```python
import torch

def _softmax(x, axis=-1):
    return torch.softmax(x, dim=axis)
def _gelu(x):
    return torch.nn.functional.gelu(x, approximate="tanh")
def _silu(x):
    return torch.nn.functional.silu(x)
def _sigmoid(x):
    return torch.sigmoid(x)
def _layernorm(x, axis=-1, eps=1e-5):
    m = x.mean(dim=axis, keepdim=True)
    v = x.var(dim=axis, keepdim=True, unbiased=False)
    return (x - m) / torch.sqrt(v + eps)
def _scatter_add(tgt, idx, src, axis=0):
    return tgt.clone().index_add_(axis, idx, src)
def _segment_sum(src, seg, n):
    out = torch.zeros((n,) + src.shape[1:], dtype=src.dtype)
    return out.index_add_(0, seg, src)
def _pad(x, pw):
    flat = tuple(v for pair in reversed(pw) for v in pair)
    return torch.nn.functional.pad(x, flat)

kernel_name = 'gated_mix__grouped_kv_mqa__sliding_block__prompt'

def setup_inputs():

    _w = (lambda a: (lambda t: t.to(torch.bfloat16) if t.is_floating_point() else t)(torch.as_tensor(a)))
    def _A_setup():
        B, S, D, H = 1, 2048, 1024, 32
        Dh = D // H
        return {
            "x": _w((lambda *s: torch.randn(*s, dtype=torch.bfloat16) * 0.05)(B, S, D)),
            "wq": _w((lambda *s: torch.randn(*s, dtype=torch.bfloat16) * 0.8)(D, H * Dh)),
            "wk": _w((lambda *s: torch.randn(*s, dtype=torch.bfloat16) * 0.8)(D, Dh)),
            "wv": _w((lambda *s: torch.randn(*s, dtype=torch.bfloat16) * 0.2)(D, Dh)),
            "wo": _w((lambda *s: torch.randn(*s, dtype=torch.bfloat16) * 0.2)(H * Dh, D)),
        }
    _A_in = _A_setup()

    def _B_setup():
        B, S, D = 1, 2048, 1024
        return {
            "x": _w((lambda *s: torch.randn(*s, dtype=torch.bfloat16) * 0.05)(B, S, D)),
            "wqkv": _w((lambda *s: torch.randn(*s, dtype=torch.bfloat16) * 0.8)(D, 3 * D)),
            "wo": _w((lambda *s: torch.randn(*s, dtype=torch.bfloat16) * 0.05)(D, D)),
        }
    _B_in = _B_setup()

    return {
        "A_x": _A_in["x"],
        "A_wq": _A_in["wq"],
        "A_wk": _A_in["wk"],
        "A_wv": _A_in["wv"],
        "A_wo": _A_in["wo"],
        "B_x": _B_in["x"],
        "B_wqkv": _B_in["wqkv"],
        "B_wo": _B_in["wo"],
        "gate_w": _w((lambda *s: torch.randn(*s, dtype=torch.bfloat16) * 0.05)(1024) * 16.0),
    }

def reference(A_x, A_wq, A_wk, A_wv, A_wo, B_x, B_wqkv, B_wo, gate_w):
    def _A_ref(x, wq, wk, wv, wo):
        B, S, D = x.shape
        H = 32
        Dh = D // H
        q = (lambda x, *d: x.permute(*d))((x @ wq).reshape(B, S, H, Dh), 0, 2, 1, 3)
        k = x @ wk
        v = x @ wv
        scores = torch.einsum("bhqd,bkd->bhqk", q, k) * (Dh ** -0.5)
        p = _softmax(scores, axis=-1)
        o = torch.einsum("bhqk,bkd->bhqd", p, v)
        return (lambda x, *d: x.permute(*d))(o, 0, 2, 1, 3).reshape(B, S, H * Dh) @ wo

    def _B_ref(x, wqkv, wo):
        B, S, D = x.shape
        H = 32; Dh = D // H; W = 256
        qkv = (lambda x, *d: x.permute(*d))((x @ wqkv).reshape(B, S, 3, H, Dh), 2, 0, 3, 1, 4)
        q, k, v = qkv[0], qkv[1], qkv[2]
        scores = torch.einsum("bhqd,bhkd->bhqk", q, k) * (Dh ** -0.5)
        idx = torch.arange(S)
        mask = (idx[:, None] - idx[None, :] >= 0) & (idx[:, None] - idx[None, :] < W)
        scores = torch.where(mask[None, None], scores, -1e9)
        p = _softmax(scores, axis=-1)
        o = torch.einsum("bhqk,bhkd->bhqd", p, v)
        return (lambda x, *d: x.permute(*d))(o, 0, 2, 1, 3).reshape(B, S, D) @ wo

    x = A_x
    g = _sigmoid((x * gate_w).sum(-1, keepdims=True))
    a = _A_ref(x, A_wq, A_wk, A_wv, A_wo)
    b = _B_ref(x, B_wqkv, B_wo)
    return g * a + (1 - g) * b
```

```python
import struct, math
NAME = "gated_mix__grouped_kv_mqa__sliding_block__prompt"

def f2u(x): return struct.unpack("<I", struct.pack("<f", x))[0]
LOG2E = 1.4426950408889634
CSCALE = LOG2E / math.sqrt(32.0)

MB = 1 << 20
QA_OFF = 0
QB_OFF = 4 * MB
KVB_OFF = 8 * MB
KVA_OFF = 16 * MB
G_OFF = 16 * MB + 256 * 1024
O_OFF = 17 * MB
WS_USED = 25 * MB

class Asm:
    def __init__(self):
        self.l = []
    def e(self, s, c=None):
        for x in s.split("\n"):
            x = x.strip()
            if x:
                self.l.append("    " + x + (f"    ; {c}" if c else ""))
                c = None
    def lab(self, s): self.l.append(s + ":")
    def c(self, s): self.l.append("    ; " + s)
    def raw(self, s): self.l.append(s)
    def text(self): return "\n".join(self.l) + "\n"

def v(a, n=1): return f"v{a}" if n == 1 else f"v[{a}:{a+n-1}]"
def s(a, n=1): return f"s{a}" if n == 1 else f"s[{a}:{a+n-1}]"

def srd(A, d, lo, hi, size):
    A.e(f"s_mov_b32 s{d}, {lo}")
    A.e(f"s_mov_b32 s{d+1}, {hi}")
    A.e(f"s_mov_b32 s{d+2}, {size}")
    A.e(f"s_mov_b32 s{d+3}, 0x20000")

def kernel_head(A, name):
    A.raw(f".globl {name}")
    A.raw(".p2align 8")
    A.raw(f".type {name},@function")
    A.lab(name)

def kernel_desc(name, nv, ns=96, accum=None):
    accum = accum or (nv + 3) // 4 * 4
    return f""".p2align 6
.amdhsa_kernel {name}
  .amdhsa_next_free_vgpr {nv}
  .amdhsa_next_free_sgpr {ns}
  .amdhsa_accum_offset {accum}
  .amdhsa_group_segment_fixed_size 0
  .amdhsa_kernarg_size 96
  .amdhsa_user_sgpr_count 2
  .amdhsa_user_sgpr_kernarg_segment_ptr 1
  .amdhsa_system_sgpr_workgroup_id_x 1
.end_amdhsa_kernel
"""

def mfma32(d, a, b, c):
    cs = c if isinstance(c, str) else v(c, 16)
    return f"v_mfma_f32_32x32x16_bf16 {v(d,16)}, {v(a,4)}, {v(b,4)}, {cs}"

import os
DIAG = bool(os.environ.get("DIAG"))
ST_OFF = 28 * MB
NSTAMP = 8
def stamp(A, i, real=False):
    if not DIAG: return
    A.e(f"s_memtime s[{72+2*i}:{73+2*i}]")
    if real: A.e(f"s_memrealtime s[{88+2*(i>0)}:{89+2*(i>0)}]")
    A.e("s_waitcnt lgkmcnt(0)")
def stamp_init(A):
    if not DIAG: return
    A.e("s_mov_b32 s70, s2\ns_mov_b64 s[68:69], s[0:1]\nv_lshrrev_b32 v1, 6, v0\ns_nop 1\nv_readfirstlane_b32 s71, v1")
    for i in range(NSTAMP): A.e(f"s_mov_b64 s[{72+2*i}:{73+2*i}], 0")
    stamp(A, 0, True)
def stamp_flush(A, kidx):
    if not DIAG: return
    A.e("s_waitcnt vmcnt(0)")
    stamp(A, NSTAMP-1, True)
    A.e(f"""s_load_dwordx2 s[64:65], s[68:69], 88
        s_waitcnt lgkmcnt(0)
        s_mov_b32 s66, {32*MB}
        s_mov_b32 s67, 0x20000
        s_lshl_b32 s70, s70, 3
        s_add_u32 s70, s70, s71
        s_lshl_b32 s70, s70, 6
        s_add_u32 s70, s70, {ST_OFF + kidx*(1<<18)}
        v_mov_b32 v0, 0""")
    for i in range(NSTAMP):
        A.e(f"v_mov_b32 v1, s{72+2*i}\nbuffer_store_dword v1, v0, s[64:67], s70 offen offset:{4*i}")
    A.e(f"v_mov_b32 v1, s88\nbuffer_store_dword v1, v0, s[64:67], s70 offen offset:{4*NSTAMP}")
    A.e(f"v_mov_b32 v1, s90\nbuffer_store_dword v1, v0, s[64:67], s70 offen offset:{4*NSTAMP+4}")
    A.e(f"s_getreg_b32 s88, hwreg(HW_REG_XCC_ID)\nv_mov_b32 v1, s88\nbuffer_store_dword v1, v0, s[64:67], s70 offen offset:{4*NSTAMP+8}")

TRV = 6
TR_OFF = 29 * MB
def trace(A, lane):
    if not DIAG or os.environ.get("DIAG") == "2": return
    if os.environ.get("TRREAL"):
        A.e(f"""s_memrealtime s[66:67]
            s_waitcnt lgkmcnt(0)
            s_sub_u32 s66, s66, s88""")
    else:
        A.e(f"""s_memtime s[66:67]
            s_waitcnt lgkmcnt(0)
            s_sub_u32 s66, s66, s72""")
    if isinstance(lane, int): A.e(f"v_writelane_b32 v{TRV}, s66, {lane}")
    else: A.e(f"s_mov_b32 s67, m0\ns_mov_b32 m0, {lane}\nv_writelane_b32 v{TRV}, s66, m0\ns_mov_b32 m0, s67")
def trace_flush(A):
    if not DIAG: return
    A.e(f"""s_sub_u32 s70, s70, {ST_OFF}
        s_lshl_b32 s70, s70, 2
        s_add_u32 s70, s70, {TR_OFF}
        v_mbcnt_lo_u32_b32 v0, -1, 0
        v_mbcnt_hi_u32_b32 v0, -1, v0
        v_lshlrev_b32 v0, 2, v0
        buffer_store_dword v{TRV}, v0, s[64:67], s70 offen""")
```

```python
from common import *
import sys
E = lambda k, d: int(os.environ.get(k, d))
STAG = 4
PART_OFF = 0
TPA = E('TPA', 7)
WARM = E('WARM', 1)
E1N = E('E1N', 11)
TPOLL = E('TPOLL', 14)
LPRIO = E('LPRIO', 3)
LPS = E('LPS', 2)
ROT = E('ROT', 1)
SLP = E('SLP', 12)
PFC = E('PFC', 0)
TOUCH = E('TOUCH', 0)
NB0 = 28

XSZ = 16384
ST = 49152
MISC = 3 * ST
LDS = 163840
NEG = f2u(-1e30)
SPIN = 200000

VL16, AC, AN, VG, IDX, VD, T0 = 1, 2, 3, 4, 5, 6, 7
ONES, L = 8, 12
QB, QA = 16, 24
KF, VF = 32, 40
PB = [48, 56]
SB = [64, 80]
O = 96
ML = 112
OFR = 128
O2, L2, MU, CM, TB, AB, TZ = 128, 144, 148, 164, 180, 188, 189
WS, DBG, SX_, SW_, SS_ = 28, 32, 36, 40, 44
RB, HP, XCD, IDXS, RT, HEAD, RB2, CBK = 48, 49, 50, 51, 52, 53, 54, 55
HEADB = 65
GROT = E('GROT', 1)

def sr(b): return f"s[{b}:{b+3}]"
def mfma16(d, a, b, c):
    cs = c if isinstance(c, str) else v(c, 4)
    return f"v_mfma_f32_16x16x32_bf16 {v(d,4)}, {v(a,4)}, {v(b,4)}, {cs}"
def smf(l, p): return f"v_smfmac_f32_16x16x64_bf16 {v(l,4)}, {v(ONES,4)}, {v(p,8)}, v{IDX}"
def ex(S, i): return f"v_exp_f32 v{S+i}, v{S+i}"
def cv(Pp, S, i): return f"v_cvt_pk_bf16_f32 v{Pp+i}, v{S+2*i}, v{S+2*i+1}"
def keyl(r): return 16 * (r >> 3) + 4 * ((r >> 2) & 1) + (r & 3)

TRN = "setup,g0,pla,pl0,gend,attn,aend,afin,y1a,y1,y3a,y3,y4,oend".split(",")
TRL = {n: 44 + i for i, n in enumerate(TRN)}
def st(A, nm):
    if DIAG: trace(A, TRL[nm])

class VM:
    def __init__(self): self.q = []
    def add(self, tag, n=1): self.q += [tag] * n
    def after(self, *tags):
        last = max(i for i, t in enumerate(self.q) if t in tags)
        return len(self.q) - 1 - last

def pack_list(dst, blk, scale):
    o = []
    for a in range(2):
        for b in range(2):
            d = blk[a][b]
            if scale:
                for i in range(4): o.append(f"v_mul_f32 v{d+i}, s63, v{d+i}")
            for i in range(2): o.append(f"v_cvt_pk_bf16_f32 v{dst+a*4+b*2+i}, v{d+2*i}, v{d+2*i+1}")
    for a in range(2):
        for i in range(2): o.append(f"v_permlane16_swap_b32 v{dst+a*4+i}, v{dst+a*4+2+i}")
    return o

def gen(A, name):
    P = "f_"
    kernel_head(A, name)
    A.e(f"""s_cmp_ge_u32 s2, 256
        s_cbranch_scc1 {P}end2""")
    stamp_init(A)
    A.e(f"""s_load_dwordx8 s[4:11], s[0:1], 0
        s_load_dwordx8 s[16:23], s[0:1], 48
        s_load_dwordx4 s[24:27], s[0:1], 80
        s_load_dwordx2 s[12:13], s[0:1], 32
        v_lshrrev_b32 v1, 6, v0
        v_and_b32 v0, 63, v0
        v_readfirstlane_b32 s3, v1
        s_and_b32 s{XCD}, s2, 7
        s_lshr_b32 s{IDXS}, s2, 3
        s_and_b32 s{RB}, s{XCD}, 1
        s_lshl_b32 s{RB}, s{RB}, 3
        s_and_b32 s56, s{IDXS}, 7
        s_add_u32 s{RB}, s{RB}, s56
        s_lshr_b32 s{HP}, s{XCD}, 1
        s_lshl_b32 s{HP}, s{HP}, 2
        s_lshr_b32 s56, s{IDXS}, 3
        s_add_u32 s{HP}, s{HP}, s56
        v_lshlrev_b32 v{VL16}, 4, v0
        s_cmp_lt_u32 s3, 4
        s_cbranch_scc1 {P}compute""")

    def common_setup():
        A.e(f"""s_and_b32 s{RB2}, s{XCD}, 3
            s_lshl_b32 s{RB2}, s{RB2}, 2
            s_and_b32 s56, s{IDXS}, 3
            s_add_u32 s{RB2}, s{RB2}, s56
            s_lshr_b32 s{CBK}, s{XCD}, 2
            s_lshl_b32 s{CBK}, s{CBK}, 3
            s_lshr_b32 s56, s{IDXS}, 2
            s_add_u32 s{CBK}, s{CBK}, s56
            s_and_b32 s56, s3, 1
            s_lshl_b32 s56, s56, 1
            s_lshr_b32 s57, s3, 2
            s_add_u32 s56, s56, s57
            s_lshl_b32 s{RT}, s{RB}, 2
            s_add_u32 s{RT}, s{RT}, s56
            s_bfe_u32 s56, s3, 0x10001
            s_lshl_b32 s{HEAD}, s{HP}, 1
            s_add_u32 s{HEAD}, s{HEAD}, s56
            s_add_u32 s56, s{HEAD}, {2*GROT}
            s_and_b32 s56, s56, 7
            s_and_b32 s57, s{HEAD}, 24
            s_or_b32 s{HEADB}, s56, s57""")
        srd(A, WS, "s26", "s27", WS_USED)
        srd(A, DBG, "s24", "s25", 256)
        A.e(f"""v_and_b32 v{T0}, 31, v0
            v_lshrrev_b32 v{VG}, 5, v0
            v_lshlrev_b32 v{VG}, 3, v{VG}
            v_sub_u32 v{VD}, v{T0}, v{VG}
            v_mov_b32 v{VG}, {NEG}""")
        for r in range(16):
            A.e(f"""v_cmp_le_i32 vcc, {keyl(r)}, v{VD}
                s_nop 1
                v_cndmask_b32 v{ML+r}, v{VG}, 0, vcc""")
        A.e(f"""v_and_b32 v{T0}, 4, v0
            v_cmp_eq_u32 vcc, 0, v{T0}
            v_mov_b32 v{VG}, 0x3f803f80
            v_and_b32 v{T0}, 1, v0
            v_cndmask_b32 v{ONES}, 0, v{VG}, vcc
            v_cndmask_b32 v{ONES+1}, 0, v{VG}, vcc
            v_cndmask_b32 v{ONES+2}, v{VG}, 0, vcc
            v_cndmask_b32 v{ONES+3}, v{VG}, 0, vcc
            v_cmp_eq_u32 vcc, 0, v{T0}
            v_mov_b32 v{T0}, 0x4444
            v_mov_b32 v{VG}, 0xeeee
            v_cndmask_b32 v{IDX}, v{VG}, v{T0}, vcc
            v_add_u32 v{AC}, 0x10000, v{VL16}
            v_add_u32 v{AN}, 0x20000, v{VL16}""")
        for i in range(4): A.e(f"v_mov_b32 v{L+i}, 0")
        if DIAG: A.e(f"v_mov_b32 v{VD}, 0")
    def pack(dst, blk, scale):
        for x in pack_list(dst, blk, scale): A.e(x)
    def zero(base, n):
        for i in range(n): A.e(f"v_mov_b32 v{base+i}, 0")
    def signal(rbreg, phase, t1, inc="1"):
        A.e(f"""s_mov_b64 exec, 1
            v_mov_b32 v{T0}, {inc}
            v_mov_b32 v{t1}, 0
            s_lshl_b32 s56, s{rbreg}, 4
            buffer_atomic_add v{T0}, v{t1}, {sr(DBG)}, s56 offen offset:{4*phase} sc1
            s_mov_b64 exec, -1""")
    def poll(tag, voff, soff, ioff, target, first_issued, field=None):
        A.e(f"s_mov_b32 s57, {SPIN}")
        if first_issued: A.e(f"s_branch {P}pc{tag}")
        A.lab(f"{P}pl{tag}")
        A.e(f"""buffer_load_dword v{T0}, v{voff}, {sr(DBG)}, {soff} offen offset:{ioff} sc1
            s_waitcnt vmcnt(0)""")
        A.lab(f"{P}pc{tag}")
        if field is not None: A.e(f"v_bfe_u32 v{T0}, v{T0}, {field}, 8")
        A.e(f"""v_cmp_le_u32 vcc, {target}, v{T0}
            s_cmp_eq_u64 vcc, -1
            s_cbranch_scc1 {P}pd{tag}
            s_sleep {SLP}
            s_sub_u32 s57, s57, 1
            s_cmp_lg_u32 s57, 0
            s_cbranch_scc1 {P}pl{tag}""")
        A.lab(f"{P}pd{tag}")
    gslot = lambda t: ((15 - t) % 3) * ST

    VX, VW, VS, AXS, AWS = 128, 130, 132, 136, 133
    SXF, SWF, SA = 144, 160, 176
    LW, KIND, PHI = 14, 15, 92
    XB, WB, WSTEP, KT, L4K, L8K, PSRC = 93, 94, 96, 98, 99, 100, 101
    A.e(f"""s_setprio {LPRIO}
        s_sub_u32 s{LW}, s3, 4
        v_lshrrev_b32 v9, 3, v0
        v_and_b32 v16, 7, v0
        v_lshrrev_b32 v17, 4, v0
        v_xor_b32 v17, v17, v16
        v_lshlrev_b32 v17, 4, v17
        v_lshl_add_u32 v{VX}, v9, 11, v17
        v_xor_b32 v{VX+1}, 64, v{VX}
        s_cmp_eq_u32 s{LW}, 0
        s_mov_b32 s57, 6144
        s_cselect_b32 s57, 2048, s57
        v_bfe_u32 v17, v0, 4, 1
        v_lshlrev_b32 v17, 1, v17
        v_xor_b32 v17, v17, v16
        v_lshlrev_b32 v17, 4, v17
        v_mul_u32_u24 v18, s57, v9
        v_add_u32 v{VW}, v18, v17
        v_xor_b32 v{VW+1}, 64, v{VW}
        s_lshl_b32 s{WSTEP}, s57, 3
        s_lshl_b32 s{XB}, s{RB}, 18
        s_lshl_b32 s56, s{LW}, 16
        s_add_u32 s{XB}, s{XB}, s56
        s_max_u32 s56, s{LW}, 1
        s_sub_u32 s56, s56, 1
        s_lshl_b32 s56, s56, 11
        s_mul_i32 s57, s{LW}, {GROT}
        s_add_u32 s57, s57, s{HP}
        s_and_b32 s57, s57, 3
        s_and_b32 s{WB}, s{HP}, 12
        s_or_b32 s57, s57, s{WB}
        s_lshl_b32 s57, s57, 7
        s_add_u32 s{WB}, s56, s57
        s_add_u32 s{PHI}, s{RB}, s{HP}
        s_and_b32 s{PHI}, s{PHI}, 3
        s_lshl_b32 s{KT}, s{PHI}, 2
        s_lshl_b32 s{L4K}, s{LW}, 12
        s_lshl_b32 s{L8K}, s{LW}, 13
        s_cmp_eq_u32 s{LW}, 0
        s_waitcnt lgkmcnt(0)
        s_cselect_b32 s{SW_}, s6, s16
        s_cselect_b32 s{SW_+1}, s7, s17
        s_mov_b32 s{SW_+2}, {6*MB}
        s_cselect_b32 s{SW_+2}, {2*MB}, s{SW_+2}
        s_mov_b32 s{SW_+3}, 0x20000""")
    srd(A, SX_, "s4", "s5", 4 * MB)
    def issue(t):
        A.e(f"""s_add_u32 m0, s{L4K}, {gslot(t)}
            s_lshl_b32 s56, s{KT}, 7
            s_add_u32 s56, s56, s{XB}""")
        for i in range(4):
            A.e(f"buffer_load_dwordx4 v{VX+(i&1)}, {sr(SX_)}, s56 offen lds")
            if i < 3: A.e("s_add_u32 m0, m0, 1024\ns_add_u32 s56, s56, 16384")
        A.e(f"""s_add_u32 m0, s{L8K}, {gslot(t) + XSZ}
            s_mul_i32 s56, s{KT}, s{WSTEP}
            s_lshl_b32 s56, s56, 3
            s_add_u32 s56, s56, s{WB}""")
        for i in range(8):
            A.e(f"buffer_load_dwordx4 v{VW+(i&1)}, {sr(SW_)}, s56 offen lds")
            if i < 7: A.e(f"s_add_u32 m0, m0, 1024\ns_add_u32 s56, s56, s{WSTEP}")
        A.e(f"""s_add_u32 s{KT}, s{KT}, 1
            s_and_b32 s{KT}, s{KT}, 15""")
    issue(0)
    A.e(f"""s_lshr_b32 s{KIND}, s{HP}, 2
        s_cmp_eq_u32 s{KIND}, 0
        s_cselect_b32 s{SS_}, s8, s10
        s_cselect_b32 s{SS_+1}, s9, s11
        s_cmp_ge_u32 s{KIND}, 2
        s_cselect_b32 s{SS_}, s20, s{SS_}
        s_cselect_b32 s{SS_+1}, s21, s{SS_+1}
        s_mov_b32 s{SS_+2}, 65536
        s_cselect_b32 s{SS_+2}, 2048, s{SS_+2}
        s_mov_b32 s{SS_+3}, 0x20000
        s_mov_b32 s57, 1024
        s_cselect_b32 s57, 32, s57
        s_cselect_b64 vcc, -1, 0
        v_lshrrev_b32 v17, 5, v0
        v_lshlrev_b32 v17, 4, v17
        v_cndmask_b32 v{VS}, v{VL16}, v17, vcc
        s_lshl_b32 s56, s{PHI}, 2
        s_add_u32 s56, s56, s{LW}
        s_lshl_b32 s56, s56, 2
        s_add_u32 m0, s{L4K}, {MISC}
        s_mul_i32 s56, s56, s57""")
    for i in range(4):
        A.e(f"buffer_load_dwordx4 v{VS}, {sr(SS_)}, s56 offen lds")
        if i < 3: A.e("s_add_u32 m0, m0, 1024\ns_add_u32 s56, s56, s57")
    issue(1)
    common_setup()
    A.e(f"""v_and_b32 v16, 31, v0
        v_lshrrev_b32 v17, 5, v0
        v_bfe_u32 v18, v0, 1, 3
        v_xor_b32 v19, v17, v18
        v_lshlrev_b32 v19, 4, v19
        v_lshl_add_u32 v19, v16, 7, v19
        v_add_u32 v{AXS}, s{L4K}, v19
        v_xor_b32 v{AXS+1}, 32, v{AXS}
        v_xor_b32 v{AXS+2}, 64, v{AXS}
        v_xor_b32 v{AXS+3}, 0x60, v{AXS}
        v_bfe_u32 v18, v0, 2, 2
        v_lshl_add_u32 v19, v17, 3, v18
        v_lshlrev_b32 v19, 6, v19
        v_bfe_u32 v18, v0, 4, 1
        v_lshl_add_u32 v19, v18, 5, v19
        v_and_b32 v18, 3, v0
        v_bfe_u32 v20, v0, 1, 1
        v_and_b32 v21, 1, v0
        v_lshl_or_b32 v20, v21, 1, v20
        s_cmp_eq_u32 s{KIND}, 0
        s_cselect_b64 vcc, -1, 0
        v_cndmask_b32 v18, v18, v20, vcc
        v_lshl_add_u32 v19, v18, 3, v19
        s_cmp_ge_u32 s{KIND}, 2
        s_cselect_b64 vcc, -1, 0
        v_cndmask_b32 v19, v19, v{VL16}, vcc
        v_add_u32 v{AWS}, {MISC}, v19
        s_lshl_b32 s{PSRC}, s{RB}, 2
        s_add_u32 s{PSRC}, s{PSRC}, s{KIND}
        s_lshl_b32 s{PSRC}, s{PSRC}, 16
        s_add_u32 s{PSRC}, s{PSRC}, {PART_OFF}""")
    zero(SA, 16); zero(O, 16)
    st(A, "setup")
    A.e("s_waitcnt vmcnt(12)")
    st(A, "g0")
    for t in range(16):
        A.e("s_barrier")
        trace(A, t)
        if t < 4:
            A.e(f"""s_cmp_eq_u32 s{KIND}, 3
                s_cbranch_scc1 {P}lh{t}""")
            for k in range(4): A.e(f"ds_read_b128 {v(SXF+4*k,4)}, v{AXS+k}")
            A.e(f"""s_cmp_eq_u32 s{KIND}, 2
                s_cbranch_scc1 {P}lg{t}""")
            for k in range(4):
                A.e(f"""ds_read_b64_tr_b16 {v(SWF+4*k,2)}, v{AWS} offset:{4096*t+1024*k}
                    ds_read_b64_tr_b16 {v(SWF+4*k+2,2)}, v{AWS} offset:{4096*t+1024*k+256}""")
            A.e(f"s_branch {P}lh{t}")
            A.lab(f"{P}lg{t}")
            for k in range(4): A.e(f"ds_read_b128 {v(SWF+4*k,4)}, v{AWS} offset:{4096*t+1024*k}")
            A.lab(f"{P}lh{t}")
        if t == 4:
            A.e(f"""s_cmp_eq_u32 s{KIND}, 3
                s_cbranch_scc1 {P}lp1
                s_lshl_b32 s56, s{LW}, 14
                s_lshl_b32 s57, s{PHI}, 12
                s_add_u32 s56, s56, s57
                s_add_u32 s56, s56, s{PSRC}""")
            for q in range(4): A.e(f"buffer_store_dwordx4 {v(SA+4*q,4)}, v{VL16}, {sr(WS)}, s56 offen offset:{1024*q} sc1")
            A.lab(f"{P}lp1")
        if t == TPA:
            A.e(f"""v_mov_b32 v16, 0
                s_lshl_b32 s62, s{RB}, 4
                s_cmp_lg_u32 s{LW}, 0
                s_cbranch_scc1 {P}lta
                buffer_load_dword v{T0}, v16, {sr(DBG)}, s62 offen sc1""")
            A.lab(f"{P}lta")
        if t == TPA + 1:
            A.e(f"""s_cmp_eq_u32 s{KIND}, 3
                s_cbranch_scc1 {P}lp2
                s_lshl_b32 s56, s{PHI}, 14
                s_lshl_b32 s57, s{LW}, 10
                s_add_u32 s56, s56, s57
                s_add_u32 s56, s56, s{PSRC}""")
            for q in range(4):
                A.e(f"buffer_load_dwordx4 {v(SA+4*q,4)}, v{VL16}, {sr(WS)}, s56 offen sc1")
                if q < 3: A.e("s_add_u32 s56, s56, 4096")
            A.lab(f"{P}lp2")
        if t == TPA + 2:
            A.e(f"""s_lshl_b32 s56, s{RB}, 2
                s_add_u32 s56, s56, s{PHI}""")
            for i in range(4):
                A.e(f"""v_add_f32 v{SA+i}, v{SA+i}, v{SA+4+i}
                    v_add_f32 v{SA+8+i}, v{SA+8+i}, v{SA+12+i}
                    v_add_f32 v{SA+i}, v{SA+i}, v{SA+8+i}""")
            A.e(f"""s_cmp_ge_u32 s{KIND}, 2
                s_cbranch_scc1 {P}lgate
                s_cmp_eq_u32 s{KIND}, 0
                s_cselect_b32 s57, {f2u(CSCALE)}, 1.0""")
            for i in range(4): A.e(f"v_mul_f32 v{SA+i}, s57, v{SA+i}")
            A.e(f"""v_cvt_pk_bf16_f32 v{SXF}, v{SA}, v{SA+1}
                v_cvt_pk_bf16_f32 v{SXF+1}, v{SA+2}, v{SA+3}
                s_lshl_b32 s56, s56, 12
                s_lshl_b32 s57, s{KIND}, 11
                s_add_u32 s56, s56, s57
                s_lshr_b32 s57, s{LW}, 1
                s_lshl_b32 s57, s57, 10
                s_add_u32 s56, s56, s57
                s_and_b32 s57, s{LW}, 1
                s_lshl_b32 s57, s57, 3
                s_add_u32 s56, s56, s57
                s_add_u32 s56, s56, {KVA_OFF}
                buffer_store_dwordx2 {v(SXF,2)}, v{VL16}, {sr(WS)}, s56 offen sc1
                s_branch {P}lsd""")
            A.lab(f"{P}lgate")
            A.e(f"""s_cmp_lg_u32 s{KIND}, 2
                s_cbranch_scc1 {P}lsd
                s_cmp_lg_u32 s{LW}, 0
                s_cbranch_scc1 {P}lsd
                v_mul_f32 v{SA}, {f2u(-LOG2E)}, v{SA}
                v_exp_f32 v{SA}, v{SA}
                s_lshl_b32 s56, s56, 7
                v_add_f32 v{SA}, 1.0, v{SA}
                v_rcp_f32 v{SA}, v{SA}
                s_add_u32 s56, s56, {G_OFF}
                v_and_b32 v16, 31, v0
                v_lshlrev_b32 v16, 2, v16
                buffer_store_dword v{SA}, v16, {sr(WS)}, s56 offen sc1""")
            A.lab(f"{P}lsd")
        if t == TPOLL:
            A.e(f"""v_and_b32 v16, 15, v0
                v_lshlrev_b32 v16, 4, v16
                s_cmp_lg_u32 s{LW}, 0
                s_cbranch_scc1 {P}lt0
                buffer_load_dword v{T0}, v16, {sr(DBG)}, 0 offen sc1""")
            A.lab(f"{P}lt0")
        if t + 2 < 16: issue(t + 2)
        if t < 4:
            dl = gslot(t + 1) - gslot(t)
            A.e(f"""s_cmp_eq_u32 s{KIND}, 3
                s_cbranch_scc1 {P}lw{t}""")
            if t < 3:
                for k in range(4): A.e(f"v_add_u32 v{AXS+k}, {dl & 0xffffffff}, v{AXS+k}")
            A.e(f"""s_waitcnt lgkmcnt(0)
                s_cmp_eq_u32 s{KIND}, 1
                s_cbranch_scc1 {P}lv{t}""")
            for k in range(4): A.e(mfma32(SA, SWF + 4*k, SXF + 4*k, SA))
            A.e(f"s_branch {P}lw{t}")
            A.lab(f"{P}lv{t}")
            for k in range(4): A.e(mfma32(SA, SXF + 4*k, SWF + 4*k, SA))
            A.lab(f"{P}lw{t}")
            if t == 3: A.e("s_nop 7")
        ncs = 0
        if t > TPOLL and (t == TPOLL + 1 or t == 15):
            cs = []
            if t == TPOLL + 1: cs.append((0, 3))
            if t == 15: cs.append((1, 2))
            for c, slot in cs:
                for hf in range(2):
                    A.e(f"""s_add_u32 m0, s{L8K}, {slot*32768 + hf*4096}
                        s_add_u32 s56, s{L8K}, {KVA_OFF + c*32768 + hf*4096}""")
                    for i in range(4): A.e(f"buffer_load_dwordx4 v{VL16}, {sr(WS)}, s56 offen offset:{1024*i} sc1 lds")
                ncs += 8
        if t < 15: A.e(f"s_waitcnt vmcnt({12 if t + 2 < 16 else ncs})")
        if t == TPA:
            A.e(f"""s_cmp_lg_u32 s{LW}, 0
                s_cbranch_scc1 {P}pda
                s_cmp_eq_u32 s{KIND}, 3
                s_cbranch_scc1 {P}pda
                s_lshl_b32 s63, s{KIND}, 3
                s_add_u32 s63, s63, 8""")
            poll("a", 16, "s62", 0, 4, True, field="s63")
            st(A, "pla")
        if t == TPOLL:
            A.e(f"""s_cmp_lg_u32 s{LW}, 0
                s_cbranch_scc1 {P}pd0""")
            poll("0", 16, "0", 0, 8, True, field=0)
            st(A, "pl0")
    A.e(f"""s_barrier
        s_add_u32 s56, s{L4K}, {MISC}
        v_add_u32 v16, s56, v{VL16}
        s_setprio 0
        s_waitcnt vmcnt(0)
        s_barrier""")
    st(A, "gend")
    A.e(f"""ds_read_b128 {v(QA,4)}, v16
        ds_read_b128 {v(QA+4,4)}, v16 offset:1024
        ds_read_b128 {v(QB+4,4)}, v16 offset:3072
        ds_read_b128 {v(QB,4)}, v16 offset:2048""")

    A.lab(f"{P}attn")
    st(A, "attn")
    W4K, W1K, I0, WKT, WSRC, OSRC, WOS = 14, 15, 58, 59, 60, 92, 94
    VOO, VWO, VW2 = ML, ML + 4, 191
    def la(off): return ([VL16, AC, AN][off >> 16], off & 0xffff)
    def rdK(addr, off): return [f"ds_read_b128 {v(KF+4*i,4)}, v{addr} offset:{off+1024*i}" for i in range(2)]
    def rdV(addr, off): return [f"ds_read_b128 {v(VF+4*i,4)}, v{addr} offset:{off+2048+1024*i}" for i in range(2)]
    cslot = lambda c: {0: 3, 1: 2, 2: 4}.get(c, c % 5)
    seq = [("A", j) for j in range(NB0)] + [("B", i) for i in range(9)] + [("A", j) for j in range(NB0, 64)]
    seq += [("A", 63), ("A", 63)]
    def taddr(n):
        k, j = seq[n]
        return la(cslot(j >> 3) * 32768 + (j & 7) * 4096) if k == "A" else (AB, j * 4096)
    def tq(n): return QA if seq[n][0] == "A" else QB
    def tc(n):
        k, j = seq[n]
        return "0" if k == "A" else (MU if j == 0 else ML if j == 8 else CM)
    def to(n): return (O, L) if seq[n][0] == "A" else (O2, L2)
    for x in rdK(*taddr(0)): A.e(x)
    A.e(f"""s_lshl_b32 s{W4K}, s3, 12
        s_lshl_b32 s{W1K}, s3, 10""")
    zero(PB[1], 8); zero(VF + 4, 4)
    A.e("s_waitcnt lgkmcnt(0)")
    A.e(mfma32(SB[0], KF, QA, "0"))
    A.e(mfma32(SB[0], KF + 4, QA + 4, SB[0]))
    for x in rdK(*taddr(1)): A.e(x)
    A.e(rdV(*taddr(0))[0])
    A.e(f"""s_sub_i32 s{I0}, 8, s{RT}
        s_lshl_b32 s{WKT}, s{RB}, 2
        s_lshr_b32 s56, s3, 2
        s_add_u32 s{WKT}, s{WKT}, s56
        s_sub_i32 s{WKT}, s{WKT}, 8
        s_lshr_b32 s{WSRC}, s{HEADB}, 1
        s_lshl_b32 s{WSRC}, s{WSRC}, 19
        s_and_b32 s56, s3, 3
        s_lshl_b32 s56, s56, 10
        s_add_u32 s{WSRC}, s{WSRC}, s56
        s_lshl_b32 s{OSRC}, s{RB2}, 2
        s_and_b32 s56, s3, 3
        s_add_u32 s{OSRC}, s{OSRC}, s56
        s_lshl_b32 s{OSRC}, s{OSRC}, 17
        s_lshr_b32 s56, s3, 2
        s_lshl_b32 s56, s56, 11
        s_add_u32 s{OSRC}, s{OSRC}, s56
        s_add_u32 s{OSRC}, s{OSRC}, {O_OFF}""")
    srd(A, SW_, "s18", "s19", 2 * MB)
    srd(A, SX_, "s12", "s13", 2 * MB)
    UO, OQ = 44, 4
    rot = [f"s_lshl_b32 s61, s{CBK}, 2" if ROT else "s_mov_b32 s61, 0", f"s_lshl_b32 s{WOS}, s{CBK}, 7"]
    for q in range(4):
        rot += [f"s_add_u32 s56, s61, {8*q}", "s_add_u32 s56, s56, s3", "s_and_b32 s56, s56, 31", "s_lshl_b32 s56, s56, 16", f"s_add_u32 s{UO+q}, s56, s{WOS}"]
    for h in range(8):
        rot += [f"s_add_u32 s56, s61, {4*h}", "s_and_b32 s56, s56, 31", "s_lshl_b32 s56, s56, 11", f"s_add_u32 s{OQ+h}, s56, s{OSRC}"]
    rot += [f"s_and_b32 s56, s{IDXS}, 3", "s_lshl_b32 s56, s56, 3", "s_add_u32 s56, s56, s3", "s_lshl_b32 s56, s56, 16", f"s_add_u32 s{WOS}, s{WOS}, s56"]
    vm = VM()
    def cpiece(c, i):
        return (f"C{c}", f"""s_add_u32 m0, s{W4K}, {cslot(c)*32768}
            s_add_u32 s57, s{W4K}, {KVA_OFF + c*32768}
            buffer_load_dwordx4 v{VL16}, {sr(WS)}, s57 offen offset:{i*1024} sc1 lds""")
    def wpiece(i):
        return ("W", f"""s_add_u32 m0, s{W1K}, {i*8192}
            s_add_i32 s57, s{WKT}, {2*(i%6)}
            s_max_i32 s57, s57, 0
            s_lshl_b32 s57, s57, 12
            s_add_u32 s57, s57, s{WSRC}
            s_add_u32 s57, s57, {KVB_OFF + (i//6)*64*4096}
            buffer_load_dwordx4 v{VL16}, {sr(WS)}, s57 offen sc1 lds""")
    def upiece(u, k):
        return (f"U{u}", f"""s_add_u32 m0, s{W4K}, {(u%5)*32768 + k*1024}
            s_add_u32 s57, s{UO+(u&3)}, {k*16384}
            buffer_load_dwordx4 v{VWO}, {sr(SW_ if u < 12 else SX_)}, s57 offen lds""")
    def warm(i):
        return ("Z", f"""s_add_u32 s57, s{WOS}, {(i&3)*16384}
            buffer_load_dwordx4 v[252:255], v{VW2}, {sr(SW_ if i < 4 else SX_)}, s57 offen""")
    def oload(n, half):
        cb, f = n >> 1, n & 1
        o = f"s_add_u32 s56, s{OQ+(cb>>1)}, {half*65536 + (cb&1)*4096}\n"
        return ("O", o + f"buffer_load_dwordx4 {v(OFR+4*n,4)}, v{VL16}, {sr(WS)}, s56 offen offset:{1024*f} sc1")
    def valu(lines): return (None, "\n".join(lines))
    bg = {n: [] for n in range(73)}
    for i in range(4): bg[i].append(cpiece(2, i))
    for i in range(4): bg[E1N + i // 2].append(cpiece(3, i))
    for i in range(12): bg[16 + i // 2].append(wpiece(i))
    bg[22].append(("G", f"""v_and_b32 v{TZ}, 31, v0
        v_lshlrev_b32 v{TZ}, 2, v{TZ}
        s_lshl_b32 s57, s{RT}, 7
        s_add_u32 s57, s57, {G_OFF}
        buffer_load_dword v{VG}, v{TZ}, {sr(WS)}, s57 offen sc1"""))
    for i in range(4): bg[26 + i // 2].append(cpiece(4, i))
    if WARM:
        for i in range(8): bg[28 + i].append(warm(i))
    for i in range(12): bg[39 + i // 3].append(cpiece(5 + i // 4, i & 3))
    for i in range(4): bg[45 + i].append(upiece(8, i))
    for i in range(4): bg[53 + i].append(upiece(9, i))
    for i in range(4): bg[57 + 2*i].append(upiece(10, i))
    for i in range(4): bg[65 + i].append(upiece(11, i))
    for i in range(32): bg[50 + (2 * i) // 3].append(oload(i, 1))
    for i in range(0, len(rot), 10): bg[8 + i // 20].append(valu(rot[i:i+10]))
    bg[4].append(valu([f"s_cmp_gt_i32 s{I0}, 0", f"s_cselect_b32 s56, {NEG}, 0", f"s_cselect_b32 s62, 0, 1.0", f"s_cmp_gt_i32 s{I0}, 1", f"s_cselect_b32 s63, {NEG}, 0", f"v_mov_b32 v{TZ}, {NEG}"]))
    for i in range(4):
        bg[4 + i].append(valu([f"v_fma_f32 v{MU+r}, -v{ML+r}, s62, v{TZ}" for r in range(4*i, 4*i+4)]))
        bg[12 + i].append(valu([f"v_mov_b32 v{CM+r}, s63" for r in range(4*i, 4*i+4)]))
        bg[12 + i].append(valu([f"v_mov_b32 v{O2+r}, 0" for r in range(5*i, 5*i+5)]))
    bg[23].append(valu([f"s_bfe_u32 s56, s3, 0x10001", "s_mul_i32 s56, s56, 49152", f"s_and_b32 s57, s{RT}, 3", "s_lshl_b32 s57, s57, 12", "s_add_u32 s56, s56, s57", f"v_add_u32 v{AB}, s56, v{VL16}"]))
    bg[24].append(valu([f"v_lshrrev_b32 v{VW2}, 3, v0", f"v_bfe_u32 v{TB}, v0, 4, 2", f"v_lshlrev_b32 v{TB}, 1, v{TB}", f"v_and_b32 v{TB+1}, 7, v0"]))
    bg[24].append(valu([f"v_xor_b32 v{TB}, v{TB}, v{TB+1}", f"v_lshlrev_b32 v{TB}, 4, v{TB}", f"v_lshl_add_u32 v{VW2}, v{VW2}, 11, v{TB}"]))
    bg[43].append(valu([f"v_mov_b32 v{VWO}, v{VW2}"]))
    ntr = [0]
    def bar(wait=None, pre=None, post=None):
        if pre:
            A.e(f"s_cmp_eq_u32 s3, 0\ns_cbranch_scc1 {P}{pre}")
            A.lab(f"{P}{pre}_r")
        if wait is not None: A.e(f"s_waitcnt vmcnt({wait})")
        A.e("s_barrier")
        if post:
            A.e(f"s_cmp_eq_u32 s3, 0\ns_cbranch_scc1 {P}{post}")
            A.lab(f"{P}{post}_r")
        trace(A, 34 + ntr[0]); ntr[0] += 1
    tops = {
        E1N: lambda: bar(0, post="sig1"),
        16: lambda: bar(vm.after("C3"), pre="poll1"),
        26: lambda: bar(vm.after("W")),
        39: lambda: bar(vm.after("C4")),
        45: lambda: bar(0, post="sig2"),
        50: lambda: bar(None, pre="poll2"),
        57: lambda: bar(None),
        65: lambda: bar(vm.after("U8")),
    }
    def step(n):
        par = n & 1
        S, Sn, Pc, Pp = SB[par], SB[1-par], PB[par], PB[1-par]
        b = list(bg[n])
        def B(k=1):
            for _ in range(k):
                if b:
                    tag, txt = b.pop(0)
                    A.e(txt)
                    if tag: vm.add(tag)
        oprev, lprev = to(max(n - 1, 0))
        A.e("s_waitcnt lgkmcnt(1)")
        if n in tops: tops[n]()
        k, j = seq[n + 1]
        if k == "B" and 2 <= j <= 7:
            A.e(f"s_cmp_eq_u32 s{I0}, {j}\ns_cbranch_scc1 {P}cm{j}")
            A.lab(f"{P}cm{j}_r")
        A.e(mfma32(Sn, KF, tq(n + 1), tc(n + 1)))
        A.e(rdK(*taddr(n + 2))[0])
        for j in (0, 1, 2, 3): A.e(ex(S, j))
        A.e(mfma32(oprev, VF + 4, Pp + 4, oprev))
        A.e(rdV(*taddr(n))[1])
        A.e(cv(Pc, S, 0)); A.e(cv(Pc, S, 1))
        B()
        for j in (4, 5, 6): A.e(ex(S, j))
        A.e(mfma32(Sn, KF + 4, tq(n + 1) + 4, Sn))
        A.e(rdK(*taddr(n + 2))[1])
        A.e(ex(S, 7)); A.e(cv(Pc, S, 2)); A.e(ex(S, 8)); A.e(cv(Pc, S, 3)); A.e(ex(S, 9))
        A.e(smf(lprev, Pp))
        A.e(ex(S, 10))
        B()
        A.e(ex(S, 11)); A.e(cv(Pc, S, 4))
        A.e("s_waitcnt lgkmcnt(3)")
        A.e(mfma32(to(n)[0], VF, Pc, to(n)[0]))
        A.e(rdV(*taddr(n + 1))[0])
        A.e(ex(S, 12)); A.e(cv(Pc, S, 5)); A.e(ex(S, 13))
        B(9)
        A.e(ex(S, 14)); A.e(ex(S, 15))
        A.e(cv(Pc, S, 6)); A.e(cv(Pc, S, 7))
    def finalize(tag, which, o, l, tmp):
        A.e(f"""v_add_f32 v{T0}, v{l}, v{l+1}
            v_mov_b32 v{tmp}, 0
            v_mov_b32 v{tmp+1}, 0
            v_mov_b32 v{tmp+2}, 0
            v_mov_b32 v{tmp+3}, 0""")
        for i in range(8):
            A.e(f"v_pk_fma_f32 {v(tmp,2)}, {v(o+2*i,2)}, {v(tmp+2,2)}, {v(tmp,2)}")
        A.e(f"""v_add_f32 v{tmp}, v{tmp}, v{tmp+1}
            v_add_f32 v{tmp}, v{tmp}, v{T0}
            v_cmp_le_f32 vcc, {f2u(2.0**-64)}, v{tmp}
            s_mov_b64 s[62:63], vcc
            v_cmp_ge_f32 vcc, {f2u(2.0**64)}, v{tmp}
            s_and_b64 vcc, vcc, s[62:63]
            s_cmp_eq_u64 vcc, -1
            s_cbranch_scc0 {P}slow{tag}""")
        A.lab(f"{P}norm{tag}")
        A.e(f"v_rcp_f32 v{T0}, v{T0}")
        if which == 0:
            A.e(f"""s_waitcnt vmcnt({vm.after('G')})
                v_sub_f32 v{tmp}, 1.0, v{VG}
                v_mul_f32 v{T0}, v{T0}, v{tmp}
                v_and_b32 v{VOO}, 15, v0
                v_bfe_u32 v{VOO+1}, v0, 4, 1
                v_lshrrev_b32 v{VOO+2}, 5, v0
                v_lshlrev_b32 v{VOO}, 4, v{VOO}
                v_lshl_add_u32 v{VOO}, v{VOO+1}, 10, v{VOO}
                v_lshl_add_u32 v{VOO}, v{VOO+2}, 8, v{VOO}""")
        else:
            A.e(f"s_nop 0\nv_mul_f32 v{T0}, v{T0}, v{VG}")
        for i in range(16): A.e(f"v_mul_f32 v{o+i}, v{o+i}, v{T0}")
        for i in range(8): A.e(f"v_cvt_pk_bf16_f32 v{tmp+i}, v{o+2*i}, v{o+2*i+1}")
        A.e(f"""s_lshl_b32 s56, s{RT}, 6
            s_add_u32 s56, s56, s{HEADB if which == 0 else HEAD}
            s_lshl_b32 s56, s56, 11
            s_add_u32 s56, s56, {O_OFF + (32*2048 if which == 0 else 0)}
            buffer_store_dwordx4 {v(tmp,4)}, v{VOO}, {sr(WS)}, s56 offen sc1
            buffer_store_dwordx4 {v(tmp+4,4)}, v{VOO}, {sr(WS)}, s56 offen offset:512 sc1""")
        vm.add("S" + tag, 2)
    for n in range(73):
        step(n)
        if n == NB0 + 9: finalize("B", 0, O2, L2, TB)
    A.e("s_waitcnt lgkmcnt(0)")
    A.e(mfma32(O, VF + 4, PB[0] + 4, O))
    A.e(smf(L, PB[0]))
    st(A, "aend")
    AWO, OAC = 16, 64
    WFO = [32, 48]
    TA = SB[0]
    A.e(f"""v_lshrrev_b32 v20, 4, v0
        v_bfe_u32 v21, v0, 2, 2
        v_and_b32 v22, 1, v20
        v_lshl_add_u32 v22, v22, 2, v21
        v_lshrrev_b32 v23, 1, v20
        v_lshl_add_u32 v23, v23, 4, v22
        v_lshlrev_b32 v23, 7, v23
        v_and_b32 v20, 3, v0
        v_lshl_add_u32 v23, v20, 3, v23
        s_lshr_b32 s56, s3, 2
        s_lshl_b32 s56, s56, 12
        s_add_u32 s56, s56, {3*32768}
        v_add_u32 v23, s56, v23
        v_lshrrev_b32 v22, 1, v22""")
    for nb in range(4):
        A.e(f"v_xor_b32 v20, {nb}, v22\nv_lshl_add_u32 v{AWO+nb}, v20, 5, v23")
    finalize("A", 1, O, L, TA)
    st(A, "afin")

    def oreads(buf, i):
        return [f"ds_read_b64_tr_b16 {v(WFO[buf]+4*nb+2*jh,2)}, v{AWO+nb} offset:{i*8192+jh*1024}" for nb in range(4) for jh in range(2)]
    for r in oreads(0, 0): A.e(r)
    zero(OAC + 8, 24); zero(OAC, 8)
    oidx = [i for i, t in enumerate(vm.q) if t == "O"]
    def emit(x):
        A.e(x[1]); vm.add(x[0])
    def quarter(u, pre_last=None, waits=None, bgq=None):
        q = u & 3
        for i in range(4):
            buf = i & 1
            ms = [mfma16(OAC + 4*(f*4+nb), WFO[buf]+4*nb, OFR+32*q+8*i+4*f, OAC + 4*(f*4+nb)) for nb in range(4) for f in range(2)]
            w = waits(i) if waits else None
            A.e("s_waitcnt lgkmcnt(0)" if w is None else f"s_waitcnt lgkmcnt(0) vmcnt({w})")
            if i < 3:
                rd = oreads(1 - buf, i + 1)
            elif u < 15:
                dl = ((u+1) % 5 - u % 5) * 32768
                for nb in range(4): A.e(f"v_add_u32 v{AWO+nb}, {dl & 0xffffffff}, v{AWO+nb}")
                if pre_last: pre_last()
                rd = oreads(1 - buf, 0)
            else:
                rd = []
            b = list(bgq(i)) if bgq else []
            for k in range(8):
                A.e(ms[k])
                if k < 4 and rd: A.e(rd[2*k]); A.e(rd[2*k+1])
                if k >= 3 and b: emit(b.pop(0))
            while b: emit(b.pop(0))
    def y1():
        st(A, "y1a")
        A.e("s_waitcnt vmcnt(0)\ns_barrier")
        st(A, "y1")
        A.e(f"""s_cmp_lg_u32 s3, 0
            s_cbranch_scc1 {P}y1""")
        signal(RB, 3, AN)
        A.lab(f"{P}y1")
    def y2(): A.e("s_barrier")
    def y3():
        st(A, "y3a")
        A.e(f"""s_cmp_lg_u32 s3, 0
            s_cbranch_scc1 {P}pd3
            v_mov_b32 v20, 0
            s_lshl_b32 s62, s{RB2}, 4""")
        poll("3", 20, "s62", 12, 16, False)
        A.e("s_barrier")
        st(A, "y3")
    def y4(): A.e(f"s_waitcnt vmcnt({vm.after('U15')})\ns_barrier")
    wo = upiece
    nxt = [0]
    def take(n, lim):
        o = []
        while n > 0 and nxt[0] < lim:
            t, x = oload(nxt[0], 0)
            o.append((f"OA{nxt[0]}", x)); nxt[0] += 1; n -= 1
        return o
    quarter(8, y1, waits=lambda i: (len(vm.q) - 1 - oidx[7]) if i == 0 else None, bgq=lambda i: [wo(12, 0), wo(12, 1)] if i == 3 else [])
    quarter(9, y2, bgq=lambda i: [[wo(12, 2), wo(12, 3)], [wo(13, 0), wo(13, 1)], [wo(13, 2), wo(13, 3)], [wo(14, 0)]][i])
    quarter(10, y3, bgq=lambda i: [wo(14, i + 1)] if i < 3 else [wo(15, k) for k in range(4)] + take(LPS, 16))
    quarter(11, y4, bgq=lambda i: take(LPS, 24))
    st(A, "y4")
    for u in range(12, 16):
        quarter(u, None, waits=lambda i: vm.after(f"OA{8*(u-12)+2*i+1}"), bgq=lambda i: take(2, 32))
    st(A, "oend")
    A.e(f"""s_lshl_b32 s56, s3, 12
        s_add_u32 s56, s56, {1*32768}
        v_add_u32 v20, s56, v{VL16}
        v_xor_b32 v21, 16384, v20
        s_cmp_ge_u32 s3, 4
        s_cbranch_scc1 {P}x1
        s_nop 3""")
    for nb in range(4): A.e(f"ds_write_b128 v20, {v(OAC+16+4*nb,4)} offset:{1024*nb}")
    A.e(f"s_branch {P}x2")
    A.lab(f"{P}x1")
    A.e("s_nop 3")
    for nb in range(4): A.e(f"ds_write_b128 v20, {v(OAC+4*nb,4)} offset:{1024*nb}")
    for i in range(16): A.e(f"v_mov_b32 v{OAC+i}, v{OAC+16+i}")
    A.lab(f"{P}x2")
    srd(A, SX_, "s22", "s23", 4 * MB)
    A.e(f"""s_lshl_b32 s56, s{RB2}, 2
        s_and_b32 s57, s3, 3
        s_add_u32 s56, s56, s57
        s_lshl_b32 s56, s56, 1
        s_lshr_b32 s57, s3, 2
        s_add_u32 s56, s56, s57
        s_lshl_b32 s56, s56, 15
        s_lshl_b32 s57, s{CBK}, 7
        s_add_u32 s56, s56, s57
        v_and_b32 v22, 15, v0
        v_lshlrev_b32 v22, 11, v22
        v_bfe_u32 v23, v0, 4, 1
        v_lshl_add_u32 v22, v23, 5, v22
        v_lshrrev_b32 v23, 5, v0
        v_lshl_add_u32 v22, v23, 4, v22
        s_waitcnt lgkmcnt(0)
        s_barrier""")
    for nb in range(4): A.e(f"ds_read_b128 {v(32+4*nb,4)}, v21 offset:{1024*nb}")
    A.e("s_waitcnt lgkmcnt(0)")
    for i in range(16): A.e(f"v_add_f32 v{OAC+i}, v{OAC+i}, v{32+i}")
    pack(48, [[OAC + 4*(2*a+b) for b in range(2)] for a in range(2)], False)
    A.e(f"""buffer_store_dwordx4 {v(48,4)}, v22, {sr(SX_)}, s56 offen
        buffer_store_dwordx4 {v(52,4)}, v22, {sr(SX_)}, s56 offen offset:64""")
    A.lab(f"{P}end")
    stamp_flush(A, 0)
    trace_flush(A)
    A.lab(f"{P}end2")
    A.e("s_endpgm")

    AX, AW, VKO = 96, 98, 100
    XF, WF = [32, 48], 64
    ACC = 128
    A.lab(f"{P}compute")
    if PFC:
        A.e("s_getpc_b64 s[66:67]")
        A.lab(f"{P}pcref")
        A.e(f"""s_sub_u32 s66, s66, {P}pcref-{name}
            s_subb_u32 s67, s67, 0
            s_lshl_b32 s56, s3, 5
            s_add_u32 s56, s56, s{IDXS}
            s_lshl_b32 s56, s56, 10
            v_add_u32 v101, s56, v{VL16}
            v_min_u32 v101, {P}last-{name}-16, v101
            s_cmp_ge_u32 s56, {P}last-{name}
            s_cbranch_scc1 {P}npc
            global_load_dwordx4 v[104:107], v101, s[66:67]""")
        A.lab(f"{P}npc")
    A.e(f"""v_and_b32 v8, 15, v0
        v_lshrrev_b32 v9, 4, v0
        v_bfe_u32 v10, v0, 1, 3
        s_and_b32 s56, s3, 1
        s_lshl_b32 s56, s56, 13
        v_xor_b32 v11, v9, v10
        v_lshlrev_b32 v11, 4, v11
        v_lshl_add_u32 v11, v8, 7, v11
        v_add_u32 v{AX}, s56, v11
        v_xor_b32 v{AX+1}, 64, v{AX}
        v_bfe_u32 v12, v0, 2, 2
        v_and_b32 v13, 3, v0
        v_lshl_add_u32 v14, v9, 3, v12
        v_lshlrev_b32 v14, 7, v14
        v_lshl_add_u32 v14, v13, 3, v14
        v_bfe_u32 v15, v0, 3, 2
        s_and_b32 s56, s3, 2
        v_xor_b32 v15, s56, v15
        v_lshl_add_u32 v14, v15, 5, v14
        v_add_u32 v{AW}, {XSZ}, v14
        v_xor_b32 v{AW+1}, 32, v{AW}
        v_and_b32 v8, 0x33, v0
        v_bfe_u32 v9, v0, 2, 1
        v_bfe_u32 v10, v0, 3, 1
        v_lshl_or_b32 v8, v9, 3, v8
        v_lshl_or_b32 v8, v10, 2, v8
        v_lshlrev_b32 v{VKO}, 4, v8
        s_waitcnt lgkmcnt(0)""")
    common_setup()
    if TOUCH:
        A.e(f"""s_cmp_lg_u32 s3, 2
            s_cbranch_scc1 {P}nt
            v_lshlrev_b32 v108, 19, v0
            buffer_load_dword v109, v108, {sr(WS)}, 0 offen sc1
            v_and_b32 v108, 1, v0
            v_lshlrev_b32 v108, 20, v108
            global_load_dword v109, v108, s[12:13]
            global_load_dword v109, v108, s[18:19]
            v_lshlrev_b32 v108, 1, v108
            global_load_dword v109, v108, s[22:23]""")
        A.lab(f"{P}nt")
    zero(ACC, 128)
    A.e(f"""s_mov_b32 s58, 0
        s_mov_b32 s59, 0
        s_mov_b32 s60, {(-ST) & 0xffffffff}
        s_mov_b32 s61, {2*ST}
        s_mov_b32 s63, {f2u(CSCALE)}
        s_and_b32 s57, s{HEAD}, 24
        s_add_u32 s92, s{HEAD}, {4*GROT}
        s_and_b32 s92, s92, 7
        s_or_b32 s92, s92, s57
        s_lshl_b32 s92, s92, 6
        s_add_u32 s92, s92, s{RT}
        s_lshl_b32 s92, s92, 12
        s_add_u32 s92, s92, {KVB_OFF}
        s_add_u32 s93, s92, 4096
        s_add_u32 s96, s{HEAD}, {6*GROT}
        s_and_b32 s96, s96, 7
        s_or_b32 s96, s96, s57
        s_lshl_b32 s96, s96, 6
        s_add_u32 s96, s96, s{RT}
        s_lshl_b32 s96, s96, 12
        s_add_u32 s96, s96, {KVB_OFF}
        s_add_u32 s97, s96, 4096
        s_cmp_lt_u32 s{HP}, 12
        s_cselect_b32 s94, 5, -1
        s_cmp_eq_u32 s3, 0
        s_cselect_b32 s94, s94, -1
        s_lshr_b32 s95, s{HP}, 2
        s_lshl_b32 s95, s95, 3
        s_lshl_b32 s95, 0x100, s95""")
    def rx(buf, ks, mb): return f"ds_read_b128 {v(XF[buf]+4*mb,4)}, v{AX+ks} offset:{mb*2048}"
    def rw(nb, ks, jh): return f"ds_read_b64_tr_b16 {v(WF+4*nb+2*jh,2)}, v{AW+(nb&1)} offset:{(nb>>1)*8192+ks*4096+jh*512}"
    st(A, "setup")
    A.e("s_barrier")
    st(A, "g0")
    for mb in range(4): A.e(rx(0, 0, mb))
    for nb in range(8):
        for jh in range(2): A.e(rw(nb, 0, jh))
        if nb == 4: A.e("s_waitcnt lgkmcnt(4)")
    A.raw(".p2align 6")
    A.lab(f"{P}g1")
    acc = lambda mb, nb: ACC + 4 * (nb * 4 + mb)
    for ks in range(2):
        for nb in range(8):
            if nb == 0: A.e("s_waitcnt lgkmcnt(4)")
            elif nb % 2 == 0: A.e("s_waitcnt lgkmcnt(8)") if not (ks == 1) else None
            for mb in range(4):
                d = acc(mb, nb)
                x, w = XF[ks] + 4 * mb, WF + 4 * nb
                A.e(mfma16(d, x, w, d) if nb >= 6 else mfma16(d, w, x, d))
                if ks == 1 and nb == 0:
                    if mb == 0:
                        A.e(f"""s_cmp_eq_u32 s58, 0
                            s_cselect_b32 s62, s61, s60
                            s_add_u32 s58, s58, s62""")
                    if mb == 1:
                        A.e(f"v_add_u32 v{AX}, s62, v{AX}\nv_add_u32 v{AX+1}, s62, v{AX+1}")
                    if mb == 2:
                        A.e(f"v_add_u32 v{AW}, s62, v{AW}\nv_add_u32 v{AW+1}, s62, v{AW+1}\ns_add_u32 s59, s59, 1")
                    if mb == 3:
                        A.e(f"""s_cmp_eq_u32 s59, s94
                            s_waitcnt lgkmcnt(0)
                            s_barrier
                            s_cbranch_scc1 {P}sig0""")
                        A.lab(f"{P}sig0_r")
                if nb >= 1 and mb < 2: A.e(rw(nb - 1, 1 - ks, mb))
                if 1 <= nb <= 4 and mb == 2: A.e(rx(1 - ks, 1 - ks, nb - 1))
                if ks == 1 and nb == 7 and mb == 2: A.e("s_cmp_lg_u32 s59, 16")
        A.e(rw(7, 1 - ks, 0)); A.e(rw(7, 1 - ks, 1))
    A.e(f"s_cbranch_scc1 {P}g1")
    st(A, "gend")
    T = 101
    A.e("s_waitcnt vmcnt(0)")
    A.e(f"""s_lshl_b32 s56, s3, 12
        s_add_u32 s56, s56, {MISC}
        v_add_u32 v{AX}, s56, v{VL16}""")
    pack(QA, [[acc(2+rbk, db) for rbk in range(2)] for db in range(2)], False)
    pack(QB, [[acc(2+rbk, 2+db) for rbk in range(2)] for db in range(2)], False)
    A.e(f"""ds_write_b128 v{AX}, {v(QA,4)}
        ds_write_b128 v{AX}, {v(QA+4,4)} offset:1024
        ds_write_b128 v{AX}, {v(QB,4)} offset:2048
        ds_write_b128 v{AX}, {v(QB+4,4)} offset:3072
        s_waitcnt lgkmcnt(0)
        s_barrier""")
    for rtl in range(2):
        tk, tv = 32 + 16 * rtl, 40 + 16 * rtl
        so = "s92" if rtl == 0 else "s93"
        pack(tk, [[acc(2*rtl+rbk, 4+db) for rbk in range(2)] for db in range(2)], True)
        A.e(f"""buffer_store_dwordx4 {v(tk,4)}, v{VKO}, {sr(WS)}, {so} offen sc1
            buffer_store_dwordx4 {v(tk+4,4)}, v{VKO}, {sr(WS)}, {so} offen offset:1024 sc1""")
        pack(tv, [[acc(2*rtl+kb, 6+db) for db in range(2)] for kb in range(2)], False)
        so = "s96" if rtl == 0 else "s97"
        A.e(f"""buffer_store_dwordx4 {v(tv,4)}, v{VL16}, {sr(WS)}, {so} offen offset:2048 sc1
            buffer_store_dwordx4 {v(tv+4,4)}, v{VL16}, {sr(WS)}, {so} offen offset:3072 sc1""")
    pack(QA, [[acc(rbk, db) for rbk in range(2)] for db in range(2)], False)
    pack(QB, [[acc(rbk, 2+db) for rbk in range(2)] for db in range(2)], False)
    zero(O, 16)
    A.e(f"s_branch {P}attn")

    A.lab(f"{P}sig0")
    signal(RB, 0, T, "s95")
    A.e(f"""s_mov_b32 s95, 1
        s_cmp_lt_u32 s{HP}, 8
        s_cselect_b32 s94, {TPA+3}, -1
        s_branch {P}sig0_r""")
    for ph in (1, 2):
        A.lab(f"{P}sig{ph}")
        signal(RB, ph, TZ + 1)
        A.e(f"s_branch {P}sig{ph}_r")
    A.lab(f"{P}poll1")
    A.e(f"""v_and_b32 v{TZ+1}, 3, v0
        v_min_u32 v{TZ+1}, 2, v{TZ+1}
        v_sub_u32 v{TZ+1}, s{RB}, v{TZ+1}
        v_max_i32 v{TZ+1}, 0, v{TZ+1}
        v_lshlrev_b32 v{TZ+1}, 4, v{TZ+1}""")
    poll("1", TZ + 1, "0", 4, 16, False)
    A.e(f"s_branch {P}poll1_r")
    A.lab(f"{P}poll2")
    A.e(f"""v_mov_b32 v{TZ+1}, 0
        s_lshl_b32 s62, s{RB2}, 4""")
    poll("2", TZ + 1, "s62", 8, 16, False)
    A.e(f"s_branch {P}poll2_r")
    for j in range(2, 8):
        A.lab(f"{P}cm{j}")
        zero(CM, 16)
        A.e(f"s_nop 0\ns_branch {P}cm{j}_r")

    def slow(tag, q, o, l, kf, vf, S, C, Pp, M, setup):
        A.lab(f"{P}slow{tag}")
        A.e("s_waitcnt vmcnt(0)")
        A.e(setup)
        zero(o, 16); zero(l, 4)
        A.e(f"""v_mov_b32 v{M}, {NEG}
            s_mov_b32 s99, 0""")
        A.lab(f"{P}spass{tag}")
        A.e("s_mov_b32 s100, s98")
        A.lab(f"{P}stile{tag}")
        A.e(f"""s_lshl_b32 s56, s100, 12
            s_add_u32 s56, s56, s101
            buffer_load_dwordx4 {v(kf,4)}, v{VL16}, {sr(WS)}, s56 offen sc1
            buffer_load_dwordx4 {v(kf+4,4)}, v{VL16}, {sr(WS)}, s56 offen offset:1024 sc1
            buffer_load_dwordx4 {v(vf,4)}, v{VL16}, {sr(WS)}, s56 offen offset:2048 sc1
            buffer_load_dwordx4 {v(vf+4,4)}, v{VL16}, {sr(WS)}, s56 offen offset:3072 sc1
            s_cmp_eq_u32 s100, s96
            s_cselect_b32 s56, {NEG}, 0
            s_cmp_eq_u32 s100, s97
            s_cselect_b32 s57, {NEG}, 0
            v_mov_b32 v{M+2}, s56
            v_mov_b32 v{M+3}, s57""")
        for r in range(16):
            A.e(f"""v_cmp_le_i32 vcc, {keyl(r)}, v{VD}
                s_nop 1
                v_cndmask_b32 v{C+r}, v{M+2}, v{M+3}, vcc""")
        A.e("s_waitcnt vmcnt(0)\ns_nop 0")
        A.e(mfma32(S, kf, q, C))
        A.e(mfma32(S, kf + 4, q + 4, S))
        A.e(f"""s_nop 7
            s_nop 7
            s_cmp_eq_u32 s99, 0
            s_cbranch_scc0 {P}sp2{tag}""")
        for r in range(16): A.e(f"v_max_f32 v{M}, v{M}, v{S+r}")
        A.e(f"s_branch {P}snext{tag}")
        A.lab(f"{P}sp2{tag}")
        for r in range(16): A.e(f"v_sub_f32 v{S+r}, v{S+r}, v{M}")
        for r in range(16): A.e(ex(S, r))
        A.e("s_nop 0")
        for i in range(8): A.e(cv(Pp, S, i))
        A.e("s_nop 1")
        A.e(mfma32(o, vf, Pp, o))
        A.e(mfma32(o, vf + 4, Pp + 4, o))
        A.e(smf(l, Pp))
        A.e("s_nop 7\ns_nop 7")
        A.lab(f"{P}snext{tag}")
        A.e(f"""s_add_u32 s100, s100, 1
            s_cmp_le_u32 s100, s95
            s_cbranch_scc1 {P}stile{tag}
            s_cmp_eq_u32 s99, 0
            s_cbranch_scc0 {P}sdone{tag}
            v_mov_b32 v{M+1}, v{M}
            s_nop 1
            v_permlane32_swap_b32 v{M}, v{M+1}
            s_nop 1
            v_max_f32 v{M}, v{M}, v{M+1}
            s_mov_b32 s99, 1
            s_branch {P}spass{tag}""")
        A.lab(f"{P}sdone{tag}")
        A.e(f"""v_add_f32 v{T0}, v{l}, v{l+1}
            s_branch {P}norm{tag}""")
    slow("B", QB, O2, L2, 192, 200, 208, 224, 240, 248,
         f"""s_lshl_b32 s101, s{HEADB}, 18
            s_add_u32 s101, s101, {KVB_OFF}
            s_sub_i32 s97, s{RT}, 8
            s_max_i32 s98, s97, 0
            s_mov_b32 s95, s{RT}
            s_mov_b32 s96, s{RT}""")
    slow("A", QA, O, L, KF, VF, SB[0], SB[1], PB[0], ML + 8,
         f"""s_mov_b32 s101, {KVA_OFF}
            s_mov_b32 s98, 0
            s_mov_b32 s95, 63
            s_mov_b32 s96, -1
            s_mov_b32 s97, -1""")
    A.raw(".p2align 4")
    A.lab(f"{P}last")
    A.e("s_endpgm")
    return kernel_desc(name, 256, 102)

if __name__ == "__main__":
    ref = open(f"cdna_kernels/{NAME}.s.ref").read().split("\n")
    hdr = [l for l in ref if l.startswith(";") and "@launch" not in l]
    A = Asm()
    d = gen(A, NAME + "_kernel")
    out = "\n".join(hdr) + "\n" + f"; @launch grid=(256,1,1) block=(512,1,1) lds={LDS}\n"
    out += '.amdgcn_target "amdgcn-amd-amdhsa--gfx950"\n.text\n' + A.text() + '.section .rodata,"a"\n' + d
    path = sys.argv[1] if len(sys.argv) > 1 else f"cdna_kernels/{NAME}.s"
    open(path, "w").write(out)
    print("wrote", path, len(out))
```

```python
from common import *
import sys
E = lambda k, d: int(os.environ.get(k, d))
STAG = 4
PART_OFF = 0
TPA = E('TPA', 7)
WARM = E('WARM', 1)
E1N = E('E1N', 11)
TPOLL = E('TPOLL', 14)
LPRIO = E('LPRIO', 3)
LPS = E('LPS', 2)
ROT = E('ROT', 1)
SLP = E('SLP', 12)
PFC = E('PFC', 0)
TOUCH = E('TOUCH', 0)
ZIG = E('ZIG', 1)
NB0 = 28

XSZ = 16384
ST = 49152
MISC = 3 * ST
LDS = 163840
NEG = f2u(-1e30)
SPIN = 200000

VL16, AC, AN, VG, IDX, VD, T0 = 1, 2, 3, 4, 5, 6, 7
ONES, L = 8, 12
QB, QA = 16, 24
KF, VF = 32, 40
PB = [48, 56]
SB = [64, 80]
O = 96
ML = 112
OFR = 128
O2, L2, MU, CM, TB, AB, TZ = 128, 144, 148, 164, 180, 188, 189
WS, DBG, SX_, SW_, SS_ = 28, 32, 36, 40, 44
RB, HP, XCD, IDXS, RT, HEAD, RB2, CBK = 48, 49, 50, 51, 52, 53, 54, 55
HEADB = 65
GROT = E('GROT', 1)

def sr(b): return f"s[{b}:{b+3}]"
def mfma16(d, a, b, c):
    cs = c if isinstance(c, str) else v(c, 4)
    return f"v_mfma_f32_16x16x32_bf16 {v(d,4)}, {v(a,4)}, {v(b,4)}, {cs}"
def smf(l, p): return f"v_smfmac_f32_16x16x64_bf16 {v(l,4)}, {v(ONES,4)}, {v(p,8)}, v{IDX}"
def ex(S, i): return f"v_exp_f32 v{S+i}, v{S+i}"
def cv(Pp, S, i): return f"v_cvt_pk_bf16_f32 v{Pp+i}, v{S+2*i}, v{S+2*i+1}"
def keyl(r): return 16 * (r >> 3) + 4 * ((r >> 2) & 1) + (r & 3)

TRN = "setup,g0,pla,pl0,gend,attn,aend,afin,y1a,y1,y3a,y3,y4,oend".split(",")
TRL = {n: 44 + i for i, n in enumerate(TRN)}
def st(A, nm):
    if DIAG: trace(A, TRL[nm])

class VM:
    def __init__(self): self.q = []
    def add(self, tag, n=1): self.q += [tag] * n
    def after(self, *tags):
        last = max(i for i, t in enumerate(self.q) if t in tags)
        return len(self.q) - 1 - last

def pack_list(dst, blk, scale):
    o = []
    for a in range(2):
        for b in range(2):
            d = blk[a][b]
            if scale:
                for i in range(4): o.append(f"v_mul_f32 v{d+i}, s63, v{d+i}")
            for i in range(2): o.append(f"v_cvt_pk_bf16_f32 v{dst+a*4+b*2+i}, v{d+2*i}, v{d+2*i+1}")
    for a in range(2):
        for i in range(2): o.append(f"v_permlane16_swap_b32 v{dst+a*4+i}, v{dst+a*4+2+i}")
    return o

def gen(A, name):
    P = "f_"
    kernel_head(A, name)
    A.e(f"""s_cmp_ge_u32 s2, 256
        s_cbranch_scc1 {P}end2""")
    stamp_init(A)
    if E('SCR', 0):
        A.e("""s_lshr_b32 s56, s2, 3
            s_lshr_b32 s57, s2, 5
            s_xor_b32 s56, s56, s57
            s_and_b32 s56, s56, 7
            s_xor_b32 s2, s2, s56""")
    A.e(f"""s_load_dwordx8 s[4:11], s[0:1], 0
        s_load_dwordx8 s[16:23], s[0:1], 48
        s_load_dwordx4 s[24:27], s[0:1], 80
        s_load_dwordx2 s[12:13], s[0:1], 32
        v_lshrrev_b32 v1, 6, v0
        v_and_b32 v0, 63, v0
        v_readfirstlane_b32 s3, v1
        s_and_b32 s{XCD}, s2, 7
        s_lshr_b32 s{IDXS}, s2, 3
        s_and_b32 s{RB}, s{XCD}, 1
        s_lshl_b32 s{RB}, s{RB}, 3
        s_and_b32 s56, s{IDXS}, 7
        s_add_u32 s{RB}, s{RB}, s56
        s_lshr_b32 s{HP}, s{XCD}, 1
        s_lshl_b32 s{HP}, s{HP}, 2
        s_lshr_b32 s56, s{IDXS}, 3
        s_add_u32 s{HP}, s{HP}, s56
        v_lshlrev_b32 v{VL16}, 4, v0
        s_cmp_lt_u32 s3, 4
        s_cbranch_scc1 {P}compute""")

    def common_setup():
        A.e(f"""s_and_b32 s{RB2}, s{XCD}, 3
            s_lshl_b32 s{RB2}, s{RB2}, 2
            s_and_b32 s56, s{IDXS}, 3
            s_add_u32 s{RB2}, s{RB2}, s56
            s_lshr_b32 s{CBK}, s{XCD}, 2
            s_lshl_b32 s{CBK}, s{CBK}, 3
            s_lshr_b32 s56, s{IDXS}, 2
            s_add_u32 s{CBK}, s{CBK}, s56
            s_and_b32 s56, s3, 1
            s_lshl_b32 s56, s56, 1
            s_lshr_b32 s57, s3, 2
            s_add_u32 s56, s56, s57
            s_lshl_b32 s{RT}, s{RB}, 2
            s_add_u32 s{RT}, s{RT}, s56
            s_bfe_u32 s56, s3, 0x10001
            s_lshl_b32 s{HEAD}, s{HP}, 1
            s_add_u32 s{HEAD}, s{HEAD}, s56
            s_add_u32 s56, s{HEAD}, {2*GROT}
            s_and_b32 s56, s56, 7
            s_and_b32 s57, s{HEAD}, 24
            s_or_b32 s{HEADB}, s56, s57""")
        srd(A, WS, "s26", "s27", WS_USED)
        srd(A, DBG, "s24", "s25", 256)
        A.e(f"""v_and_b32 v{T0}, 31, v0
            v_lshrrev_b32 v{VG}, 5, v0
            v_lshlrev_b32 v{VG}, 3, v{VG}
            v_sub_u32 v{VD}, v{T0}, v{VG}
            v_mov_b32 v{VG}, {NEG}""")
        for r in range(16):
            A.e(f"""v_cmp_le_i32 vcc, {keyl(r)}, v{VD}
                s_nop 1
                v_cndmask_b32 v{ML+r}, v{VG}, 0, vcc""")
        A.e(f"""v_and_b32 v{T0}, 4, v0
            v_cmp_eq_u32 vcc, 0, v{T0}
            v_mov_b32 v{VG}, 0x3f803f80
            v_and_b32 v{T0}, 1, v0
            v_cndmask_b32 v{ONES}, 0, v{VG}, vcc
            v_cndmask_b32 v{ONES+1}, 0, v{VG}, vcc
            v_cndmask_b32 v{ONES+2}, v{VG}, 0, vcc
            v_cndmask_b32 v{ONES+3}, v{VG}, 0, vcc
            v_cmp_eq_u32 vcc, 0, v{T0}
            v_mov_b32 v{T0}, 0x4444
            v_mov_b32 v{VG}, 0xeeee
            v_cndmask_b32 v{IDX}, v{VG}, v{T0}, vcc
            v_add_u32 v{AC}, 0x10000, v{VL16}
            v_add_u32 v{AN}, 0x20000, v{VL16}""")
        for i in range(4): A.e(f"v_mov_b32 v{L+i}, 0")
        if DIAG: A.e(f"v_mov_b32 v{VD}, 0")
    def pack(dst, blk, scale):
        for x in pack_list(dst, blk, scale): A.e(x)
    def zero(base, n):
        for i in range(n): A.e(f"v_mov_b32 v{base+i}, 0")
    def signal(rbreg, phase, t1, inc="1"):
        A.e(f"""s_mov_b64 exec, 1
            v_mov_b32 v{T0}, {inc}
            v_mov_b32 v{t1}, 0
            s_lshl_b32 s56, s{rbreg}, 4
            buffer_atomic_add v{T0}, v{t1}, {sr(DBG)}, s56 offen offset:{4*phase} sc1
            s_mov_b64 exec, -1""")
    def poll(tag, voff, soff, ioff, target, first_issued, field=None):
        A.e(f"s_mov_b32 s57, {SPIN}")
        if first_issued: A.e(f"s_branch {P}pc{tag}")
        A.lab(f"{P}pl{tag}")
        A.e(f"""buffer_load_dword v{T0}, v{voff}, {sr(DBG)}, {soff} offen offset:{ioff} sc1
            s_waitcnt vmcnt(0)""")
        A.lab(f"{P}pc{tag}")
        if field is not None: A.e(f"v_bfe_u32 v{T0}, v{T0}, {field}, 8")
        A.e(f"""v_cmp_le_u32 vcc, {target}, v{T0}
            s_cmp_eq_u64 vcc, -1
            s_cbranch_scc1 {P}pd{tag}
            s_sleep {SLP}
            s_sub_u32 s57, s57, 1
            s_cmp_lg_u32 s57, 0
            s_cbranch_scc1 {P}pl{tag}""")
        A.lab(f"{P}pd{tag}")
    gslot = lambda t: ((15 - t) % 3) * ST

    VX, VW, VS, AXS, AWS = 128, 130, 132, 136, 133
    SXF, SWF, SA = 144, 160, 176
    LW, KIND, PHI = 14, 15, 92
    XB, WB, WSTEP, KT, L4K, L8K, PSRC = 93, 94, 96, 98, 99, 100, 101
    A.e(f"""s_setprio {LPRIO}
        s_sub_u32 s{LW}, s3, 4
        v_lshrrev_b32 v9, 3, v0
        v_and_b32 v16, 7, v0
        v_lshrrev_b32 v17, 4, v0
        v_xor_b32 v17, v17, v16
        v_lshlrev_b32 v17, 4, v17
        v_lshl_add_u32 v{VX}, v9, 11, v17
        v_xor_b32 v{VX+1}, 64, v{VX}
        s_cmp_eq_u32 s{LW}, 0
        s_mov_b32 s57, 6144
        s_cselect_b32 s57, 2048, s57
        v_bfe_u32 v17, v0, 4, 1
        v_lshlrev_b32 v17, 1, v17
        v_xor_b32 v17, v17, v16
        v_lshlrev_b32 v17, 4, v17
        v_mul_u32_u24 v18, s57, v9
        v_add_u32 v{VW}, v18, v17
        v_xor_b32 v{VW+1}, 64, v{VW}
        s_lshl_b32 s{WSTEP}, s57, 3
        s_lshl_b32 s{XB}, s{RB}, 18
        s_lshl_b32 s56, s{LW}, 16
        s_add_u32 s{XB}, s{XB}, s56
        s_max_u32 s56, s{LW}, 1
        s_sub_u32 s56, s56, 1
        s_lshl_b32 s56, s56, 11
        s_mul_i32 s57, s{LW}, {GROT}
        s_add_u32 s57, s57, s{HP}
        s_and_b32 s57, s57, 3
        s_and_b32 s{WB}, s{HP}, 12
        s_or_b32 s57, s57, s{WB}
        s_lshl_b32 s57, s57, 7
        s_add_u32 s{WB}, s56, s57
        s_add_u32 s{PHI}, s{RB}, s{HP}
        s_and_b32 s{PHI}, s{PHI}, 3
        s_lshl_b32 s{KT}, s{PHI}, 2
        s_lshl_b32 s{L4K}, s{LW}, 12
        s_lshl_b32 s{L8K}, s{LW}, 13
        s_cmp_eq_u32 s{LW}, 0
        s_waitcnt lgkmcnt(0)
        s_cselect_b32 s{SW_}, s6, s16
        s_cselect_b32 s{SW_+1}, s7, s17
        s_mov_b32 s{SW_+2}, {6*MB}
        s_cselect_b32 s{SW_+2}, {2*MB}, s{SW_+2}
        s_mov_b32 s{SW_+3}, 0x20000""")
    srd(A, SX_, "s4", "s5", 4 * MB)
    def ktof(t): return 4 * (t >> 2) + ((3 - (t & 3)) if ((ZIG & 1) and (t >> 2) & 1) else (t & 3))
    def issue(t):
        A.e(f"""s_add_u32 m0, s{L4K}, {gslot(t)}
            s_lshl_b32 s56, s{KT}, 7
            s_add_u32 s56, s56, s{XB}""")
        for i in range(4):
            A.e(f"buffer_load_dwordx4 v{VX+(i&1)}, {sr(SX_)}, s56 offen lds")
            if i < 3: A.e("s_add_u32 m0, m0, 1024\ns_add_u32 s56, s56, 16384")
        A.e(f"""s_add_u32 m0, s{L8K}, {gslot(t) + XSZ}
            s_mul_i32 s56, s{KT}, s{WSTEP}
            s_lshl_b32 s56, s56, 3
            s_add_u32 s56, s56, s{WB}""")
        for i in range(8):
            A.e(f"buffer_load_dwordx4 v{VW+(i&1)}, {sr(SW_)}, s56 offen lds")
            if i < 7: A.e(f"s_add_u32 m0, m0, 1024\ns_add_u32 s56, s56, s{WSTEP}")
        if t < 15 and ZIG >= 2 and (t & 3) == 3:
            p = (t + 1) >> 2
            first = ktof(t + 1) & 3
            A.e(f"""s_cmp_le_u32 s{PHI}, {p-1}
                s_cselect_b32 s{KT}, {4*p + first}, {4*(p-1) + first}""")
        elif t < 15:
            A.e(f"""s_add_u32 s{KT}, s{KT}, {(ktof(t+1) - ktof(t)) & 15}
                s_and_b32 s{KT}, s{KT}, 15""")
    issue(0)
    A.e(f"""s_lshr_b32 s{KIND}, s{HP}, 2
        s_cmp_eq_u32 s{KIND}, 0
        s_cselect_b32 s{SS_}, s8, s10
        s_cselect_b32 s{SS_+1}, s9, s11
        s_cmp_ge_u32 s{KIND}, 2
        s_cselect_b32 s{SS_}, s20, s{SS_}
        s_cselect_b32 s{SS_+1}, s21, s{SS_+1}
        s_mov_b32 s{SS_+2}, 65536
        s_cselect_b32 s{SS_+2}, 2048, s{SS_+2}
        s_mov_b32 s{SS_+3}, 0x20000
        s_mov_b32 s57, 1024
        s_cselect_b32 s57, 32, s57
        s_cselect_b64 vcc, -1, 0
        v_lshrrev_b32 v17, 5, v0
        v_lshlrev_b32 v17, 4, v17
        v_cndmask_b32 v{VS}, v{VL16}, v17, vcc
        s_lshl_b32 s56, s{PHI}, 2
        s_add_u32 s56, s56, s{LW}
        s_lshl_b32 s56, s56, 2
        s_add_u32 m0, s{L4K}, {MISC}
        s_mul_i32 s56, s56, s57""")
    for i in range(4):
        A.e(f"buffer_load_dwordx4 v{VS}, {sr(SS_)}, s56 offen lds")
        if i < 3: A.e("s_add_u32 m0, m0, 1024\ns_add_u32 s56, s56, s57")
    issue(1)
    common_setup()
    A.e(f"""v_and_b32 v16, 31, v0
        v_lshrrev_b32 v17, 5, v0
        v_bfe_u32 v18, v0, 1, 3
        v_xor_b32 v19, v17, v18
        v_lshlrev_b32 v19, 4, v19
        v_lshl_add_u32 v19, v16, 7, v19
        v_add_u32 v{AXS}, s{L4K}, v19
        v_xor_b32 v{AXS+1}, 32, v{AXS}
        v_xor_b32 v{AXS+2}, 64, v{AXS}
        v_xor_b32 v{AXS+3}, 0x60, v{AXS}
        v_bfe_u32 v18, v0, 2, 2
        v_lshl_add_u32 v19, v17, 3, v18
        v_lshlrev_b32 v19, 6, v19
        v_bfe_u32 v18, v0, 4, 1
        v_lshl_add_u32 v19, v18, 5, v19
        v_and_b32 v18, 3, v0
        v_bfe_u32 v20, v0, 1, 1
        v_and_b32 v21, 1, v0
        v_lshl_or_b32 v20, v21, 1, v20
        s_cmp_eq_u32 s{KIND}, 0
        s_cselect_b64 vcc, -1, 0
        v_cndmask_b32 v18, v18, v20, vcc
        v_lshl_add_u32 v19, v18, 3, v19
        s_cmp_ge_u32 s{KIND}, 2
        s_cselect_b64 vcc, -1, 0
        v_cndmask_b32 v19, v19, v{VL16}, vcc
        v_add_u32 v{AWS}, {MISC}, v19
        s_lshl_b32 s{PSRC}, s{RB}, 2
        s_add_u32 s{PSRC}, s{PSRC}, s{KIND}
        s_lshl_b32 s{PSRC}, s{PSRC}, 16
        s_add_u32 s{PSRC}, s{PSRC}, {PART_OFF}""")
    zero(SA, 16); zero(O, 16)
    st(A, "setup")
    A.e("s_waitcnt vmcnt(12)")
    st(A, "g0")
    for t in range(16):
        A.e("s_barrier")
        trace(A, t)
        if t < 4:
            A.e(f"""s_cmp_eq_u32 s{KIND}, 3
                s_cbranch_scc1 {P}lh{t}""")
            for k in range(4): A.e(f"ds_read_b128 {v(SXF+4*k,4)}, v{AXS+k}")
            A.e(f"""s_cmp_eq_u32 s{KIND}, 2
                s_cbranch_scc1 {P}lg{t}""")
            for k in range(4):
                A.e(f"""ds_read_b64_tr_b16 {v(SWF+4*k,2)}, v{AWS} offset:{4096*t+1024*k}
                    ds_read_b64_tr_b16 {v(SWF+4*k+2,2)}, v{AWS} offset:{4096*t+1024*k+256}""")
            A.e(f"s_branch {P}lh{t}")
            A.lab(f"{P}lg{t}")
            for k in range(4): A.e(f"ds_read_b128 {v(SWF+4*k,4)}, v{AWS} offset:{4096*t+1024*k}")
            A.lab(f"{P}lh{t}")
        if t == 4:
            A.e(f"""s_cmp_eq_u32 s{KIND}, 3
                s_cbranch_scc1 {P}lp1
                s_lshl_b32 s56, s{LW}, 14
                s_lshl_b32 s57, s{PHI}, 12
                s_add_u32 s56, s56, s57
                s_add_u32 s56, s56, s{PSRC}""")
            for q in range(4): A.e(f"buffer_store_dwordx4 {v(SA+4*q,4)}, v{VL16}, {sr(WS)}, s56 offen offset:{1024*q} sc1")
            A.lab(f"{P}lp1")
        if t == TPA:
            A.e(f"""v_mov_b32 v16, 0
                s_lshl_b32 s62, s{RB}, 4
                s_cmp_lg_u32 s{LW}, 0
                s_cbranch_scc1 {P}lta
                buffer_load_dword v{T0}, v16, {sr(DBG)}, s62 offen sc1""")
            A.lab(f"{P}lta")
        if t == TPA + 1:
            A.e(f"""s_cmp_eq_u32 s{KIND}, 3
                s_cbranch_scc1 {P}lp2
                s_lshl_b32 s56, s{PHI}, 14
                s_lshl_b32 s57, s{LW}, 10
                s_add_u32 s56, s56, s57
                s_add_u32 s56, s56, s{PSRC}""")
            for q in range(4):
                A.e(f"buffer_load_dwordx4 {v(SA+4*q,4)}, v{VL16}, {sr(WS)}, s56 offen sc1")
                if q < 3: A.e("s_add_u32 s56, s56, 4096")
            A.lab(f"{P}lp2")
        if t == TPA + 2:
            A.e(f"""s_lshl_b32 s56, s{RB}, 2
                s_add_u32 s56, s56, s{PHI}""")
            for i in range(4):
                A.e(f"""v_add_f32 v{SA+i}, v{SA+i}, v{SA+4+i}
                    v_add_f32 v{SA+8+i}, v{SA+8+i}, v{SA+12+i}
                    v_add_f32 v{SA+i}, v{SA+i}, v{SA+8+i}""")
            A.e(f"""s_cmp_ge_u32 s{KIND}, 2
                s_cbranch_scc1 {P}lgate
                s_cmp_eq_u32 s{KIND}, 0
                s_cselect_b32 s57, {f2u(CSCALE)}, 1.0""")
            for i in range(4): A.e(f"v_mul_f32 v{SA+i}, s57, v{SA+i}")
            A.e(f"""v_cvt_pk_bf16_f32 v{SXF}, v{SA}, v{SA+1}
                v_cvt_pk_bf16_f32 v{SXF+1}, v{SA+2}, v{SA+3}
                s_lshl_b32 s56, s56, 12
                s_lshl_b32 s57, s{KIND}, 11
                s_add_u32 s56, s56, s57
                s_lshr_b32 s57, s{LW}, 1
                s_lshl_b32 s57, s57, 10
                s_add_u32 s56, s56, s57
                s_and_b32 s57, s{LW}, 1
                s_lshl_b32 s57, s57, 3
                s_add_u32 s56, s56, s57
                s_add_u32 s56, s56, {KVA_OFF}
                buffer_store_dwordx2 {v(SXF,2)}, v{VL16}, {sr(WS)}, s56 offen sc1
                s_branch {P}lsd""")
            A.lab(f"{P}lgate")
            A.e(f"""s_cmp_lg_u32 s{KIND}, 2
                s_cbranch_scc1 {P}lsd
                s_cmp_lg_u32 s{LW}, 0
                s_cbranch_scc1 {P}lsd
                v_mul_f32 v{SA}, {f2u(-LOG2E)}, v{SA}
                v_exp_f32 v{SA}, v{SA}
                s_lshl_b32 s56, s56, 7
                v_add_f32 v{SA}, 1.0, v{SA}
                v_rcp_f32 v{SA}, v{SA}
                s_add_u32 s56, s56, {G_OFF}
                v_and_b32 v16, 31, v0
                v_lshlrev_b32 v16, 2, v16
                buffer_store_dword v{SA}, v16, {sr(WS)}, s56 offen sc1""")
            A.lab(f"{P}lsd")
        if t == TPOLL:
            A.e(f"""v_and_b32 v16, 15, v0
                v_lshlrev_b32 v16, 4, v16
                s_cmp_lg_u32 s{LW}, 0
                s_cbranch_scc1 {P}lt0
                buffer_load_dword v{T0}, v16, {sr(DBG)}, 0 offen sc1""")
            A.lab(f"{P}lt0")
        if t + 2 < 16: issue(t + 2)
        if t < 4:
            dl = gslot(t + 1) - gslot(t)
            A.e(f"""s_cmp_eq_u32 s{KIND}, 3
                s_cbranch_scc1 {P}lw{t}""")
            if t < 3:
                for k in range(4): A.e(f"v_add_u32 v{AXS+k}, {dl & 0xffffffff}, v{AXS+k}")
            A.e(f"""s_waitcnt lgkmcnt(0)
                s_cmp_eq_u32 s{KIND}, 1
                s_cbranch_scc1 {P}lv{t}""")
            for k in range(4): A.e(mfma32(SA, SWF + 4*k, SXF + 4*k, SA))
            A.e(f"s_branch {P}lw{t}")
            A.lab(f"{P}lv{t}")
            for k in range(4): A.e(mfma32(SA, SXF + 4*k, SWF + 4*k, SA))
            A.lab(f"{P}lw{t}")
            if t == 3: A.e("s_nop 7")
        ncs = 0
        if t > TPOLL and (t == TPOLL + 1 or t == 15):
            cs = []
            if t == TPOLL + 1: cs.append((0, 3))
            if t == 15: cs.append((1, 2))
            for c, slot in cs:
                for hf in range(2):
                    A.e(f"""s_add_u32 m0, s{L8K}, {slot*32768 + hf*4096}
                        s_add_u32 s56, s{L8K}, {KVA_OFF + c*32768 + hf*4096}""")
                    for i in range(4): A.e(f"buffer_load_dwordx4 v{VL16}, {sr(WS)}, s56 offen offset:{1024*i} sc1 lds")
                ncs += 8
        if t < 15: A.e(f"s_waitcnt vmcnt({12 if t + 2 < 16 else ncs})")
        if t == TPA:
            A.e(f"""s_cmp_lg_u32 s{LW}, 0
                s_cbranch_scc1 {P}pda
                s_cmp_eq_u32 s{KIND}, 3
                s_cbranch_scc1 {P}pda
                s_lshl_b32 s63, s{KIND}, 3
                s_add_u32 s63, s63, 8""")
            poll("a", 16, "s62", 0, 4, True, field="s63")
            st(A, "pla")
        if t == TPOLL:
            A.e(f"""s_cmp_lg_u32 s{LW}, 0
                s_cbranch_scc1 {P}pd0""")
            poll("0", 16, "0", 0, 8, True, field=0)
            st(A, "pl0")
    A.e(f"""s_barrier
        s_add_u32 s56, s{L4K}, {MISC}
        v_add_u32 v16, s56, v{VL16}
        s_setprio 0
        s_waitcnt vmcnt(0)
        s_barrier""")
    st(A, "gend")
    A.e(f"""ds_read_b128 {v(QA,4)}, v16
        ds_read_b128 {v(QA+4,4)}, v16 offset:1024
        ds_read_b128 {v(QB+4,4)}, v16 offset:3072
        ds_read_b128 {v(QB,4)}, v16 offset:2048""")

    A.lab(f"{P}attn")
    if E('STOPG', 0): A.e(f"s_branch {P}end")
    st(A, "attn")
    W4K, W1K, I0, WKT, WSRC, OSRC, WOS = 14, 15, 58, 59, 60, 92, 94
    VOO, VWO, VW2 = ML, ML + 4, 191
    def la(off): return ([VL16, AC, AN][off >> 16], off & 0xffff)
    def rdK(addr, off): return [f"ds_read_b128 {v(KF+4*i,4)}, v{addr} offset:{off+1024*i}" for i in range(2)]
    def rdV(addr, off): return [f"ds_read_b128 {v(VF+4*i,4)}, v{addr} offset:{off+2048+1024*i}" for i in range(2)]
    cslot = lambda c: {0: 3, 1: 2, 2: 4}.get(c, c % 5)
    seq = [("A", j) for j in range(NB0)] + [("B", i) for i in range(9)] + [("A", j) for j in range(NB0, 64)]
    seq += [("A", 63), ("A", 63)]
    def taddr(n):
        k, j = seq[n]
        return la(cslot(j >> 3) * 32768 + (j & 7) * 4096) if k == "A" else (AB, j * 4096)
    def tq(n): return QA if seq[n][0] == "A" else QB
    def tc(n):
        k, j = seq[n]
        return "0" if k == "A" else (MU if j == 0 else ML if j == 8 else CM)
    def to(n): return (O, L) if seq[n][0] == "A" else (O2, L2)
    for x in rdK(*taddr(0)): A.e(x)
    A.e(f"""s_lshl_b32 s{W4K}, s3, 12
        s_lshl_b32 s{W1K}, s3, 10""")
    zero(PB[1], 8); zero(VF + 4, 4)
    A.e("s_waitcnt lgkmcnt(0)")
    A.e(mfma32(SB[0], KF, QA, "0"))
    A.e(mfma32(SB[0], KF + 4, QA + 4, SB[0]))
    for x in rdK(*taddr(1)): A.e(x)
    A.e(rdV(*taddr(0))[0])
    A.e(f"""s_sub_i32 s{I0}, 8, s{RT}
        s_lshl_b32 s{WKT}, s{RB}, 2
        s_lshr_b32 s56, s3, 2
        s_add_u32 s{WKT}, s{WKT}, s56
        s_sub_i32 s{WKT}, s{WKT}, 8
        s_lshr_b32 s{WSRC}, s{HEADB}, 1
        s_lshl_b32 s{WSRC}, s{WSRC}, 19
        s_and_b32 s56, s3, 3
        s_lshl_b32 s56, s56, 10
        s_add_u32 s{WSRC}, s{WSRC}, s56
        s_lshl_b32 s{OSRC}, s{RB2}, 2
        s_and_b32 s56, s3, 3
        s_add_u32 s{OSRC}, s{OSRC}, s56
        s_lshl_b32 s{OSRC}, s{OSRC}, 17
        s_lshr_b32 s56, s3, 2
        s_lshl_b32 s56, s56, 11
        s_add_u32 s{OSRC}, s{OSRC}, s56
        s_add_u32 s{OSRC}, s{OSRC}, {O_OFF}""")
    srd(A, SW_, "s18", "s19", 2 * MB)
    srd(A, SX_, "s12", "s13", 2 * MB)
    UO, OQ = 44, 4
    rot = [f"s_lshl_b32 s61, s{CBK}, 2" if ROT else "s_mov_b32 s61, 0", f"s_lshl_b32 s{WOS}, s{CBK}, 7"]
    for q in range(4):
        rot += [f"s_add_u32 s56, s61, {8*q}", "s_add_u32 s56, s56, s3", "s_and_b32 s56, s56, 31", "s_lshl_b32 s56, s56, 16", f"s_add_u32 s{UO+q}, s56, s{WOS}"]
    for h in range(8):
        rot += [f"s_add_u32 s56, s61, {4*h}", "s_and_b32 s56, s56, 31", "s_lshl_b32 s56, s56, 11", f"s_add_u32 s{OQ+h}, s56, s{OSRC}"]
    rot += [f"s_and_b32 s56, s{IDXS}, 3", "s_lshl_b32 s56, s56, 3", "s_add_u32 s56, s56, s3", "s_lshl_b32 s56, s56, 16", f"s_add_u32 s{WOS}, s{WOS}, s56"]
    vm = VM()
    def cpiece(c, i):
        return (f"C{c}", f"""s_add_u32 m0, s{W4K}, {cslot(c)*32768}
            s_add_u32 s57, s{W4K}, {KVA_OFF + c*32768}
            buffer_load_dwordx4 v{VL16}, {sr(WS)}, s57 offen offset:{i*1024} sc1 lds""")
    def wpiece(i):
        return ("W", f"""s_add_u32 m0, s{W1K}, {i*8192}
            s_add_i32 s57, s{WKT}, {2*(i%6)}
            s_max_i32 s57, s57, 0
            s_lshl_b32 s57, s57, 12
            s_add_u32 s57, s57, s{WSRC}
            s_add_u32 s57, s57, {KVB_OFF + (i//6)*64*4096}
            buffer_load_dwordx4 v{VL16}, {sr(WS)}, s57 offen sc1 lds""")
    def upiece(u, k):
        return (f"U{u}", f"""s_add_u32 m0, s{W4K}, {(u%5)*32768 + k*1024}
            s_add_u32 s57, s{UO+(u&3)}, {k*16384}
            buffer_load_dwordx4 v{VWO}, {sr(SW_ if u < 12 else SX_)}, s57 offen lds""")
    def warm(i):
        return ("Z", f"""s_add_u32 s57, s{WOS}, {(i&3)*16384}
            buffer_load_dwordx4 v[252:255], v{VW2}, {sr(SW_ if i < 4 else SX_)}, s57 offen""")
    def oload(n, half):
        cb, f = n >> 1, n & 1
        o = f"s_add_u32 s56, s{OQ+(cb>>1)}, {half*65536 + (cb&1)*4096}\n"
        return ("O", o + f"buffer_load_dwordx4 {v(OFR+4*n,4)}, v{VL16}, {sr(WS)}, s56 offen offset:{1024*f} sc1")
    def valu(lines): return (None, "\n".join(lines))
    bg = {n: [] for n in range(73)}
    for i in range(4): bg[i].append(cpiece(2, i))
    for i in range(4): bg[E1N + i // 2].append(cpiece(3, i))
    for i in range(12): bg[16 + i // 2].append(wpiece(i))
    bg[22].append(("G", f"""v_and_b32 v{TZ}, 31, v0
        v_lshlrev_b32 v{TZ}, 2, v{TZ}
        s_lshl_b32 s57, s{RT}, 7
        s_add_u32 s57, s57, {G_OFF}
        buffer_load_dword v{VG}, v{TZ}, {sr(WS)}, s57 offen sc1"""))
    for i in range(4): bg[26 + i // 2].append(cpiece(4, i))
    if WARM:
        for i in range(8): bg[28 + i].append(warm(i))
    for i in range(12): bg[39 + i // 3].append(cpiece(5 + i // 4, i & 3))
    for i in range(4): bg[45 + i].append(upiece(8, i))
    for i in range(4): bg[53 + i].append(upiece(9, i))
    for i in range(4): bg[57 + 2*i].append(upiece(10, i))
    for i in range(4): bg[65 + i].append(upiece(11, i))
    for i in range(32): bg[50 + (2 * i) // 3].append(oload(i, 1))
    for i in range(0, len(rot), 10): bg[8 + i // 20].append(valu(rot[i:i+10]))
    bg[4].append(valu([f"s_cmp_gt_i32 s{I0}, 0", f"s_cselect_b32 s56, {NEG}, 0", f"s_cselect_b32 s62, 0, 1.0", f"s_cmp_gt_i32 s{I0}, 1", f"s_cselect_b32 s63, {NEG}, 0", f"v_mov_b32 v{TZ}, {NEG}"]))
    for i in range(4):
        bg[4 + i].append(valu([f"v_fma_f32 v{MU+r}, -v{ML+r}, s62, v{TZ}" for r in range(4*i, 4*i+4)]))
        bg[12 + i].append(valu([f"v_mov_b32 v{CM+r}, s63" for r in range(4*i, 4*i+4)]))
        bg[12 + i].append(valu([f"v_mov_b32 v{O2+r}, 0" for r in range(5*i, 5*i+5)]))
    bg[23].append(valu([f"s_bfe_u32 s56, s3, 0x10001", "s_mul_i32 s56, s56, 49152", f"s_and_b32 s57, s{RT}, 3", "s_lshl_b32 s57, s57, 12", "s_add_u32 s56, s56, s57", f"v_add_u32 v{AB}, s56, v{VL16}"]))
    bg[24].append(valu([f"v_lshrrev_b32 v{VW2}, 3, v0", f"v_bfe_u32 v{TB}, v0, 4, 2", f"v_lshlrev_b32 v{TB}, 1, v{TB}", f"v_and_b32 v{TB+1}, 7, v0"]))
    bg[24].append(valu([f"v_xor_b32 v{TB}, v{TB}, v{TB+1}", f"v_lshlrev_b32 v{TB}, 4, v{TB}", f"v_lshl_add_u32 v{VW2}, v{VW2}, 11, v{TB}"]))
    bg[43].append(valu([f"v_mov_b32 v{VWO}, v{VW2}"]))
    ntr = [0]
    def bar(wait=None, pre=None, post=None):
        if pre:
            A.e(f"s_cmp_eq_u32 s3, 0\ns_cbranch_scc1 {P}{pre}")
            A.lab(f"{P}{pre}_r")
        if wait is not None: A.e(f"s_waitcnt vmcnt({wait})")
        A.e("s_barrier")
        if post:
            A.e(f"s_cmp_eq_u32 s3, 0\ns_cbranch_scc1 {P}{post}")
            A.lab(f"{P}{post}_r")
        trace(A, 34 + ntr[0]); ntr[0] += 1
    tops = {
        E1N: lambda: bar(0, post="sig1"),
        16: lambda: bar(vm.after("C3"), pre="poll1"),
        26: lambda: bar(vm.after("W")),
        39: lambda: bar(vm.after("C4")),
        45: lambda: bar(0, post="sig2"),
        50: lambda: bar(None, pre="poll2"),
        57: lambda: bar(None),
        65: lambda: bar(vm.after("U8")),
    }
    def step(n):
        par = n & 1
        S, Sn, Pc, Pp = SB[par], SB[1-par], PB[par], PB[1-par]
        b = list(bg[n])
        def B(k=1):
            for _ in range(k):
                if b:
                    tag, txt = b.pop(0)
                    A.e(txt)
                    if tag: vm.add(tag)
        oprev, lprev = to(max(n - 1, 0))
        A.e("s_waitcnt lgkmcnt(1)")
        if n in tops: tops[n]()
        k, j = seq[n + 1]
        if k == "B" and 2 <= j <= 7:
            A.e(f"s_cmp_eq_u32 s{I0}, {j}\ns_cbranch_scc1 {P}cm{j}")
            A.lab(f"{P}cm{j}_r")
        A.e(mfma32(Sn, KF, tq(n + 1), tc(n + 1)))
        A.e(rdK(*taddr(n + 2))[0])
        for j in (0, 1, 2, 3): A.e(ex(S, j))
        A.e(mfma32(oprev, VF + 4, Pp + 4, oprev))
        A.e(rdV(*taddr(n))[1])
        A.e(cv(Pc, S, 0)); A.e(cv(Pc, S, 1))
        B()
        for j in (4, 5, 6): A.e(ex(S, j))
        A.e(mfma32(Sn, KF + 4, tq(n + 1) + 4, Sn))
        A.e(rdK(*taddr(n + 2))[1])
        A.e(ex(S, 7)); A.e(cv(Pc, S, 2)); A.e(ex(S, 8)); A.e(cv(Pc, S, 3)); A.e(ex(S, 9))
        A.e(smf(lprev, Pp))
        A.e(ex(S, 10))
        B()
        A.e(ex(S, 11)); A.e(cv(Pc, S, 4))
        A.e("s_waitcnt lgkmcnt(3)")
        A.e(mfma32(to(n)[0], VF, Pc, to(n)[0]))
        A.e(rdV(*taddr(n + 1))[0])
        A.e(ex(S, 12)); A.e(cv(Pc, S, 5)); A.e(ex(S, 13))
        B(9)
        A.e(ex(S, 14)); A.e(ex(S, 15))
        A.e(cv(Pc, S, 6)); A.e(cv(Pc, S, 7))
    def finalize(tag, which, o, l, tmp):
        A.e(f"""v_add_f32 v{T0}, v{l}, v{l+1}
            v_mov_b32 v{tmp}, 0
            v_mov_b32 v{tmp+1}, 0
            v_mov_b32 v{tmp+2}, 0
            v_mov_b32 v{tmp+3}, 0""")
        for i in range(8):
            A.e(f"v_pk_fma_f32 {v(tmp,2)}, {v(o+2*i,2)}, {v(tmp+2,2)}, {v(tmp,2)}")
        A.e(f"""v_add_f32 v{tmp}, v{tmp}, v{tmp+1}
            v_add_f32 v{tmp}, v{tmp}, v{T0}
            v_cmp_le_f32 vcc, {f2u(2.0**-64)}, v{tmp}
            s_mov_b64 s[62:63], vcc
            v_cmp_ge_f32 vcc, {f2u(2.0**64)}, v{tmp}
            s_and_b64 vcc, vcc, s[62:63]
            s_cmp_eq_u64 vcc, -1
            s_cbranch_scc0 {P}slow{tag}""")
        A.lab(f"{P}norm{tag}")
        A.e(f"v_rcp_f32 v{T0}, v{T0}")
        if which == 0:
            A.e(f"""s_waitcnt vmcnt({vm.after('G')})
                v_sub_f32 v{tmp}, 1.0, v{VG}
                v_mul_f32 v{T0}, v{T0}, v{tmp}
                v_and_b32 v{VOO}, 15, v0
                v_bfe_u32 v{VOO+1}, v0, 4, 1
                v_lshrrev_b32 v{VOO+2}, 5, v0
                v_lshlrev_b32 v{VOO}, 4, v{VOO}
                v_lshl_add_u32 v{VOO}, v{VOO+1}, 10, v{VOO}
                v_lshl_add_u32 v{VOO}, v{VOO+2}, 8, v{VOO}""")
        else:
            A.e(f"s_nop 0\nv_mul_f32 v{T0}, v{T0}, v{VG}")
        for i in range(16): A.e(f"v_mul_f32 v{o+i}, v{o+i}, v{T0}")
        for i in range(8): A.e(f"v_cvt_pk_bf16_f32 v{tmp+i}, v{o+2*i}, v{o+2*i+1}")
        A.e(f"""s_lshl_b32 s56, s{RT}, 6
            s_add_u32 s56, s56, s{HEADB if which == 0 else HEAD}
            s_lshl_b32 s56, s56, 11
            s_add_u32 s56, s56, {O_OFF + (32*2048 if which == 0 else 0)}
            buffer_store_dwordx4 {v(tmp,4)}, v{VOO}, {sr(WS)}, s56 offen sc1
            buffer_store_dwordx4 {v(tmp+4,4)}, v{VOO}, {sr(WS)}, s56 offen offset:512 sc1""")
        vm.add("S" + tag, 2)
    for n in range(73):
        step(n)
        if n == NB0 + 9: finalize("B", 0, O2, L2, TB)
    A.e("s_waitcnt lgkmcnt(0)")
    A.e(mfma32(O, VF + 4, PB[0] + 4, O))
    A.e(smf(L, PB[0]))
    st(A, "aend")
    AWO, OAC = 16, 64
    WFO = [32, 48]
    TA = SB[0]
    A.e(f"""v_lshrrev_b32 v20, 4, v0
        v_bfe_u32 v21, v0, 2, 2
        v_and_b32 v22, 1, v20
        v_lshl_add_u32 v22, v22, 2, v21
        v_lshrrev_b32 v23, 1, v20
        v_lshl_add_u32 v23, v23, 4, v22
        v_lshlrev_b32 v23, 7, v23
        v_and_b32 v20, 3, v0
        v_lshl_add_u32 v23, v20, 3, v23
        s_lshr_b32 s56, s3, 2
        s_lshl_b32 s56, s56, 12
        s_add_u32 s56, s56, {3*32768}
        v_add_u32 v23, s56, v23
        v_lshrrev_b32 v22, 1, v22""")
    for nb in range(4):
        A.e(f"v_xor_b32 v20, {nb}, v22\nv_lshl_add_u32 v{AWO+nb}, v20, 5, v23")
    finalize("A", 1, O, L, TA)
    st(A, "afin")

    def oreads(buf, i):
        return [f"ds_read_b64_tr_b16 {v(WFO[buf]+4*nb+2*jh,2)}, v{AWO+nb} offset:{i*8192+jh*1024}" for nb in range(4) for jh in range(2)]
    for r in oreads(0, 0): A.e(r)
    zero(OAC + 8, 24); zero(OAC, 8)
    oidx = [i for i, t in enumerate(vm.q) if t == "O"]
    def emit(x):
        A.e(x[1]); vm.add(x[0])
    def quarter(u, pre_last=None, waits=None, bgq=None):
        q = u & 3
        for i in range(4):
            buf = i & 1
            ms = [mfma16(OAC + 4*(f*4+nb), WFO[buf]+4*nb, OFR+32*q+8*i+4*f, OAC + 4*(f*4+nb)) for nb in range(4) for f in range(2)]
            w = waits(i) if waits else None
            A.e("s_waitcnt lgkmcnt(0)" if w is None else f"s_waitcnt lgkmcnt(0) vmcnt({w})")
            if i < 3:
                rd = oreads(1 - buf, i + 1)
            elif u < 15:
                dl = ((u+1) % 5 - u % 5) * 32768
                for nb in range(4): A.e(f"v_add_u32 v{AWO+nb}, {dl & 0xffffffff}, v{AWO+nb}")
                if pre_last: pre_last()
                rd = oreads(1 - buf, 0)
            else:
                rd = []
            b = list(bgq(i)) if bgq else []
            for k in range(8):
                A.e(ms[k])
                if k < 4 and rd: A.e(rd[2*k]); A.e(rd[2*k+1])
                if k >= 3 and b: emit(b.pop(0))
            while b: emit(b.pop(0))
    def y1():
        st(A, "y1a")
        A.e("s_waitcnt vmcnt(0)\ns_barrier")
        st(A, "y1")
        A.e(f"""s_cmp_lg_u32 s3, 0
            s_cbranch_scc1 {P}y1""")
        signal(RB, 3, AN)
        A.lab(f"{P}y1")
    def y2(): A.e("s_barrier")
    def y3():
        st(A, "y3a")
        A.e(f"""s_cmp_lg_u32 s3, 0
            s_cbranch_scc1 {P}pd3
            v_mov_b32 v20, 0
            s_lshl_b32 s62, s{RB2}, 4""")
        poll("3", 20, "s62", 12, 16, False)
        A.e("s_barrier")
        st(A, "y3")
    def y4(): A.e(f"s_waitcnt vmcnt({vm.after('U15')})\ns_barrier")
    wo = upiece
    nxt = [0]
    def take(n, lim):
        o = []
        while n > 0 and nxt[0] < lim:
            t, x = oload(nxt[0], 0)
            o.append((f"OA{nxt[0]}", x)); nxt[0] += 1; n -= 1
        return o
    quarter(8, y1, waits=lambda i: (len(vm.q) - 1 - oidx[7]) if i == 0 else None, bgq=lambda i: [wo(12, 0), wo(12, 1)] if i == 3 else [])
    quarter(9, y2, bgq=lambda i: [[wo(12, 2), wo(12, 3)], [wo(13, 0), wo(13, 1)], [wo(13, 2), wo(13, 3)], [wo(14, 0)]][i])
    quarter(10, y3, bgq=lambda i: [wo(14, i + 1)] if i < 3 else [wo(15, k) for k in range(4)] + take(LPS, 16))
    quarter(11, y4, bgq=lambda i: take(LPS, 24))
    st(A, "y4")
    for u in range(12, 16):
        quarter(u, None, waits=lambda i: vm.after(f"OA{8*(u-12)+2*i+1}"), bgq=lambda i: take(2, 32))
    st(A, "oend")
    A.e(f"""s_lshl_b32 s56, s3, 12
        s_add_u32 s56, s56, {1*32768}
        v_add_u32 v20, s56, v{VL16}
        v_xor_b32 v21, 16384, v20
        s_cmp_ge_u32 s3, 4
        s_cbranch_scc1 {P}x1
        s_nop 3""")
    for nb in range(4): A.e(f"ds_write_b128 v20, {v(OAC+16+4*nb,4)} offset:{1024*nb}")
    A.e(f"s_branch {P}x2")
    A.lab(f"{P}x1")
    A.e("s_nop 3")
    for nb in range(4): A.e(f"ds_write_b128 v20, {v(OAC+4*nb,4)} offset:{1024*nb}")
    for i in range(16): A.e(f"v_mov_b32 v{OAC+i}, v{OAC+16+i}")
    A.lab(f"{P}x2")
    srd(A, SX_, "s22", "s23", 4 * MB)
    A.e(f"""s_lshl_b32 s56, s{RB2}, 2
        s_and_b32 s57, s3, 3
        s_add_u32 s56, s56, s57
        s_lshl_b32 s56, s56, 1
        s_lshr_b32 s57, s3, 2
        s_add_u32 s56, s56, s57
        s_lshl_b32 s56, s56, 15
        s_lshl_b32 s57, s{CBK}, 7
        s_add_u32 s56, s56, s57
        v_and_b32 v22, 15, v0
        v_lshlrev_b32 v22, 11, v22
        v_bfe_u32 v23, v0, 4, 1
        v_lshl_add_u32 v22, v23, 5, v22
        v_lshrrev_b32 v23, 5, v0
        v_lshl_add_u32 v22, v23, 4, v22
        s_waitcnt lgkmcnt(0)
        s_barrier""")
    for nb in range(4): A.e(f"ds_read_b128 {v(32+4*nb,4)}, v21 offset:{1024*nb}")
    A.e("s_waitcnt lgkmcnt(0)")
    for i in range(16): A.e(f"v_add_f32 v{OAC+i}, v{OAC+i}, v{32+i}")
    pack(48, [[OAC + 4*(2*a+b) for b in range(2)] for a in range(2)], False)
    A.e(f"""buffer_store_dwordx4 {v(48,4)}, v22, {sr(SX_)}, s56 offen
        buffer_store_dwordx4 {v(52,4)}, v22, {sr(SX_)}, s56 offen offset:64""")
    A.lab(f"{P}end")
    stamp_flush(A, 0)
    trace_flush(A)
    A.lab(f"{P}end2")
    A.e("s_endpgm")

    AX, AW, VKO = 96, 98, 100
    XF, WF = [32, 48], 64
    ACC = 128
    A.lab(f"{P}compute")
    if PFC:
        A.e("s_getpc_b64 s[66:67]")
        A.lab(f"{P}pcref")
        A.e(f"""s_sub_u32 s66, s66, {P}pcref-{name}
            s_subb_u32 s67, s67, 0
            s_lshl_b32 s56, s3, 5
            s_add_u32 s56, s56, s{IDXS}
            s_lshl_b32 s56, s56, 10
            v_add_u32 v101, s56, v{VL16}
            v_min_u32 v101, {P}last-{name}-16, v101
            s_cmp_ge_u32 s56, {P}last-{name}
            s_cbranch_scc1 {P}npc
            global_load_dwordx4 v[104:107], v101, s[66:67]""")
        A.lab(f"{P}npc")
    A.e(f"""v_and_b32 v8, 15, v0
        v_lshrrev_b32 v9, 4, v0
        v_bfe_u32 v10, v0, 1, 3
        s_and_b32 s56, s3, 1
        s_lshl_b32 s56, s56, 13
        v_xor_b32 v11, v9, v10
        v_lshlrev_b32 v11, 4, v11
        v_lshl_add_u32 v11, v8, 7, v11
        v_add_u32 v{AX}, s56, v11
        v_xor_b32 v{AX+1}, 64, v{AX}
        v_bfe_u32 v12, v0, 2, 2
        v_and_b32 v13, 3, v0
        v_lshl_add_u32 v14, v9, 3, v12
        v_lshlrev_b32 v14, 7, v14
        v_lshl_add_u32 v14, v13, 3, v14
        v_bfe_u32 v15, v0, 3, 2
        s_and_b32 s56, s3, 2
        v_xor_b32 v15, s56, v15
        v_lshl_add_u32 v14, v15, 5, v14
        v_add_u32 v{AW}, {XSZ}, v14
        v_xor_b32 v{AW+1}, 32, v{AW}
        v_and_b32 v8, 0x33, v0
        v_bfe_u32 v9, v0, 2, 1
        v_bfe_u32 v10, v0, 3, 1
        v_lshl_or_b32 v8, v9, 3, v8
        v_lshl_or_b32 v8, v10, 2, v8
        v_lshlrev_b32 v{VKO}, 4, v8
        s_waitcnt lgkmcnt(0)""")
    common_setup()
    if TOUCH:
        A.e(f"""s_cmp_lg_u32 s3, 2
            s_cbranch_scc1 {P}nt
            v_lshlrev_b32 v108, 19, v0
            buffer_load_dword v109, v108, {sr(WS)}, 0 offen sc1
            v_and_b32 v108, 1, v0
            v_lshlrev_b32 v108, 20, v108
            global_load_dword v109, v108, s[12:13]
            global_load_dword v109, v108, s[18:19]
            v_lshlrev_b32 v108, 1, v108
            global_load_dword v109, v108, s[22:23]""")
        A.lab(f"{P}nt")
    zero(ACC, 128)
    A.e(f"""s_mov_b32 s58, 0
        s_mov_b32 s59, 0
        s_mov_b32 s60, {(-ST) & 0xffffffff}
        s_mov_b32 s61, {2*ST}
        s_mov_b32 s63, {f2u(CSCALE)}
        s_and_b32 s57, s{HEAD}, 24
        s_add_u32 s92, s{HEAD}, {4*GROT}
        s_and_b32 s92, s92, 7
        s_or_b32 s92, s92, s57
        s_lshl_b32 s92, s92, 6
        s_add_u32 s92, s92, s{RT}
        s_lshl_b32 s92, s92, 12
        s_add_u32 s92, s92, {KVB_OFF}
        s_add_u32 s93, s92, 4096
        s_add_u32 s96, s{HEAD}, {6*GROT}
        s_and_b32 s96, s96, 7
        s_or_b32 s96, s96, s57
        s_lshl_b32 s96, s96, 6
        s_add_u32 s96, s96, s{RT}
        s_lshl_b32 s96, s96, 12
        s_add_u32 s96, s96, {KVB_OFF}
        s_add_u32 s97, s96, 4096
        s_cmp_lt_u32 s{HP}, 12
        s_cselect_b32 s94, 5, -1
        s_cmp_eq_u32 s3, 0
        s_cselect_b32 s94, s94, -1
        s_lshr_b32 s95, s{HP}, 2
        s_lshl_b32 s95, s95, 3
        s_lshl_b32 s95, 0x100, s95""")
    def rx(buf, ks, mb): return f"ds_read_b128 {v(XF[buf]+4*mb,4)}, v{AX+ks} offset:{mb*2048}"
    def rw(nb, ks, jh): return f"ds_read_b64_tr_b16 {v(WF+4*nb+2*jh,2)}, v{AW+(nb&1)} offset:{(nb>>1)*8192+ks*4096+jh*512}"
    st(A, "setup")
    A.e("s_barrier")
    st(A, "g0")
    for mb in range(4): A.e(rx(0, 0, mb))
    for nb in range(8):
        for jh in range(2): A.e(rw(nb, 0, jh))
        if nb == 4: A.e("s_waitcnt lgkmcnt(4)")
    A.raw(".p2align 6")
    A.lab(f"{P}g1")
    acc = lambda mb, nb: ACC + 4 * (nb * 4 + mb)
    for ks in range(2):
        for nb in range(8):
            if nb == 0: A.e("s_waitcnt lgkmcnt(4)")
            elif nb % 2 == 0: A.e("s_waitcnt lgkmcnt(8)") if not (ks == 1) else None
            for mb in range(4):
                d = acc(mb, nb)
                x, w = XF[ks] + 4 * mb, WF + 4 * nb
                A.e(mfma16(d, x, w, d) if nb >= 6 else mfma16(d, w, x, d))
                if ks == 1 and nb == 0:
                    if mb == 0:
                        A.e(f"""s_cmp_eq_u32 s58, 0
                            s_cselect_b32 s62, s61, s60
                            s_add_u32 s58, s58, s62""")
                    if mb == 1:
                        A.e(f"v_add_u32 v{AX}, s62, v{AX}\nv_add_u32 v{AX+1}, s62, v{AX+1}")
                    if mb == 2:
                        A.e(f"v_add_u32 v{AW}, s62, v{AW}\nv_add_u32 v{AW+1}, s62, v{AW+1}\ns_add_u32 s59, s59, 1")
                    if mb == 3:
                        A.e(f"""s_cmp_eq_u32 s59, s94
                            s_waitcnt lgkmcnt(0)
                            s_barrier
                            s_cbranch_scc1 {P}sig0""")
                        A.lab(f"{P}sig0_r")
                if nb >= 1 and mb < 2: A.e(rw(nb - 1, 1 - ks, mb))
                if 1 <= nb <= 4 and mb == 2: A.e(rx(1 - ks, 1 - ks, nb - 1))
                if ks == 1 and nb == 7 and mb == 2: A.e("s_cmp_lg_u32 s59, 16")
        A.e(rw(7, 1 - ks, 0)); A.e(rw(7, 1 - ks, 1))
    A.e(f"s_cbranch_scc1 {P}g1")
    st(A, "gend")
    T = 101
    A.e("s_waitcnt vmcnt(0)")
    A.e(f"""s_lshl_b32 s56, s3, 12
        s_add_u32 s56, s56, {MISC}
        v_add_u32 v{AX}, s56, v{VL16}""")
    pack(QA, [[acc(2+rbk, db) for rbk in range(2)] for db in range(2)], False)
    pack(QB, [[acc(2+rbk, 2+db) for rbk in range(2)] for db in range(2)], False)
    A.e(f"""ds_write_b128 v{AX}, {v(QA,4)}
        ds_write_b128 v{AX}, {v(QA+4,4)} offset:1024
        ds_write_b128 v{AX}, {v(QB,4)} offset:2048
        ds_write_b128 v{AX}, {v(QB+4,4)} offset:3072
        s_waitcnt lgkmcnt(0)
        s_barrier""")
    for rtl in range(2):
        tk, tv = 32 + 16 * rtl, 40 + 16 * rtl
        so = "s92" if rtl == 0 else "s93"
        pack(tk, [[acc(2*rtl+rbk, 4+db) for rbk in range(2)] for db in range(2)], True)
        A.e(f"""buffer_store_dwordx4 {v(tk,4)}, v{VKO}, {sr(WS)}, {so} offen sc1
            buffer_store_dwordx4 {v(tk+4,4)}, v{VKO}, {sr(WS)}, {so} offen offset:1024 sc1""")
        pack(tv, [[acc(2*rtl+kb, 6+db) for db in range(2)] for kb in range(2)], False)
        so = "s96" if rtl == 0 else "s97"
        A.e(f"""buffer_store_dwordx4 {v(tv,4)}, v{VL16}, {sr(WS)}, {so} offen offset:2048 sc1
            buffer_store_dwordx4 {v(tv+4,4)}, v{VL16}, {sr(WS)}, {so} offen offset:3072 sc1""")
    pack(QA, [[acc(rbk, db) for rbk in range(2)] for db in range(2)], False)
    pack(QB, [[acc(rbk, 2+db) for rbk in range(2)] for db in range(2)], False)
    zero(O, 16)
    A.e(f"s_branch {P}attn")

    A.lab(f"{P}sig0")
    signal(RB, 0, T, "s95")
    A.e(f"""s_mov_b32 s95, 1
        s_cmp_lt_u32 s{HP}, 8
        s_cselect_b32 s94, {TPA+3}, -1
        s_branch {P}sig0_r""")
    for ph in (1, 2):
        A.lab(f"{P}sig{ph}")
        signal(RB, ph, TZ + 1)
        A.e(f"s_branch {P}sig{ph}_r")
    A.lab(f"{P}poll1")
    A.e(f"""v_and_b32 v{TZ+1}, 3, v0
        v_min_u32 v{TZ+1}, 2, v{TZ+1}
        v_sub_u32 v{TZ+1}, s{RB}, v{TZ+1}
        v_max_i32 v{TZ+1}, 0, v{TZ+1}
        v_lshlrev_b32 v{TZ+1}, 4, v{TZ+1}""")
    poll("1", TZ + 1, "0", 4, 16, False)
    A.e(f"s_branch {P}poll1_r")
    A.lab(f"{P}poll2")
    A.e(f"""v_mov_b32 v{TZ+1}, 0
        s_lshl_b32 s62, s{RB2}, 4""")
    poll("2", TZ + 1, "s62", 8, 16, False)
    A.e(f"s_branch {P}poll2_r")
    for j in range(2, 8):
        A.lab(f"{P}cm{j}")
        zero(CM, 16)
        A.e(f"s_nop 0\ns_branch {P}cm{j}_r")

    def slow(tag, q, o, l, kf, vf, S, C, Pp, M, setup):
        A.lab(f"{P}slow{tag}")
        A.e("s_waitcnt vmcnt(0)")
        A.e(setup)
        zero(o, 16); zero(l, 4)
        A.e(f"""v_mov_b32 v{M}, {NEG}
            s_mov_b32 s99, 0""")
        A.lab(f"{P}spass{tag}")
        A.e("s_mov_b32 s100, s98")
        A.lab(f"{P}stile{tag}")
        A.e(f"""s_lshl_b32 s56, s100, 12
            s_add_u32 s56, s56, s101
            buffer_load_dwordx4 {v(kf,4)}, v{VL16}, {sr(WS)}, s56 offen sc1
            buffer_load_dwordx4 {v(kf+4,4)}, v{VL16}, {sr(WS)}, s56 offen offset:1024 sc1
            buffer_load_dwordx4 {v(vf,4)}, v{VL16}, {sr(WS)}, s56 offen offset:2048 sc1
            buffer_load_dwordx4 {v(vf+4,4)}, v{VL16}, {sr(WS)}, s56 offen offset:3072 sc1
            s_cmp_eq_u32 s100, s96
            s_cselect_b32 s56, {NEG}, 0
            s_cmp_eq_u32 s100, s97
            s_cselect_b32 s57, {NEG}, 0
            v_mov_b32 v{M+2}, s56
            v_mov_b32 v{M+3}, s57""")
        for r in range(16):
            A.e(f"""v_cmp_le_i32 vcc, {keyl(r)}, v{VD}
                s_nop 1
                v_cndmask_b32 v{C+r}, v{M+2}, v{M+3}, vcc""")
        A.e("s_waitcnt vmcnt(0)\ns_nop 0")
        A.e(mfma32(S, kf, q, C))
        A.e(mfma32(S, kf + 4, q + 4, S))
        A.e(f"""s_nop 7
            s_nop 7
            s_cmp_eq_u32 s99, 0
            s_cbranch_scc0 {P}sp2{tag}""")
        for r in range(16): A.e(f"v_max_f32 v{M}, v{M}, v{S+r}")
        A.e(f"s_branch {P}snext{tag}")
        A.lab(f"{P}sp2{tag}")
        for r in range(16): A.e(f"v_sub_f32 v{S+r}, v{S+r}, v{M}")
        for r in range(16): A.e(ex(S, r))
        A.e("s_nop 0")
        for i in range(8): A.e(cv(Pp, S, i))
        A.e("s_nop 1")
        A.e(mfma32(o, vf, Pp, o))
        A.e(mfma32(o, vf + 4, Pp + 4, o))
        A.e(smf(l, Pp))
        A.e("s_nop 7\ns_nop 7")
        A.lab(f"{P}snext{tag}")
        A.e(f"""s_add_u32 s100, s100, 1
            s_cmp_le_u32 s100, s95
            s_cbranch_scc1 {P}stile{tag}
            s_cmp_eq_u32 s99, 0
            s_cbranch_scc0 {P}sdone{tag}
            v_mov_b32 v{M+1}, v{M}
            s_nop 1
            v_permlane32_swap_b32 v{M}, v{M+1}
            s_nop 1
            v_max_f32 v{M}, v{M}, v{M+1}
            s_mov_b32 s99, 1
            s_branch {P}spass{tag}""")
        A.lab(f"{P}sdone{tag}")
        A.e(f"""v_add_f32 v{T0}, v{l}, v{l+1}
            s_branch {P}norm{tag}""")
    slow("B", QB, O2, L2, 192, 200, 208, 224, 240, 248,
         f"""s_lshl_b32 s101, s{HEADB}, 18
            s_add_u32 s101, s101, {KVB_OFF}
            s_sub_i32 s97, s{RT}, 8
            s_max_i32 s98, s97, 0
            s_mov_b32 s95, s{RT}
            s_mov_b32 s96, s{RT}""")
    slow("A", QA, O, L, KF, VF, SB[0], SB[1], PB[0], ML + 8,
         f"""s_mov_b32 s101, {KVA_OFF}
            s_mov_b32 s98, 0
            s_mov_b32 s95, 63
            s_mov_b32 s96, -1
            s_mov_b32 s97, -1""")
    A.raw(".p2align 4")
    A.lab(f"{P}last")
    A.e("s_endpgm")
    return kernel_desc(name, 256, 102)

if __name__ == "__main__":
    ref = open(f"cdna_kernels/{NAME}.s.ref").read().split("\n")
    hdr = [l for l in ref if l.startswith(";") and "@launch" not in l]
    A = Asm()
    d = gen(A, NAME + "_kernel")
    out = "\n".join(hdr) + "\n" + f"; @launch grid=(256,1,1) block=(512,1,1) lds={LDS}\n"
    out += '.amdgcn_target "amdgcn-amd-amdhsa--gfx950"\n.text\n' + A.text() + '.section .rodata,"a"\n' + d
    path = sys.argv[1] if len(sys.argv) > 1 else f"cdna_kernels/{NAME}.s"
    open(path, "w").write(out)
    print("wrote", path, len(out))
```

```python
from common import *
import sys
E = lambda k, d: int(os.environ.get(k, d))
STAG = 4
PART_OFF = 0
TPA = E('TPA', 7)
WARM = E('WARM', 1)
E1N = E('E1N', 11)
TPOLL = E('TPOLL', 14)
LPRIO = E('LPRIO', 3)
LPS = E('LPS', 2)
ROT = E('ROT', 1)
SLP = E('SLP', 12)
PFC = E('PFC', 0)
TOUCH = E('TOUCH', 0)
ZIG = E('ZIG', 3)
SFIRST = E('SFIRST', 1)
OFL = os.environ.get('OFL', '')
NB0 = 28

XSZ = 16384
ST = 49152
MISC = 3 * ST
LDS = 163840
NEG = f2u(-1e30)
SPIN = 200000

VL16, AC, AN, VG, IDX, VD, T0 = 1, 2, 3, 4, 5, 6, 7
ONES, L = 8, 12
QB, QA = 16, 24
KF, VF = 32, 40
PB = [48, 56]
SB = [64, 80]
O = 96
ML = 112
OFR = 128
O2, L2, MU, CM, TB, AB, TZ = 128, 144, 148, 164, 180, 188, 189
WS, DBG, SX_, SW_, SS_ = 28, 32, 36, 40, 44
RB, HP, XCD, IDXS, RT, HEAD, RB2, CBK = 48, 49, 50, 51, 52, 53, 54, 55
HEADB = 65
GROT = E('GROT', 1)

def sr(b): return f"s[{b}:{b+3}]"
def mfma16(d, a, b, c):
    cs = c if isinstance(c, str) else v(c, 4)
    return f"v_mfma_f32_16x16x32_bf16 {v(d,4)}, {v(a,4)}, {v(b,4)}, {cs}"
def smf(l, p): return f"v_smfmac_f32_16x16x64_bf16 {v(l,4)}, {v(ONES,4)}, {v(p,8)}, v{IDX}"
def ex(S, i): return f"v_exp_f32 v{S+i}, v{S+i}"
def cv(Pp, S, i): return f"v_cvt_pk_bf16_f32 v{Pp+i}, v{S+2*i}, v{S+2*i+1}"
def keyl(r): return 16 * (r >> 3) + 4 * ((r >> 2) & 1) + (r & 3)

TRN = "setup,g0,pla,pl0,gend,attn,aend,afin,y1a,y1,y3a,y3,y4,oend".split(",")
TRL = {n: 44 + i for i, n in enumerate(TRN)}
def st(A, nm):
    if DIAG: trace(A, TRL[nm])

class VM:
    def __init__(self): self.q = []
    def add(self, tag, n=1): self.q += [tag] * n
    def after(self, *tags):
        last = max(i for i, t in enumerate(self.q) if t in tags)
        return len(self.q) - 1 - last

def pack_list(dst, blk, scale):
    o = []
    for a in range(2):
        for b in range(2):
            d = blk[a][b]
            if scale:
                for i in range(2): o.append(f"v_pk_mul_f32 {v(d+2*i,2)}, {v(d+2*i,2)}, s[62:63]")
            for i in range(2): o.append(f"v_cvt_pk_bf16_f32 v{dst+a*4+b*2+i}, v{d+2*i}, v{d+2*i+1}")
    for a in range(2):
        for i in range(2): o.append(f"v_permlane16_swap_b32 v{dst+a*4+i}, v{dst+a*4+2+i}")
    return o

def gen(A, name):
    P = "f_"
    kernel_head(A, name)
    A.e(f"""s_cmp_ge_u32 s2, 256
        s_cbranch_scc1 {P}end2""")
    stamp_init(A)
    if E('SCR', 0):
        A.e("""s_lshr_b32 s56, s2, 3
            s_lshr_b32 s57, s2, 5
            s_xor_b32 s56, s56, s57
            s_and_b32 s56, s56, 7
            s_xor_b32 s2, s2, s56""")
    A.e(f"""s_load_dwordx8 s[4:11], s[0:1], 0
        s_load_dwordx8 s[16:23], s[0:1], 48
        s_load_dwordx4 s[24:27], s[0:1], 80
        s_load_dwordx2 s[12:13], s[0:1], 32
        v_lshrrev_b32 v1, 6, v0
        v_and_b32 v0, 63, v0
        v_readfirstlane_b32 s3, v1
        s_and_b32 s{XCD}, s2, 7
        s_lshr_b32 s{IDXS}, s2, 3
        s_and_b32 s{RB}, s{XCD}, 1
        s_lshl_b32 s{RB}, s{RB}, 3
        s_and_b32 s56, s{IDXS}, 7
        s_add_u32 s{RB}, s{RB}, s56
        s_lshr_b32 s{HP}, s{XCD}, 1
        s_lshl_b32 s{HP}, s{HP}, 2
        s_lshr_b32 s56, s{IDXS}, 3
        s_add_u32 s{HP}, s{HP}, s56
        v_lshlrev_b32 v{VL16}, 4, v0
        s_cmp_lt_u32 s3, 4
        s_cbranch_scc1 {P}compute""")

    def common_setup():
        A.e(f"""s_and_b32 s{RB2}, s{XCD}, 3
            s_lshl_b32 s{RB2}, s{RB2}, 2
            s_and_b32 s56, s{IDXS}, 3
            s_add_u32 s{RB2}, s{RB2}, s56
            s_lshr_b32 s{CBK}, s{XCD}, 2
            s_lshl_b32 s{CBK}, s{CBK}, 3
            s_lshr_b32 s56, s{IDXS}, 2
            s_add_u32 s{CBK}, s{CBK}, s56
            s_and_b32 s56, s3, 1
            s_lshl_b32 s56, s56, 1
            s_lshr_b32 s57, s3, 2
            s_add_u32 s56, s56, s57
            s_lshl_b32 s{RT}, s{RB}, 2
            s_add_u32 s{RT}, s{RT}, s56
            s_bfe_u32 s56, s3, 0x10001
            s_lshl_b32 s{HEAD}, s{HP}, 1
            s_add_u32 s{HEAD}, s{HEAD}, s56
            s_add_u32 s56, s{HEAD}, {2*GROT}
            s_and_b32 s56, s56, 7
            s_and_b32 s57, s{HEAD}, 24
            s_or_b32 s{HEADB}, s56, s57""")
        srd(A, WS, "s26", "s27", WS_USED)
        srd(A, DBG, "s24", "s25", 256)
        A.e(f"""v_and_b32 v{T0}, 31, v0
            v_lshrrev_b32 v{VG}, 5, v0
            v_lshlrev_b32 v{VG}, 3, v{VG}
            v_sub_u32 v{VD}, v{T0}, v{VG}
            v_mov_b32 v{VG}, {NEG}""")
        for r in range(16):
            A.e(f"""v_cmp_le_i32 vcc, {keyl(r)}, v{VD}
                s_nop 1
                v_cndmask_b32 v{ML+r}, v{VG}, 0, vcc""")
        A.e(f"""v_and_b32 v{T0}, 4, v0
            v_cmp_eq_u32 vcc, 0, v{T0}
            v_mov_b32 v{VG}, 0x3f803f80
            v_and_b32 v{T0}, 1, v0
            v_cndmask_b32 v{ONES}, 0, v{VG}, vcc
            v_cndmask_b32 v{ONES+1}, 0, v{VG}, vcc
            v_cndmask_b32 v{ONES+2}, v{VG}, 0, vcc
            v_cndmask_b32 v{ONES+3}, v{VG}, 0, vcc
            v_cmp_eq_u32 vcc, 0, v{T0}
            v_mov_b32 v{T0}, 0x4444
            v_mov_b32 v{VG}, 0xeeee
            v_cndmask_b32 v{IDX}, v{VG}, v{T0}, vcc
            v_add_u32 v{AC}, 0x10000, v{VL16}
            v_add_u32 v{AN}, 0x20000, v{VL16}""")
        for i in range(4): A.e(f"v_mov_b32 v{L+i}, 0")
        if DIAG: A.e(f"v_mov_b32 v{VD}, 0")
    def pack(dst, blk, scale):
        for x in pack_list(dst, blk, scale): A.e(x)
    def zero(base, n):
        for i in range(n): A.e(f"v_mov_b32 v{base+i}, 0")
    def signal(rbreg, phase, t1, inc="1"):
        A.e(f"""s_mov_b64 exec, 1
            v_mov_b32 v{T0}, {inc}
            v_mov_b32 v{t1}, 0
            s_lshl_b32 s56, s{rbreg}, 4
            buffer_atomic_add v{T0}, v{t1}, {sr(DBG)}, s56 offen offset:{4*phase} sc1
            s_mov_b64 exec, -1""")
    def poll(tag, voff, soff, ioff, target, first_issued, field=None):
        A.e(f"s_mov_b32 s57, {SPIN}")
        if first_issued: A.e(f"s_branch {P}pc{tag}")
        A.lab(f"{P}pl{tag}")
        A.e(f"""buffer_load_dword v{T0}, v{voff}, {sr(DBG)}, {soff} offen offset:{ioff} sc1
            s_waitcnt vmcnt(0)""")
        A.lab(f"{P}pc{tag}")
        if field is not None: A.e(f"v_bfe_u32 v{T0}, v{T0}, {field}, 8")
        A.e(f"""v_cmp_le_u32 vcc, {target}, v{T0}
            s_cmp_eq_u64 vcc, -1
            s_cbranch_scc1 {P}pd{tag}
            s_sleep {SLP}
            s_sub_u32 s57, s57, 1
            s_cmp_lg_u32 s57, 0
            s_cbranch_scc1 {P}pl{tag}""")
        A.lab(f"{P}pd{tag}")
    gslot = lambda t: ((15 - t) % 3) * ST

    VX, VW, VS, AXS, AWS = 128, 130, 132, 136, 133
    SXF, SWF, SA = 144, 176, 208
    LW, KIND, PHI = 14, 15, 92
    XB, WB, WSTEP, KT, L4K, L8K, PSRC = 93, 94, 96, 98, 99, 100, 101
    A.e(f"""s_setprio {LPRIO}
        s_sub_u32 s{LW}, s3, 4
        v_lshrrev_b32 v9, 3, v0
        v_and_b32 v16, 7, v0
        v_lshrrev_b32 v17, 4, v0
        v_xor_b32 v17, v17, v16
        v_lshlrev_b32 v17, 4, v17
        v_lshl_add_u32 v{VX}, v9, 11, v17
        v_xor_b32 v{VX+1}, 64, v{VX}
        s_cmp_eq_u32 s{LW}, 0
        s_mov_b32 s57, 6144
        s_cselect_b32 s57, 2048, s57
        v_bfe_u32 v17, v0, 4, 1
        v_lshlrev_b32 v17, 1, v17
        v_xor_b32 v17, v17, v16
        v_lshlrev_b32 v17, 4, v17
        v_mul_u32_u24 v18, s57, v9
        v_add_u32 v{VW}, v18, v17
        v_xor_b32 v{VW+1}, 64, v{VW}
        s_lshl_b32 s{WSTEP}, s57, 3
        s_lshl_b32 s{XB}, s{RB}, 18
        s_lshl_b32 s56, s{LW}, 16
        s_add_u32 s{XB}, s{XB}, s56
        s_max_u32 s56, s{LW}, 1
        s_sub_u32 s56, s56, 1
        s_lshl_b32 s56, s56, 11
        s_mul_i32 s57, s{LW}, {GROT}
        s_add_u32 s57, s57, s{HP}
        s_and_b32 s57, s57, 3
        s_and_b32 s{WB}, s{HP}, 12
        s_or_b32 s57, s57, s{WB}
        s_lshl_b32 s57, s57, 7
        s_add_u32 s{WB}, s56, s57
        s_add_u32 s{PHI}, s{RB}, s{HP}
        s_and_b32 s{PHI}, s{PHI}, 3
        s_lshl_b32 s{KT}, s{PHI}, 2
        s_lshl_b32 s{L4K}, s{LW}, 12
        s_lshl_b32 s{L8K}, s{LW}, 13
        s_cmp_eq_u32 s{LW}, 0
        s_waitcnt lgkmcnt(0)
        s_cselect_b32 s{SW_}, s6, s16
        s_cselect_b32 s{SW_+1}, s7, s17
        s_mov_b32 s{SW_+2}, {6*MB}
        s_cselect_b32 s{SW_+2}, {2*MB}, s{SW_+2}
        s_mov_b32 s{SW_+3}, 0x20000""")
    srd(A, SX_, "s4", "s5", 4 * MB)
    def ktof(t): return 4 * (t >> 2) + ((3 - (t & 3)) if ((ZIG & 1) and (t >> 2) & 1) else (t & 3))
    def issue(t):
        A.e(f"""s_add_u32 m0, s{L4K}, {gslot(t)}
            s_lshl_b32 s56, s{KT}, 7
            s_add_u32 s56, s56, s{XB}""")
        for i in range(4):
            A.e(f"buffer_load_dwordx4 v{VX+(i&1)}, {sr(SX_)}, s56 offen lds")
            if i < 3: A.e("s_add_u32 m0, m0, 1024\ns_add_u32 s56, s56, 16384")
        A.e(f"""s_add_u32 m0, s{L8K}, {gslot(t) + XSZ}
            s_mul_i32 s56, s{KT}, s{WSTEP}
            s_lshl_b32 s56, s56, 3
            s_add_u32 s56, s56, s{WB}""")
        for i in range(8):
            A.e(f"buffer_load_dwordx4 v{VW+(i&1)}, {sr(SW_)}, s56 offen lds")
            if i < 7: A.e(f"s_add_u32 m0, m0, 1024\ns_add_u32 s56, s56, s{WSTEP}")
        if t < 15 and ZIG >= 2 and (t & 3) == 3:
            p = (t + 1) >> 2
            first = ktof(t + 1) & 3
            A.e(f"""s_cmp_le_u32 s{PHI}, {p-1}
                s_cselect_b32 s{KT}, {4*p + first}, {4*(p-1) + first}""")
        elif t < 15:
            A.e(f"""s_add_u32 s{KT}, s{KT}, {(ktof(t+1) - ktof(t)) & 15}
                s_and_b32 s{KT}, s{KT}, 15""")
    stamp(A, 1)
    issue(0)
    stamp(A, 2)
    A.e(f"""s_lshr_b32 s{KIND}, s{HP}, 2
        s_cmp_eq_u32 s{KIND}, 0
        s_cselect_b32 s{SS_}, s8, s10
        s_cselect_b32 s{SS_+1}, s9, s11
        s_cmp_ge_u32 s{KIND}, 2
        s_cselect_b32 s{SS_}, s20, s{SS_}
        s_cselect_b32 s{SS_+1}, s21, s{SS_+1}
        s_mov_b32 s{SS_+2}, 65536
        s_cselect_b32 s{SS_+2}, 2048, s{SS_+2}
        s_mov_b32 s{SS_+3}, 0x20000
        s_mov_b32 s57, 1024
        s_cselect_b32 s57, 32, s57
        s_cselect_b64 vcc, -1, 0
        v_lshrrev_b32 v17, 5, v0
        v_lshlrev_b32 v17, 4, v17
        v_cndmask_b32 v{VS}, v{VL16}, v17, vcc
        s_mov_b32 s95, s57""")
    common_setup()
    A.e(f"""v_and_b32 v16, 31, v0
        v_lshrrev_b32 v17, 5, v0
        v_bfe_u32 v18, v0, 1, 3
        v_xor_b32 v19, v17, v18
        v_lshlrev_b32 v19, 4, v19
        v_lshl_add_u32 v19, v16, 7, v19
        v_add_u32 v{AXS}, s{L4K}, v19
        v_xor_b32 v{AXS+1}, 32, v{AXS}
        v_xor_b32 v{AXS+2}, 64, v{AXS}
        v_xor_b32 v{AXS+3}, 0x60, v{AXS}
        v_bfe_u32 v18, v0, 2, 2
        v_lshl_add_u32 v19, v17, 3, v18
        v_lshlrev_b32 v19, 6, v19
        v_bfe_u32 v18, v0, 4, 1
        v_lshl_add_u32 v19, v18, 5, v19
        v_and_b32 v18, 3, v0
        v_bfe_u32 v20, v0, 1, 1
        v_and_b32 v21, 1, v0
        v_lshl_or_b32 v20, v21, 1, v20
        s_cmp_eq_u32 s{KIND}, 0
        s_cselect_b64 vcc, -1, 0
        v_cndmask_b32 v18, v18, v20, vcc
        v_lshl_add_u32 v19, v18, 3, v19
        s_cmp_ge_u32 s{KIND}, 2
        s_cselect_b64 vcc, -1, 0
        v_cndmask_b32 v19, v19, v{VL16}, vcc
        v_add_u32 v{AWS}, {MISC}, v19
        s_lshl_b32 s{PSRC}, s{RB}, 2
        s_add_u32 s{PSRC}, s{PSRC}, s{KIND}
        s_lshl_b32 s{PSRC}, s{PSRC}, 16
        s_add_u32 s{PSRC}, s{PSRC}, {PART_OFF}""")
    zero(SA, 16); zero(O, 16)
    st(A, "setup")
    issue(1)
    A.e("s_waitcnt vmcnt(12)")
    st(A, "g0")
    for t in range(16):
        A.e("s_barrier")
        trace(A, t)
        wt = {0: [], 1: [0, 1], 2: [2], 3: [3]}.get(t, [])
        sx = lambda tt: SXF + 16 * (tt & 1)
        sw = lambda tt: SWF + 16 * (tt & 1)
        if t < 4:
            A.e(f"""s_cmp_eq_u32 s{KIND}, 3
                s_cbranch_scc1 {P}lh{t}""")
            for k in range(4): A.e(f"ds_read_b128 {v(sx(t)+4*k,4)}, v{AXS+k}")
            if wt:
                A.e(f"""s_cmp_eq_u32 s{KIND}, 2
                    s_cbranch_scc1 {P}lg{t}""")
                for tt in wt:
                    for k in range(4):
                        A.e(f"""ds_read_b64_tr_b16 {v(sw(tt)+4*k,2)}, v{AWS} offset:{4096*tt+1024*k}
                            ds_read_b64_tr_b16 {v(sw(tt)+4*k+2,2)}, v{AWS} offset:{4096*tt+1024*k+256}""")
                    if tt == 0: A.e("s_waitcnt lgkmcnt(4)")
                A.e(f"s_branch {P}lh{t}")
                A.lab(f"{P}lg{t}")
                for tt in wt:
                    for k in range(4): A.e(f"ds_read_b128 {v(sw(tt)+4*k,4)}, v{AWS} offset:{4096*tt+1024*k}")
            A.lab(f"{P}lh{t}")
        if t == 0:
            A.e(f"""s_lshl_b32 s56, s{PHI}, 2
                s_add_u32 s56, s56, s{LW}
                s_lshl_b32 s56, s56, 2
                s_add_u32 m0, s{L4K}, {MISC}
                s_mul_i32 s56, s56, s95""")
            for i in range(4):
                A.e(f"buffer_load_dwordx4 v{VS}, {sr(SS_)}, s56 offen lds")
                if i < 3: A.e("s_add_u32 m0, m0, 1024\ns_add_u32 s56, s56, s95")
        if t == TPA:
            A.e(f"""v_mov_b32 v16, 0
                s_lshl_b32 s62, s{RB}, 4
                buffer_load_dword v{T0}, v16, {sr(DBG)}, s62 offen sc1""")
        if t == TPOLL:
            A.e(f"""v_and_b32 v16, 15, v0
                v_lshlrev_b32 v16, 4, v16
                s_cmp_lg_u32 s{LW}, 0
                s_cbranch_scc1 {P}lt0
                buffer_load_dword v{T0}, v16, {sr(DBG)}, 0 offen sc1""")
            A.lab(f"{P}lt0")
        late = SFIRST and 1 <= t < 4
        if t + 2 < 16 and not late: issue(t + 2)
        if t < 4:
            dl = gslot(t + 1) - gslot(t)
            A.e(f"""s_cmp_eq_u32 s{KIND}, 3
                s_cbranch_scc1 {P}lw{t}""")
            if t < 3:
                for k in range(4): A.e(f"v_add_u32 v{AXS+k}, {dl & 0xffffffff}, v{AXS+k}")
            A.e(f"""s_waitcnt lgkmcnt(0)
                s_cmp_eq_u32 s{KIND}, 1
                s_cbranch_scc1 {P}lv{t}""")
            for tt in wt:
                for k in range(4): A.e(mfma32(SA, sw(tt) + 4*k, sx(tt) + 4*k, SA))
            A.e(f"s_branch {P}lw{t}")
            A.lab(f"{P}lv{t}")
            for tt in wt:
                for k in range(4): A.e(mfma32(SA, sx(tt) + 4*k, sw(tt) + 4*k, SA))
            A.lab(f"{P}lw{t}")
            if t == 3: A.e("s_nop 7")
        if late: issue(t + 2)
        if t == 3:
            A.e(f"""s_cmp_eq_u32 s{KIND}, 3
                s_cbranch_scc1 {P}lp1
                s_lshl_b32 s56, s{LW}, 14
                s_lshl_b32 s57, s{PHI}, 12
                s_add_u32 s56, s56, s57
                s_add_u32 s56, s56, s{PSRC}""")
            for q in range(4): A.e(f"buffer_store_dwordx4 {v(SA+4*q,4)}, v{VL16}, {sr(WS)}, s56 offen offset:{1024*q} sc1")
            A.lab(f"{P}lp1")
        if t == TPA + 2:
            A.e(f"""s_lshl_b32 s56, s{RB}, 2
                s_add_u32 s56, s56, s{PHI}""")
            for i in range(4):
                A.e(f"""v_add_f32 v{SA+i}, v{SA+i}, v{SA+4+i}
                    v_add_f32 v{SA+8+i}, v{SA+8+i}, v{SA+12+i}
                    v_add_f32 v{SA+i}, v{SA+i}, v{SA+8+i}""")
            A.e(f"""s_cmp_ge_u32 s{KIND}, 2
                s_cbranch_scc1 {P}lgate
                s_cmp_eq_u32 s{KIND}, 0
                s_cselect_b32 s57, {f2u(CSCALE)}, 1.0""")
            for i in range(4): A.e(f"v_mul_f32 v{SA+i}, s57, v{SA+i}")
            A.e(f"""v_cvt_pk_bf16_f32 v{SXF}, v{SA}, v{SA+1}
                v_cvt_pk_bf16_f32 v{SXF+1}, v{SA+2}, v{SA+3}
                s_lshl_b32 s56, s56, 12
                s_lshl_b32 s57, s{KIND}, 11
                s_add_u32 s56, s56, s57
                s_lshr_b32 s57, s{LW}, 1
                s_lshl_b32 s57, s57, 10
                s_add_u32 s56, s56, s57
                s_and_b32 s57, s{LW}, 1
                s_lshl_b32 s57, s57, 3
                s_add_u32 s56, s56, s57
                s_add_u32 s56, s56, {KVA_OFF}
                buffer_store_dwordx2 {v(SXF,2)}, v{VL16}, {sr(WS)}, s56 offen sc1
                s_branch {P}lsd""")
            A.lab(f"{P}lgate")
            A.e(f"""s_cmp_lg_u32 s{KIND}, 2
                s_cbranch_scc1 {P}lsd
                s_cmp_lg_u32 s{LW}, 0
                s_cbranch_scc1 {P}lsd
                v_mul_f32 v{SA}, {f2u(-LOG2E)}, v{SA}
                v_exp_f32 v{SA}, v{SA}
                s_lshl_b32 s56, s56, 7
                v_add_f32 v{SA}, 1.0, v{SA}
                v_rcp_f32 v{SA}, v{SA}
                s_add_u32 s56, s56, {G_OFF}
                v_and_b32 v16, 31, v0
                v_lshlrev_b32 v16, 2, v16
                buffer_store_dword v{SA}, v16, {sr(WS)}, s56 offen sc1""")
            A.lab(f"{P}lsd")
        ncs = 0
        if t > TPOLL and (t == TPOLL + 1 or t == 15):
            cs = []
            if t == TPOLL + 1: cs.append((0, 3))
            if t == 15: cs.append((1, 2))
            for c, slot in cs:
                for hf in range(2):
                    A.e(f"""s_add_u32 m0, s{L8K}, {slot*32768 + hf*4096}
                        s_add_u32 s56, s{L8K}, {KVA_OFF + c*32768 + hf*4096}""")
                    for i in range(4): A.e(f"buffer_load_dwordx4 v{VL16}, {sr(WS)}, s56 offen offset:{1024*i} sc1 lds")
                ncs += 8
        if t < 15: A.e(f"s_waitcnt vmcnt({12 if t + 2 < 16 else ncs})")
        if t == TPA:
            A.e(f"""s_cmp_eq_u32 s{KIND}, 3
                s_cbranch_scc1 {P}pda
                s_lshl_b32 s63, s{KIND}, 3
                s_add_u32 s63, s63, 8""")
            poll("a", 16, "s62", 0, 4, True, field="s63")
            st(A, "pla")
        if t == TPA:
            A.e(f"""s_cmp_eq_u32 s{KIND}, 3
                s_cbranch_scc1 {P}lp2
                s_lshl_b32 s56, s{PHI}, 14
                s_lshl_b32 s57, s{LW}, 10
                s_add_u32 s56, s56, s57
                s_add_u32 s56, s56, s{PSRC}""")
            for q in range(4):
                A.e(f"buffer_load_dwordx4 {v(SA+4*q,4)}, v{VL16}, {sr(WS)}, s56 offen sc1")
                if q < 3: A.e("s_add_u32 s56, s56, 4096")
            A.lab(f"{P}lp2")
        if t == TPOLL:
            A.e(f"""s_cmp_lg_u32 s{LW}, 0
                s_cbranch_scc1 {P}pd0""")
            poll("0", 16, "0", 0, 8, True, field=0)
            st(A, "pl0")
    A.e(f"""s_barrier
        s_add_u32 s56, s{L4K}, {MISC}
        v_add_u32 v16, s56, v{VL16}
        s_setprio 0
        s_waitcnt vmcnt(0)
        s_barrier""")
    st(A, "gend")
    A.e(f"""ds_read_b128 {v(QA,4)}, v16
        ds_read_b128 {v(QA+4,4)}, v16 offset:1024
        ds_read_b128 {v(QB+4,4)}, v16 offset:3072
        ds_read_b128 {v(QB,4)}, v16 offset:2048""")

    A.lab(f"{P}attn")
    if E('STOPG', 0): A.e(f"s_branch {P}end")
    st(A, "attn")
    W4K, W1K, I0, WKT, WSRC, OSRC, WOS = 14, 15, 58, 59, 60, 92, 94
    VOO, VWO, VW2 = ML, ML + 4, 191
    def la(off): return ([VL16, AC, AN][off >> 16], off & 0xffff)
    def rdK(addr, off): return [f"ds_read_b128 {v(KF+4*i,4)}, v{addr} offset:{off+1024*i}" for i in range(2)]
    def rdV(addr, off): return [f"ds_read_b128 {v(VF+4*i,4)}, v{addr} offset:{off+2048+1024*i}" for i in range(2)]
    cslot = lambda c: {0: 3, 1: 2, 2: 4}.get(c, c % 5)
    seq = [("A", j) for j in range(NB0)] + [("B", i) for i in range(9)] + [("A", j) for j in range(NB0, 64)]
    seq += [("A", 63), ("A", 63)]
    def taddr(n):
        k, j = seq[n]
        return la(cslot(j >> 3) * 32768 + (j & 7) * 4096) if k == "A" else (AB, j * 4096)
    def tq(n): return QA if seq[n][0] == "A" else QB
    def tc(n):
        k, j = seq[n]
        return "0" if k == "A" else (MU if j == 0 else ML if j == 8 else CM)
    def to(n): return (O, L) if seq[n][0] == "A" else (O2, L2)
    for x in rdK(*taddr(0)): A.e(x)
    A.e(f"""s_lshl_b32 s{W4K}, s3, 12
        s_lshl_b32 s{W1K}, s3, 10""")
    zero(PB[1], 8); zero(VF + 4, 4)
    A.e("s_waitcnt lgkmcnt(0)")
    A.e(mfma32(SB[0], KF, QA, "0"))
    A.e(mfma32(SB[0], KF + 4, QA + 4, SB[0]))
    for x in rdK(*taddr(1)): A.e(x)
    A.e(rdV(*taddr(0))[0])
    A.e(f"""s_sub_i32 s{I0}, 8, s{RT}
        s_lshl_b32 s{WKT}, s{RB}, 2
        s_lshr_b32 s56, s3, 2
        s_add_u32 s{WKT}, s{WKT}, s56
        s_sub_i32 s{WKT}, s{WKT}, 8
        s_lshr_b32 s{WSRC}, s{HEADB}, 1
        s_lshl_b32 s{WSRC}, s{WSRC}, 19
        s_and_b32 s56, s3, 3
        s_lshl_b32 s56, s56, 10
        s_add_u32 s{WSRC}, s{WSRC}, s56
        s_lshl_b32 s{OSRC}, s{RB2}, 2
        s_and_b32 s56, s3, 3
        s_add_u32 s{OSRC}, s{OSRC}, s56
        s_lshl_b32 s{OSRC}, s{OSRC}, 17
        s_lshr_b32 s56, s3, 2
        s_lshl_b32 s56, s56, 11
        s_add_u32 s{OSRC}, s{OSRC}, s56
        s_add_u32 s{OSRC}, s{OSRC}, {O_OFF}""")
    srd(A, SW_, "s18", "s19", 2 * MB)
    srd(A, SX_, "s12", "s13", 2 * MB)
    UO, OQ = 44, 4
    rot = [f"s_lshl_b32 s61, s{CBK}, 2" if ROT else "s_mov_b32 s61, 0", f"s_lshl_b32 s{WOS}, s{CBK}, 7"]
    for q in range(4):
        rot += [f"s_add_u32 s56, s61, {8*q}", "s_add_u32 s56, s56, s3", "s_and_b32 s56, s56, 31", "s_lshl_b32 s56, s56, 16", f"s_add_u32 s{UO+q}, s56, s{WOS}"]
    for h in range(8):
        rot += [f"s_add_u32 s56, s61, {4*h}", "s_and_b32 s56, s56, 31", "s_lshl_b32 s56, s56, 11", f"s_add_u32 s{OQ+h}, s56, s{OSRC}"]
    rot += [f"s_and_b32 s56, s{IDXS}, 3", "s_lshl_b32 s56, s56, 3", "s_add_u32 s56, s56, s3", "s_lshl_b32 s56, s56, 16", f"s_add_u32 s{WOS}, s{WOS}, s56"]
    vm = VM()
    def cpiece(c, i):
        return (f"C{c}", f"""s_add_u32 m0, s{W4K}, {cslot(c)*32768}
            s_add_u32 s57, s{W4K}, {KVA_OFF + c*32768}
            buffer_load_dwordx4 v{VL16}, {sr(WS)}, s57 offen offset:{i*1024} sc1 lds""")
    def wpiece(i):
        return ("W", f"""s_add_u32 m0, s{W1K}, {i*8192}
            s_add_i32 s57, s{WKT}, {2*(i%6)}
            s_max_i32 s57, s57, 0
            s_lshl_b32 s57, s57, 12
            s_add_u32 s57, s57, s{WSRC}
            s_add_u32 s57, s57, {KVB_OFF + (i//6)*64*4096}
            buffer_load_dwordx4 v{VL16}, {sr(WS)}, s57 offen sc1 lds""")
    def upiece(u, k):
        return (f"U{u}", f"""s_add_u32 m0, s{W4K}, {(u%5)*32768 + k*1024}
            s_add_u32 s57, s{UO+(u&3)}, {k*16384}
            buffer_load_dwordx4 v{VWO}, {sr(SW_ if u < 12 else SX_)}, s57 offen lds""")
    def warm(i):
        return ("Z", f"""s_add_u32 s57, s{WOS}, {(i&3)*16384}
            buffer_load_dwordx4 v[252:255], v{VW2}, {sr(SW_ if i < 4 else SX_)}, s57 offen""")
    def oload(n, half):
        cb, f = n >> 1, n & 1
        o = f"s_add_u32 s56, s{OQ+(cb>>1)}, {half*65536 + (cb&1)*4096}\n"
        return ("O", o + f"buffer_load_dwordx4 {v(OFR+4*n,4)}, v{VL16}, {sr(WS)}, s56 offen offset:{1024*f} sc1")
    def valu(lines): return (None, "\n".join(lines))
    bg = {n: [] for n in range(73)}
    for i in range(4): bg[i].append(cpiece(2, i))
    for i in range(4): bg[E1N + i // 2].append(cpiece(3, i))
    for i in range(12): bg[16 + i // 2].append(wpiece(i))
    bg[22].append(("G", f"""v_and_b32 v{TZ}, 31, v0
        v_lshlrev_b32 v{TZ}, 2, v{TZ}
        s_lshl_b32 s57, s{RT}, 7
        s_add_u32 s57, s57, {G_OFF}
        buffer_load_dword v{VG}, v{TZ}, {sr(WS)}, s57 offen sc1"""))
    for i in range(4): bg[26 + i // 2].append(cpiece(4, i))
    if WARM:
        for i in range(8): bg[28 + i].append(warm(i))
    for i in range(12): bg[39 + i // 3].append(cpiece(5 + i // 4, i & 3))
    for i in range(4): bg[45 + i].append(upiece(8, i))
    for i in range(4): bg[53 + i].append(upiece(9, i))
    for i in range(4): bg[57 + 2*i].append(upiece(10, i))
    for i in range(4): bg[65 + i].append(upiece(11, i))
    for i in range(32): bg[50 + (2 * i) // 3].append(oload(i, 1))
    for i in range(0, len(rot), 10): bg[8 + i // 20].append(valu(rot[i:i+10]))
    bg[4].append(valu([f"s_cmp_gt_i32 s{I0}, 0", f"s_cselect_b32 s56, {NEG}, 0", f"s_cselect_b32 s62, 0, 1.0", f"s_cmp_gt_i32 s{I0}, 1", f"s_cselect_b32 s63, {NEG}, 0", f"v_mov_b32 v{TZ}, {NEG}"]))
    for i in range(4):
        bg[4 + i].append(valu([f"v_fma_f32 v{MU+r}, -v{ML+r}, s62, v{TZ}" for r in range(4*i, 4*i+4)]))
        bg[12 + i].append(valu([f"v_mov_b32 v{CM+r}, s63" for r in range(4*i, 4*i+4)]))
        bg[12 + i].append(valu([f"v_mov_b32 v{O2+r}, 0" for r in range(5*i, 5*i+5)]))
    bg[23].append(valu([f"s_bfe_u32 s56, s3, 0x10001", "s_mul_i32 s56, s56, 49152", f"s_and_b32 s57, s{RT}, 3", "s_lshl_b32 s57, s57, 12", "s_add_u32 s56, s56, s57", f"v_add_u32 v{AB}, s56, v{VL16}"]))
    bg[24].append(valu([f"v_lshrrev_b32 v{VW2}, 3, v0", f"v_bfe_u32 v{TB}, v0, 4, 2", f"v_lshlrev_b32 v{TB}, 1, v{TB}", f"v_and_b32 v{TB+1}, 7, v0"]))
    bg[24].append(valu([f"v_xor_b32 v{TB}, v{TB}, v{TB+1}", f"v_lshlrev_b32 v{TB}, 4, v{TB}", f"v_lshl_add_u32 v{VW2}, v{VW2}, 11, v{TB}"]))
    bg[43].append(valu([f"v_mov_b32 v{VWO}, v{VW2}"]))
    ntr = [0]
    def bar(wait=None, pre=None, post=None):
        if pre:
            A.e(f"s_cmp_eq_u32 s3, 0\ns_cbranch_scc1 {P}{pre}")
            A.lab(f"{P}{pre}_r")
        if wait is not None: A.e(f"s_waitcnt vmcnt({wait})")
        A.e("s_barrier")
        if post:
            A.e(f"s_cmp_eq_u32 s3, 0\ns_cbranch_scc1 {P}{post}")
            A.lab(f"{P}{post}_r")
        trace(A, 34 + ntr[0]); ntr[0] += 1
    tops = {
        E1N: lambda: bar(0, post="sig1"),
        16: lambda: bar(vm.after("C3"), pre="poll1"),
        26: lambda: bar(vm.after("W")),
        39: lambda: bar(vm.after("C4")),
        45: lambda: bar(0, post="sig2"),
        50: lambda: bar(None, pre="poll2"),
        57: lambda: bar(None),
        65: lambda: bar(vm.after("U8")),
    }
    def step(n):
        par = n & 1
        S, Sn, Pc, Pp = SB[par], SB[1-par], PB[par], PB[1-par]
        b = list(bg[n])
        def B(k=1):
            for _ in range(k):
                if b:
                    tag, txt = b.pop(0)
                    A.e(txt)
                    if tag: vm.add(tag)
        oprev, lprev = to(max(n - 1, 0))
        A.e("s_waitcnt lgkmcnt(1)")
        if n in tops: tops[n]()
        k, j = seq[n + 1]
        if k == "B" and 2 <= j <= 7:
            A.e(f"s_cmp_eq_u32 s{I0}, {j}\ns_cbranch_scc1 {P}cm{j}")
            A.lab(f"{P}cm{j}_r")
        A.e(mfma32(Sn, KF, tq(n + 1), tc(n + 1)))
        A.e(rdK(*taddr(n + 2))[0])
        for j in (0, 1, 2, 3): A.e(ex(S, j))
        A.e(mfma32(oprev, VF + 4, Pp + 4, oprev))
        A.e(rdV(*taddr(n))[1])
        A.e(cv(Pc, S, 0)); A.e(cv(Pc, S, 1))
        B()
        for j in (4, 5, 6): A.e(ex(S, j))
        A.e(mfma32(Sn, KF + 4, tq(n + 1) + 4, Sn))
        A.e(rdK(*taddr(n + 2))[1])
        A.e(ex(S, 7)); A.e(cv(Pc, S, 2)); A.e(ex(S, 8)); A.e(cv(Pc, S, 3)); A.e(ex(S, 9))
        A.e(smf(lprev, Pp))
        A.e(ex(S, 10))
        B()
        A.e(ex(S, 11)); A.e(cv(Pc, S, 4))
        A.e("s_waitcnt lgkmcnt(3)")
        A.e(mfma32(to(n)[0], VF, Pc, to(n)[0]))
        A.e(rdV(*taddr(n + 1))[0])
        A.e(ex(S, 12)); A.e(cv(Pc, S, 5)); A.e(ex(S, 13))
        B(9)
        A.e(ex(S, 14)); A.e(ex(S, 15))
        A.e(cv(Pc, S, 6)); A.e(cv(Pc, S, 7))
    def finalize(tag, which, o, l, tmp):
        A.e(f"""v_add_f32 v{T0}, v{l}, v{l+1}
            v_mov_b32 v{tmp}, 0
            v_mov_b32 v{tmp+1}, 0
            v_mov_b32 v{tmp+2}, 0
            v_mov_b32 v{tmp+3}, 0""")
        for i in range(8):
            A.e(f"v_pk_fma_f32 {v(tmp,2)}, {v(o+2*i,2)}, {v(tmp+2,2)}, {v(tmp,2)}")
        A.e(f"""v_add_f32 v{tmp}, v{tmp}, v{tmp+1}
            v_add_f32 v{tmp}, v{tmp}, v{T0}
            v_cmp_le_f32 vcc, {f2u(2.0**-64)}, v{tmp}
            s_mov_b64 s[62:63], vcc
            v_cmp_ge_f32 vcc, {f2u(2.0**64)}, v{tmp}
            s_and_b64 vcc, vcc, s[62:63]
            s_cmp_eq_u64 vcc, -1
            s_cbranch_scc0 {P}slow{tag}""")
        A.lab(f"{P}norm{tag}")
        A.e(f"v_rcp_f32 v{T0}, v{T0}")
        if which == 0:
            A.e(f"""s_waitcnt vmcnt({vm.after('G')})
                v_sub_f32 v{tmp}, 1.0, v{VG}
                v_mul_f32 v{T0}, v{T0}, v{tmp}
                v_and_b32 v{VOO}, 15, v0
                v_bfe_u32 v{VOO+1}, v0, 4, 1
                v_lshrrev_b32 v{VOO+2}, 5, v0
                v_lshlrev_b32 v{VOO}, 4, v{VOO}
                v_lshl_add_u32 v{VOO}, v{VOO+1}, 10, v{VOO}
                v_lshl_add_u32 v{VOO}, v{VOO+2}, 8, v{VOO}""")
        else:
            A.e(f"s_nop 0\nv_mul_f32 v{T0}, v{T0}, v{VG}")
        for i in range(16): A.e(f"v_mul_f32 v{o+i}, v{o+i}, v{T0}")
        for i in range(8): A.e(f"v_cvt_pk_bf16_f32 v{tmp+i}, v{o+2*i}, v{o+2*i+1}")
        A.e(f"""s_lshl_b32 s56, s{RT}, 6
            s_add_u32 s56, s56, s{HEADB if which == 0 else HEAD}
            s_lshl_b32 s56, s56, 11
            s_add_u32 s56, s56, {O_OFF + (32*2048 if which == 0 else 0)}
            buffer_store_dwordx4 {v(tmp,4)}, v{VOO}, {sr(WS)}, s56 offen sc1
            buffer_store_dwordx4 {v(tmp+4,4)}, v{VOO}, {sr(WS)}, s56 offen offset:512 sc1""")
        vm.add("S" + tag, 2)
    for n in range(73):
        step(n)
        if n == NB0 + 9: finalize("B", 0, O2, L2, TB)
    A.e("s_waitcnt lgkmcnt(0)")
    A.e(mfma32(O, VF + 4, PB[0] + 4, O))
    A.e(smf(L, PB[0]))
    st(A, "aend")
    AWO, OAC = 16, 64
    WFO = [32, 48]
    TA = SB[0]
    A.e(f"""v_lshrrev_b32 v20, 4, v0
        v_bfe_u32 v21, v0, 2, 2
        v_and_b32 v22, 1, v20
        v_lshl_add_u32 v22, v22, 2, v21
        v_lshrrev_b32 v23, 1, v20
        v_lshl_add_u32 v23, v23, 4, v22
        v_lshlrev_b32 v23, 7, v23
        v_and_b32 v20, 3, v0
        v_lshl_add_u32 v23, v20, 3, v23
        s_lshr_b32 s56, s3, 2
        s_lshl_b32 s56, s56, 12
        s_add_u32 s56, s56, {3*32768}
        v_add_u32 v23, s56, v23
        v_lshrrev_b32 v22, 1, v22""")
    for nb in range(4):
        A.e(f"v_xor_b32 v20, {nb}, v22\nv_lshl_add_u32 v{AWO+nb}, v20, 5, v23")
    finalize("A", 1, O, L, TA)
    st(A, "afin")

    def oreads(buf, i):
        return [f"ds_read_b64_tr_b16 {v(WFO[buf]+4*nb+2*jh,2)}, v{AWO+nb} offset:{i*8192+jh*1024}" for nb in range(4) for jh in range(2)]
    for r in oreads(0, 0): A.e(r)
    zero(OAC + 8, 24); zero(OAC, 8)
    oidx = [i for i, t in enumerate(vm.q) if t == "O"]
    def emit(x):
        A.e(x[1]); vm.add(x[0])
    def quarter(u, pre_last=None, waits=None, bgq=None):
        q = u & 3
        for i in range(4):
            buf = i & 1
            ms = [mfma16(OAC + 4*(f*4+nb), WFO[buf]+4*nb, OFR+32*q+8*i+4*f, OAC + 4*(f*4+nb)) for nb in range(4) for f in range(2)]
            w = waits(i) if waits else None
            A.e("s_waitcnt lgkmcnt(0)" if w is None else f"s_waitcnt lgkmcnt(0) vmcnt({w})")
            if i < 3:
                rd = oreads(1 - buf, i + 1)
            elif u < 15:
                dl = ((u+1) % 5 - u % 5) * 32768
                for nb in range(4): A.e(f"v_add_u32 v{AWO+nb}, {dl & 0xffffffff}, v{AWO+nb}")
                if pre_last: pre_last()
                rd = oreads(1 - buf, 0)
            else:
                rd = []
            b = list(bgq(i)) if bgq else []
            for k in range(8):
                A.e(ms[k])
                if k < 4 and rd: A.e(rd[2*k]); A.e(rd[2*k+1])
                if k >= 3 and b: emit(b.pop(0))
            while b: emit(b.pop(0))
    def y1():
        st(A, "y1a")
        A.e("s_waitcnt vmcnt(0)\ns_barrier")
        st(A, "y1")
        A.e(f"""s_cmp_lg_u32 s3, 0
            s_cbranch_scc1 {P}y1""")
        signal(RB, 3, AN)
        A.lab(f"{P}y1")
    def y2(): A.e("s_barrier")
    def y3():
        st(A, "y3a")
        A.e(f"""s_cmp_lg_u32 s3, 0
            s_cbranch_scc1 {P}pd3
            v_mov_b32 v20, 0
            s_lshl_b32 s62, s{RB2}, 4""")
        poll("3", 20, "s62", 12, 16, False)
        A.e("s_barrier")
        st(A, "y3")
    def y4(): A.e(f"s_waitcnt vmcnt({vm.after('U15')})\ns_barrier")
    wo = upiece
    nxt = [0]
    def take(n, lim):
        o = []
        while n > 0 and nxt[0] < lim:
            t, x = oload(nxt[0], 0)
            o.append((f"OA{nxt[0]}", x)); nxt[0] += 1; n -= 1
        return o
    quarter(8, y1, waits=lambda i: (len(vm.q) - 1 - oidx[7]) if i == 0 else None, bgq=lambda i: [wo(12, 0), wo(12, 1)] if i == 3 else [])
    quarter(9, y2, bgq=lambda i: [[wo(12, 2), wo(12, 3)], [wo(13, 0), wo(13, 1)], [wo(13, 2), wo(13, 3)], [wo(14, 0)]][i])
    quarter(10, y3, bgq=lambda i: [wo(14, i + 1)] if i < 3 else [wo(15, k) for k in range(4)] + take(LPS, 16))
    quarter(11, y4, bgq=lambda i: take(LPS, 24))
    st(A, "y4")
    for u in range(12, 16):
        quarter(u, None, waits=lambda i: vm.after(f"OA{8*(u-12)+2*i+1}"), bgq=lambda i: take(2, 32))
    st(A, "oend")
    A.e(f"""s_lshl_b32 s56, s3, 12
        s_add_u32 s56, s56, {1*32768}
        v_add_u32 v20, s56, v{VL16}
        v_xor_b32 v21, 16384, v20
        s_cmp_ge_u32 s3, 4
        s_cbranch_scc1 {P}x1
        s_nop 3""")
    for nb in range(4): A.e(f"ds_write_b128 v20, {v(OAC+16+4*nb,4)} offset:{1024*nb}")
    A.e(f"s_branch {P}x2")
    A.lab(f"{P}x1")
    A.e("s_nop 3")
    for nb in range(4): A.e(f"ds_write_b128 v20, {v(OAC+4*nb,4)} offset:{1024*nb}")
    for i in range(16): A.e(f"v_mov_b32 v{OAC+i}, v{OAC+16+i}")
    A.lab(f"{P}x2")
    srd(A, SX_, "s22", "s23", 4 * MB)
    A.e(f"""s_lshl_b32 s56, s{RB2}, 2
        s_and_b32 s57, s3, 3
        s_add_u32 s56, s56, s57
        s_lshl_b32 s56, s56, 1
        s_lshr_b32 s57, s3, 2
        s_add_u32 s56, s56, s57
        s_lshl_b32 s56, s56, 15
        s_lshl_b32 s57, s{CBK}, 7
        s_add_u32 s56, s56, s57
        v_and_b32 v22, 15, v0
        v_lshlrev_b32 v22, 11, v22
        v_bfe_u32 v23, v0, 4, 1
        v_lshl_add_u32 v22, v23, 5, v22
        v_lshrrev_b32 v23, 5, v0
        v_lshl_add_u32 v22, v23, 4, v22
        s_waitcnt lgkmcnt(0)
        s_barrier""")
    for nb in range(4): A.e(f"ds_read_b128 {v(32+4*nb,4)}, v21 offset:{1024*nb}")
    A.e("s_waitcnt lgkmcnt(0)")
    for i in range(16): A.e(f"v_add_f32 v{OAC+i}, v{OAC+i}, v{32+i}")
    pack(48, [[OAC + 4*(2*a+b) for b in range(2)] for a in range(2)], False)
    A.e(f"""buffer_store_dwordx4 {v(48,4)}, v22, {sr(SX_)}, s56 offen {OFL}
        buffer_store_dwordx4 {v(52,4)}, v22, {sr(SX_)}, s56 offen offset:64 {OFL}""")
    A.lab(f"{P}end")
    stamp_flush(A, 0)
    trace_flush(A)
    A.lab(f"{P}end2")
    A.e("s_endpgm")

    AX, AW, VKO = 16, 18, 20
    XF, WF = [32, 48], 64
    ACC = 128
    A.lab(f"{P}compute")
    A.e(f"""v_and_b32 v8, 15, v0
        v_lshrrev_b32 v9, 4, v0
        v_bfe_u32 v10, v0, 1, 3
        s_and_b32 s56, s3, 1
        s_lshl_b32 s56, s56, 13
        v_xor_b32 v11, v9, v10
        v_lshlrev_b32 v11, 4, v11
        v_lshl_add_u32 v11, v8, 7, v11
        v_add_u32 v{AX}, s56, v11
        v_xor_b32 v{AX+1}, 64, v{AX}
        v_bfe_u32 v12, v0, 2, 2
        v_and_b32 v13, 3, v0
        v_lshl_add_u32 v14, v9, 3, v12
        v_lshlrev_b32 v14, 7, v14
        v_lshl_add_u32 v14, v13, 3, v14
        v_bfe_u32 v15, v0, 3, 2
        s_and_b32 s56, s3, 2
        v_xor_b32 v15, s56, v15
        v_lshl_add_u32 v14, v15, 5, v14
        v_add_u32 v{AW}, {XSZ}, v14
        v_xor_b32 v{AW+1}, 32, v{AW}
        v_and_b32 v8, 0x33, v0
        v_bfe_u32 v9, v0, 2, 1
        v_bfe_u32 v10, v0, 3, 1
        v_lshl_or_b32 v8, v9, 3, v8
        v_lshl_or_b32 v8, v10, 2, v8
        v_lshlrev_b32 v{VKO}, 4, v8
        s_waitcnt lgkmcnt(0)""")
    common_setup()
    zero(ACC, 128); zero(O, 16)
    A.e(f"""s_mov_b32 s58, 0
        s_mov_b32 s59, 0
        s_mov_b32 s60, {(-ST) & 0xffffffff}
        s_mov_b32 s61, {2*ST}
        s_mov_b32 s63, {f2u(CSCALE)}
        s_and_b32 s57, s{HEAD}, 24
        s_add_u32 s92, s{HEAD}, {4*GROT}
        s_and_b32 s92, s92, 7
        s_or_b32 s92, s92, s57
        s_lshl_b32 s92, s92, 6
        s_add_u32 s92, s92, s{RT}
        s_lshl_b32 s92, s92, 12
        s_add_u32 s92, s92, {KVB_OFF}
        s_add_u32 s93, s92, 4096
        s_add_u32 s96, s{HEAD}, {6*GROT}
        s_and_b32 s96, s96, 7
        s_or_b32 s96, s96, s57
        s_lshl_b32 s96, s96, 6
        s_add_u32 s96, s96, s{RT}
        s_lshl_b32 s96, s96, 12
        s_add_u32 s96, s96, {KVB_OFF}
        s_add_u32 s97, s96, 4096
        s_cmp_lt_u32 s{HP}, 12
        s_cselect_b32 s94, 5, -1
        s_cmp_eq_u32 s3, 0
        s_cselect_b32 s94, s94, -1
        s_lshr_b32 s95, s{HP}, 2
        s_lshl_b32 s95, s95, 3
        s_lshl_b32 s95, 0x100, s95""")
    def rx(buf, ks, mb): return f"ds_read_b128 {v(XF[buf]+4*mb,4)}, v{AX+ks} offset:{mb*2048}"
    def rw(nb, ks, jh): return f"ds_read_b64_tr_b16 {v(WF+4*nb+2*jh,2)}, v{AW+(nb&1)} offset:{(nb>>1)*8192+ks*4096+jh*512}"
    st(A, "setup")
    A.e("s_barrier")
    st(A, "g0")
    for mb in range(4): A.e(rx(0, 0, mb))
    for nb in range(8):
        for jh in range(2): A.e(rw(nb, 0, jh))
        if nb == 4: A.e("s_waitcnt lgkmcnt(4)")
    A.raw(".p2align 6")
    A.lab(f"{P}g1")
    acc = lambda mb, nb: ACC + 4 * (nb * 4 + mb)
    for ks in range(2):
        for nb in range(8):
            if nb == 0: A.e("s_waitcnt lgkmcnt(4)")
            elif nb % 2 == 0: A.e("s_waitcnt lgkmcnt(8)") if not (ks == 1) else None
            for mb in range(4):
                d = acc(mb, nb)
                x, w = XF[ks] + 4 * mb, WF + 4 * nb
                A.e(mfma16(d, x, w, d) if nb >= 6 else mfma16(d, w, x, d))
                if ks == 1 and nb == 0:
                    if mb == 0:
                        A.e(f"""s_cmp_eq_u32 s58, 0
                            s_cselect_b32 s62, s61, s60
                            s_add_u32 s58, s58, s62""")
                    if mb == 1:
                        A.e(f"v_add_u32 v{AX}, s62, v{AX}\nv_add_u32 v{AX+1}, s62, v{AX+1}")
                    if mb == 2:
                        A.e(f"v_add_u32 v{AW}, s62, v{AW}\nv_add_u32 v{AW+1}, s62, v{AW+1}\ns_add_u32 s59, s59, 1")
                    if mb == 3:
                        A.e(f"""s_cmp_eq_u32 s59, s94
                            s_waitcnt lgkmcnt(0)
                            s_barrier
                            s_cbranch_scc1 {P}sig0""")
                        A.lab(f"{P}sig0_r")
                if nb >= 1 and mb < 2: A.e(rw(nb - 1, 1 - ks, mb))
                if 1 <= nb <= 4 and mb == 2: A.e(rx(1 - ks, 1 - ks, nb - 1))
                if ks == 1 and nb == 7 and mb == 2: A.e("s_cmp_lg_u32 s59, 16")
        A.e(rw(7, 1 - ks, 0)); A.e(rw(7, 1 - ks, 1))
    A.e(f"s_cbranch_scc1 {P}g1")
    st(A, "gend")
    T = 21
    A.e(f"""s_lshl_b32 s56, s3, 12
        s_add_u32 s56, s56, {MISC}
        v_add_u32 v{AX}, s56, v{VL16}
        s_mov_b32 s62, s63
        s_waitcnt lgkmcnt(0)""")
    pack(64, [[acc(2+rbk, db) for rbk in range(2)] for db in range(2)], False)
    A.e(f"""ds_write_b128 v{AX}, {v(64,4)}
        ds_write_b128 v{AX}, {v(68,4)} offset:1024""")
    pack(72, [[acc(2+rbk, 2+db) for rbk in range(2)] for db in range(2)], False)
    A.e(f"""ds_write_b128 v{AX}, {v(72,4)} offset:2048
        ds_write_b128 v{AX}, {v(76,4)} offset:3072""")
    pack(QA, [[acc(rbk, db) for rbk in range(2)] for db in range(2)], False)
    A.e("""s_waitcnt lgkmcnt(0)
        s_barrier""")
    for rtl in range(2):
        tk, tv = 80 + 8 * rtl, ACC + 8 * rtl
        so = "s92" if rtl == 0 else "s93"
        pack(tk, [[acc(2*rtl+rbk, 4+db) for rbk in range(2)] for db in range(2)], True)
        A.e(f"""buffer_store_dwordx4 {v(tk,4)}, v{VKO}, {sr(WS)}, {so} offen sc1
            buffer_store_dwordx4 {v(tk+4,4)}, v{VKO}, {sr(WS)}, {so} offen offset:1024 sc1""")
        pack(tv, [[acc(2*rtl+kb, 6+db) for db in range(2)] for kb in range(2)], False)
        so = "s96" if rtl == 0 else "s97"
        A.e(f"""buffer_store_dwordx4 {v(tv,4)}, v{VL16}, {sr(WS)}, {so} offen offset:2048 sc1
            buffer_store_dwordx4 {v(tv+4,4)}, v{VL16}, {sr(WS)}, {so} offen offset:3072 sc1""")
    pack(QB, [[acc(rbk, 2+db) for rbk in range(2)] for db in range(2)], False)
    A.e(f"s_branch {P}attn")

    A.lab(f"{P}sig0")
    signal(RB, 0, T, "s95")
    A.e(f"""s_mov_b32 s95, 1
        s_cmp_lt_u32 s{HP}, 8
        s_cselect_b32 s94, {TPA+4}, -1
        s_branch {P}sig0_r""")
    for ph in (1, 2):
        A.lab(f"{P}sig{ph}")
        signal(RB, ph, TZ + 1)
        A.e(f"s_branch {P}sig{ph}_r")
    A.lab(f"{P}poll1")
    A.e(f"""v_and_b32 v{TZ+1}, 3, v0
        v_min_u32 v{TZ+1}, 2, v{TZ+1}
        v_sub_u32 v{TZ+1}, s{RB}, v{TZ+1}
        v_max_i32 v{TZ+1}, 0, v{TZ+1}
        v_lshlrev_b32 v{TZ+1}, 4, v{TZ+1}""")
    poll("1", TZ + 1, "0", 4, 16, False)
    A.e(f"s_branch {P}poll1_r")
    A.lab(f"{P}poll2")
    A.e(f"""v_mov_b32 v{TZ+1}, 0
        s_lshl_b32 s62, s{RB2}, 4""")
    poll("2", TZ + 1, "s62", 8, 16, False)
    A.e(f"s_branch {P}poll2_r")
    for j in range(2, 8):
        A.lab(f"{P}cm{j}")
        zero(CM, 16)
        A.e(f"s_nop 0\ns_branch {P}cm{j}_r")

    def slow(tag, q, o, l, kf, vf, S, C, Pp, M, setup):
        A.lab(f"{P}slow{tag}")
        A.e("s_waitcnt vmcnt(0)")
        A.e(setup)
        zero(o, 16); zero(l, 4)
        A.e(f"""v_mov_b32 v{M}, {NEG}
            s_mov_b32 s99, 0""")
        A.lab(f"{P}spass{tag}")
        A.e("s_mov_b32 s100, s98")
        A.lab(f"{P}stile{tag}")
        A.e(f"""s_lshl_b32 s56, s100, 12
            s_add_u32 s56, s56, s101
            buffer_load_dwordx4 {v(kf,4)}, v{VL16}, {sr(WS)}, s56 offen sc1
            buffer_load_dwordx4 {v(kf+4,4)}, v{VL16}, {sr(WS)}, s56 offen offset:1024 sc1
            buffer_load_dwordx4 {v(vf,4)}, v{VL16}, {sr(WS)}, s56 offen offset:2048 sc1
            buffer_load_dwordx4 {v(vf+4,4)}, v{VL16}, {sr(WS)}, s56 offen offset:3072 sc1
            s_cmp_eq_u32 s100, s96
            s_cselect_b32 s56, {NEG}, 0
            s_cmp_eq_u32 s100, s97
            s_cselect_b32 s57, {NEG}, 0
            v_mov_b32 v{M+2}, s56
            v_mov_b32 v{M+3}, s57""")
        for r in range(16):
            A.e(f"""v_cmp_le_i32 vcc, {keyl(r)}, v{VD}
                s_nop 1
                v_cndmask_b32 v{C+r}, v{M+2}, v{M+3}, vcc""")
        A.e("s_waitcnt vmcnt(0)\ns_nop 0")
        A.e(mfma32(S, kf, q, C))
        A.e(mfma32(S, kf + 4, q + 4, S))
        A.e(f"""s_nop 7
            s_nop 7
            s_cmp_eq_u32 s99, 0
            s_cbranch_scc0 {P}sp2{tag}""")
        for r in range(16): A.e(f"v_max_f32 v{M}, v{M}, v{S+r}")
        A.e(f"s_branch {P}snext{tag}")
        A.lab(f"{P}sp2{tag}")
        for r in range(16): A.e(f"v_sub_f32 v{S+r}, v{S+r}, v{M}")
        for r in range(16): A.e(ex(S, r))
        A.e("s_nop 0")
        for i in range(8): A.e(cv(Pp, S, i))
        A.e("s_nop 1")
        A.e(mfma32(o, vf, Pp, o))
        A.e(mfma32(o, vf + 4, Pp + 4, o))
        A.e(smf(l, Pp))
        A.e("s_nop 7\ns_nop 7")
        A.lab(f"{P}snext{tag}")
        A.e(f"""s_add_u32 s100, s100, 1
            s_cmp_le_u32 s100, s95
            s_cbranch_scc1 {P}stile{tag}
            s_cmp_eq_u32 s99, 0
            s_cbranch_scc0 {P}sdone{tag}
            v_mov_b32 v{M+1}, v{M}
            s_nop 1
            v_permlane32_swap_b32 v{M}, v{M+1}
            s_nop 1
            v_max_f32 v{M}, v{M}, v{M+1}
            s_mov_b32 s99, 1
            s_branch {P}spass{tag}""")
        A.lab(f"{P}sdone{tag}")
        A.e(f"""v_add_f32 v{T0}, v{l}, v{l+1}
            s_branch {P}norm{tag}""")
    slow("B", QB, O2, L2, 192, 200, 208, 224, 240, 248,
         f"""s_lshl_b32 s101, s{HEADB}, 18
            s_add_u32 s101, s101, {KVB_OFF}
            s_sub_i32 s97, s{RT}, 8
            s_max_i32 s98, s97, 0
            s_mov_b32 s95, s{RT}
            s_mov_b32 s96, s{RT}""")
    slow("A", QA, O, L, KF, VF, SB[0], SB[1], PB[0], ML + 8,
         f"""s_mov_b32 s101, {KVA_OFF}
            s_mov_b32 s98, 0
            s_mov_b32 s95, 63
            s_mov_b32 s96, -1
            s_mov_b32 s97, -1""")
    A.raw(".p2align 4")
    A.lab(f"{P}last")
    A.e("s_endpgm")
    return kernel_desc(name, 256, 102)

if __name__ == "__main__":
    ref = open(f"cdna_kernels/{NAME}.s.ref").read().split("\n")
    hdr = [l for l in ref if l.startswith(";") and "@launch" not in l]
    A = Asm()
    d = gen(A, NAME + "_kernel")
    out = "\n".join(hdr) + "\n" + f"; @launch grid=(256,1,1) block=(512,1,1) lds={LDS}\n"
    out += '.amdgcn_target "amdgcn-amd-amdhsa--gfx950"\n.text\n' + A.text() + '.section .rodata,"a"\n' + d
    path = sys.argv[1] if len(sys.argv) > 1 else f"cdna_kernels/{NAME}.s"
    open(path, "w").write(out)
    print("wrote", path, len(out))
```

```python
from common import *
import sys
E = lambda k, d: int(os.environ.get(k, d))
STAG = 4
PART_OFF = 0
TPA = E('TPA', 7)
WARM = E('WARM', 1)
E1N = E('E1N', 11)
TPOLL = E('TPOLL', 14)
LPRIO = E('LPRIO', 3)
LPS = E('LPS', 2)
ROT = E('ROT', 1)
SLP = E('SLP', 12)
PFC = E('PFC', 0)
TOUCH = E('TOUCH', 0)
ZIG = E('ZIG', 3)
SFIRST = E('SFIRST', 0)
OFL = os.environ.get('OFL', '')
XP = E('XP', 0)
JP = E('JP', 11)
JU = E('JU', 13)
JV = E('JV', 21)
SLP3 = E('SLP3', 4)
PRL = E('PRL', 2)
ORD = E('ORD', 3)
SPRO = E('SPRO', 1)
TRED = E('TRED', 9)
TTAG = E('TTAG', 2)
NB0 = 28

XSZ = 16384
ST = 49152
MISC = 3 * ST
LDS = 163840
NEG = f2u(-1e30)
SPIN = 50000

VL16, AC, AN, VG, IDX, VD, T0 = 1, 2, 3, 4, 5, 6, 7
ONES, L = 8, 12
QB, QA = 16, 24
KF, VF = 32, 40
PB = [48, 56]
SB = [64, 80]
O = 96
ML = 112
OFR = 128
O2, L2, MU, CM, TB, AB, TZ = 128, 144, 148, 164, 180, 188, 189
WS, DBG, SX_, SW_, SS_ = 28, 32, 36, 40, 44
RB, HP, XCD, IDXS, RT, HEAD, RB2, CBK = 48, 49, 50, 51, 52, 53, 54, 55
HEADB = 65
NON = 64
FL_OFF = 4 * MB
GROT = E('GROT', 1)

def sr(b): return f"s[{b}:{b+3}]"
def mfma16(d, a, b, c):
    cs = c if isinstance(c, str) else v(c, 4)
    return f"v_mfma_f32_16x16x32_bf16 {v(d,4)}, {v(a,4)}, {v(b,4)}, {cs}"
def smf(l, p): return f"v_smfmac_f32_16x16x64_bf16 {v(l,4)}, {v(ONES,4)}, {v(p,8)}, v{IDX}"
def ex(S, i): return f"v_exp_f32 v{S+i}, v{S+i}"
def cv(Pp, S, i): return f"v_cvt_pk_bf16_f32 v{Pp+i}, v{S+2*i}, v{S+2*i+1}"
def keyl(r): return 16 * (r >> 3) + 4 * ((r >> 2) & 1) + (r & 3)

TRN = "setup,g0,pla,pl0,gend,attn,aend,afin,y1a,y1,y3a,y3,y4,oend".split(",")
TRL = {n: 44 + i for i, n in enumerate(TRN)}
def st(A, nm):
    if DIAG: trace(A, TRL[nm])

class VM:
    def __init__(self): self.q = []
    def add(self, tag, n=1): self.q += [tag] * n
    def after(self, *tags):
        if not any(t in tags for t in self.q): return 0
        last = max(i for i, t in enumerate(self.q) if t in tags)
        return len(self.q) - 1 - last

def pack_list(dst, blk, scale):
    o = []
    for a in range(2):
        for b in range(2):
            d = blk[a][b]
            if scale:
                for i in range(2): o.append(f"v_pk_mul_f32 {v(d+2*i,2)}, {v(d+2*i,2)}, s[62:63]")
            for i in range(2): o.append(f"v_cvt_pk_bf16_f32 v{dst+a*4+b*2+i}, v{d+2*i}, v{d+2*i+1}")
    for a in range(2):
        for i in range(2): o.append(f"v_permlane16_swap_b32 v{dst+a*4+i}, v{dst+a*4+2+i}")
    return o

def gen(A, name):
    P = "f_"
    kernel_head(A, name)
    A.e(f"""s_cmp_ge_u32 s2, 256
        s_cbranch_scc1 {P}end2""")
    stamp_init(A)
    if E('SCR', 0):
        A.e("""s_lshr_b32 s56, s2, 3
            s_lshr_b32 s57, s2, 5
            s_xor_b32 s56, s56, s57
            s_and_b32 s56, s56, 7
            s_xor_b32 s2, s2, s56""")
    A.e(f"""s_load_dwordx8 s[4:11], s[0:1], 0
        s_load_dwordx8 s[16:23], s[0:1], 48
        s_load_dwordx4 s[24:27], s[0:1], 80
        s_load_dwordx2 s[12:13], s[0:1], 32
        v_lshrrev_b32 v1, 6, v0
        v_and_b32 v0, 63, v0
        v_readfirstlane_b32 s3, v1
        s_and_b32 s{XCD}, s2, 7
        s_lshr_b32 s{IDXS}, s2, 3
        s_and_b32 s{RB}, s{XCD}, 1
        s_lshl_b32 s{RB}, s{RB}, 3
        s_and_b32 s56, s{IDXS}, 7
        s_add_u32 s{RB}, s{RB}, s56
        s_lshr_b32 s{HP}, s{XCD}, 1
        s_lshl_b32 s{HP}, s{HP}, 2
        s_lshr_b32 s56, s{IDXS}, 3
        s_add_u32 s{HP}, s{HP}, s56
        v_lshlrev_b32 v{VL16}, 4, v0
        s_cmp_lt_u32 s3, 4
        s_cbranch_scc1 {P}compute""")

    def common_setup():
        A.e(f"""s_and_b32 s{RB2}, s{XCD}, 3
            s_lshl_b32 s{RB2}, s{RB2}, 2
            s_and_b32 s56, s{IDXS}, 3
            s_add_u32 s{RB2}, s{RB2}, s56
            s_lshr_b32 s{CBK}, s{XCD}, 2
            s_lshl_b32 s{CBK}, s{CBK}, 3
            s_lshr_b32 s56, s{IDXS}, 2
            s_add_u32 s{CBK}, s{CBK}, s56
            s_and_b32 s56, s3, 1
            s_lshl_b32 s56, s56, 1
            s_lshr_b32 s57, s3, 2
            s_add_u32 s56, s56, s57
            s_lshl_b32 s{RT}, s{RB}, 2
            s_add_u32 s{RT}, s{RT}, s56
            s_bfe_u32 s56, s3, 0x10001
            s_lshl_b32 s{HEAD}, s{HP}, 1
            s_add_u32 s{HEAD}, s{HEAD}, s56
            s_add_u32 s56, s{HEAD}, {2*GROT}
            s_and_b32 s56, s56, 7
            s_and_b32 s57, s{HEAD}, 24
            s_or_b32 s{HEADB}, s56, s57""")
        srd(A, WS, "s26", "s27", WS_USED)
        srd(A, DBG, "s24", "s25", 256)
        A.e(f"""v_and_b32 v{T0}, 31, v0
            v_lshrrev_b32 v{VG}, 5, v0
            v_lshlrev_b32 v{VG}, 3, v{VG}
            v_sub_u32 v{VD}, v{T0}, v{VG}
            v_mov_b32 v{VG}, {NEG}""")
        for r in range(16):
            A.e(f"""v_cmp_le_i32 vcc, {keyl(r)}, v{VD}
                s_nop 1
                v_cndmask_b32 v{ML+r}, v{VG}, 0, vcc""")
        A.e(f"""v_and_b32 v{T0}, 4, v0
            v_cmp_eq_u32 vcc, 0, v{T0}
            v_mov_b32 v{VG}, 0x3f803f80
            v_and_b32 v{T0}, 1, v0
            v_cndmask_b32 v{ONES}, 0, v{VG}, vcc
            v_cndmask_b32 v{ONES+1}, 0, v{VG}, vcc
            v_cndmask_b32 v{ONES+2}, v{VG}, 0, vcc
            v_cndmask_b32 v{ONES+3}, v{VG}, 0, vcc
            v_cmp_eq_u32 vcc, 0, v{T0}
            v_mov_b32 v{T0}, 0x4444
            v_mov_b32 v{VG}, 0xeeee
            v_cndmask_b32 v{IDX}, v{VG}, v{T0}, vcc
            v_add_u32 v{AC}, 0x10000, v{VL16}
            v_add_u32 v{AN}, 0x20000, v{VL16}""")
        for i in range(4): A.e(f"v_mov_b32 v{L+i}, 0")
        if DIAG: A.e(f"v_mov_b32 v{VD}, 0")
    def pack(dst, blk, scale):
        for x in pack_list(dst, blk, scale): A.e(x)
    def zero(base, n):
        for i in range(n): A.e(f"v_mov_b32 v{base+i}, 0")
    def signal(phase, t1):
        A.e(f"""s_mov_b64 exec, 1
            v_mov_b32 v{T0}, s{NON}
            v_mov_b32 v{t1}, 0
            s_lshl_b32 s56, s{RB}, 4
            s_add_u32 s56, s56, s{HP}
            s_lshl_b32 s56, s56, 4
            s_add_u32 s56, s56, {FL_OFF + 4096*phase}
            buffer_store_dword v{T0}, v{t1}, {sr(WS)}, s56 offen sc1
            s_mov_b64 exec, -1""")
    def poll_issue(voff, phase, t1=None):
        A.e(f"""s_mov_b32 s62, {FL_OFF + 4096*phase}
            buffer_load_dword v{T0}, v{voff}, {sr(WS)}, s62 offen sc1""")
        if t1: A.e(f"buffer_load_dword v{t1}, v{voff}, {sr(WS)}, s62 offen offset:16 sc1")
    def poll(tag, voff, phase, first_issued, t1=None, slp=SLP):
        A.e(f"s_mov_b32 s57, {1 if ((XP & 32 and tag in '0a') or (XP & 64 and tag in '123')) else SPIN}")
        if first_issued: A.e(f"s_branch {P}pc{tag}")
        A.lab(f"{P}pl{tag}")
        poll_issue(voff, phase, t1)
        A.e("s_waitcnt vmcnt(0)")
        A.lab(f"{P}pc{tag}")
        A.e(f"v_cmp_eq_u32 vcc, s{NON}, v{T0}")
        if t1: A.e(f"""s_mov_b64 s[62:63], vcc
            v_cmp_eq_u32 vcc, s{NON}, v{t1}
            s_and_b64 vcc, vcc, s[62:63]""")
        A.e(f"""s_cmp_eq_u64 vcc, -1
            s_cbranch_scc1 {P}pd{tag}
            s_sleep {slp}
            s_sub_u32 s57, s57, 1
            s_cmp_lg_u32 s57, 0
            s_cbranch_scc1 {P}pl{tag}""")
        A.lab(f"{P}pd{tag}")
    def tag_issue(d, z):
        A.e(f"""v_mov_b32 v{z}, 0
            buffer_load_dword v{d}, v{z}, {sr(DBG)}, 0 offen sc1""")
    def tag_get(lbl, d, z):
        A.e(f"s_mov_b32 s57, {SPIN}")
        A.lab(f"{P}tl{lbl}")
        A.e(f"""v_readfirstlane_b32 s{NON}, v{d}
            s_cmp_lg_u32 s{NON}, 0
            s_cbranch_scc1 {P}td{lbl}
            s_sleep 8
            buffer_load_dword v{d}, v{z}, {sr(DBG)}, 0 offen sc1
            s_waitcnt vmcnt(0)
            s_sub_u32 s57, s57, 1
            s_cmp_lg_u32 s57, 0
            s_cbranch_scc1 {P}tl{lbl}""")
        A.lab(f"{P}td{lbl}")
    gslot = lambda t: ((15 - t) % 3) * ST

    VX, VW, VS, AXS, AWS = 128, 130, 132, 136, 133
    SXF, SWF, SA = 144, 176, 208
    LW, KIND, PHI = 14, 15, 92
    XB, WB, WSTEP, KT, L4K, L8K, PSRC = 93, 94, 96, 98, 99, 100, 101
    A.e(f"""s_setprio {LPRIO}
        s_sub_u32 s{LW}, s3, 4
        v_lshrrev_b32 v9, 3, v0
        v_and_b32 v16, 7, v0
        v_lshrrev_b32 v17, 4, v0
        v_xor_b32 v17, v17, v16
        v_lshlrev_b32 v17, 4, v17
        v_lshl_add_u32 v{VX}, v9, 11, v17
        v_xor_b32 v{VX+1}, 64, v{VX}
        s_cmp_eq_u32 s{LW}, 0
        s_mov_b32 s57, 6144
        s_cselect_b32 s57, 2048, s57
        v_bfe_u32 v17, v0, 4, 1
        v_lshlrev_b32 v17, 1, v17
        v_xor_b32 v17, v17, v16
        v_lshlrev_b32 v17, 4, v17
        v_mul_u32_u24 v18, s57, v9
        v_add_u32 v{VW}, v18, v17
        v_xor_b32 v{VW+1}, 64, v{VW}
        s_lshl_b32 s{WSTEP}, s57, 3
        s_lshl_b32 s{XB}, s{RB}, 18
        s_lshl_b32 s56, s{LW}, 16
        s_add_u32 s{XB}, s{XB}, s56
        s_max_u32 s56, s{LW}, 1
        s_sub_u32 s56, s56, 1
        s_lshl_b32 s56, s56, 11
        s_mul_i32 s57, s{LW}, {GROT}
        s_add_u32 s57, s57, s{HP}
        s_and_b32 s57, s57, 3
        s_and_b32 s{WB}, s{HP}, 12
        s_or_b32 s57, s57, s{WB}
        s_lshl_b32 s57, s57, 7
        s_add_u32 s{WB}, s56, s57
        s_add_u32 s{PHI}, s{RB}, s{HP}
        s_and_b32 s{PHI}, s{PHI}, 3
        s_lshl_b32 s{KT}, s{PHI}, {0 if ORD >= 3 else 1 if ORD else 2}
        s_and_b32 s56, s{HP}, {4 if ORD == 2 else 12 if ORD == 3 else 0}
        s_lshl_b32 s56, s56, {1 if ORD == 2 else 0}
        s_or_b32 s{KT}, s{KT}, s56
        s_lshl_b32 s{L4K}, s{LW}, 12
        s_lshl_b32 s{L8K}, s{LW}, 13
        s_cmp_eq_u32 s{LW}, 0
        s_waitcnt lgkmcnt(0)
        s_cselect_b32 s{SW_}, s6, s16
        s_cselect_b32 s{SW_+1}, s7, s17
        s_mov_b32 s{SW_+2}, {6*MB}
        s_cselect_b32 s{SW_+2}, {2*MB}, s{SW_+2}
        s_mov_b32 s{SW_+3}, 0x20000""")
    srd(A, SX_, "s4", "s5", 4 * MB)
    def ktof(t): return 4 * (t >> 2) + ((3 - (t & 3)) if ((ZIG & 1) and (t >> 2) & 1) else (t & 3))
    def issue(t):
        A.e(f"""s_add_u32 m0, s{L4K}, {gslot(t)}
            s_lshl_b32 s56, s{KT}, 7
            s_add_u32 s56, s56, s{XB}""")
        for i in range(4):
            A.e(f"buffer_load_dwordx4 v{VX+(i&1)}, {sr(SX_)}, s56 offen lds")
            if i < 3: A.e("s_add_u32 m0, m0, 1024\ns_add_u32 s56, s56, 16384")
        A.e(f"""s_add_u32 m0, s{L8K}, {gslot(t) + XSZ}
            s_mul_i32 s56, s{KT}, s{WSTEP}
            s_lshl_b32 s56, s56, 3
            s_add_u32 s56, s56, s{WB}""")
        for i in range(8):
            A.e(f"buffer_load_dwordx4 v{VW+(i&1)}, {sr(SW_)}, s56 offen lds")
            if i < 7: A.e(f"s_add_u32 m0, m0, 1024\ns_add_u32 s56, s56, s{WSTEP}")
        if ORD >= 3:
            if t < 15:
                A.e(f"""s_add_u32 s56, s{KT}, 1
                    s_and_b32 s56, s56, 3
                    s_add_u32 s{KT}, s{KT}, {4 if (t & 3) == 3 else 0}
                    s_and_b32 s{KT}, s{KT}, 12
                    s_or_b32 s{KT}, s{KT}, s56""")
        elif ORD:
            if t < 15:
                A.e(f"""s_add_u32 s56, s{KT}, 1
                    s_and_b32 s56, s56, 7
                    s_and_b32 s{KT}, s{KT}, 8
                    s_or_b32 s{KT}, s{KT}, s56""")
                if t == 7: A.e(f"s_xor_b32 s{KT}, s{KT}, 8")
        elif t < 15 and ZIG >= 2 and (t & 3) == 3:
            p = (t + 1) >> 2
            first = ktof(t + 1) & 3
            A.e(f"""s_cmp_le_u32 s{PHI}, {p-1}
                s_cselect_b32 s{KT}, {4*p + first}, {4*(p-1) + first}""")
        elif t < 15:
            A.e(f"""s_add_u32 s{KT}, s{KT}, {(ktof(t+1) - ktof(t)) & 15}
                s_and_b32 s{KT}, s{KT}, 15""")
    stamp(A, 1)
    issue(0)
    stamp(A, 2)
    if ORD == 3:
        A.e(f"""s_and_b32 s{KIND}, s{HP}, 3
            s_add_u32 s97, s{PHI}, s{LW}
            s_and_b32 s97, s97, 3
            s_lshr_b32 s{PHI}, s{HP}, 2""")
    else:
        A.e(f"""s_lshr_b32 s{KIND}, s{HP}, 2
            s_mov_b32 s97, s{LW}""")
    A.e(f"""s_or_b32 s{KIND}, s{KIND}, {3 if XP & 32 else 0}
        s_cmp_eq_u32 s{KIND}, 0
        s_cselect_b32 s{SS_}, s8, s10
        s_cselect_b32 s{SS_+1}, s9, s11
        s_cmp_ge_u32 s{KIND}, 2
        s_cselect_b32 s{SS_}, s20, s{SS_}
        s_cselect_b32 s{SS_+1}, s21, s{SS_+1}
        s_mov_b32 s{SS_+2}, 65536
        s_cselect_b32 s{SS_+2}, 2048, s{SS_+2}
        s_mov_b32 s{SS_+3}, 0x20000
        s_mov_b32 s57, 1024
        s_cselect_b32 s57, 32, s57
        s_cselect_b64 vcc, -1, 0
        v_lshrrev_b32 v17, 5, v0
        v_lshlrev_b32 v17, 4, v17
        v_cndmask_b32 v{VS}, v{VL16}, v17, vcc
        s_mov_b32 s95, s57""")
    common_setup()
    A.e(f"""v_and_b32 v16, 31, v0
        v_lshrrev_b32 v17, 5, v0
        v_bfe_u32 v18, v0, 1, 3
        v_xor_b32 v19, v17, v18
        v_lshlrev_b32 v19, 4, v19
        v_lshl_add_u32 v19, v16, 7, v19
        v_add_u32 v{AXS}, s{L4K}, v19
        v_xor_b32 v{AXS+1}, 32, v{AXS}
        v_xor_b32 v{AXS+2}, 64, v{AXS}
        v_xor_b32 v{AXS+3}, 0x60, v{AXS}
        v_bfe_u32 v18, v0, 2, 2
        v_lshl_add_u32 v19, v17, 3, v18
        v_lshlrev_b32 v19, 6, v19
        v_bfe_u32 v18, v0, 4, 1
        v_lshl_add_u32 v19, v18, 5, v19
        v_and_b32 v18, 3, v0
        v_bfe_u32 v20, v0, 1, 1
        v_and_b32 v21, 1, v0
        v_lshl_or_b32 v20, v21, 1, v20
        s_cmp_eq_u32 s{KIND}, 0
        s_cselect_b64 vcc, -1, 0
        v_cndmask_b32 v18, v18, v20, vcc
        v_lshl_add_u32 v19, v18, 3, v19
        s_cmp_ge_u32 s{KIND}, 2
        s_cselect_b64 vcc, -1, 0
        v_cndmask_b32 v19, v19, v{VL16}, vcc
        v_add_u32 v{AWS}, {MISC}, v19
        s_lshl_b32 s{PSRC}, s{RB}, 2
        s_add_u32 s{PSRC}, s{PSRC}, s{KIND}
        s_lshl_b32 s{PSRC}, s{PSRC}, 16
        s_add_u32 s{PSRC}, s{PSRC}, {PART_OFF}""")
    zero(SA, 16)
    def side_issue():
        A.e(f"""s_lshl_b32 s56, s{PHI}, 2
            s_add_u32 s56, s56, s97
            s_lshl_b32 s56, s56, 2
            s_add_u32 m0, s{L4K}, {MISC}
            s_mul_i32 s56, s56, s95""")
        for i in range(4):
            A.e(f"buffer_load_dwordx4 v{VS}, {sr(SS_)}, s56 offen lds")
            if i < 3: A.e("s_add_u32 m0, m0, 1024\ns_add_u32 s56, s56, s95")
    st(A, "setup")
    if SPRO: side_issue()
    issue(1)
    A.e(f"s_waitcnt vmcnt({16 if SPRO else 12})")
    st(A, "g0")
    for t in range(16):
        A.e("s_barrier")
        trace(A, t)
        wt = {0: [], 1: [0, 1], 2: [2], 3: [3]}.get(t, [])
        sx = lambda tt: SXF + 16 * (tt & 1)
        sw = lambda tt: SWF + 16 * (tt & 1)
        if t < 4:
            A.e(f"""s_cmp_eq_u32 s{KIND}, 3
                s_cbranch_scc1 {P}lh{t}""")
            for k in range(4): A.e(f"ds_read_b128 {v(sx(t)+4*k,4)}, v{AXS+k}")
            if wt:
                A.e(f"""s_cmp_eq_u32 s{KIND}, 2
                    s_cbranch_scc1 {P}lg{t}""")
                for tt in wt:
                    for k in range(4):
                        A.e(f"""ds_read_b64_tr_b16 {v(sw(tt)+4*k,2)}, v{AWS} offset:{4096*tt+1024*k}
                            ds_read_b64_tr_b16 {v(sw(tt)+4*k+2,2)}, v{AWS} offset:{4096*tt+1024*k+256}""")
                    if tt == 0: A.e("s_waitcnt lgkmcnt(4)")
                A.e(f"s_branch {P}lh{t}")
                A.lab(f"{P}lg{t}")
                for tt in wt:
                    for k in range(4): A.e(f"ds_read_b128 {v(sw(tt)+4*k,4)}, v{AWS} offset:{4096*tt+1024*k}")
            A.lab(f"{P}lh{t}")
        if t == 0 and not SPRO: side_issue()
        if t == TTAG: tag_issue(18, 17)
        if t == TPA:
            A.e(f"""v_and_b32 v16, 3, v0
                v_lshlrev_b32 v16, {6 if ORD == 3 else 4}, v16
                s_lshl_b32 s56, s{RB}, {4 if ORD == 3 else 2}
                s_add_u32 s56, s56, s{KIND}
                s_lshl_b32 s56, s56, {4 if ORD == 3 else 6}
                v_add_u32 v16, s56, v16
                s_cmp_ge_u32 s{LW}, 2
                s_cbranch_scc1 {P}lta""")
            poll_issue(16, 0)
            A.lab(f"{P}lta")
        if t == TPOLL:
            if ORD == 3: A.e("v_lshlrev_b32 v16, 6, v0")
            else: A.e("v_lshrrev_b32 v16, 2, v0\nv_lshlrev_b32 v16, 8, v16\nv_and_b32 v17, 3, v0\nv_lshl_add_u32 v16, v17, 5, v16")
            A.e(f"""s_cmp_lg_u32 s{LW}, 0
                s_cbranch_scc1 {P}lt0""")
            poll_issue(16, 1, 17)
            A.lab(f"{P}lt0")
        if t == TRED:
            A.e(f"""s_cmp_ge_u32 s{LW}, 2
                s_cbranch_scc1 {P}lsd
                s_lshl_b32 s56, s{RB}, 2
                s_add_u32 s56, s56, s{PHI}""")
            for i in range(0, 8, 2):
                A.e(f"""v_pk_add_f32 {v(SA+i,2)}, {v(SA+i,2)}, {v(SA+8+i,2)}
                    v_pk_add_f32 {v(SA+16+i,2)}, {v(SA+16+i,2)}, {v(SA+24+i,2)}
                    v_pk_add_f32 {v(SA+i,2)}, {v(SA+i,2)}, {v(SA+16+i,2)}""")
            A.e(f"""s_cmp_ge_u32 s{KIND}, 2
                s_cbranch_scc1 {P}lgate
                s_cmp_eq_u32 s{KIND}, 0
                s_cselect_b32 s57, {f2u(CSCALE)}, 1.0""")
            for i in range(8): A.e(f"v_mul_f32 v{SA+i}, s57, v{SA+i}")
            for i in range(4): A.e(f"v_cvt_pk_bf16_f32 v{SXF+i}, v{SA+2*i}, v{SA+2*i+1}")
            A.e(f"""s_lshl_b32 s56, s56, 12
                s_lshl_b32 s57, s{KIND}, 11
                s_add_u32 s56, s56, s57
                s_lshl_b32 s57, s{LW}, 10
                s_add_u32 s56, s56, s57
                s_add_u32 s56, s56, {KVA_OFF}
                buffer_store_dwordx4 {v(SXF,4)}, v{VL16}, {sr(WS)}, s56 offen sc1
                s_branch {P}lsd""")
            A.lab(f"{P}lgate")
            A.e(f"""s_cmp_lg_u32 s{KIND}, 2
                s_cbranch_scc1 {P}lsd
                s_cmp_lg_u32 s{LW}, 0
                s_cbranch_scc1 {P}lsd
                v_mul_f32 v{SA}, {f2u(-LOG2E)}, v{SA}
                v_exp_f32 v{SA}, v{SA}
                s_lshl_b32 s56, s56, 7
                v_add_f32 v{SA}, 1.0, v{SA}
                v_rcp_f32 v{SA}, v{SA}
                s_add_u32 s56, s56, {G_OFF}
                v_and_b32 v16, 31, v0
                v_lshlrev_b32 v16, 2, v16
                buffer_store_dword v{SA}, v16, {sr(WS)}, s56 offen sc1""")
            A.lab(f"{P}lsd")
        late = SFIRST and t in (1, 3)
        if t + 2 < 16 and not late: issue(t + 2)
        if t < 4:
            dl = gslot(t + 1) - gslot(t)
            A.e(f"""s_cmp_eq_u32 s{KIND}, 3
                s_cbranch_scc1 {P}lw{t}""")
            if t < 3:
                for k in range(4): A.e(f"v_add_u32 v{AXS+k}, {dl & 0xffffffff}, v{AXS+k}")
            A.e(f"""s_waitcnt lgkmcnt(0)
                s_cmp_eq_u32 s{KIND}, 1
                s_cbranch_scc1 {P}lv{t}""")
            for tt in wt:
                for k in range(4): A.e(mfma32(SA, sw(tt) + 4*k, sx(tt) + 4*k, SA))
            A.e(f"s_branch {P}lw{t}")
            A.lab(f"{P}lv{t}")
            for tt in wt:
                for k in range(4): A.e(mfma32(SA, sx(tt) + 4*k, sw(tt) + 4*k, SA))
            A.lab(f"{P}lw{t}")
            if t == 3: A.e("s_nop 7")
        if late: issue(t + 2)
        if t == 3:
            A.e(f"""s_cmp_eq_u32 s{KIND}, 3
                s_cbranch_scc1 {P}lp1
                s_lshl_b32 s56, s{LW}, 14
                s_lshl_b32 s57, s{PHI}, 12
                s_add_u32 s56, s56, s57
                s_add_u32 s56, s56, s{PSRC}""")
            for q in range(4): A.e(f"buffer_store_dwordx4 {v(SA+4*q,4)}, v{VL16}, {sr(WS)}, s56 offen offset:{1024*q} sc1")
            A.lab(f"{P}lp1")
        ncs = 0
        if t > TPOLL and (t == TPOLL + 1 or t == 15):
            cs = []
            if t == TPOLL + 1: cs.append((0, 3))
            if t == 15: cs.append((1, 2))
            for c, slot in cs:
                for hf in range(2):
                    A.e(f"""s_add_u32 m0, s{L8K}, {slot*32768 + hf*4096}
                        s_add_u32 s56, s{L8K}, {KVA_OFF + c*32768 + hf*4096}""")
                    for i in range(4): A.e(f"buffer_load_dwordx4 v{VL16}, {sr(WS)}, s56 offen offset:{1024*i} sc1 lds")
                ncs += 8
        if t < 15: A.e(f"s_waitcnt vmcnt({12 if t + 2 < 16 else ncs})")
        if t == TPA - 1: tag_get("l", 18, 17)
        if t == TPA:
            A.e(f"""s_cmp_eq_u32 s{KIND}, 3
                s_cbranch_scc1 {P}pda
                s_cmp_ge_u32 s{LW}, 2
                s_cbranch_scc1 {P}pda""")
            poll("a", 16, 0, True)
            st(A, "pla")
        if t == TPA:
            A.e(f"""s_cmp_eq_u32 s{KIND}, 3
                s_cbranch_scc1 {P}lp2
                s_cmp_ge_u32 s{LW}, 2
                s_cbranch_scc1 {P}lp2
                s_lshl_b32 s56, s{PHI}, 14
                s_lshl_b32 s57, s{LW}, 11
                s_add_u32 s56, s56, s57
                s_add_u32 s56, s56, s{PSRC}""")
            for q in range(4):
                A.e(f"""buffer_load_dwordx4 {v(SA+8*q,4)}, v{VL16}, {sr(WS)}, s56 offen sc1
                    buffer_load_dwordx4 {v(SA+8*q+4,4)}, v{VL16}, {sr(WS)}, s56 offen offset:1024 sc1""")
                if q < 3: A.e("s_add_u32 s56, s56, 4096")
            A.lab(f"{P}lp2")
        if t == TPOLL:
            A.e(f"""s_cmp_lg_u32 s{LW}, 0
                s_cbranch_scc1 {P}pd0""")
            poll("0", 16, 1, True, t1=17)
            st(A, "pl0")
    A.e(f"""s_barrier
        s_add_u32 s56, s{L4K}, {MISC}
        v_add_u32 v16, s56, v{VL16}
        s_setprio 0
        s_waitcnt vmcnt(0)
        s_barrier""")
    st(A, "gend")
    A.e(f"""ds_read_b128 {v(QA,4)}, v16
        ds_read_b128 {v(QA+4,4)}, v16 offset:1024
        ds_read_b128 {v(QB+4,4)}, v16 offset:3072
        ds_read_b128 {v(QB,4)}, v16 offset:2048""")

    A.lab(f"{P}attn")
    if E('STOPG', 0): A.e(f"s_branch {P}end")
    st(A, "attn")
    W4K, W1K, I0, WKT, WSRC, OSRC, WOS = 14, 15, 58, 59, 60, 92, 94
    VOO, VWO, VW2 = ML, ML + 4, 191
    def la(off): return ([VL16, AC, AN][off >> 16], off & 0xffff)
    def rdK(addr, off): return [f"ds_read_b128 {v(KF+4*i,4)}, v{addr} offset:{off+1024*i}" for i in range(2)]
    def rdV(addr, off): return [f"ds_read_b128 {v(VF+4*i,4)}, v{addr} offset:{off+2048+1024*i}" for i in range(2)]
    cslot = lambda c: {0: 3, 1: 2, 2: 4}.get(c, c % 5)
    seq = [("A", j) for j in range(NB0)] + [("B", i) for i in range(9)] + [("A", j) for j in range(NB0, 64)]
    seq += [("A", 63), ("A", 63)]
    def taddr(n):
        k, j = seq[n]
        return la(cslot(j >> 3) * 32768 + (j & 7) * 4096) if k == "A" else (AB, j * 4096)
    def tq(n): return QA if seq[n][0] == "A" else QB
    def tc(n):
        k, j = seq[n]
        return "0" if k == "A" else (MU if j == 0 else ML if j == 8 else CM)
    def to(n): return (O, L) if seq[n][0] == "A" else (O2, L2)
    for x in rdK(*taddr(0)): A.e(x)
    A.e(f"""s_lshl_b32 s{W4K}, s3, 12
        s_lshl_b32 s{W1K}, s3, 10""")
    A.e("s_waitcnt lgkmcnt(0)")
    A.e(mfma32(SB[0], KF, QA, "0"))
    A.e(mfma32(SB[0], KF + 4, QA + 4, SB[0]))
    for x in rdK(*taddr(1)): A.e(x)
    A.e(rdV(*taddr(0))[0])
    A.e(f"""s_sub_i32 s{I0}, 8, s{RT}
        s_lshl_b32 s{WKT}, s{RB}, 2
        s_lshr_b32 s56, s3, 2
        s_add_u32 s{WKT}, s{WKT}, s56
        s_sub_i32 s{WKT}, s{WKT}, 8
        s_lshr_b32 s{WSRC}, s{HEADB}, 1
        s_lshl_b32 s{WSRC}, s{WSRC}, 19
        s_and_b32 s56, s3, 3
        s_lshl_b32 s56, s56, 10
        s_add_u32 s{WSRC}, s{WSRC}, s56
        s_lshl_b32 s{OSRC}, s{RB2}, 2
        s_and_b32 s56, s3, 3
        s_add_u32 s{OSRC}, s{OSRC}, s56
        s_lshl_b32 s{OSRC}, s{OSRC}, 17
        s_lshr_b32 s56, s3, 2
        s_lshl_b32 s56, s56, 11
        s_add_u32 s{OSRC}, s{OSRC}, s56
        s_add_u32 s{OSRC}, s{OSRC}, {O_OFF}""")
    srd(A, SW_, "s18", "s19", 2 * MB)
    srd(A, SX_, "s12", "s13", 2 * MB)
    UO, OQ = 44, 4
    rot = [f"s_lshl_b32 s61, s{CBK}, 2" if ROT else "s_mov_b32 s61, 0", f"s_lshl_b32 s{WOS}, s{CBK}, 7"]
    for q in range(4):
        rot += [f"s_add_u32 s56, s61, {8*q}", "s_add_u32 s56, s56, s3", "s_and_b32 s56, s56, 31", "s_lshl_b32 s56, s56, 16", f"s_add_u32 s{UO+q}, s56, s{WOS}"]
    for h in range(8):
        rot += [f"s_add_u32 s56, s61, {4*h}", "s_and_b32 s56, s56, 31", "s_lshl_b32 s56, s56, 11", f"s_add_u32 s{OQ+h}, s56, s{OSRC}"]
    rot += [f"s_and_b32 s56, s{IDXS}, 3", "s_lshl_b32 s56, s56, 3", "s_add_u32 s56, s56, s3", "s_lshl_b32 s56, s56, 16", f"s_add_u32 s{WOS}, s{WOS}, s56"]
    vm = VM()
    def cpiece(c, i):
        return (f"C{c}", f"""s_add_u32 m0, s{W4K}, {cslot(c)*32768}
            s_add_u32 s57, s{W4K}, {KVA_OFF + c*32768}
            buffer_load_dwordx4 v{VL16}, {sr(WS)}, s57 offen offset:{i*1024} sc1 lds""")
    def wpiece(i):
        return ("W", f"""s_add_u32 m0, s{W1K}, {i*8192}
            s_add_i32 s57, s{WKT}, {2*(i%6)}
            s_max_i32 s57, s57, 0
            s_lshl_b32 s57, s57, 12
            s_add_u32 s57, s57, s{WSRC}
            s_add_u32 s57, s57, {KVB_OFF + (i//6)*64*4096}
            buffer_load_dwordx4 v{VL16}, {sr(WS)}, s57 offen sc1 lds""")
    def upiece(u, k):
        return (f"U{u}", f"""s_add_u32 m0, s{W4K}, {(u%5)*32768 + k*1024}
            s_add_u32 s57, s{UO+(u&3)}, {k*16384}
            buffer_load_dwordx4 v{VWO}, {sr(SW_ if u < 12 else SX_)}, s57 offen lds""")
    def warm(i):
        return ("Z", f"""s_add_u32 s57, s{WOS}, {(i&3)*16384}
            buffer_load_dwordx4 v[252:255], v{VW2}, {sr(SW_ if i < 4 else SX_)}, s57 offen""")
    def oload(n, half):
        cb, f = n >> 1, n & 1
        o = f"s_add_u32 s56, s{OQ+(cb>>1)}, {half*65536 + (cb&1)*4096}\n"
        return ("O", o + f"buffer_load_dwordx4 {v(OFR+4*n,4)}, v{VL16}, {sr(WS)}, s56 offen offset:{1024*f} sc1")
    def valu(lines): return (None, "\n".join(lines))
    bg = {n: [] for n in range(73)}
    for i in range(4): bg[i].append(cpiece(2, i))
    for i in range(4): bg[E1N + i // 2].append(cpiece(3, i))
    for i in range(12): bg[16 + i // 2].append(wpiece(i))
    bg[22].append(("G", f"""v_and_b32 v{TZ}, 31, v0
        v_lshlrev_b32 v{TZ}, 2, v{TZ}
        s_lshl_b32 s57, s{RT}, 7
        s_add_u32 s57, s57, {G_OFF}
        buffer_load_dword v{VG}, v{TZ}, {sr(WS)}, s57 offen sc1"""))
    for i in range(4): bg[26 + i // 2].append(cpiece(4, i))
    if WARM:
        for i in range(8): bg[28 + i].append(warm(i))
    for i in range(12): bg[39 + i // 3].append(cpiece(5 + i // 4, i & 3))
    for i in range(4): bg[45 + i].append(upiece(8, i))
    for i in range(4): bg[53 + i].append(upiece(9, i))
    for i in range(8): bg[65 + i].append(upiece(10 + i // 4, i & 3))
    for i in range(32): bg[50 + (2 * i) // 3].append(oload(i, 1))
    for i in range(0, len(rot), 10): bg[8 + i // 20].append(valu(rot[i:i+10]))
    bg[4].append(valu([f"s_cmp_gt_i32 s{I0}, 0", f"s_cselect_b32 s56, {NEG}, 0", f"s_cselect_b32 s62, 0, 1.0", f"s_cmp_gt_i32 s{I0}, 1", f"s_cselect_b32 s63, {NEG}, 0", f"v_mov_b32 v{TZ}, {NEG}"]))
    for i in range(4):
        bg[4 + i].append(valu([f"v_fma_f32 v{MU+r}, -v{ML+r}, s62, v{TZ}" for r in range(4*i, 4*i+4)]))
        bg[12 + i].append(valu([f"v_mov_b32 v{CM+r}, s63" for r in range(4*i, 4*i+4)]))
        bg[12 + i].append(valu([f"v_mov_b32 v{L2+i}, 0"]))
    bg[23].append(valu([f"s_bfe_u32 s56, s3, 0x10001", "s_mul_i32 s56, s56, 49152", f"s_and_b32 s57, s{RT}, 3", "s_lshl_b32 s57, s57, 12", "s_add_u32 s56, s56, s57", f"v_add_u32 v{AB}, s56, v{VL16}"]))
    bg[24].append(valu([f"v_lshrrev_b32 v{VW2}, 3, v0", f"v_bfe_u32 v{TB}, v0, 4, 2", f"v_lshlrev_b32 v{TB}, 1, v{TB}", f"v_and_b32 v{TB+1}, 7, v0"]))
    bg[24].append(valu([f"v_xor_b32 v{TB}, v{TB}, v{TB+1}", f"v_lshlrev_b32 v{TB}, 4, v{TB}", f"v_lshl_add_u32 v{VW2}, v{VW2}, 11, v{TB}"]))
    bg[43].append(valu([f"v_mov_b32 v{VWO}, v{VW2}"]))
    ntr = [0]
    def bar(wait=None, pre=None, post=None):
        if pre:
            A.e(f"s_cmp_eq_u32 s3, 0\ns_cbranch_scc1 {P}{pre}")
            A.lab(f"{P}{pre}_r")
        if wait is not None: A.e(f"s_waitcnt vmcnt({wait})")
        A.e("s_barrier")
        if post:
            A.e(f"s_cmp_eq_u32 s3, 0\ns_cbranch_scc1 {P}{post}")
            A.lab(f"{P}{post}_r")
        trace(A, 34 + ntr[0]); ntr[0] += 1
    tops = {
        E1N: lambda: bar(0, post="sig1"),
        16: lambda: bar(vm.after("C3"), pre="poll1"),
        26: lambda: bar(vm.after("W")),
        39: lambda: bar(vm.after("C4")),
        45: lambda: bar(0, post="sig2"),
        50: lambda: bar(None, pre="poll2"),
        65: lambda: bar(vm.after("U8")),
    }
    bnd = [0] + sorted(tops) + [73]
    lvl = {}
    for a_, b_ in zip(bnd, bnd[1:]):
        for n in range(a_, b_): lvl[n] = 3 - (PRL * (n - a_)) // (b_ - a_)
    def step(n):
        par = n & 1
        S, Sn, Pc, Pp = SB[par], SB[1-par], PB[par], PB[1-par]
        b = list(bg[n])
        b = [x for x in b if x[0] is None or x[0][0] not in os.environ.get("DROP", "")]
        if XP & 1: b = [x for x in b if x[0] is None]
        if XP & 2: b = [x for x in b if x[0] is not None]
        def B(k=1):
            for _ in range(k):
                if b:
                    tag, txt = b.pop(0)
                    A.e(txt)
                    if tag: vm.add(tag)
        oprev, lprev = to(max(n - 1, 0))
        A.e("s_waitcnt lgkmcnt(1)")
        if n in tops and not (XP & 4): tops[n]()
        if PRL and (n == 0 or lvl[n] != lvl[n - 1]): A.e(f"s_setprio {lvl[n]}")
        k, j = seq[n + 1]
        if k == "B" and 2 <= j <= 7:
            A.e(f"s_cmp_eq_u32 s{I0}, {j}\ns_cbranch_scc1 {P}cm{j}")
            A.lab(f"{P}cm{j}_r")
        A.e(mfma32(Sn, KF, tq(n + 1), tc(n + 1)))
        A.e(rdK(*taddr(n + 2))[0])
        for j in (0, 1, 2, 3): A.e(ex(S, j))
        if n > 0: A.e(mfma32(oprev, VF + 4, Pp + 4, oprev))
        A.e(rdV(*taddr(n))[1])
        A.e(cv(Pc, S, 0)); A.e(cv(Pc, S, 1))
        B()
        for j in (4, 5, 6): A.e(ex(S, j))
        A.e(mfma32(Sn, KF + 4, tq(n + 1) + 4, Sn))
        A.e(rdK(*taddr(n + 2))[1])
        A.e(ex(S, 7)); A.e(cv(Pc, S, 2)); A.e(ex(S, 8)); A.e(cv(Pc, S, 3)); A.e(ex(S, 9))
        if n > 0: A.e(smf(lprev, Pp))
        A.e(ex(S, 10))
        B()
        A.e(ex(S, 11)); A.e(cv(Pc, S, 4))
        A.e("s_waitcnt lgkmcnt(3)")
        A.e(mfma32(to(n)[0], VF, Pc, "0" if n in (0, NB0) else to(n)[0]))
        A.e(rdV(*taddr(n + 1))[0])
        A.e(ex(S, 12)); A.e(cv(Pc, S, 5)); A.e(ex(S, 13))
        B(9)
        A.e(ex(S, 14)); A.e(ex(S, 15))
        A.e(cv(Pc, S, 6)); A.e(cv(Pc, S, 7))
    def finalize(tag, which, o, l, tmp):
        A.e(f"""v_add_f32 v{T0}, v{l}, v{l+1}
            v_mov_b32 v{tmp}, 0
            v_mov_b32 v{tmp+1}, 0
            v_mov_b32 v{tmp+2}, 0
            v_mov_b32 v{tmp+3}, 0""")
        for i in range(8):
            A.e(f"v_pk_fma_f32 {v(tmp,2)}, {v(o+2*i,2)}, {v(tmp+2,2)}, {v(tmp,2)}")
        A.e(f"""v_add_f32 v{tmp}, v{tmp}, v{tmp+1}
            v_add_f32 v{tmp}, v{tmp}, v{T0}
            v_cmp_le_f32 vcc, {f2u(2.0**-64)}, v{tmp}
            s_mov_b64 s[62:63], vcc
            v_cmp_ge_f32 vcc, {f2u(2.0**64)}, v{tmp}
            s_and_b64 vcc, vcc, s[62:63]
            s_cmp_eq_u64 vcc, -1
            {"s_nop 0" if XP else f"s_cbranch_scc0 {P}slow{tag}"}""")
        A.lab(f"{P}norm{tag}")
        A.e(f"v_rcp_f32 v{T0}, v{T0}")
        if which == 0:
            A.e(f"""s_waitcnt vmcnt({vm.after('G')})
                v_sub_f32 v{tmp}, 1.0, v{VG}
                v_mul_f32 v{T0}, v{T0}, v{tmp}
                v_and_b32 v{VOO}, 15, v0
                v_bfe_u32 v{VOO+1}, v0, 4, 1
                v_lshrrev_b32 v{VOO+2}, 5, v0
                v_lshlrev_b32 v{VOO}, 4, v{VOO}
                v_lshl_add_u32 v{VOO}, v{VOO+1}, 10, v{VOO}
                v_lshl_add_u32 v{VOO}, v{VOO+2}, 8, v{VOO}""")
        else:
            A.e(f"s_nop 0\nv_mul_f32 v{T0}, v{T0}, v{VG}")
        for i in range(16): A.e(f"v_mul_f32 v{o+i}, v{o+i}, v{T0}")
        for i in range(8): A.e(f"v_cvt_pk_bf16_f32 v{tmp+i}, v{o+2*i}, v{o+2*i+1}")
        A.e(f"""s_lshl_b32 s56, s{RT}, 6
            s_add_u32 s56, s56, s{HEADB if which == 0 else HEAD}
            s_lshl_b32 s56, s56, 11
            s_add_u32 s56, s56, {O_OFF + (32*2048 if which == 0 else 0)}
            buffer_store_dwordx4 {v(tmp,4)}, v{VOO}, {sr(WS)}, s56 offen sc1
            buffer_store_dwordx4 {v(tmp+4,4)}, v{VOO}, {sr(WS)}, s56 offen offset:512 sc1""")
        vm.add("S" + tag, 2)
    for n in range(73):
        step(n)
        if n == NB0 + 9 and not (XP & 8): finalize("B", 0, O2, L2, TB)
    A.e("s_waitcnt lgkmcnt(0)")
    A.e(mfma32(O, VF + 4, PB[0] + 4, O))
    A.e(smf(L, PB[0]))
    A.e("s_setprio 0")
    st(A, "aend")
    if XP & 31: A.e(f"s_branch {P}end")
    AWO, OAC = 16, 64
    WFO = [32, 48]
    TA = SB[0]
    A.e(f"""v_lshrrev_b32 v20, 4, v0
        v_bfe_u32 v21, v0, 2, 2
        v_and_b32 v22, 1, v20
        v_lshl_add_u32 v22, v22, 2, v21
        v_lshrrev_b32 v23, 1, v20
        v_lshl_add_u32 v23, v23, 4, v22
        v_lshlrev_b32 v23, 7, v23
        v_and_b32 v20, 3, v0
        v_lshl_add_u32 v23, v20, 3, v23
        s_lshr_b32 s56, s3, 2
        s_lshl_b32 s56, s56, 12
        s_add_u32 s56, s56, {3*32768}
        v_add_u32 v23, s56, v23
        v_lshrrev_b32 v22, 1, v22""")
    for nb in range(4):
        A.e(f"v_xor_b32 v20, {nb}, v22\nv_lshl_add_u32 v{AWO+nb}, v20, 5, v23")
    finalize("A", 1, O, L, TA)
    st(A, "afin")

    def oreads(buf, i):
        return [f"ds_read_b64_tr_b16 {v(WFO[buf]+4*nb+2*jh,2)}, v{AWO+nb} offset:{i*8192+jh*1024}" for nb in range(4) for jh in range(2)]
    for r in oreads(0, 0): A.e(r)
    oidx = [i for i, t in enumerate(vm.q) if t == "O"] or [0] * 32
    def emit(x):
        A.e(x[1]); vm.add(x[0])
    def y1():
        st(A, "y1a")
        A.e("s_waitcnt vmcnt(0)\ns_barrier")
        st(A, "y1")
        A.e(f"""s_cmp_lg_u32 s3, 0
            s_cbranch_scc1 {P}y1""")
        signal(4, AN)
        A.lab(f"{P}y1")
    def ypoll():
        st(A, "y3a")
        A.e(f"""s_cmp_lg_u32 s3, 0
            s_cbranch_scc1 {P}pd3
            v_and_b32 v20, 15, v0
            v_lshlrev_b32 v20, 4, v20
            s_lshl_b32 s56, s{RB2}, 8
            v_add_u32 v20, s56, v20""")
        poll("3", 20, 4, False, slp=SLP3)
    def ybar(*tags):
        if tags: A.e(f"s_waitcnt vmcnt({vm.after(*tags)})")
        A.e("s_barrier")
    pre = {j: [] for j in range(32)}
    obg = {j: [] for j in range(32)}
    pre[3].append(y1)
    pre[JP].append(ypoll)
    for j in sorted({7, 11, JP}):
        pre[j].append((lambda: ybar("U12", "U13")) if j == 11 else ybar)
    pre[JP].append(lambda: st(A, "y3"))
    pre[JV].append(lambda: ybar("U14", "U15"))
    pre[16].append(lambda: st(A, "y4"))
    for k in range(8): obg[3 + k // 2].append(upiece(12 + k // 4, k & 3))
    nl = 0
    for j in range(JP, 32):
        c = 0
        while not (XP & 128) and nl < 32 and c < (LPS if j < 16 else 2) and nl // 2 < j:
            obg[j].append((f"OA{nl}", oload(nl, 0)[1])); nl += 1; c += 1
    for k in range(4): obg[7 + k].append(upiece(14, k))
    for k in range(4): obg[JU + k].append(upiece(15, k))
    for j in range(32):
        u, i = 8 + j // 4, j & 3
        q, buf = u & 3, i & 1
        order = [(nb, f if nb % 2 == 0 else 1 - f) for nb in range(4) for f in range(2)]
        ms = [mfma16(OAC + 4*(f*4+nb), WFO[buf]+4*nb, OFR+32*q+8*i+4*f, "0" if j == 0 else OAC + 4*(f*4+nb)) for nb, f in order]
        w = min(60, len(vm.q) - 1 - oidx[7]) if j == 0 else vm.after(f"OA{2*(j-16)+1}") if j >= 16 else None
        A.e("s_waitcnt lgkmcnt(0)" if w is None else f"s_waitcnt lgkmcnt(0) vmcnt({w})")
        if i == 3 and u < 15:
            dl = ((u+1) % 5 - u % 5) * 32768
            for nb in range(4): A.e(f"v_add_u32 v{AWO+nb}, {dl & 0xffffffff}, v{AWO+nb}")
        for f in pre[j]: f()
        rd = oreads(1 - buf, (i + 1) & 3) if j < 31 else []
        b = list(obg[j])
        for k in range(8):
            A.e(ms[k])
            if k < 4 and rd: A.e(rd[2*k]); A.e(rd[2*k+1])
            if k >= 3 and b: emit(b.pop(0))
        while b: emit(b.pop(0))
    st(A, "oend")
    if XP & 256: A.e(f"s_branch {P}end")
    A.e(f"""s_lshl_b32 s56, s3, 12
        s_add_u32 s56, s56, {1*32768}
        v_add_u32 v20, s56, v{VL16}
        v_xor_b32 v21, 16384, v20
        s_cmp_ge_u32 s3, 4
        s_cbranch_scc1 {P}x1
        s_nop 3""")
    for nb in range(4): A.e(f"ds_write_b128 v20, {v(OAC+16+4*nb,4)} offset:{1024*nb}")
    A.e(f"s_branch {P}x2")
    A.lab(f"{P}x1")
    A.e("s_nop 3")
    for nb in range(4): A.e(f"ds_write_b128 v20, {v(OAC+4*nb,4)} offset:{1024*nb}")
    for i in range(16): A.e(f"v_mov_b32 v{OAC+i}, v{OAC+16+i}")
    A.lab(f"{P}x2")
    srd(A, SX_, "s22", "s23", 4 * MB)
    A.e(f"""s_lshl_b32 s56, s{RB2}, 2
        s_and_b32 s57, s3, 3
        s_add_u32 s56, s56, s57
        s_lshl_b32 s56, s56, 1
        s_lshr_b32 s57, s3, 2
        s_add_u32 s56, s56, s57
        s_lshl_b32 s56, s56, 15
        s_lshl_b32 s57, s{CBK}, 7
        s_add_u32 s56, s56, s57
        v_and_b32 v22, 15, v0
        v_lshlrev_b32 v22, 11, v22
        v_bfe_u32 v23, v0, 4, 1
        v_lshl_add_u32 v22, v23, 5, v22
        v_lshrrev_b32 v23, 5, v0
        v_lshl_add_u32 v22, v23, 4, v22
        s_waitcnt lgkmcnt(0)
        s_barrier""")
    for nb in range(4): A.e(f"ds_read_b128 {v(32+4*nb,4)}, v21 offset:{1024*nb}")
    A.e("s_waitcnt lgkmcnt(0)")
    for i in range(16): A.e(f"v_add_f32 v{OAC+i}, v{OAC+i}, v{32+i}")
    pack(48, [[OAC + 4*(2*a+b) for b in range(2)] for a in range(2)], False)
    A.e(f"""buffer_store_dwordx4 {v(48,4)}, v22, {sr(SX_)}, s56 offen {OFL}
        buffer_store_dwordx4 {v(52,4)}, v22, {sr(SX_)}, s56 offen offset:64 {OFL}""")
    A.lab(f"{P}end")
    stamp_flush(A, 0)
    trace_flush(A)
    A.lab(f"{P}end2")
    A.e("s_endpgm")

    AX, AW, VKO = 16, 18, 20
    XF, WF = [32, 48], 64
    ACC = 128
    A.lab(f"{P}compute")
    A.e(f"""v_and_b32 v8, 15, v0
        v_lshrrev_b32 v9, 4, v0
        v_bfe_u32 v10, v0, 1, 3
        s_and_b32 s56, s3, 1
        s_lshl_b32 s56, s56, 13
        v_xor_b32 v11, v9, v10
        v_lshlrev_b32 v11, 4, v11
        v_lshl_add_u32 v11, v8, 7, v11
        v_add_u32 v{AX}, s56, v11
        v_xor_b32 v{AX+1}, 64, v{AX}
        v_bfe_u32 v12, v0, 2, 2
        v_and_b32 v13, 3, v0
        v_lshl_add_u32 v14, v9, 3, v12
        v_lshlrev_b32 v14, 7, v14
        v_lshl_add_u32 v14, v13, 3, v14
        v_bfe_u32 v15, v0, 3, 2
        s_and_b32 s56, s3, 2
        v_xor_b32 v15, s56, v15
        v_lshl_add_u32 v14, v15, 5, v14
        v_add_u32 v{AW}, {XSZ}, v14
        v_xor_b32 v{AW+1}, 32, v{AW}
        v_and_b32 v8, 0x33, v0
        v_bfe_u32 v9, v0, 2, 1
        v_bfe_u32 v10, v0, 3, 1
        v_lshl_or_b32 v8, v9, 3, v8
        v_lshl_or_b32 v8, v10, 2, v8
        v_lshlrev_b32 v{VKO}, 4, v8
        s_waitcnt lgkmcnt(0)""")
    common_setup()
    A.e(f"""v_mov_b32 v21, 0
        s_or_b32 s56, s2, s3
        s_cmp_lg_u32 s56, 0
        s_cbranch_scc1 {P}ntag
        s_memrealtime s[56:57]
        s_waitcnt lgkmcnt(0)
        s_mul_i32 s57, s57, 0x9e3779b1
        s_xor_b32 s56, s56, s57
        s_or_b32 s56, s56, 1
        v_mov_b32 v22, s56
        buffer_store_dword v22, v21, {sr(DBG)}, 0 offen sc1""")
    A.lab(f"{P}ntag")
    zero(ACC, 128)
    A.e(f"""s_mov_b32 s58, 0
        s_mov_b32 s59, 0
        s_mov_b32 s60, {(-ST) & 0xffffffff}
        s_mov_b32 s61, {2*ST}
        s_mov_b32 s63, {f2u(CSCALE)}
        s_and_b32 s57, s{HEAD}, 24
        s_add_u32 s92, s{HEAD}, {4*GROT}
        s_and_b32 s92, s92, 7
        s_or_b32 s92, s92, s57
        s_lshl_b32 s92, s92, 6
        s_add_u32 s92, s92, s{RT}
        s_lshl_b32 s92, s92, 12
        s_add_u32 s92, s92, {KVB_OFF}
        s_add_u32 s93, s92, 4096
        s_add_u32 s96, s{HEAD}, {6*GROT}
        s_and_b32 s96, s96, 7
        s_or_b32 s96, s96, s57
        s_lshl_b32 s96, s96, 6
        s_add_u32 s96, s96, s{RT}
        s_lshl_b32 s96, s96, 12
        s_add_u32 s96, s96, {KVB_OFF}
        s_add_u32 s97, s96, 4096
        s_cmp_eq_u32 s3, 0
        s_cselect_b32 s94, {TTAG}, -1""")
    def rx(buf, ks, mb): return f"ds_read_b128 {v(XF[buf]+4*mb,4)}, v{AX+ks} offset:{mb*2048}"
    def rw(nb, ks, jh): return f"ds_read_b64_tr_b16 {v(WF+4*nb+2*jh,2)}, v{AW+(nb&1)} offset:{(nb>>1)*8192+ks*4096+jh*512}"
    st(A, "setup")
    A.e("s_barrier")
    st(A, "g0")
    for mb in range(4): A.e(rx(0, 0, mb))
    for nb in range(8):
        for jh in range(2): A.e(rw(nb, 0, jh))
        if nb == 4: A.e("s_waitcnt lgkmcnt(4)")
    A.raw(".p2align 6")
    A.lab(f"{P}g1")
    acc = lambda mb, nb: ACC + 4 * (nb * 4 + mb)
    for ks in range(2):
        for nb in range(8):
            if nb == 0: A.e("s_waitcnt lgkmcnt(4)")
            elif nb % 2 == 0: A.e("s_waitcnt lgkmcnt(8)") if not (ks == 1) else None
            for mb in range(4):
                m2 = mb if nb % 2 == 0 else 3 - mb
                d = acc(m2, nb)
                x, w = XF[ks] + 4 * m2, WF + 4 * nb
                A.e(mfma16(d, x, w, d) if nb >= 6 else mfma16(d, w, x, d))
                if ks == 1 and nb == 0:
                    if mb == 0:
                        A.e(f"""s_cmp_eq_u32 s58, 0
                            s_cselect_b32 s62, s61, s60
                            s_add_u32 s58, s58, s62""")
                    if mb == 1:
                        A.e(f"v_add_u32 v{AX}, s62, v{AX}\nv_add_u32 v{AX+1}, s62, v{AX+1}")
                    if mb == 2:
                        A.e(f"v_add_u32 v{AW}, s62, v{AW}\nv_add_u32 v{AW+1}, s62, v{AW+1}\ns_add_u32 s59, s59, 1")
                    if mb == 3:
                        A.e(f"""s_cmp_eq_u32 s59, s94
                            s_waitcnt lgkmcnt(0)
                            s_barrier
                            s_cbranch_scc1 {P}sig0""")
                        A.lab(f"{P}sig0_r")
                if nb >= 1 and mb < 2: A.e(rw(nb - 1, 1 - ks, mb))
                if 1 <= nb <= 4 and mb == 2: A.e(rx(1 - ks, 1 - ks, nb - 1))
                if ks == 1 and nb == 7 and mb == 2: A.e("s_cmp_lg_u32 s59, 16")
        A.e(rw(7, 1 - ks, 0)); A.e(rw(7, 1 - ks, 1))
    A.e(f"s_cbranch_scc1 {P}g1")
    st(A, "gend")
    T = 21
    A.e(f"""s_lshl_b32 s56, s3, 12
        s_add_u32 s56, s56, {MISC}
        v_add_u32 v{AX}, s56, v{VL16}
        s_mov_b32 s62, s63
        s_waitcnt lgkmcnt(0)""")
    pack(64, [[acc(2+rbk, db) for rbk in range(2)] for db in range(2)], False)
    A.e(f"""ds_write_b128 v{AX}, {v(64,4)}
        ds_write_b128 v{AX}, {v(68,4)} offset:1024""")
    pack(72, [[acc(2+rbk, 2+db) for rbk in range(2)] for db in range(2)], False)
    A.e(f"""ds_write_b128 v{AX}, {v(72,4)} offset:2048
        ds_write_b128 v{AX}, {v(76,4)} offset:3072""")
    pack(QA, [[acc(rbk, db) for rbk in range(2)] for db in range(2)], False)
    A.e("""s_waitcnt lgkmcnt(0)
        s_barrier""")
    for rtl in range(2):
        tk, tv = 80 + 8 * rtl, ACC + 8 * rtl
        so = "s92" if rtl == 0 else "s93"
        pack(tk, [[acc(2*rtl+rbk, 4+db) for rbk in range(2)] for db in range(2)], True)
        A.e(f"""buffer_store_dwordx4 {v(tk,4)}, v{VKO}, {sr(WS)}, {so} offen sc1
            buffer_store_dwordx4 {v(tk+4,4)}, v{VKO}, {sr(WS)}, {so} offen offset:1024 sc1""")
        pack(tv, [[acc(2*rtl+kb, 6+db) for db in range(2)] for kb in range(2)], False)
        so = "s96" if rtl == 0 else "s97"
        A.e(f"""buffer_store_dwordx4 {v(tv,4)}, v{VL16}, {sr(WS)}, {so} offen offset:2048 sc1
            buffer_store_dwordx4 {v(tv+4,4)}, v{VL16}, {sr(WS)}, {so} offen offset:3072 sc1""")
    pack(QB, [[acc(rbk, 2+db) for rbk in range(2)] for db in range(2)], False)
    A.e(f"s_branch {P}attn")

    if XP & 4:
        for l in ("sig1", "sig2", "poll1", "poll2"): A.lab(f"{P}{l}_r")
    if XP & 8: A.lab(f"{P}normB")
    A.lab(f"{P}sig0")
    A.e(f"""s_cmp_lg_u32 s94, {TTAG}
        s_cbranch_scc1 {P}sg1""")
    tag_issue(T + 1, T)
    A.e(f"""s_mov_b32 s94, 5
        s_branch {P}sig0_r""")
    A.lab(f"{P}sg1")
    A.e(f"""s_cmp_lg_u32 s94, 5
        s_cbranch_scc1 {P}sg2
        s_waitcnt vmcnt(0)""")
    tag_get("c", T + 1, T)
    signal(0, T)
    A.e(f"""s_mov_b32 s94, {TRED+1}
        s_branch {P}sig0_r""")
    A.lab(f"{P}sg2")
    signal(1, T)
    A.e(f"s_branch {P}sig0_r")
    for ph in (1, 2):
        A.lab(f"{P}sig{ph}")
        signal(ph + 1, TZ + 1)
        A.e(f"s_branch {P}sig{ph}_r")
    A.lab(f"{P}poll1")
    A.e(f"""v_lshrrev_b32 v{TZ+1}, 4, v0
        v_min_u32 v{TZ+1}, 2, v{TZ+1}
        v_sub_u32 v{TZ+1}, s{RB}, v{TZ+1}
        v_max_i32 v{TZ+1}, 0, v{TZ+1}
        v_lshlrev_b32 v{TZ+1}, 4, v{TZ+1}
        v_and_or_b32 v{TZ+1}, v0, 15, v{TZ+1}
        v_lshlrev_b32 v{TZ+1}, 4, v{TZ+1}""")
    poll("1", TZ + 1, 2, False)
    A.e(f"s_branch {P}poll1_r")
    A.lab(f"{P}poll2")
    A.e(f"""v_and_b32 v{TZ+1}, 15, v0
        v_lshlrev_b32 v{TZ+1}, 4, v{TZ+1}
        s_lshl_b32 s56, s{RB2}, 8
        v_add_u32 v{TZ+1}, s56, v{TZ+1}""")
    poll("2", TZ + 1, 3, False)
    A.e(f"s_branch {P}poll2_r")
    for j in range(2, 8):
        A.lab(f"{P}cm{j}")
        zero(CM, 16)
        A.e(f"s_nop 0\ns_branch {P}cm{j}_r")

    def slow(tag, q, o, l, kf, vf, S, C, Pp, M, setup):
        A.lab(f"{P}slow{tag}")
        A.e("s_waitcnt vmcnt(0)")
        A.e(setup)
        zero(o, 16); zero(l, 4)
        A.e(f"""v_mov_b32 v{M}, {NEG}
            s_mov_b32 s99, 0""")
        A.lab(f"{P}spass{tag}")
        A.e("s_mov_b32 s100, s98")
        A.lab(f"{P}stile{tag}")
        A.e(f"""s_lshl_b32 s56, s100, 12
            s_add_u32 s56, s56, s101
            buffer_load_dwordx4 {v(kf,4)}, v{VL16}, {sr(WS)}, s56 offen sc1
            buffer_load_dwordx4 {v(kf+4,4)}, v{VL16}, {sr(WS)}, s56 offen offset:1024 sc1
            buffer_load_dwordx4 {v(vf,4)}, v{VL16}, {sr(WS)}, s56 offen offset:2048 sc1
            buffer_load_dwordx4 {v(vf+4,4)}, v{VL16}, {sr(WS)}, s56 offen offset:3072 sc1
            s_cmp_eq_u32 s100, s96
            s_cselect_b32 s56, {NEG}, 0
            s_cmp_eq_u32 s100, s97
            s_cselect_b32 s57, {NEG}, 0
            v_mov_b32 v{M+2}, s56
            v_mov_b32 v{M+3}, s57""")
        for r in range(16):
            A.e(f"""v_cmp_le_i32 vcc, {keyl(r)}, v{VD}
                s_nop 1
                v_cndmask_b32 v{C+r}, v{M+2}, v{M+3}, vcc""")
        A.e("s_waitcnt vmcnt(0)\ns_nop 0")
        A.e(mfma32(S, kf, q, C))
        A.e(mfma32(S, kf + 4, q + 4, S))
        A.e(f"""s_nop 7
            s_nop 7
            s_cmp_eq_u32 s99, 0
            s_cbranch_scc0 {P}sp2{tag}""")
        for r in range(16): A.e(f"v_max_f32 v{M}, v{M}, v{S+r}")
        A.e(f"s_branch {P}snext{tag}")
        A.lab(f"{P}sp2{tag}")
        for r in range(16): A.e(f"v_sub_f32 v{S+r}, v{S+r}, v{M}")
        for r in range(16): A.e(ex(S, r))
        A.e("s_nop 0")
        for i in range(8): A.e(cv(Pp, S, i))
        A.e("s_nop 1")
        A.e(mfma32(o, vf, Pp, o))
        A.e(mfma32(o, vf + 4, Pp + 4, o))
        A.e(smf(l, Pp))
        A.e("s_nop 7\ns_nop 7")
        A.lab(f"{P}snext{tag}")
        A.e(f"""s_add_u32 s100, s100, 1
            s_cmp_le_u32 s100, s95
            s_cbranch_scc1 {P}stile{tag}
            s_cmp_eq_u32 s99, 0
            s_cbranch_scc0 {P}sdone{tag}
            v_mov_b32 v{M+1}, v{M}
            s_nop 1
            v_permlane32_swap_b32 v{M}, v{M+1}
            s_nop 1
            v_max_f32 v{M}, v{M}, v{M+1}
            s_mov_b32 s99, 1
            s_branch {P}spass{tag}""")
        A.lab(f"{P}sdone{tag}")
        A.e(f"""v_add_f32 v{T0}, v{l}, v{l+1}
            s_branch {P}norm{tag}""")
    slow("B", QB, O2, L2, 192, 200, 208, 224, 240, 248,
         f"""s_lshl_b32 s101, s{HEADB}, 18
            s_add_u32 s101, s101, {KVB_OFF}
            s_sub_i32 s97, s{RT}, 8
            s_max_i32 s98, s97, 0
            s_mov_b32 s95, s{RT}
            s_mov_b32 s96, s{RT}""")
    slow("A", QA, O, L, KF, VF, SB[0], SB[1], PB[0], ML + 8,
         f"""s_mov_b32 s101, {KVA_OFF}
            s_mov_b32 s98, 0
            s_mov_b32 s95, 63
            s_mov_b32 s96, -1
            s_mov_b32 s97, -1""")
    A.raw(".p2align 4")
    A.lab(f"{P}last")
    A.e("s_endpgm")
    return kernel_desc(name, 256, 102)

if __name__ == "__main__":
    ref = open(f"cdna_kernels/{NAME}.s.ref").read().split("\n")
    hdr = [l for l in ref if l.startswith(";") and "@launch" not in l]
    A = Asm()
    d = gen(A, NAME + "_kernel")
    out = "\n".join(hdr) + "\n" + f"; @launch grid=(256,1,1) block=(512,1,1) lds={LDS}\n"
    out += '.amdgcn_target "amdgcn-amd-amdhsa--gfx950"\n.text\n' + A.text() + '.section .rodata,"a"\n' + d
    path = sys.argv[1] if len(sys.argv) > 1 else f"cdna_kernels/{NAME}.s"
    open(path, "w").write(out)
    print("wrote", path, len(out))
```

```python
from common import *
import sys
E = lambda k, d: int(os.environ.get(k, d))
STAG = 4
PART_OFF = 0
TPA = E('TPA', 8)
WARM = E('WARM', 1)
E1N = E('E1N', 11)
TPOLL = E('TPOLL', 14)
LPRIO = E('LPRIO', 3)
LPS = E('LPS', 2)
ROT = E('ROT', 1)
SLP = E('SLP', 12)
PFC = E('PFC', 0)
TOUCH = E('TOUCH', 0)
ZIG = E('ZIG', 3)
SFIRST = E('SFIRST', 0)
OFL = os.environ.get('OFL', '')
XP = E('XP', 0)
JP = E('JP', 11)
JU = E('JU', 13)
JV = E('JV', 21)
SLP3 = E('SLP3', 4)
PRL = E('PRL', 2)
ORD = E('ORD', 3)
SPRO = E('SPRO', 1)
TRED = E('TRED', 10)
TTAG = E('TTAG', 2)
NB0 = 28

XSZ = 16384
ST = 49152
MISC = 3 * ST
LDS = 163840
NEG = f2u(-1e30)
SPIN = 50000

VL16, AC, AN, VG, IDX, VD, T0 = 1, 2, 3, 4, 5, 6, 7
ONES, L = 8, 12
QB, QA = 16, 24
KF, VF = 32, 40
PB = [48, 56]
SB = [64, 80]
O = 96
ML = 112
OFR = 128
O2, L2, MU, CM, TB, AB, TZ = 128, 144, 148, 164, 180, 188, 189
WS, DBG, SX_, SW_, SS_ = 28, 32, 36, 40, 44
RB, HP, XCD, IDXS, RT, HEAD, RB2, CBK = 48, 49, 50, 51, 52, 53, 54, 55
HEADB = 65
NON = 64
FL_OFF = 4 * MB
GROT = E('GROT', 1)

def sr(b): return f"s[{b}:{b+3}]"
def mfma16(d, a, b, c):
    cs = c if isinstance(c, str) else v(c, 4)
    return f"v_mfma_f32_16x16x32_bf16 {v(d,4)}, {v(a,4)}, {v(b,4)}, {cs}"
def smf(l, p): return f"v_smfmac_f32_16x16x64_bf16 {v(l,4)}, {v(ONES,4)}, {v(p,8)}, v{IDX}"
def ex(S, i): return f"v_exp_f32 v{S+i}, v{S+i}"
def cv(Pp, S, i): return f"v_cvt_pk_bf16_f32 v{Pp+i}, v{S+2*i}, v{S+2*i+1}"
def keyl(r): return 16 * (r >> 3) + 4 * ((r >> 2) & 1) + (r & 3)

TRN = "setup,g0,pla,pl0,gend,attn,aend,afin,y1a,y1,y3a,y3,y4,oend".split(",")
TRL = {n: 44 + i for i, n in enumerate(TRN)}
def st(A, nm):
    if DIAG: trace(A, TRL[nm])

class VM:
    def __init__(self): self.q = []
    def add(self, tag, n=1): self.q += [tag] * n
    def after(self, *tags):
        if not any(t in tags for t in self.q): return 0
        last = max(i for i, t in enumerate(self.q) if t in tags)
        return len(self.q) - 1 - last

def pack_list(dst, blk, scale):
    o = []
    for a in range(2):
        for b in range(2):
            d = blk[a][b]
            if scale:
                for i in range(2): o.append(f"v_pk_mul_f32 {v(d+2*i,2)}, {v(d+2*i,2)}, s[62:63]")
            for i in range(2): o.append(f"v_cvt_pk_bf16_f32 v{dst+a*4+b*2+i}, v{d+2*i}, v{d+2*i+1}")
    for a in range(2):
        for i in range(2): o.append(f"v_permlane16_swap_b32 v{dst+a*4+i}, v{dst+a*4+2+i}")
    return o

def gen(A, name):
    P = "f_"
    kernel_head(A, name)
    A.e(f"""s_cmp_ge_u32 s2, 256
        s_cbranch_scc1 {P}end2""")
    stamp_init(A)
    if E('HT', 0): A.e("s_memrealtime s[70:71]\ns_memtime s[74:75]")
    if E('SCR', 0):
        A.e("""s_lshr_b32 s56, s2, 3
            s_lshr_b32 s57, s2, 5
            s_xor_b32 s56, s56, s57
            s_and_b32 s56, s56, 7
            s_xor_b32 s2, s2, s56""")
    A.e(f"""s_load_dwordx8 s[4:11], s[0:1], 0
        s_load_dwordx8 s[16:23], s[0:1], 48
        s_load_dwordx4 s[24:27], s[0:1], 80
        s_load_dwordx2 s[12:13], s[0:1], 32
        v_lshrrev_b32 v1, 6, v0
        v_and_b32 v0, 63, v0
        v_readfirstlane_b32 s3, v1
        s_and_b32 s{XCD}, s2, 7
        s_lshr_b32 s{IDXS}, s2, 3
        s_and_b32 s{RB}, s{XCD}, 1
        s_lshl_b32 s{RB}, s{RB}, 3
        s_and_b32 s56, s{IDXS}, 7
        s_add_u32 s{RB}, s{RB}, s56
        s_lshr_b32 s{HP}, s{XCD}, 1
        s_lshl_b32 s{HP}, s{HP}, 2
        s_lshr_b32 s56, s{IDXS}, 3
        s_add_u32 s{HP}, s{HP}, s56
        v_lshlrev_b32 v{VL16}, 4, v0
        s_cmp_lt_u32 s3, 4
        s_cbranch_scc1 {P}compute""")

    def common_setup():
        A.e(f"""s_and_b32 s{RB2}, s{XCD}, 3
            s_lshl_b32 s{RB2}, s{RB2}, 2
            s_and_b32 s56, s{IDXS}, 3
            s_add_u32 s{RB2}, s{RB2}, s56
            s_lshr_b32 s{CBK}, s{XCD}, 2
            s_lshl_b32 s{CBK}, s{CBK}, 3
            s_lshr_b32 s56, s{IDXS}, 2
            s_add_u32 s{CBK}, s{CBK}, s56
            s_and_b32 s56, s3, 1
            s_lshl_b32 s56, s56, 1
            s_lshr_b32 s57, s3, 2
            s_add_u32 s56, s56, s57
            s_lshl_b32 s{RT}, s{RB}, 2
            s_add_u32 s{RT}, s{RT}, s56
            s_bfe_u32 s56, s3, 0x10001
            s_lshl_b32 s{HEAD}, s{HP}, 1
            s_add_u32 s{HEAD}, s{HEAD}, s56
            s_add_u32 s56, s{HEAD}, {2*GROT}
            s_and_b32 s56, s56, 7
            s_and_b32 s57, s{HEAD}, 24
            s_or_b32 s{HEADB}, s56, s57""")
        srd(A, WS, "s26", "s27", WS_USED)
        srd(A, DBG, "s24", "s25", 256)
        A.e(f"""v_and_b32 v{T0}, 31, v0
            v_lshrrev_b32 v{VG}, 5, v0
            v_lshlrev_b32 v{VG}, 3, v{VG}
            v_sub_u32 v{VD}, v{T0}, v{VG}
            v_mov_b32 v{VG}, {NEG}""")
        for r in range(16):
            A.e(f"""v_cmp_le_i32 vcc, {keyl(r)}, v{VD}
                s_nop 1
                v_cndmask_b32 v{ML+r}, v{VG}, 0, vcc""")
        A.e(f"""v_and_b32 v{T0}, 4, v0
            v_cmp_eq_u32 vcc, 0, v{T0}
            v_mov_b32 v{VG}, 0x3f803f80
            v_and_b32 v{T0}, 1, v0
            v_cndmask_b32 v{ONES}, 0, v{VG}, vcc
            v_cndmask_b32 v{ONES+1}, 0, v{VG}, vcc
            v_cndmask_b32 v{ONES+2}, v{VG}, 0, vcc
            v_cndmask_b32 v{ONES+3}, v{VG}, 0, vcc
            v_cmp_eq_u32 vcc, 0, v{T0}
            v_mov_b32 v{T0}, 0x4444
            v_mov_b32 v{VG}, 0xeeee
            v_cndmask_b32 v{IDX}, v{VG}, v{T0}, vcc
            v_add_u32 v{AC}, 0x10000, v{VL16}
            v_add_u32 v{AN}, 0x20000, v{VL16}""")
        for i in range(4): A.e(f"v_mov_b32 v{L+i}, 0")
        if DIAG: A.e(f"v_mov_b32 v{VD}, 0")
    def pack(dst, blk, scale):
        for x in pack_list(dst, blk, scale): A.e(x)
    def zero(base, n):
        for i in range(n): A.e(f"v_mov_b32 v{base+i}, 0")
    def signal(phase, t1):
        A.e(f"""s_mov_b64 exec, 1
            v_mov_b32 v{T0}, s{NON}
            v_mov_b32 v{t1}, 0
            s_lshl_b32 s56, s{RB}, 4
            s_add_u32 s56, s56, s{HP}
            s_lshl_b32 s56, s56, 4
            s_add_u32 s56, s56, {FL_OFF + 4096*phase}
            buffer_store_dword v{T0}, v{t1}, {sr(WS)}, s56 offen sc1
            s_mov_b64 exec, -1""")
    def poll_issue(voff, phase, t1=None):
        A.e(f"""s_mov_b32 s62, {FL_OFF + 4096*phase}
            buffer_load_dword v{T0}, v{voff}, {sr(WS)}, s62 offen sc1""")
        if t1: A.e(f"buffer_load_dword v{t1}, v{voff}, {sr(WS)}, s62 offen offset:16 sc1")
    def poll(tag, voff, phase, first_issued, t1=None, slp=SLP):
        A.e(f"s_mov_b32 s57, {1 if ((XP & 32 and tag in '0a') or (XP & 64 and tag in '123')) else SPIN}")
        if first_issued: A.e(f"s_branch {P}pc{tag}")
        A.lab(f"{P}pl{tag}")
        poll_issue(voff, phase, t1)
        A.e("s_waitcnt vmcnt(0)")
        A.lab(f"{P}pc{tag}")
        A.e(f"v_cmp_eq_u32 vcc, s{NON}, v{T0}")
        if t1: A.e(f"""s_mov_b64 s[62:63], vcc
            v_cmp_eq_u32 vcc, s{NON}, v{t1}
            s_and_b64 vcc, vcc, s[62:63]""")
        A.e(f"""s_cmp_eq_u64 vcc, -1
            s_cbranch_scc1 {P}pd{tag}
            s_sleep {slp}
            s_sub_u32 s57, s57, 1
            s_cmp_lg_u32 s57, 0
            s_cbranch_scc1 {P}pl{tag}""")
        A.lab(f"{P}pd{tag}")
    def tag_issue(d, z):
        A.e(f"""v_mov_b32 v{z}, 0
            buffer_load_dword v{d}, v{z}, {sr(DBG)}, 0 offen sc1""")
    def tag_get(lbl, d, z):
        A.e(f"s_mov_b32 s57, {SPIN}")
        A.lab(f"{P}tl{lbl}")
        A.e(f"""v_readfirstlane_b32 s{NON}, v{d}
            s_cmp_lg_u32 s{NON}, 0
            s_cbranch_scc1 {P}td{lbl}
            s_sleep 8
            buffer_load_dword v{d}, v{z}, {sr(DBG)}, 0 offen sc1
            s_waitcnt vmcnt(0)
            s_sub_u32 s57, s57, 1
            s_cmp_lg_u32 s57, 0
            s_cbranch_scc1 {P}tl{lbl}""")
        A.lab(f"{P}td{lbl}")
    gslot = lambda t: ((15 - t) % 3) * ST

    VX, VW, VS, AXS, AWS = 128, 130, 132, 136, 133
    SXF, SWF, SA = 144, 176, 208
    LW, KIND, PHI = 14, 15, 92
    XB, WB, WSTEP, KT, L4K, L8K, PSRC = 93, 94, 96, 98, 99, 100, 101
    A.e(f"""s_setprio {LPRIO}
        s_sub_u32 s{LW}, s3, 4
        v_lshrrev_b32 v9, 3, v0
        v_and_b32 v16, 7, v0
        v_lshrrev_b32 v17, 4, v0
        v_xor_b32 v17, v17, v16
        v_lshlrev_b32 v17, 4, v17
        v_lshl_add_u32 v{VX}, v9, 11, v17
        v_xor_b32 v{VX+1}, 64, v{VX}
        s_cmp_eq_u32 s{LW}, 0
        s_mov_b32 s57, 6144
        s_cselect_b32 s57, 2048, s57
        v_bfe_u32 v17, v0, 4, 1
        v_lshlrev_b32 v17, 1, v17
        v_xor_b32 v17, v17, v16
        v_lshlrev_b32 v17, 4, v17
        v_mul_u32_u24 v18, s57, v9
        v_add_u32 v{VW}, v18, v17
        v_xor_b32 v{VW+1}, 64, v{VW}
        s_lshl_b32 s{WSTEP}, s57, 3
        s_lshl_b32 s{XB}, s{RB}, 18
        s_lshl_b32 s56, s{LW}, 16
        s_add_u32 s{XB}, s{XB}, s56
        s_max_u32 s56, s{LW}, 1
        s_sub_u32 s56, s56, 1
        s_lshl_b32 s56, s56, 11
        s_mul_i32 s57, s{LW}, {GROT}
        s_add_u32 s57, s57, s{HP}
        s_and_b32 s57, s57, 3
        s_and_b32 s{WB}, s{HP}, 12
        s_or_b32 s57, s57, s{WB}
        s_lshl_b32 s57, s57, 7
        s_add_u32 s{WB}, s56, s57
        s_add_u32 s{PHI}, s{RB}, s{HP}
        s_and_b32 s{PHI}, s{PHI}, 3
        s_lshl_b32 s{KT}, s{PHI}, {0 if ORD >= 3 else 1 if ORD else 2}
        s_and_b32 s56, s{HP}, {4 if ORD == 2 else 12 if ORD == 3 else 0}
        s_lshl_b32 s56, s56, {1 if ORD == 2 else 0}
        s_or_b32 s{KT}, s{KT}, s56
        s_lshl_b32 s{L4K}, s{LW}, 12
        s_lshl_b32 s{L8K}, s{LW}, 13
        s_cmp_eq_u32 s{LW}, 0
        s_waitcnt lgkmcnt(0)
        s_cselect_b32 s{SW_}, s6, s16
        s_cselect_b32 s{SW_+1}, s7, s17
        s_mov_b32 s{SW_+2}, {6*MB}
        s_cselect_b32 s{SW_+2}, {2*MB}, s{SW_+2}
        s_mov_b32 s{SW_+3}, 0x20000""")
    srd(A, SX_, "s4", "s5", 4 * MB)
    def ktof(t): return 4 * (t >> 2) + ((3 - (t & 3)) if ((ZIG & 1) and (t >> 2) & 1) else (t & 3))
    def issue(t):
        A.e(f"""s_add_u32 m0, s{L4K}, {gslot(t)}
            s_lshl_b32 s56, s{KT}, 7
            s_add_u32 s56, s56, s{XB}""")
        for i in range(4):
            A.e(f"buffer_load_dwordx4 v{VX+(i&1)}, {sr(SX_)}, s56 offen lds")
            if i < 3: A.e("s_add_u32 m0, m0, 1024\ns_add_u32 s56, s56, 16384")
        A.e(f"""s_add_u32 m0, s{L8K}, {gslot(t) + XSZ}
            s_mul_i32 s56, s{KT}, s{WSTEP}
            s_lshl_b32 s56, s56, 3
            s_add_u32 s56, s56, s{WB}""")
        for i in range(8):
            A.e(f"buffer_load_dwordx4 v{VW+(i&1)}, {sr(SW_)}, s56 offen lds")
            if i < 7: A.e(f"s_add_u32 m0, m0, 1024\ns_add_u32 s56, s56, s{WSTEP}")
        if ORD >= 3:
            if t < 15:
                A.e(f"""s_add_u32 s56, s{KT}, 1
                    s_and_b32 s56, s56, 3
                    s_add_u32 s{KT}, s{KT}, {4 if (t & 3) == 3 else 0}
                    s_and_b32 s{KT}, s{KT}, 12
                    s_or_b32 s{KT}, s{KT}, s56""")
        elif ORD:
            if t < 15:
                A.e(f"""s_add_u32 s56, s{KT}, 1
                    s_and_b32 s56, s56, 7
                    s_and_b32 s{KT}, s{KT}, 8
                    s_or_b32 s{KT}, s{KT}, s56""")
                if t == 7: A.e(f"s_xor_b32 s{KT}, s{KT}, 8")
        elif t < 15 and ZIG >= 2 and (t & 3) == 3:
            p = (t + 1) >> 2
            first = ktof(t + 1) & 3
            A.e(f"""s_cmp_le_u32 s{PHI}, {p-1}
                s_cselect_b32 s{KT}, {4*p + first}, {4*(p-1) + first}""")
        elif t < 15:
            A.e(f"""s_add_u32 s{KT}, s{KT}, {(ktof(t+1) - ktof(t)) & 15}
                s_and_b32 s{KT}, s{KT}, 15""")
    stamp(A, 1)
    issue(0)
    stamp(A, 2)
    if ORD == 3:
        A.e(f"""s_and_b32 s{KIND}, s{HP}, 3
            s_add_u32 s97, s{PHI}, s{LW}
            s_and_b32 s97, s97, 3
            s_lshr_b32 s{PHI}, s{HP}, 2""")
    else:
        A.e(f"""s_lshr_b32 s{KIND}, s{HP}, 2
            s_mov_b32 s97, s{LW}""")
    A.e(f"""s_or_b32 s{KIND}, s{KIND}, {3 if XP & 32 else 0}
        s_cmp_eq_u32 s{KIND}, 0
        s_cselect_b32 s{SS_}, s8, s10
        s_cselect_b32 s{SS_+1}, s9, s11
        s_cmp_ge_u32 s{KIND}, 2
        s_cselect_b32 s{SS_}, s20, s{SS_}
        s_cselect_b32 s{SS_+1}, s21, s{SS_+1}
        s_mov_b32 s{SS_+2}, 65536
        s_cselect_b32 s{SS_+2}, 2048, s{SS_+2}
        s_mov_b32 s{SS_+3}, 0x20000
        s_mov_b32 s57, 1024
        s_cselect_b32 s57, 32, s57
        s_cselect_b64 vcc, -1, 0
        v_lshrrev_b32 v17, 5, v0
        v_lshlrev_b32 v17, 4, v17
        v_cndmask_b32 v{VS}, v{VL16}, v17, vcc
        s_mov_b32 s95, s57""")
    common_setup()
    A.e(f"""v_and_b32 v16, 31, v0
        v_lshrrev_b32 v17, 5, v0
        v_bfe_u32 v18, v0, 1, 3
        v_xor_b32 v19, v17, v18
        v_lshlrev_b32 v19, 4, v19
        v_lshl_add_u32 v19, v16, 7, v19
        v_add_u32 v{AXS}, s{L4K}, v19
        v_xor_b32 v{AXS+1}, 32, v{AXS}
        v_xor_b32 v{AXS+2}, 64, v{AXS}
        v_xor_b32 v{AXS+3}, 0x60, v{AXS}
        v_bfe_u32 v18, v0, 2, 2
        v_lshl_add_u32 v19, v17, 3, v18
        v_lshlrev_b32 v19, 6, v19
        v_bfe_u32 v18, v0, 4, 1
        v_lshl_add_u32 v19, v18, 5, v19
        v_and_b32 v18, 3, v0
        v_bfe_u32 v20, v0, 1, 1
        v_and_b32 v21, 1, v0
        v_lshl_or_b32 v20, v21, 1, v20
        s_cmp_eq_u32 s{KIND}, 0
        s_cselect_b64 vcc, -1, 0
        v_cndmask_b32 v18, v18, v20, vcc
        v_lshl_add_u32 v19, v18, 3, v19
        s_cmp_ge_u32 s{KIND}, 2
        s_cselect_b64 vcc, -1, 0
        v_cndmask_b32 v19, v19, v{VL16}, vcc
        v_add_u32 v{AWS}, {MISC}, v19
        s_lshl_b32 s{PSRC}, s{RB}, 2
        s_add_u32 s{PSRC}, s{PSRC}, s{KIND}
        s_lshl_b32 s{PSRC}, s{PSRC}, 16
        s_add_u32 s{PSRC}, s{PSRC}, {PART_OFF}""")
    zero(SA, 16)
    def side_issue():
        A.e(f"""s_lshl_b32 s56, s{PHI}, 2
            s_add_u32 s56, s56, s97
            s_lshl_b32 s56, s56, 2
            s_add_u32 m0, s{L4K}, {MISC}
            s_mul_i32 s56, s56, s95""")
        for i in range(4):
            A.e(f"buffer_load_dwordx4 v{VS}, {sr(SS_)}, s56 offen lds")
            if i < 3: A.e("s_add_u32 m0, m0, 1024\ns_add_u32 s56, s56, s95")
    st(A, "setup")
    if SPRO: side_issue()
    issue(1)
    A.e(f"s_waitcnt vmcnt({16 if SPRO else 12})")
    st(A, "g0")
    for t in range(16):
        A.e("s_barrier")
        trace(A, t)
        wt = {0: [], 1: [0, 1], 2: [2], 3: [3]}.get(t, [])
        sx = lambda tt: SXF + 16 * (tt & 1)
        sw = lambda tt: SWF + 16 * (tt & 1)
        if t < 4:
            A.e(f"""s_cmp_eq_u32 s{KIND}, 3
                s_cbranch_scc1 {P}lh{t}""")
            for k in range(4): A.e(f"ds_read_b128 {v(sx(t)+4*k,4)}, v{AXS+k}")
            if wt:
                A.e(f"""s_cmp_eq_u32 s{KIND}, 2
                    s_cbranch_scc1 {P}lg{t}""")
                for tt in wt:
                    for k in range(4):
                        A.e(f"""ds_read_b64_tr_b16 {v(sw(tt)+4*k,2)}, v{AWS} offset:{4096*tt+1024*k}
                            ds_read_b64_tr_b16 {v(sw(tt)+4*k+2,2)}, v{AWS} offset:{4096*tt+1024*k+256}""")
                    if tt == 0: A.e("s_waitcnt lgkmcnt(4)")
                A.e(f"s_branch {P}lh{t}")
                A.lab(f"{P}lg{t}")
                for tt in wt:
                    for k in range(4): A.e(f"ds_read_b128 {v(sw(tt)+4*k,4)}, v{AWS} offset:{4096*tt+1024*k}")
            A.lab(f"{P}lh{t}")
        if t == 0 and not SPRO: side_issue()
        if t == TTAG: tag_issue(18, 17)
        if t == TPA:
            A.e(f"""v_and_b32 v16, 3, v0
                v_lshlrev_b32 v16, {6 if ORD == 3 else 4}, v16
                s_lshl_b32 s56, s{RB}, {4 if ORD == 3 else 2}
                s_add_u32 s56, s56, s{KIND}
                s_lshl_b32 s56, s56, {4 if ORD == 3 else 6}
                v_add_u32 v16, s56, v16
                s_cmp_ge_u32 s{LW}, 2
                s_cbranch_scc1 {P}lta""")
            poll_issue(16, 0)
            A.lab(f"{P}lta")
        if t == TPOLL:
            if ORD == 3: A.e("v_lshlrev_b32 v16, 6, v0")
            else: A.e("v_lshrrev_b32 v16, 2, v0\nv_lshlrev_b32 v16, 8, v16\nv_and_b32 v17, 3, v0\nv_lshl_add_u32 v16, v17, 5, v16")
            A.e(f"""s_cmp_lg_u32 s{LW}, 0
                s_cbranch_scc1 {P}lt0""")
            poll_issue(16, 1, 17)
            A.lab(f"{P}lt0")
        if t == TRED:
            A.e(f"""s_cmp_ge_u32 s{LW}, 2
                s_cbranch_scc1 {P}lsd
                s_lshl_b32 s56, s{RB}, 2
                s_add_u32 s56, s56, s{PHI}""")
            for i in range(0, 8, 2):
                A.e(f"""v_pk_add_f32 {v(SA+i,2)}, {v(SA+i,2)}, {v(SA+8+i,2)}
                    v_pk_add_f32 {v(SA+16+i,2)}, {v(SA+16+i,2)}, {v(SA+24+i,2)}
                    v_pk_add_f32 {v(SA+i,2)}, {v(SA+i,2)}, {v(SA+16+i,2)}""")
            A.e(f"""s_cmp_ge_u32 s{KIND}, 2
                s_cbranch_scc1 {P}lgate
                s_cmp_eq_u32 s{KIND}, 0
                s_cselect_b32 s57, {f2u(CSCALE)}, 1.0""")
            for i in range(8): A.e(f"v_mul_f32 v{SA+i}, s57, v{SA+i}")
            for i in range(4): A.e(f"v_cvt_pk_bf16_f32 v{SXF+i}, v{SA+2*i}, v{SA+2*i+1}")
            A.e(f"""s_lshl_b32 s56, s56, 12
                s_lshl_b32 s57, s{KIND}, 11
                s_add_u32 s56, s56, s57
                s_lshl_b32 s57, s{LW}, 10
                s_add_u32 s56, s56, s57
                s_add_u32 s56, s56, {KVA_OFF}
                buffer_store_dwordx4 {v(SXF,4)}, v{VL16}, {sr(WS)}, s56 offen sc1
                s_branch {P}lsd""")
            A.lab(f"{P}lgate")
            A.e(f"""s_cmp_lg_u32 s{KIND}, 2
                s_cbranch_scc1 {P}lsd
                s_cmp_lg_u32 s{LW}, 0
                s_cbranch_scc1 {P}lsd
                v_mul_f32 v{SA}, {f2u(-LOG2E)}, v{SA}
                v_exp_f32 v{SA}, v{SA}
                s_lshl_b32 s56, s56, 7
                v_add_f32 v{SA}, 1.0, v{SA}
                v_rcp_f32 v{SA}, v{SA}
                s_add_u32 s56, s56, {G_OFF}
                v_and_b32 v16, 31, v0
                v_lshlrev_b32 v16, 2, v16
                buffer_store_dword v{SA}, v16, {sr(WS)}, s56 offen sc1""")
            A.lab(f"{P}lsd")
        late = SFIRST and t in (1, 3)
        if t + 2 < 16 and not late: issue(t + 2)
        if t < 4:
            dl = gslot(t + 1) - gslot(t)
            A.e(f"""s_cmp_eq_u32 s{KIND}, 3
                s_cbranch_scc1 {P}lw{t}""")
            if t < 3:
                for k in range(4): A.e(f"v_add_u32 v{AXS+k}, {dl & 0xffffffff}, v{AXS+k}")
            A.e(f"""s_waitcnt lgkmcnt(0)
                s_cmp_eq_u32 s{KIND}, 1
                s_cbranch_scc1 {P}lv{t}""")
            for tt in wt:
                for k in range(4): A.e(mfma32(SA, sw(tt) + 4*k, sx(tt) + 4*k, SA))
            A.e(f"s_branch {P}lw{t}")
            A.lab(f"{P}lv{t}")
            for tt in wt:
                for k in range(4): A.e(mfma32(SA, sx(tt) + 4*k, sw(tt) + 4*k, SA))
            A.lab(f"{P}lw{t}")
            if t == 3: A.e("s_nop 7")
        if late: issue(t + 2)
        if t == 3:
            A.e(f"""s_cmp_eq_u32 s{KIND}, 3
                s_cbranch_scc1 {P}lp1
                s_lshl_b32 s56, s{LW}, 14
                s_lshl_b32 s57, s{PHI}, 12
                s_add_u32 s56, s56, s57
                s_add_u32 s56, s56, s{PSRC}""")
            for q in range(4): A.e(f"buffer_store_dwordx4 {v(SA+4*q,4)}, v{VL16}, {sr(WS)}, s56 offen offset:{1024*q} sc1")
            A.lab(f"{P}lp1")
        ncs = 0
        if t > TPOLL and (t == TPOLL + 1 or t == 15):
            cs = []
            if t == TPOLL + 1: cs.append((0, 3))
            if t == 15: cs.append((1, 2))
            for c, slot in cs:
                for hf in range(2):
                    A.e(f"""s_add_u32 m0, s{L8K}, {slot*32768 + hf*4096}
                        s_add_u32 s56, s{L8K}, {KVA_OFF + c*32768 + hf*4096}""")
                    for i in range(4): A.e(f"buffer_load_dwordx4 v{VL16}, {sr(WS)}, s56 offen offset:{1024*i} sc1 lds")
                ncs += 8
        if t < 15: A.e(f"s_waitcnt vmcnt({12 if t + 2 < 16 else ncs})")
        if t == TPA - 1: tag_get("l", 18, 17)
        if t == TPA:
            A.e(f"""s_cmp_eq_u32 s{KIND}, 3
                s_cbranch_scc1 {P}pda
                s_cmp_ge_u32 s{LW}, 2
                s_cbranch_scc1 {P}pda""")
            poll("a", 16, 0, True)
            st(A, "pla")
        if t == TPA:
            A.e(f"""s_cmp_eq_u32 s{KIND}, 3
                s_cbranch_scc1 {P}lp2
                s_cmp_ge_u32 s{LW}, 2
                s_cbranch_scc1 {P}lp2
                s_lshl_b32 s56, s{PHI}, 14
                s_lshl_b32 s57, s{LW}, 11
                s_add_u32 s56, s56, s57
                s_add_u32 s56, s56, s{PSRC}""")
            for q in range(4):
                A.e(f"""buffer_load_dwordx4 {v(SA+8*q,4)}, v{VL16}, {sr(WS)}, s56 offen sc1
                    buffer_load_dwordx4 {v(SA+8*q+4,4)}, v{VL16}, {sr(WS)}, s56 offen offset:1024 sc1""")
                if q < 3: A.e("s_add_u32 s56, s56, 4096")
            A.lab(f"{P}lp2")
        if t == TPOLL:
            A.e(f"""s_cmp_lg_u32 s{LW}, 0
                s_cbranch_scc1 {P}pd0""")
            poll("0", 16, 1, True, t1=17)
            st(A, "pl0")
    A.e(f"""s_barrier
        s_add_u32 s56, s{L4K}, {MISC}
        v_add_u32 v16, s56, v{VL16}
        s_setprio 0
        s_waitcnt vmcnt(0)
        s_barrier""")
    st(A, "gend")
    A.e(f"""ds_read_b128 {v(QA,4)}, v16
        ds_read_b128 {v(QA+4,4)}, v16 offset:1024
        ds_read_b128 {v(QB+4,4)}, v16 offset:3072
        ds_read_b128 {v(QB,4)}, v16 offset:2048""")

    A.lab(f"{P}attn")
    if E('STOPG', 0): A.e(f"s_branch {P}end")
    st(A, "attn")
    W4K, W1K, I0, WKT, WSRC, OSRC, WOS = 14, 15, 58, 59, 60, 92, 94
    VOO, VWO, VW2 = ML, ML + 4, 191
    def la(off): return ([VL16, AC, AN][off >> 16], off & 0xffff)
    def rdK(addr, off): return [f"ds_read_b128 {v(KF+4*i,4)}, v{addr} offset:{off+1024*i}" for i in range(2)]
    def rdV(addr, off): return [f"ds_read_b128 {v(VF+4*i,4)}, v{addr} offset:{off+2048+1024*i}" for i in range(2)]
    cslot = lambda c: {0: 3, 1: 2, 2: 4}.get(c, c % 5)
    seq = [("A", j) for j in range(NB0)] + [("B", i) for i in range(9)] + [("A", j) for j in range(NB0, 64)]
    seq += [("A", 63), ("A", 63)]
    def taddr(n):
        k, j = seq[n]
        return la(cslot(j >> 3) * 32768 + (j & 7) * 4096) if k == "A" else (AB, j * 4096)
    def tq(n): return QA if seq[n][0] == "A" else QB
    def tc(n):
        k, j = seq[n]
        return "0" if k == "A" else (MU if j == 0 else ML if j == 8 else CM)
    def to(n): return (O, L) if seq[n][0] == "A" else (O2, L2)
    for x in rdK(*taddr(0)): A.e(x)
    A.e(f"""s_lshl_b32 s{W4K}, s3, 12
        s_lshl_b32 s{W1K}, s3, 10""")
    A.e("s_waitcnt lgkmcnt(0)")
    A.e(mfma32(SB[0], KF, QA, "0"))
    A.e(mfma32(SB[0], KF + 4, QA + 4, SB[0]))
    for x in rdK(*taddr(1)): A.e(x)
    A.e(rdV(*taddr(0))[0])
    A.e(f"""s_sub_i32 s{I0}, 8, s{RT}
        s_lshl_b32 s{WKT}, s{RB}, 2
        s_lshr_b32 s56, s3, 2
        s_add_u32 s{WKT}, s{WKT}, s56
        s_sub_i32 s{WKT}, s{WKT}, 8
        s_lshr_b32 s{WSRC}, s{HEADB}, 1
        s_lshl_b32 s{WSRC}, s{WSRC}, 19
        s_and_b32 s56, s3, 3
        s_lshl_b32 s56, s56, 10
        s_add_u32 s{WSRC}, s{WSRC}, s56
        s_lshl_b32 s{OSRC}, s{RB2}, 2
        s_and_b32 s56, s3, 3
        s_add_u32 s{OSRC}, s{OSRC}, s56
        s_lshl_b32 s{OSRC}, s{OSRC}, 17
        s_lshr_b32 s56, s3, 2
        s_lshl_b32 s56, s56, 11
        s_add_u32 s{OSRC}, s{OSRC}, s56
        s_add_u32 s{OSRC}, s{OSRC}, {O_OFF}""")
    srd(A, SW_, "s18", "s19", 2 * MB)
    srd(A, SX_, "s12", "s13", 2 * MB)
    UO, OQ = 44, 4
    rot = [f"s_lshl_b32 s61, s{CBK}, 2" if ROT else "s_mov_b32 s61, 0", f"s_lshl_b32 s{WOS}, s{CBK}, 7"]
    for q in range(4):
        rot += [f"s_add_u32 s56, s61, {8*q}", "s_add_u32 s56, s56, s3", "s_and_b32 s56, s56, 31", "s_lshl_b32 s56, s56, 16", f"s_add_u32 s{UO+q}, s56, s{WOS}"]
    for h in range(8):
        rot += [f"s_add_u32 s56, s61, {4*h}", "s_and_b32 s56, s56, 31", "s_lshl_b32 s56, s56, 11", f"s_add_u32 s{OQ+h}, s56, s{OSRC}"]
    rot += [f"s_and_b32 s56, s{IDXS}, 3", "s_lshl_b32 s56, s56, 3", "s_add_u32 s56, s56, s3", "s_lshl_b32 s56, s56, 16", f"s_add_u32 s{WOS}, s{WOS}, s56"]
    vm = VM()
    def cpiece(c, i):
        return (f"C{c}", f"""s_add_u32 m0, s{W4K}, {cslot(c)*32768}
            s_add_u32 s57, s{W4K}, {KVA_OFF + c*32768}
            buffer_load_dwordx4 v{VL16}, {sr(WS)}, s57 offen offset:{i*1024} sc1 lds""")
    def wpiece(i):
        return ("W", f"""s_add_u32 m0, s{W1K}, {i*8192}
            s_add_i32 s57, s{WKT}, {2*(i%6)}
            s_max_i32 s57, s57, 0
            s_lshl_b32 s57, s57, 12
            s_add_u32 s57, s57, s{WSRC}
            s_add_u32 s57, s57, {KVB_OFF + (i//6)*64*4096}
            buffer_load_dwordx4 v{VL16}, {sr(WS)}, s57 offen sc1 lds""")
    def upiece(u, k):
        return (f"U{u}", f"""s_add_u32 m0, s{W4K}, {(u%5)*32768 + k*1024}
            s_add_u32 s57, s{UO+(u&3)}, {k*16384}
            buffer_load_dwordx4 v{VWO}, {sr(SW_ if u < 12 else SX_)}, s57 offen lds""")
    def warm(i):
        return ("Z", f"""s_add_u32 s57, s{WOS}, {(i&3)*16384}
            buffer_load_dwordx4 v[252:255], v{VW2}, {sr(SW_ if i < 4 else SX_)}, s57 offen""")
    def oload(n, half):
        cb, f = n >> 1, n & 1
        o = f"s_add_u32 s56, s{OQ+(cb>>1)}, {half*65536 + (cb&1)*4096}\n"
        return ("O", o + f"buffer_load_dwordx4 {v(OFR+4*n,4)}, v{VL16}, {sr(WS)}, s56 offen offset:{1024*f} sc1")
    def valu(lines): return (None, "\n".join(lines))
    bg = {n: [] for n in range(73)}
    for i in range(4): bg[i].append(cpiece(2, i))
    for i in range(4): bg[E1N + i // 2].append(cpiece(3, i))
    for i in range(12): bg[16 + i // 2].append(wpiece(i))
    bg[22].append(("G", f"""v_and_b32 v{TZ}, 31, v0
        v_lshlrev_b32 v{TZ}, 2, v{TZ}
        s_lshl_b32 s57, s{RT}, 7
        s_add_u32 s57, s57, {G_OFF}
        buffer_load_dword v{VG}, v{TZ}, {sr(WS)}, s57 offen sc1"""))
    for i in range(4): bg[26 + i // 2].append(cpiece(4, i))
    if WARM:
        for i in range(8): bg[28 + i].append(warm(i))
    for i in range(12): bg[39 + i // 3].append(cpiece(5 + i // 4, i & 3))
    for i in range(4): bg[45 + i].append(upiece(8, i))
    for i in range(4): bg[53 + i].append(upiece(9, i))
    for i in range(8): bg[65 + i].append(upiece(10 + i // 4, i & 3))
    for i in range(32): bg[50 + (2 * i) // 3].append(oload(i, 1))
    for i in range(0, len(rot), 10): bg[8 + i // 20].append(valu(rot[i:i+10]))
    bg[4].append(valu([f"s_cmp_gt_i32 s{I0}, 0", f"s_cselect_b32 s56, {NEG}, 0", f"s_cselect_b32 s62, 0, 1.0", f"s_cmp_gt_i32 s{I0}, 1", f"s_cselect_b32 s63, {NEG}, 0", f"v_mov_b32 v{TZ}, {NEG}"]))
    for i in range(4):
        bg[4 + i].append(valu([f"v_fma_f32 v{MU+r}, -v{ML+r}, s62, v{TZ}" for r in range(4*i, 4*i+4)]))
        bg[12 + i].append(valu([f"v_mov_b32 v{CM+r}, s63" for r in range(4*i, 4*i+4)]))
        bg[12 + i].append(valu([f"v_mov_b32 v{L2+i}, 0"]))
    bg[23].append(valu([f"s_bfe_u32 s56, s3, 0x10001", "s_mul_i32 s56, s56, 49152", f"s_and_b32 s57, s{RT}, 3", "s_lshl_b32 s57, s57, 12", "s_add_u32 s56, s56, s57", f"v_add_u32 v{AB}, s56, v{VL16}"]))
    bg[24].append(valu([f"v_lshrrev_b32 v{VW2}, 3, v0", f"v_bfe_u32 v{TB}, v0, 4, 2", f"v_lshlrev_b32 v{TB}, 1, v{TB}", f"v_and_b32 v{TB+1}, 7, v0"]))
    bg[24].append(valu([f"v_xor_b32 v{TB}, v{TB}, v{TB+1}", f"v_lshlrev_b32 v{TB}, 4, v{TB}", f"v_lshl_add_u32 v{VW2}, v{VW2}, 11, v{TB}"]))
    bg[43].append(valu([f"v_mov_b32 v{VWO}, v{VW2}"]))
    ntr = [0]
    def bar(wait=None, pre=None, post=None):
        if pre:
            A.e(f"s_cmp_eq_u32 s3, 0\ns_cbranch_scc1 {P}{pre}")
            A.lab(f"{P}{pre}_r")
        if wait is not None: A.e(f"s_waitcnt vmcnt({wait})")
        A.e("s_barrier")
        if post:
            A.e(f"s_cmp_eq_u32 s3, 0\ns_cbranch_scc1 {P}{post}")
            A.lab(f"{P}{post}_r")
        trace(A, 34 + ntr[0]); ntr[0] += 1
    tops = {
        E1N: lambda: bar(0, post="sig1"),
        16: lambda: bar(vm.after("C3"), pre="poll1"),
        26: lambda: bar(vm.after("W")),
        39: lambda: bar(vm.after("C4")),
        45: lambda: bar(0, post="sig2"),
        50: lambda: bar(None, pre="poll2"),
        65: lambda: bar(vm.after("U8")),
    }
    bnd = [0] + sorted(tops) + [73]
    lvl = {}
    for a_, b_ in zip(bnd, bnd[1:]):
        for n in range(a_, b_): lvl[n] = 3 - (PRL * (n - a_)) // (b_ - a_)
    def step(n):
        par = n & 1
        S, Sn, Pc, Pp = SB[par], SB[1-par], PB[par], PB[1-par]
        b = list(bg[n])
        b = [x for x in b if x[0] is None or x[0][0] not in os.environ.get("DROP", "")]
        if XP & 1: b = [x for x in b if x[0] is None]
        if XP & 2: b = [x for x in b if x[0] is not None]
        def B(k=1):
            for _ in range(k):
                if b:
                    tag, txt = b.pop(0)
                    A.e(txt)
                    if tag: vm.add(tag)
        oprev, lprev = to(max(n - 1, 0))
        A.e("s_waitcnt lgkmcnt(1)")
        if n in tops and not (XP & 4): tops[n]()
        if PRL and (n == 0 or lvl[n] != lvl[n - 1]): A.e(f"s_setprio {lvl[n]}")
        k, j = seq[n + 1]
        if k == "B" and 2 <= j <= 7:
            A.e(f"s_cmp_eq_u32 s{I0}, {j}\ns_cbranch_scc1 {P}cm{j}")
            A.lab(f"{P}cm{j}_r")
        A.e(mfma32(Sn, KF, tq(n + 1), tc(n + 1)))
        A.e(rdK(*taddr(n + 2))[0])
        for j in (0, 1, 2, 3): A.e(ex(S, j))
        if n > 0: A.e(mfma32(oprev, VF + 4, Pp + 4, oprev))
        A.e(rdV(*taddr(n))[1])
        A.e(cv(Pc, S, 0)); A.e(cv(Pc, S, 1))
        B()
        for j in (4, 5, 6): A.e(ex(S, j))
        A.e(mfma32(Sn, KF + 4, tq(n + 1) + 4, Sn))
        A.e(rdK(*taddr(n + 2))[1])
        A.e(ex(S, 7)); A.e(cv(Pc, S, 2)); A.e(ex(S, 8)); A.e(cv(Pc, S, 3)); A.e(ex(S, 9))
        if n > 0: A.e(smf(lprev, Pp))
        A.e(ex(S, 10))
        B()
        A.e(ex(S, 11)); A.e(cv(Pc, S, 4))
        A.e("s_waitcnt lgkmcnt(3)")
        A.e(mfma32(to(n)[0], VF, Pc, "0" if n in (0, NB0) else to(n)[0]))
        A.e(rdV(*taddr(n + 1))[0])
        A.e(ex(S, 12)); A.e(cv(Pc, S, 5)); A.e(ex(S, 13))
        B(9)
        A.e(ex(S, 14)); A.e(ex(S, 15))
        A.e(cv(Pc, S, 6)); A.e(cv(Pc, S, 7))
    def finalize(tag, which, o, l, tmp):
        A.e(f"""v_add_f32 v{T0}, v{l}, v{l+1}
            v_mov_b32 v{tmp}, 0
            v_mov_b32 v{tmp+1}, 0
            v_mov_b32 v{tmp+2}, 0
            v_mov_b32 v{tmp+3}, 0""")
        for i in range(8):
            A.e(f"v_pk_fma_f32 {v(tmp,2)}, {v(o+2*i,2)}, {v(tmp+2,2)}, {v(tmp,2)}")
        A.e(f"""v_add_f32 v{tmp}, v{tmp}, v{tmp+1}
            v_add_f32 v{tmp}, v{tmp}, v{T0}
            v_cmp_le_f32 vcc, {f2u(2.0**-64)}, v{tmp}
            s_mov_b64 s[62:63], vcc
            v_cmp_ge_f32 vcc, {f2u(2.0**64)}, v{tmp}
            s_and_b64 vcc, vcc, s[62:63]
            s_cmp_eq_u64 vcc, -1
            {"s_nop 0" if XP else f"s_cbranch_scc0 {P}slow{tag}"}""")
        A.lab(f"{P}norm{tag}")
        A.e(f"v_rcp_f32 v{T0}, v{T0}")
        if which == 0:
            A.e(f"""s_waitcnt vmcnt({vm.after('G')})
                v_sub_f32 v{tmp}, 1.0, v{VG}
                v_mul_f32 v{T0}, v{T0}, v{tmp}
                v_and_b32 v{VOO}, 15, v0
                v_bfe_u32 v{VOO+1}, v0, 4, 1
                v_lshrrev_b32 v{VOO+2}, 5, v0
                v_lshlrev_b32 v{VOO}, 4, v{VOO}
                v_lshl_add_u32 v{VOO}, v{VOO+1}, 10, v{VOO}
                v_lshl_add_u32 v{VOO}, v{VOO+2}, 8, v{VOO}""")
        else:
            A.e(f"s_nop 0\nv_mul_f32 v{T0}, v{T0}, v{VG}")
        for i in range(16): A.e(f"v_mul_f32 v{o+i}, v{o+i}, v{T0}")
        for i in range(8): A.e(f"v_cvt_pk_bf16_f32 v{tmp+i}, v{o+2*i}, v{o+2*i+1}")
        A.e(f"""s_lshl_b32 s56, s{RT}, 6
            s_add_u32 s56, s56, s{HEADB if which == 0 else HEAD}
            s_lshl_b32 s56, s56, 11
            s_add_u32 s56, s56, {O_OFF + (32*2048 if which == 0 else 0)}
            buffer_store_dwordx4 {v(tmp,4)}, v{VOO}, {sr(WS)}, s56 offen sc1
            buffer_store_dwordx4 {v(tmp+4,4)}, v{VOO}, {sr(WS)}, s56 offen offset:512 sc1""")
        vm.add("S" + tag, 2)
    for n in range(73):
        step(n)
        if n == NB0 + 9 and not (XP & 8): finalize("B", 0, O2, L2, TB)
    A.e("s_waitcnt lgkmcnt(0)")
    A.e(mfma32(O, VF + 4, PB[0] + 4, O))
    A.e(smf(L, PB[0]))
    A.e("s_setprio 0")
    st(A, "aend")
    if XP & 31: A.e(f"s_branch {P}end")
    AWO, OAC = 16, 64
    WFO = [32, 48]
    TA = SB[0]
    A.e(f"""v_lshrrev_b32 v20, 4, v0
        v_bfe_u32 v21, v0, 2, 2
        v_and_b32 v22, 1, v20
        v_lshl_add_u32 v22, v22, 2, v21
        v_lshrrev_b32 v23, 1, v20
        v_lshl_add_u32 v23, v23, 4, v22
        v_lshlrev_b32 v23, 7, v23
        v_and_b32 v20, 3, v0
        v_lshl_add_u32 v23, v20, 3, v23
        s_lshr_b32 s56, s3, 2
        s_lshl_b32 s56, s56, 12
        s_add_u32 s56, s56, {3*32768}
        v_add_u32 v23, s56, v23
        v_lshrrev_b32 v22, 1, v22""")
    for nb in range(4):
        A.e(f"v_xor_b32 v20, {nb}, v22\nv_lshl_add_u32 v{AWO+nb}, v20, 5, v23")
    finalize("A", 1, O, L, TA)
    st(A, "afin")

    def oreads(buf, i):
        return [f"ds_read_b64_tr_b16 {v(WFO[buf]+4*nb+2*jh,2)}, v{AWO+nb} offset:{i*8192+jh*1024}" for nb in range(4) for jh in range(2)]
    for r in oreads(0, 0): A.e(r)
    oidx = [i for i, t in enumerate(vm.q) if t == "O"] or [0] * 32
    def emit(x):
        A.e(x[1]); vm.add(x[0])
    def y1():
        st(A, "y1a")
        A.e("s_waitcnt vmcnt(0)\ns_barrier")
        st(A, "y1")
        A.e(f"""s_cmp_lg_u32 s3, 0
            s_cbranch_scc1 {P}y1""")
        signal(4, AN)
        A.lab(f"{P}y1")
    def ypoll():
        st(A, "y3a")
        A.e(f"""s_cmp_lg_u32 s3, 0
            s_cbranch_scc1 {P}pd3
            v_and_b32 v20, 15, v0
            v_lshlrev_b32 v20, 4, v20
            s_lshl_b32 s56, s{RB2}, 8
            v_add_u32 v20, s56, v20""")
        poll("3", 20, 4, False, slp=SLP3)
    def ybar(*tags):
        if tags: A.e(f"s_waitcnt vmcnt({vm.after(*tags)})")
        A.e("s_barrier")
    pre = {j: [] for j in range(32)}
    obg = {j: [] for j in range(32)}
    pre[3].append(y1)
    pre[JP].append(ypoll)
    for j in sorted({7, 11, JP}):
        pre[j].append((lambda: ybar("U12", "U13")) if j == 11 else ybar)
    pre[JP].append(lambda: st(A, "y3"))
    pre[JV].append(lambda: ybar("U14", "U15"))
    pre[16].append(lambda: st(A, "y4"))
    for k in range(8): obg[3 + k // 2].append(upiece(12 + k // 4, k & 3))
    nl = 0
    for j in range(JP, 32):
        c = 0
        while not (XP & 128) and nl < 32 and c < (LPS if j < 16 else 2) and nl // 2 < j:
            obg[j].append((f"OA{nl}", oload(nl, 0)[1])); nl += 1; c += 1
    for k in range(4): obg[7 + k].append(upiece(14, k))
    for k in range(4): obg[JU + k].append(upiece(15, k))
    for j in range(32):
        u, i = 8 + j // 4, j & 3
        q, buf = u & 3, i & 1
        order = [(nb, f if nb % 2 == 0 else 1 - f) for nb in range(4) for f in range(2)]
        ms = [mfma16(OAC + 4*(f*4+nb), WFO[buf]+4*nb, OFR+32*q+8*i+4*f, "0" if j == 0 else OAC + 4*(f*4+nb)) for nb, f in order]
        w = min(60, len(vm.q) - 1 - oidx[7]) if j == 0 else vm.after(f"OA{2*(j-16)+1}") if j >= 16 else None
        A.e("s_waitcnt lgkmcnt(0)" if w is None else f"s_waitcnt lgkmcnt(0) vmcnt({w})")
        if i == 3 and u < 15:
            dl = ((u+1) % 5 - u % 5) * 32768
            for nb in range(4): A.e(f"v_add_u32 v{AWO+nb}, {dl & 0xffffffff}, v{AWO+nb}")
        for f in pre[j]: f()
        rd = oreads(1 - buf, (i + 1) & 3) if j < 31 else []
        b = list(obg[j])
        for k in range(8):
            A.e(ms[k])
            if k < 4 and rd: A.e(rd[2*k]); A.e(rd[2*k+1])
            if k >= 3 and b: emit(b.pop(0))
        while b: emit(b.pop(0))
    st(A, "oend")
    if XP & 256: A.e(f"s_branch {P}end")
    A.e(f"""s_lshl_b32 s56, s3, 12
        s_add_u32 s56, s56, {1*32768}
        v_add_u32 v20, s56, v{VL16}
        v_xor_b32 v21, 16384, v20
        s_cmp_ge_u32 s3, 4
        s_cbranch_scc1 {P}x1
        s_nop 3""")
    for nb in range(4): A.e(f"ds_write_b128 v20, {v(OAC+16+4*nb,4)} offset:{1024*nb}")
    A.e(f"s_branch {P}x2")
    A.lab(f"{P}x1")
    A.e("s_nop 3")
    for nb in range(4): A.e(f"ds_write_b128 v20, {v(OAC+4*nb,4)} offset:{1024*nb}")
    for i in range(16): A.e(f"v_mov_b32 v{OAC+i}, v{OAC+16+i}")
    A.lab(f"{P}x2")
    srd(A, SX_, "s22", "s23", 4 * MB)
    A.e(f"""s_lshl_b32 s56, s{RB2}, 2
        s_and_b32 s57, s3, 3
        s_add_u32 s56, s56, s57
        s_lshl_b32 s56, s56, 1
        s_lshr_b32 s57, s3, 2
        s_add_u32 s56, s56, s57
        s_lshl_b32 s56, s56, 15
        s_lshl_b32 s57, s{CBK}, 7
        s_add_u32 s56, s56, s57
        v_and_b32 v22, 15, v0
        v_lshlrev_b32 v22, 11, v22
        v_bfe_u32 v23, v0, 4, 1
        v_lshl_add_u32 v22, v23, 5, v22
        v_lshrrev_b32 v23, 5, v0
        v_lshl_add_u32 v22, v23, 4, v22
        s_waitcnt lgkmcnt(0)
        s_barrier""")
    for nb in range(4): A.e(f"ds_read_b128 {v(32+4*nb,4)}, v21 offset:{1024*nb}")
    A.e("s_waitcnt lgkmcnt(0)")
    for i in range(16): A.e(f"v_add_f32 v{OAC+i}, v{OAC+i}, v{32+i}")
    pack(48, [[OAC + 4*(2*a+b) for b in range(2)] for a in range(2)], False)
    A.e(f"""buffer_store_dwordx4 {v(48,4)}, v22, {sr(SX_)}, s56 offen {OFL}
        buffer_store_dwordx4 {v(52,4)}, v22, {sr(SX_)}, s56 offen offset:64 {OFL}""")
    A.lab(f"{P}end")
    if E('HT', 0):
        A.e(f"""s_waitcnt vmcnt(0)
            s_memrealtime s[72:73]
            s_memtime s[76:77]
            s_waitcnt lgkmcnt(0)
            s_cmp_lg_u32 s3, 4
            s_cbranch_scc1 {P}end2
            s_mov_b64 exec, 1
            v_mov_b32 v0, 0
            s_not_b32 s56, s70
            v_mov_b32 v1, s56
            v_mov_b32 v2, s70
            v_mov_b32 v3, s72
            s_sub_u32 s76, s76, s74
            v_mov_b32 v4, s76
            buffer_atomic_umax v1, v0, {sr(DBG)}, 0 offen offset:8 sc1
            buffer_atomic_umax v2, v0, {sr(DBG)}, 0 offen offset:12 sc1
            buffer_atomic_umax v3, v0, {sr(DBG)}, 0 offen offset:16 sc1
            buffer_atomic_umax v4, v0, {sr(DBG)}, 0 offen offset:20 sc1""")
    stamp_flush(A, 0)
    trace_flush(A)
    A.lab(f"{P}end2")
    A.e("s_endpgm")

    AX, AW, VKO = 16, 18, 20
    XF, WF = [32, 48], 64
    ACC = 128
    A.lab(f"{P}compute")
    A.e(f"""v_and_b32 v8, 15, v0
        v_lshrrev_b32 v9, 4, v0
        v_bfe_u32 v10, v0, 1, 3
        s_and_b32 s56, s3, 1
        s_lshl_b32 s56, s56, 13
        v_xor_b32 v11, v9, v10
        v_lshlrev_b32 v11, 4, v11
        v_lshl_add_u32 v11, v8, 7, v11
        v_add_u32 v{AX}, s56, v11
        v_xor_b32 v{AX+1}, 64, v{AX}
        v_bfe_u32 v12, v0, 2, 2
        v_and_b32 v13, 3, v0
        v_lshl_add_u32 v14, v9, 3, v12
        v_lshlrev_b32 v14, 7, v14
        v_lshl_add_u32 v14, v13, 3, v14
        v_bfe_u32 v15, v0, 3, 2
        s_and_b32 s56, s3, 2
        v_xor_b32 v15, s56, v15
        v_lshl_add_u32 v14, v15, 5, v14
        v_add_u32 v{AW}, {XSZ}, v14
        v_xor_b32 v{AW+1}, 32, v{AW}
        v_and_b32 v8, 0x33, v0
        v_bfe_u32 v9, v0, 2, 1
        v_bfe_u32 v10, v0, 3, 1
        v_lshl_or_b32 v8, v9, 3, v8
        v_lshl_or_b32 v8, v10, 2, v8
        v_lshlrev_b32 v{VKO}, 4, v8
        s_waitcnt lgkmcnt(0)""")
    common_setup()
    A.e(f"""v_mov_b32 v21, 0
        s_or_b32 s56, s2, s3
        s_cmp_lg_u32 s56, 0
        s_cbranch_scc1 {P}ntag
        s_memrealtime s[56:57]
        s_waitcnt lgkmcnt(0)
        s_mul_i32 s57, s57, 0x9e3779b1
        s_xor_b32 s56, s56, s57
        s_or_b32 s56, s56, 1
        v_mov_b32 v22, s56
        buffer_store_dword v22, v21, {sr(DBG)}, 0 offen sc1""")
    A.lab(f"{P}ntag")
    zero(ACC, 128)
    A.e(f"""s_mov_b32 s58, 0
        s_mov_b32 s59, 0
        s_mov_b32 s60, {(-ST) & 0xffffffff}
        s_mov_b32 s61, {2*ST}
        s_mov_b32 s63, {f2u(CSCALE)}
        s_and_b32 s57, s{HEAD}, 24
        s_add_u32 s92, s{HEAD}, {4*GROT}
        s_and_b32 s92, s92, 7
        s_or_b32 s92, s92, s57
        s_lshl_b32 s92, s92, 6
        s_add_u32 s92, s92, s{RT}
        s_lshl_b32 s92, s92, 12
        s_add_u32 s92, s92, {KVB_OFF}
        s_add_u32 s93, s92, 4096
        s_add_u32 s96, s{HEAD}, {6*GROT}
        s_and_b32 s96, s96, 7
        s_or_b32 s96, s96, s57
        s_lshl_b32 s96, s96, 6
        s_add_u32 s96, s96, s{RT}
        s_lshl_b32 s96, s96, 12
        s_add_u32 s96, s96, {KVB_OFF}
        s_add_u32 s97, s96, 4096
        s_cmp_eq_u32 s3, 0
        s_cselect_b32 s94, {TTAG}, -1""")
    def rx(buf, ks, mb): return f"ds_read_b128 {v(XF[buf]+4*mb,4)}, v{AX+ks} offset:{mb*2048}"
    def rw(nb, ks, jh): return f"ds_read_b64_tr_b16 {v(WF+4*nb+2*jh,2)}, v{AW+(nb&1)} offset:{(nb>>1)*8192+ks*4096+jh*512}"
    st(A, "setup")
    A.e("s_barrier")
    st(A, "g0")
    for mb in range(4): A.e(rx(0, 0, mb))
    for nb in range(8):
        for jh in range(2): A.e(rw(nb, 0, jh))
        if nb == 4: A.e("s_waitcnt lgkmcnt(4)")
    A.raw(".p2align 6")
    A.lab(f"{P}g1")
    acc = lambda mb, nb: ACC + 4 * (nb * 4 + mb)
    for ks in range(2):
        for nb in range(8):
            if nb == 0: A.e("s_waitcnt lgkmcnt(4)")
            elif nb % 2 == 0: A.e("s_waitcnt lgkmcnt(8)") if not (ks == 1) else None
            for mb in range(4):
                m2 = mb if nb % 2 == 0 else 3 - mb
                d = acc(m2, nb)
                x, w = XF[ks] + 4 * m2, WF + 4 * nb
                A.e(mfma16(d, x, w, d) if nb >= 6 else mfma16(d, w, x, d))
                if ks == 1 and nb == 0:
                    if mb == 0:
                        A.e(f"""s_cmp_eq_u32 s58, 0
                            s_cselect_b32 s62, s61, s60
                            s_add_u32 s58, s58, s62""")
                    if mb == 1:
                        A.e(f"v_add_u32 v{AX}, s62, v{AX}\nv_add_u32 v{AX+1}, s62, v{AX+1}")
                    if mb == 2:
                        A.e(f"v_add_u32 v{AW}, s62, v{AW}\nv_add_u32 v{AW+1}, s62, v{AW+1}\ns_add_u32 s59, s59, 1")
                    if mb == 3:
                        A.e(f"""s_cmp_eq_u32 s59, s94
                            s_waitcnt lgkmcnt(0)
                            s_barrier
                            s_cbranch_scc1 {P}sig0""")
                        A.lab(f"{P}sig0_r")
                if nb >= 1 and mb < 2: A.e(rw(nb - 1, 1 - ks, mb))
                if 1 <= nb <= 4 and mb == 2: A.e(rx(1 - ks, 1 - ks, nb - 1))
                if ks == 1 and nb == 7 and mb == 2: A.e("s_cmp_lg_u32 s59, 16")
        A.e(rw(7, 1 - ks, 0)); A.e(rw(7, 1 - ks, 1))
    A.e(f"s_cbranch_scc1 {P}g1")
    st(A, "gend")
    T = 21
    A.e(f"""s_lshl_b32 s56, s3, 12
        s_add_u32 s56, s56, {MISC}
        v_add_u32 v{AX}, s56, v{VL16}
        s_mov_b32 s62, s63
        s_waitcnt lgkmcnt(0)""")
    pack(64, [[acc(2+rbk, db) for rbk in range(2)] for db in range(2)], False)
    A.e(f"""ds_write_b128 v{AX}, {v(64,4)}
        ds_write_b128 v{AX}, {v(68,4)} offset:1024""")
    pack(72, [[acc(2+rbk, 2+db) for rbk in range(2)] for db in range(2)], False)
    A.e(f"""ds_write_b128 v{AX}, {v(72,4)} offset:2048
        ds_write_b128 v{AX}, {v(76,4)} offset:3072""")
    pack(QA, [[acc(rbk, db) for rbk in range(2)] for db in range(2)], False)
    A.e("""s_waitcnt lgkmcnt(0)
        s_barrier""")
    for rtl in range(2):
        tk, tv = 80 + 8 * rtl, ACC + 8 * rtl
        so = "s92" if rtl == 0 else "s93"
        pack(tk, [[acc(2*rtl+rbk, 4+db) for rbk in range(2)] for db in range(2)], True)
        A.e(f"""buffer_store_dwordx4 {v(tk,4)}, v{VKO}, {sr(WS)}, {so} offen sc1
            buffer_store_dwordx4 {v(tk+4,4)}, v{VKO}, {sr(WS)}, {so} offen offset:1024 sc1""")
        pack(tv, [[acc(2*rtl+kb, 6+db) for db in range(2)] for kb in range(2)], False)
        so = "s96" if rtl == 0 else "s97"
        A.e(f"""buffer_store_dwordx4 {v(tv,4)}, v{VL16}, {sr(WS)}, {so} offen offset:2048 sc1
            buffer_store_dwordx4 {v(tv+4,4)}, v{VL16}, {sr(WS)}, {so} offen offset:3072 sc1""")
    pack(QB, [[acc(rbk, 2+db) for rbk in range(2)] for db in range(2)], False)
    A.e(f"s_branch {P}attn")

    if XP & 4:
        for l in ("sig1", "sig2", "poll1", "poll2"): A.lab(f"{P}{l}_r")
    if XP & 8: A.lab(f"{P}normB")
    A.lab(f"{P}sig0")
    A.e(f"""s_cmp_lg_u32 s94, {TTAG}
        s_cbranch_scc1 {P}sg1""")
    tag_issue(T + 1, T)
    A.e(f"""s_mov_b32 s94, 5
        s_branch {P}sig0_r""")
    A.lab(f"{P}sg1")
    A.e(f"""s_cmp_lg_u32 s94, 5
        s_cbranch_scc1 {P}sg2
        s_waitcnt vmcnt(0)""")
    tag_get("c", T + 1, T)
    signal(0, T)
    A.e(f"""s_mov_b32 s94, {TRED+1}
        s_branch {P}sig0_r""")
    A.lab(f"{P}sg2")
    signal(1, T)
    A.e(f"s_branch {P}sig0_r")
    for ph in (1, 2):
        A.lab(f"{P}sig{ph}")
        signal(ph + 1, TZ + 1)
        A.e(f"s_branch {P}sig{ph}_r")
    A.lab(f"{P}poll1")
    A.e(f"""v_lshrrev_b32 v{TZ+1}, 4, v0
        v_min_u32 v{TZ+1}, 2, v{TZ+1}
        v_sub_u32 v{TZ+1}, s{RB}, v{TZ+1}
        v_max_i32 v{TZ+1}, 0, v{TZ+1}
        v_lshlrev_b32 v{TZ+1}, 4, v{TZ+1}
        v_and_or_b32 v{TZ+1}, v0, 15, v{TZ+1}
        v_lshlrev_b32 v{TZ+1}, 4, v{TZ+1}""")
    poll("1", TZ + 1, 2, False)
    A.e(f"s_branch {P}poll1_r")
    A.lab(f"{P}poll2")
    A.e(f"""v_and_b32 v{TZ+1}, 15, v0
        v_lshlrev_b32 v{TZ+1}, 4, v{TZ+1}
        s_lshl_b32 s56, s{RB2}, 8
        v_add_u32 v{TZ+1}, s56, v{TZ+1}""")
    poll("2", TZ + 1, 3, False)
    A.e(f"s_branch {P}poll2_r")
    for j in range(2, 8):
        A.lab(f"{P}cm{j}")
        zero(CM, 16)
        A.e(f"s_nop 0\ns_branch {P}cm{j}_r")

    def slow(tag, q, o, l, kf, vf, S, C, Pp, M, setup):
        A.lab(f"{P}slow{tag}")
        A.e("s_waitcnt vmcnt(0)")
        A.e(setup)
        zero(o, 16); zero(l, 4)
        A.e(f"""v_mov_b32 v{M}, {NEG}
            s_mov_b32 s99, 0""")
        A.lab(f"{P}spass{tag}")
        A.e("s_mov_b32 s100, s98")
        A.lab(f"{P}stile{tag}")
        A.e(f"""s_lshl_b32 s56, s100, 12
            s_add_u32 s56, s56, s101
            buffer_load_dwordx4 {v(kf,4)}, v{VL16}, {sr(WS)}, s56 offen sc1
            buffer_load_dwordx4 {v(kf+4,4)}, v{VL16}, {sr(WS)}, s56 offen offset:1024 sc1
            buffer_load_dwordx4 {v(vf,4)}, v{VL16}, {sr(WS)}, s56 offen offset:2048 sc1
            buffer_load_dwordx4 {v(vf+4,4)}, v{VL16}, {sr(WS)}, s56 offen offset:3072 sc1
            s_cmp_eq_u32 s100, s96
            s_cselect_b32 s56, {NEG}, 0
            s_cmp_eq_u32 s100, s97
            s_cselect_b32 s57, {NEG}, 0
            v_mov_b32 v{M+2}, s56
            v_mov_b32 v{M+3}, s57""")
        for r in range(16):
            A.e(f"""v_cmp_le_i32 vcc, {keyl(r)}, v{VD}
                s_nop 1
                v_cndmask_b32 v{C+r}, v{M+2}, v{M+3}, vcc""")
        A.e("s_waitcnt vmcnt(0)\ns_nop 0")
        A.e(mfma32(S, kf, q, C))
        A.e(mfma32(S, kf + 4, q + 4, S))
        A.e(f"""s_nop 7
            s_nop 7
            s_cmp_eq_u32 s99, 0
            s_cbranch_scc0 {P}sp2{tag}""")
        for r in range(16): A.e(f"v_max_f32 v{M}, v{M}, v{S+r}")
        A.e(f"s_branch {P}snext{tag}")
        A.lab(f"{P}sp2{tag}")
        for r in range(16): A.e(f"v_sub_f32 v{S+r}, v{S+r}, v{M}")
        for r in range(16): A.e(ex(S, r))
        A.e("s_nop 0")
        for i in range(8): A.e(cv(Pp, S, i))
        A.e("s_nop 1")
        A.e(mfma32(o, vf, Pp, o))
        A.e(mfma32(o, vf + 4, Pp + 4, o))
        A.e(smf(l, Pp))
        A.e("s_nop 7\ns_nop 7")
        A.lab(f"{P}snext{tag}")
        A.e(f"""s_add_u32 s100, s100, 1
            s_cmp_le_u32 s100, s95
            s_cbranch_scc1 {P}stile{tag}
            s_cmp_eq_u32 s99, 0
            s_cbranch_scc0 {P}sdone{tag}
            v_mov_b32 v{M+1}, v{M}
            s_nop 1
            v_permlane32_swap_b32 v{M}, v{M+1}
            s_nop 1
            v_max_f32 v{M}, v{M}, v{M+1}
            s_mov_b32 s99, 1
            s_branch {P}spass{tag}""")
        A.lab(f"{P}sdone{tag}")
        A.e(f"""v_add_f32 v{T0}, v{l}, v{l+1}
            s_branch {P}norm{tag}""")
    slow("B", QB, O2, L2, 192, 200, 208, 224, 240, 248,
         f"""s_lshl_b32 s101, s{HEADB}, 18
            s_add_u32 s101, s101, {KVB_OFF}
            s_sub_i32 s97, s{RT}, 8
            s_max_i32 s98, s97, 0
            s_mov_b32 s95, s{RT}
            s_mov_b32 s96, s{RT}""")
    slow("A", QA, O, L, KF, VF, SB[0], SB[1], PB[0], ML + 8,
         f"""s_mov_b32 s101, {KVA_OFF}
            s_mov_b32 s98, 0
            s_mov_b32 s95, 63
            s_mov_b32 s96, -1
            s_mov_b32 s97, -1""")
    A.raw(".p2align 4")
    A.lab(f"{P}last")
    A.e("s_endpgm")
    return kernel_desc(name, 256, 102)

if __name__ == "__main__":
    ref = open(f"cdna_kernels/{NAME}.s.ref").read().split("\n")
    hdr = [l for l in ref if l.startswith(";") and "@launch" not in l]
    A = Asm()
    d = gen(A, NAME + "_kernel")
    out = "\n".join(hdr) + "\n" + f"; @launch grid=(256,1,1) block=(512,1,1) lds={LDS}\n"
    out += '.amdgcn_target "amdgcn-amd-amdhsa--gfx950"\n.text\n' + A.text() + '.section .rodata,"a"\n' + d
    path = sys.argv[1] if len(sys.argv) > 1 else f"cdna_kernels/{NAME}.s"
    open(path, "w").write(out)
    print("wrote", path, len(out))
```

```python
from common import *
import sys
E = lambda k, d: int(os.environ.get(k, d))
STAG = 4
PART_OFF = 0
TPA = E('TPA', 5)
WARM = E('WARM', 1)
E1N = E('E1N', 11)
TPOLL = E('TPOLL', 14)
LPRIO = E('LPRIO', 3)
LPS = E('LPS', 2)
ROT = E('ROT', 0)
SLP = E('SLP', 12)
PFC = E('PFC', 0)
TOUCH = E('TOUCH', 0)
ZIG = E('ZIG', 3)
SFIRST = E('SFIRST', 1)
OFL = os.environ.get('OFL', '')
XP = E('XP', 0)
JP = E('JP', 11)
JU = E('JU', 13)
JV = E('JV', 21)
SLP3 = E('SLP3', 4)
PRL = E('PRL', 2)
ORD = 3
SPRO = E('SPRO', 1)
TRED = E('TRED', 7)
TTAG = E('TTAG', 2)
RAFT = E('RAFT', 1)
TSA = E('TSA', 3)
PRE = E('PRE', 2)
FS = E('FS', 4)
SPLIT = E('SPLIT', 0)
TS = E('TS', 14)
TV = E('TV', 15)
NB0 = 28

XSZ = 16384
ST = 49152
MISC = 3 * ST
LDS = 163840
NEG = f2u(-1e30)
SPIN = 50000

VL16, AC, AN, VG, IDX, VD, T0 = 1, 2, 3, 4, 5, 6, 7
ONES, L = 8, 12
QB, QA = 16, 24
KF, VF = 32, 40
PB = [48, 56]
SB = [64, 80]
O = 96
ML = 112
OFR = 128
O2, L2, MU, CM, TB, AB, TZ = 128, 144, 148, 164, 180, 188, 189
WS, DBG, SX_, SW_, SS_ = 28, 32, 36, 40, 44
RB, HP, XCD, IDXS, RT, HEAD, RB2, CBK = 48, 49, 50, 51, 52, 53, 54, 55
HEADB = 65
W4K, W1K, I0, WOS, GSRC, ABS = 74, 75, 76, 77, 78, 79
WS6 = 80
MUS, CMS, OUTS, OSTA = 16, 17, 20, 21
OSTB, KH10, CSRC = 24, 25, 26
UO, OQ = 44, 4
NON = 64
FL_OFF = 4 * MB
GP_OFF = 5 * MB
GROT = E('GROT', 1)

def sr(b): return f"s[{b}:{b+3}]"
def mfma16(d, a, b, c):
    cs = c if isinstance(c, str) else v(c, 4)
    return f"v_mfma_f32_16x16x32_bf16 {v(d,4)}, {v(a,4)}, {v(b,4)}, {cs}"
def smf(l, p): return f"v_smfmac_f32_16x16x64_bf16 {v(l,4)}, {v(ONES,4)}, {v(p,8)}, v{IDX}"
def ex(S, i): return f"v_exp_f32 v{S+i}, v{S+i}"
def cv(Pp, S, i): return f"v_cvt_pk_bf16_f32 v{Pp+i}, v{S+2*i}, v{S+2*i+1}"
def keyl(r): return 16 * (r >> 3) + 4 * ((r >> 2) & 1) + (r & 3)

TRN = "setup,g0,pla,pl0,gend,attn,aend,afin,y1a,y1,y3a,y3,y4,oend".split(",")
TRL = {n: 44 + i for i, n in enumerate(TRN)}
def st(A, nm):
    if DIAG: trace(A, TRL[nm])

class VM:
    def __init__(self): self.q = []
    def add(self, tag, n=1): self.q += [tag] * n
    def after(self, *tags):
        if not any(t in tags for t in self.q): return 0
        last = max(i for i, t in enumerate(self.q) if t in tags)
        return len(self.q) - 1 - last

def pack_list(dst, blk, scale):
    o = []
    for a in range(2):
        for b in range(2):
            d = blk[a][b]
            if scale:
                for i in range(2): o.append(f"v_pk_mul_f32 {v(d+2*i,2)}, {v(d+2*i,2)}, s[62:63]")
            for i in range(2): o.append(f"v_cvt_pk_bf16_f32 v{dst+a*4+b*2+i}, v{d+2*i}, v{d+2*i+1}")
    for a in range(2):
        for i in range(2): o.append(f"v_permlane16_swap_b32 v{dst+a*4+i}, v{dst+a*4+2+i}")
    return o

def gen(A, name):
    P = "f_"
    kernel_head(A, name)
    A.e(f"""s_cmp_ge_u32 s2, 256
        s_cbranch_scc1 {P}end2""")
    stamp_init(A)
    if E('HT', 0): A.e("s_memrealtime s[70:71]\ns_memtime s[74:75]")
    if E('SCR', 0):
        A.e("""s_lshr_b32 s56, s2, 3
            s_lshr_b32 s57, s2, 5
            s_xor_b32 s56, s56, s57
            s_and_b32 s56, s56, 7
            s_xor_b32 s2, s2, s56""")
    A.e(f"""s_load_dwordx8 s[4:11], s[0:1], 0
        s_load_dwordx8 s[16:23], s[0:1], 48
        s_load_dwordx4 s[24:27], s[0:1], 80
        s_load_dwordx2 s[12:13], s[0:1], 32
        v_lshrrev_b32 v1, 6, v0
        v_and_b32 v0, 63, v0
        v_readfirstlane_b32 s3, v1
        s_and_b32 s{XCD}, s2, 7
        s_lshr_b32 s{IDXS}, s2, 3
        s_and_b32 s{RB}, s{XCD}, 1
        s_lshl_b32 s{RB}, s{RB}, 3
        s_and_b32 s56, s{IDXS}, 7
        s_add_u32 s{RB}, s{RB}, s56
        s_lshr_b32 s{HP}, s{XCD}, 1
        s_lshl_b32 s{HP}, s{HP}, 2
        s_lshr_b32 s56, s{IDXS}, 3
        s_add_u32 s{HP}, s{HP}, s56
        v_lshlrev_b32 v{VL16}, 4, v0
        s_cmp_lt_u32 s3, 4
        s_cbranch_scc1 {P}compute""")

    def srds():
        srd(A, WS, "s26", "s27", WS_USED)
        srd(A, DBG, "s24", "s25", 256)
        if DIAG: A.e(f"v_mov_b32 v{VD}, 0")
    def setup_v():
        vd = AN if DIAG else VD
        A.e(f"""v_and_b32 v{T0}, 31, v0
            v_lshrrev_b32 v{VG}, 5, v0
            v_lshlrev_b32 v{VG}, 3, v{VG}
            v_sub_u32 v{vd}, v{T0}, v{VG}
            v_mov_b32 v{VG}, {NEG}""")
        for r in range(16): A.e(f"v_subrev_u32 v{ML+r}, {keyl(r)}, v{vd}")
        for r in range(16): A.e(f"v_ashrrev_i32 v{ML+r}, 31, v{ML+r}")
        for r in range(16): A.e(f"v_and_b32 v{ML+r}, v{VG}, v{ML+r}")
        A.e(f"""v_bfe_i32 v{T0}, v0, 2, 1
            v_mov_b32 v{VG}, 0x3f803f80
            v_and_b32 v{ONES+2}, v{VG}, v{T0}
            v_xor_b32 v{ONES}, v{VG}, v{ONES+2}
            v_mov_b32 v{ONES+1}, v{ONES}
            v_mov_b32 v{ONES+3}, v{ONES+2}
            v_bfe_i32 v{T0}, v0, 0, 1
            v_and_b32 v{T0}, 0xaaaa, v{T0}
            v_or_b32 v{IDX}, 0x4444, v{T0}
            v_add_u32 v{AC}, 0x10000, v{VL16}
            v_add_u32 v{AN}, 0x20000, v{VL16}""")
        for i in range(4): A.e(f"v_mov_b32 v{L+i}, 0")
    def setup_s():
        A.e(f"""s_and_b32 s{RB2}, s{XCD}, 3
            s_lshl_b32 s{RB2}, s{RB2}, 2
            s_and_b32 s56, s{IDXS}, 3
            s_add_u32 s{RB2}, s{RB2}, s56
            s_lshl_b32 s{WOS}, s56, 19
            s_lshr_b32 s{CBK}, s{XCD}, 2
            s_lshl_b32 s{CBK}, s{CBK}, 3
            s_lshr_b32 s56, s{IDXS}, 2
            s_add_u32 s{CBK}, s{CBK}, s56
            s_and_b32 s56, s3, 1
            s_lshl_b32 s56, s56, 1
            s_lshr_b32 s{KH10}, s3, 2
            s_add_u32 s56, s56, s{KH10}
            s_lshl_b32 s{ABS}, s56, 12
            s_lshl_b32 s{RT}, s{RB}, 2
            s_add_u32 s{CSRC}, s{RT}, s{KH10}
            s_add_u32 s{RT}, s{RT}, s56
            s_bfe_u32 s56, s3, 0x10001
            s_mul_i32 s57, s56, 49152
            s_add_u32 s{ABS}, s{ABS}, s57
            s_lshl_b32 s{HEAD}, s{HP}, 1
            s_add_u32 s{HEAD}, s{HEAD}, s56
            s_add_u32 s56, s{HEAD}, {2*GROT}
            s_and_b32 s56, s56, 7
            s_and_b32 s57, s{HEAD}, 24
            s_or_b32 s{HEADB}, s56, s57
            s_lshl_b32 s{W4K}, s3, 12
            s_lshl_b32 s{W1K}, s3, 10
            s_sub_i32 s{I0}, 8, s{RT}
            s_cmp_gt_i32 s{I0}, 0
            s_cselect_b32 s{MUS}, 0, 1.0
            s_cmp_gt_i32 s{I0}, 1
            s_cselect_b32 s{CMS}, {NEG}, 0
            s_lshr_b32 s57, s{HEADB}, 1
            s_lshl_b32 s57, s57, 19
            s_and_b32 s27, s3, 3
            s_lshl_b32 s56, s27, 10
            s_add_u32 s57, s57, s56
            s_add_u32 s57, s57, {KVB_OFF}
            s_lshl_b32 s56, s{CSRC}, 12
            s_add_u32 s56, s56, s57
            s_sub_u32 s56, s56, 0x8000""")
        for i in range(6):
            A.e(f"s_max_u32 s{WS6+i}, s56, s57")
            if i < 5: A.e("s_addk_i32 s56, 0x2000")
        A.e(f"""s_lshl_b32 s56, s{RB2}, 2
            s_add_u32 s56, s56, s27
            s_lshl_b32 s{OUTS}, s56, 1
            s_add_u32 s{OUTS}, s{OUTS}, s{KH10}
            s_lshl_b32 s{OUTS}, s{OUTS}, 15
            s_lshl_b32 s57, s{CBK}, 7
            s_add_u32 s{OUTS}, s{OUTS}, s57
            s_lshl_b32 s{UO}, s3, 16
            s_add_u32 s{UO}, s{UO}, s57
            s_add_u32 s{WOS}, s{WOS}, s{UO}
            s_add_u32 s{UO+1}, s{UO}, 0x80000
            s_add_u32 s{UO+2}, s{UO}, 0x100000
            s_add_u32 s{UO+3}, s{UO}, 0x180000
            s_lshl_b32 s56, s56, 17
            s_lshl_b32 s57, s{KH10}, 11
            s_add_u32 s56, s56, s57
            s_add_u32 s{OQ}, s56, {O_OFF + 65536}
            s_movk_i32 s57, 0x2000""")
        if ROT:
            A.e(f"""s_mov_b32 s56, s{OQ}
                s_lshl_b32 s27, s{CBK}, 13""")
            for h in range(8):
                A.e(f"""s_and_b32 s27, s27, 0xffff
                    s_add_u32 s{OQ+h}, s56, s27
                    s_add_u32 s27, s27, s57""")
            A.e(f"s_lshl_b32 s27, s{CBK}, 18")
            for q in range(4):
                A.e(f"""s_add_u32 s{UO+q}, s{UO+q}, s27
                    s_and_b32 s{UO+q}, s{UO+q}, 0x1fffff""")
        else:
            for h in range(1, 8): A.e(f"s_add_u32 s{OQ+h}, s{OQ+h-1}, s57")
        A.e(f"""s_lshl_b32 s{GSRC}, s{RT}, 7
            s_add_u32 s{GSRC}, s{GSRC}, {G_OFF}
            s_lshl_b32 s56, s{RT}, 17
            s_add_u32 s56, s56, {O_OFF}
            s_lshl_b32 s{OSTA}, s{HEAD}, 11
            s_add_u32 s{OSTA}, s{OSTA}, s56
            s_lshl_b32 s{OSTB}, s{HEADB}, 11
            s_add_u32 s{OSTB}, s{OSTB}, s56
            s_add_u32 s{OSTB}, s{OSTB}, 0x10000
            s_lshl_b32 s{KH10}, s{KH10}, 10""")
    def pack(dst, blk, scale):
        for x in pack_list(dst, blk, scale): A.e(x)
    def zero(base, n):
        for i in range(n): A.e(f"v_mov_b32 v{base+i}, 0")
    def signal(phase, t1):
        A.e(f"""s_mov_b64 exec, 1
            v_mov_b32 v{T0}, s{NON}
            v_mov_b32 v{t1}, 0
            s_lshl_b32 s56, s{RB}, 4
            s_add_u32 s56, s56, s{HP}
            s_lshl_b32 s56, s56, {FS}
            s_add_u32 s56, s56, {FL_OFF + (256<<FS)*phase}
            buffer_store_dword v{T0}, v{t1}, {sr(WS)}, s56 offen sc1
            s_mov_b64 exec, -1""")
    def poll_issue(voff, phase, t1=None):
        A.e(f"""s_mov_b32 s62, {FL_OFF + (256<<FS)*phase}
            buffer_load_dword v{T0}, v{voff}, {sr(WS)}, s62 offen sc1""")
        if t1:
            for i in range(3): A.e(f"buffer_load_dword v{t1+i}, v{voff}, {sr(WS)}, s62 offen offset:{(i+1)<<FS} sc1")
    def poll(tag, voff, phase, first_issued, t1=None, slp=SLP):
        A.e(f"s_mov_b32 s57, {1 if ((XP & 32 and tag in '0a') or (XP & 64 and tag in '123')) else SPIN}")
        if first_issued: A.e(f"s_branch {P}pc{tag}")
        A.lab(f"{P}pl{tag}")
        poll_issue(voff, phase, t1)
        A.e("s_waitcnt vmcnt(0)")
        A.lab(f"{P}pc{tag}")
        A.e(f"v_cmp_eq_u32 vcc, s{NON}, v{T0}")
        if t1:
            for i in range(3):
                A.e(f"""s_mov_b64 s[62:63], vcc
                    v_cmp_eq_u32 vcc, s{NON}, v{t1+i}
                    s_and_b64 vcc, vcc, s[62:63]""")
        A.e(f"""s_cmp_eq_u64 vcc, -1
            s_cbranch_scc1 {P}pd{tag}
            s_sleep {slp}
            s_sub_u32 s57, s57, 1
            s_cmp_lg_u32 s57, 0
            s_cbranch_scc1 {P}pl{tag}""")
        A.lab(f"{P}pd{tag}")
    def tag_issue(d, z):
        A.e(f"""v_mov_b32 v{z}, 0
            buffer_load_dword v{d}, v{z}, {sr(DBG)}, 0 offen sc1""")
    def tag_get(lbl, d, z):
        A.e(f"s_mov_b32 s57, {SPIN}")
        A.lab(f"{P}tl{lbl}")
        A.e(f"""v_readfirstlane_b32 s{NON}, v{d}
            s_cmp_lg_u32 s{NON}, 0
            s_cbranch_scc1 {P}td{lbl}
            s_sleep 8
            buffer_load_dword v{d}, v{z}, {sr(DBG)}, 0 offen sc1
            s_waitcnt vmcnt(0)
            s_sub_u32 s57, s57, 1
            s_cmp_lg_u32 s57, 0
            s_cbranch_scc1 {P}tl{lbl}""")
        A.lab(f"{P}td{lbl}")
    gslot = lambda t: ((15 - t) % 3) * ST

    VX, VW, VS, AXS, AWS = 128, 130, 132, 136, 133
    SXF, SWF, SA = 144, 176, 208
    LW, KIND, PHI = 14, 15, 92
    XB, WB, WSTEP, KT, L4K, L8K, PSRC = 93, 94, 96, 98, 99, 100, 101
    A.e(f"""s_setprio {LPRIO}
        s_sub_u32 s{LW}, s3, 4
        v_lshrrev_b32 v9, 3, v0
        v_and_b32 v16, 7, v0
        v_lshrrev_b32 v17, 4, v0
        v_xor_b32 v17, v17, v16
        v_lshlrev_b32 v17, 4, v17
        v_lshl_add_u32 v{VX}, v9, 11, v17
        v_xor_b32 v{VX+1}, 64, v{VX}
        s_cmp_eq_u32 s{LW}, 0
        s_mov_b32 s57, 6144
        s_cselect_b32 s57, 2048, s57
        v_bfe_u32 v17, v0, 4, 1
        v_lshlrev_b32 v17, 1, v17
        v_xor_b32 v17, v17, v16
        v_lshlrev_b32 v17, 4, v17
        v_mul_u32_u24 v18, s57, v9
        v_add_u32 v{VW}, v18, v17
        v_xor_b32 v{VW+1}, 64, v{VW}
        s_lshl_b32 s{WSTEP}, s57, 3
        s_lshl_b32 s{XB}, s{RB}, 18
        s_lshl_b32 s56, s{LW}, 16
        s_add_u32 s{XB}, s{XB}, s56
        s_max_u32 s56, s{LW}, 1
        s_sub_u32 s56, s56, 1
        s_lshl_b32 s56, s56, 11
        s_mul_i32 s57, s{LW}, {GROT}
        s_add_u32 s57, s57, s{HP}
        s_and_b32 s57, s57, 3
        s_and_b32 s{WB}, s{HP}, 12
        s_or_b32 s57, s57, s{WB}
        s_lshl_b32 s57, s57, 7
        s_add_u32 s{WB}, s56, s57
        s_add_u32 s{PHI}, s{RB}, s{HP}
        s_and_b32 s{PHI}, s{PHI}, 3
        s_and_b32 s56, s{HP}, 12
        s_or_b32 s{KT}, s{PHI}, s56
        s_lshl_b32 s{L4K}, s{LW}, 12
        s_lshl_b32 s{L8K}, s{LW}, 13
        s_cmp_eq_u32 s{LW}, 0
        s_waitcnt lgkmcnt(0)
        s_cselect_b32 s{SW_}, s6, s16
        s_cselect_b32 s{SW_+1}, s7, s17
        s_mov_b32 s{SW_+2}, {6*MB}
        s_cselect_b32 s{SW_+2}, {2*MB}, s{SW_+2}
        s_mov_b32 s{SW_+3}, 0x20000""")
    srd(A, SX_, "s4", "s5", 4 * MB)
    def issue(t):
        A.e(f"""s_add_u32 m0, s{L4K}, {gslot(t)}
            s_lshl_b32 s56, s{KT}, 7
            s_add_u32 s56, s56, s{XB}""")
        for i in range(4):
            A.e(f"buffer_load_dwordx4 v{VX+(i&1)}, {sr(SX_)}, s56 offen lds")
            if i < 3: A.e("s_add_u32 m0, m0, 1024\ns_add_u32 s56, s56, 16384")
        A.e(f"""s_add_u32 m0, s{L8K}, {gslot(t) + XSZ}
            s_mul_i32 s56, s{KT}, s{WSTEP}
            s_lshl_b32 s56, s56, 3
            s_add_u32 s56, s56, s{WB}""")
        for i in range(8):
            A.e(f"buffer_load_dwordx4 v{VW+(i&1)}, {sr(SW_)}, s56 offen lds")
            if i < 7: A.e(f"s_add_u32 m0, m0, 1024\ns_add_u32 s56, s56, s{WSTEP}")
        if t < 15:
            A.e(f"""s_add_u32 s56, s{KT}, 1
                s_and_b32 s56, s56, 3""")
            if (t & 3) == 3: A.e(f"s_add_u32 s{KT}, s{KT}, 4")
            A.e(f"""s_and_b32 s{KT}, s{KT}, 12
                s_or_b32 s{KT}, s{KT}, s56""")
    A.e(f"s_mov_b32 s95, s{KT}")
    issue(0)
    SG, GA, AGS, PI = 32, 64, 134, 97
    A.e(f"""s_and_b32 s{KIND}, s{PHI}, 1
        s_cmp_eq_u32 s{KIND}, 0
        s_cselect_b32 s{SS_}, s8, s10
        s_cselect_b32 s{SS_+1}, s9, s11
        s_mov_b32 s{SS_+2}, 65536
        s_mov_b32 s{SS_+3}, 0x20000
        s_cmp_lt_u32 s{LW}, 2
        s_cselect_b32 s56, s95, s{KT}
        s_lshl_b32 s56, s56, 12
        s_and_b32 s57, s{LW}, 1
        s_lshl_b32 s57, s57, 11
        s_add_u32 s56, s56, s57
        s_lshl_b32 s57, s{LW}, 11
        s_add_u32 m0, s57, {MISC}
        v_mov_b32 v17, s95
        buffer_load_dwordx4 v{VL16}, {sr(SS_)}, s56 offen lds
        buffer_load_dwordx4 v{VL16}, {sr(SS_)}, s56 offen offset:1024 lds
        v_mov_b32 v18, s{KT}
        v_cmp_gt_u32 vcc, 8, v0
        v_lshlrev_b32 v19, 4, v16
        v_lshrrev_b32 v20, 4, v0
        v_cndmask_b32 v17, v18, v17, vcc
        v_lshl_add_u32 v19, v17, 7, v19
        v_lshl_add_u32 v19, v20, 16, v19
        s_lshl_b32 s57, s{LW}, 10
        s_add_u32 s57, s57, {MISC + 8192}
        s_mov_b32 m0, s57""")
    srd(A, 60, "s20", "s21", 2048)
    A.e(f"""buffer_load_dwordx4 v19, s[60:63], 0 offen lds
        v_lshrrev_b32 v17, 5, v0
        v_lshl_add_u32 v{AGS}, v17, 4, s57""")
    srds()
    A.e(f"""v_and_b32 v16, 31, v0
        v_lshrrev_b32 v17, 5, v0
        v_bfe_u32 v18, v0, 1, 3
        v_xor_b32 v19, v17, v18
        v_lshlrev_b32 v19, 4, v19
        v_lshl_add_u32 v19, v16, 7, v19
        v_add_u32 v{AXS}, s{L4K}, v19
        v_xor_b32 v{AXS+1}, 32, v{AXS}
        v_xor_b32 v{AXS+2}, 64, v{AXS}
        v_xor_b32 v{AXS+3}, 0x60, v{AXS}
        v_bfe_u32 v18, v0, 2, 2
        v_lshl_add_u32 v19, v17, 3, v18
        v_lshlrev_b32 v19, 6, v19
        v_bfe_u32 v18, v0, 4, 1
        v_lshl_add_u32 v19, v18, 5, v19
        v_and_b32 v18, 3, v0
        v_bfe_u32 v20, v0, 1, 1
        v_and_b32 v21, 1, v0
        v_lshl_or_b32 v20, v21, 1, v20
        s_cmp_eq_u32 s{KIND}, 0
        s_cselect_b64 vcc, -1, 0
        v_cndmask_b32 v18, v18, v20, vcc
        v_lshl_add_u32 v19, v18, 3, v19
        v_add_u32 v{AWS}, {MISC}, v19
        v_lshlrev_b32 v{VS}, 2, v0
        v_mov_b32 v{GA}, 0
        v_mov_b32 v{GA+1}, 0
        s_lshr_b32 s{PI}, s{HP}, 2
        s_lshl_b32 s{PI}, s{PI}, 1
        s_lshr_b32 s56, s{PHI}, 1
        s_add_u32 s{PI}, s{PI}, s56
        s_lshl_b32 s{PSRC}, s{RB}, 1
        s_add_u32 s{PSRC}, s{PSRC}, s{KIND}
        s_lshl_b32 s{PSRC}, s{PSRC}, 17
        s_add_u32 s{PSRC}, s{PSRC}, {PART_OFF}""")
    st(A, "setup")
    issue(1)
    A.e(f"s_waitcnt vmcnt({12 if SPLIT else 15})")
    st(A, "g0")
    RL = SXF
    def lsignal(t, ph):
        A.e(f"""s_cmp_lg_u32 s{LW}, 0
            s_cbranch_scc1 {P}ls{t}""")
        signal(ph, 17)
        A.lab(f"{P}ls{t}")
    def side_compute(ks):
        tg = ks[0]
        A.e(f"""s_cmp_eq_u32 s{KIND}, 1
            s_cbranch_scc1 {P}lv{tg}""")
        for k in ks: A.e(f"ds_read_b128 {v(SG+4*k,4)}, v{AGS} offset:{32*k}")
        A.e(f"s_waitcnt lgkmcnt({len(ks)})")
        for k in ks: A.e(mfma32(SA, SWF + 4*k, SXF + 4*k, "0" if k == 0 else SA))
        A.e("s_waitcnt lgkmcnt(0)")
        for k in range(4*ks[0], 4*ks[-1]+4): A.e(f"v_dot2_f32_bf16 v{GA+(k&1)}, v{SXF+k}, v{SG+k}, v{GA+(k&1)}")
        A.e(f"s_branch {P}lw{tg}")
        A.lab(f"{P}lv{tg}")
        A.e("s_waitcnt lgkmcnt(0)")
        for k in ks: A.e(mfma32(SA, SXF + 4*k, SWF + 4*k, "0" if k == 0 else SA))
        A.lab(f"{P}lw{tg}")
    def reduce_store():
        A.e(f"""s_lshl_b32 s56, s{RB}, 2
            s_lshr_b32 s57, s{PI}, 1
            s_add_u32 s56, s56, s57
            s_cmp_lg_u32 s{LW}, 0
            s_cbranch_scc1 {P}lgate""")
        for st_ in (32, 16, 8):
            for i in range(0, st_, 2): A.e(f"v_pk_add_f32 {v(RL+i,2)}, {v(RL+i,2)}, {v(RL+st_+i,2)}")
        A.e(f"""s_cmp_eq_u32 s{KIND}, 0
            s_cselect_b32 s57, {f2u(CSCALE)}, 1.0""")
        for i in range(8): A.e(f"v_mul_f32 v{RL+i}, s57, v{RL+i}")
        for i in range(4): A.e(f"v_cvt_pk_bf16_f32 v{SA+i}, v{RL+2*i}, v{RL+2*i+1}")
        A.e(f"""s_lshl_b32 s56, s56, 12
            s_lshl_b32 s57, s{KIND}, 11
            s_add_u32 s56, s56, s57
            s_and_b32 s57, s{PI}, 1
            s_lshl_b32 s57, s57, 10
            s_add_u32 s56, s56, s57
            s_add_u32 s56, s56, {KVA_OFF}
            buffer_store_dwordx4 {v(SA,4)}, v{VL16}, {sr(WS)}, s56 offen sc1
            s_branch {P}lsd""")
        A.lab(f"{P}lgate")
        A.e(f"""s_cmp_lg_u32 s58, 1
            s_cbranch_scc1 {P}lsd""")
        for i in range(1, 8): A.e(f"v_add_f32 v{RL}, v{RL}, v{RL+i}")
        A.e(f"""v_mov_b32 v{RL+1}, v{RL}
            s_lshl_b32 s56, s56, 7
            s_add_u32 s56, s56, {G_OFF}
            v_permlane32_swap_b32 v{RL}, v{RL+1}
            v_and_b32 v16, 31, v0
            v_add_f32 v{RL}, v{RL}, v{RL+1}
            v_mul_f32 v{RL}, {f2u(-LOG2E)}, v{RL}
            v_exp_f32 v{RL}, v{RL}
            v_lshlrev_b32 v16, 2, v16
            v_add_f32 v{RL}, 1.0, v{RL}
            v_rcp_f32 v{RL}, v{RL}
            s_nop 0
            buffer_store_dword v{RL}, v16, {sr(WS)}, s56 offen sc1""")
        A.lab(f"{P}lsd")
    for t in range(16):
        A.e("s_barrier")
        trace(A, t)
        if t < 2:
            for k in range(4): A.e(f"ds_read_b128 {v(SXF+16*t+4*k,4)}, v{AXS+k}")
        if t == 0:
            for k in range(4): A.e(f"v_add_u32 v{AXS+k}, {gslot(1) - gslot(0)}, v{AXS+k}")
        ks = ([list(range(4)), list(range(4, 8))] if SPLIT else [[], list(range(8))])[t] if t < 2 else []
        for k in ks:
            A.e(f"""ds_read_b64_tr_b16 {v(SWF+4*k,2)}, v{AWS} offset:{1024*k}
                ds_read_b64_tr_b16 {v(SWF+4*k+2,2)}, v{AWS} offset:{1024*k+256}""")
            if k in (3, 7): A.e("s_waitcnt lgkmcnt(4)")
        if t == 1: tag_issue(18, 17)
        if ks and SFIRST: side_compute(ks)
        if t == TSA: lsignal(t, 0)
        if t == TRED + 1 + RAFT: lsignal(t, 1)
        if t == TPA:
            A.e(f"""s_lshl_b32 s58, s{PHI}, 1
                s_add_u32 s58, s58, s{LW}
                s_cmp_eq_u32 s{LW}, 0
                s_cselect_b32 s58, 0, s58
                v_and_b32 v16, 7, v0
                v_lshlrev_b32 v16, {FS+1}, v16
                s_and_b32 s57, s{HP}, 1
                s_lshl_b32 s56, s{RB}, 4
                s_add_u32 s56, s56, s57
                s_lshl_b32 s56, s56, {FS}
                v_add_u32 v16, s56, v16
                s_cmp_ge_u32 s58, 2
                s_cbranch_scc1 {P}lta""")
            poll_issue(16, 0)
            A.lab(f"{P}lta")
        if t == TPOLL:
            A.e(f"""v_lshlrev_b32 v16, {FS+2}, v0
                s_cmp_lg_u32 s{LW}, 0
                s_cbranch_scc1 {P}lt0""")
            poll_issue(16, 1, 17)
            A.lab(f"{P}lt0")
        if t == TRED and not RAFT: reduce_store()
        if t + 2 < 16: issue(t + 2)
        if t == 0: A.e("s_waitcnt lgkmcnt(0)")
        if ks and not SFIRST:
            side_compute(ks)
            A.e("s_nop 7")
        if t == 1:
            A.e(f"""s_lshl_b32 s56, s{LW}, 3
                s_add_u32 s56, s56, s{PI}
                s_lshl_b32 s57, s56, 12
                s_add_u32 s57, s57, s{PSRC}
                v_add_f32 v{GA}, v{GA}, v{GA+1}""")
            for q in range(4): A.e(f"buffer_store_dwordx4 {v(SA+4*q,4)}, v{VL16}, {sr(WS)}, s57 offen offset:{1024*q} sc1")
            A.e(f"""s_cmp_eq_u32 s{KIND}, 1
                s_cbranch_scc1 {P}lp1
                s_lshl_b32 s57, s{RB}, 5
                s_add_u32 s56, s56, s57
                s_lshl_b32 s56, s56, 8
                s_add_u32 s56, s56, {GP_OFF}
                buffer_store_dword v{GA}, v{VS}, {sr(WS)}, s56 offen sc1""")
            A.lab(f"{P}lp1")
        if t == TRED and RAFT: reduce_store()
        ncs = 0
        if t > TPOLL and (t == TPOLL + 1 or t == 15):
            cs = []
            if t == TPOLL + 1: cs.append((0, 3))
            if t == 15: cs.append((1, 2))
            for c, slot in cs:
                for hf in range(2):
                    A.e(f"""s_add_u32 m0, s{L8K}, {slot*32768 + hf*4096}
                        s_add_u32 s56, s{L8K}, {KVA_OFF + c*32768 + hf*4096}""")
                    for i in range(4): A.e(f"buffer_load_dwordx4 v{VL16}, {sr(WS)}, s56 offen offset:{1024*i} sc1 lds")
                ncs += 8
        for nm, tt in (("s", TS), ("v", TV)):
            if t == tt:
                A.e(f"s_branch {P}set{nm}")
                A.lab(f"{P}set{nm}_r")
        if t < 15: A.e(f"s_waitcnt vmcnt({16 if t == 1 else 12 if t + 2 < 16 else ncs})")
        if t == 2: tag_get("l", 18, 17)
        if t == TPA:
            A.e(f"""s_cmp_ge_u32 s58, 2
                s_cbranch_scc1 {P}lp2""")
            poll("a", 16, 0, True)
            st(A, "pla")
            A.e(f"""s_lshr_b32 s56, s{PI}, 1
                s_cmp_eq_u32 s58, 1
                s_cbranch_scc1 {P}lp3
                s_lshl_b32 s56, s56, 15
                s_and_b32 s57, s{PI}, 1
                s_lshl_b32 s57, s57, 11
                s_add_u32 s56, s56, s57
                s_add_u32 s56, s56, s{PSRC}""")
            for q in range(8):
                A.e(f"""buffer_load_dwordx4 {v(RL+8*q,4)}, v{VL16}, {sr(WS)}, s56 offen sc1
                    buffer_load_dwordx4 {v(RL+8*q+4,4)}, v{VL16}, {sr(WS)}, s56 offen offset:1024 sc1""")
                if q < 7: A.e("s_add_u32 s56, s56, 4096")
            A.e(f"s_branch {P}lp2")
            A.lab(f"{P}lp3")
            A.e(f"""s_lshl_b32 s57, s{RB}, 2
                s_add_u32 s56, s56, s57
                s_lshl_b32 s56, s56, 11
                s_add_u32 s56, s56, {GP_OFF}""")
            for q in range(8): A.e(f"buffer_load_dword v{RL+q}, v{VS}, {sr(WS)}, s56 offen offset:{256*q} sc1")
            A.lab(f"{P}lp2")
        if t == TPOLL:
            A.e(f"""s_cmp_lg_u32 s{LW}, 0
                s_cbranch_scc1 {P}pd0""")
            poll("0", 16, 1, True, t1=17)
            st(A, "pl0")
    A.e(f"""s_barrier
        s_add_u32 s56, s{L4K}, {MISC}
        v_add_u32 v16, s56, v{VL16}
        s_setprio 0
        s_waitcnt vmcnt(0)
        s_barrier""")
    st(A, "gend")
    A.e(f"""ds_read_b128 {v(QA,4)}, v16
        ds_read_b128 {v(QA+4,4)}, v16 offset:1024
        ds_read_b128 {v(QB+4,4)}, v16 offset:3072
        ds_read_b128 {v(QB,4)}, v16 offset:2048""")

    A.lab(f"{P}attn")
    if E('STOPG', 0): A.e(f"s_branch {P}end")
    st(A, "attn")
    VOO, VXW, VXO = ML, ML + 12, ML + 14
    VWO = [ML + 4, ML + 1, ML + 2, ML + 3]
    VO4 = [ML + 5, ML + 6, ML + 7, ML + 15]
    VW2, VH1 = 192, 191
    def la(off): return ([VL16, AC, AN][off >> 16], off & 0xffff)
    def rdK(addr, off): return [f"ds_read_b128 {v(KF+4*i,4)}, v{addr} offset:{off+1024*i}" for i in range(2)]
    def rdV(addr, off): return [f"ds_read_b128 {v(VF+4*i,4)}, v{addr} offset:{off+2048+1024*i}" for i in range(2)]
    cslot = lambda c: {0: 3, 1: 2, 2: 4}.get(c, c % 5)
    seq = [("A", j) for j in range(NB0)] + [("B", i) for i in range(9)] + [("A", j) for j in range(NB0, 64)]
    seq += [("A", 63), ("A", 63)]
    def taddr(n):
        k, j = seq[n]
        return la(cslot(j >> 3) * 32768 + (j & 7) * 4096) if k == "A" else (AB, j * 4096)
    def tq(n): return QA if seq[n][0] == "A" else QB
    def tc(n):
        k, j = seq[n]
        return "0" if k == "A" else (MU if j == 0 else ML if j == 8 else CM)
    def to(n): return (O, L) if seq[n][0] == "A" else (O2, L2)
    for x in rdK(*taddr(0)): A.e(x)
    srd(A, SW_, "s18", "s19", 2 * MB)
    A.e("s_waitcnt lgkmcnt(0)")
    A.e(mfma32(SB[0], KF, QA, "0"))
    A.e(mfma32(SB[0], KF + 4, QA + 4, SB[0]))
    for x in rdK(*taddr(1)): A.e(x)
    srd(A, SX_, "s12", "s13", 2 * MB)
    A.e(f"""v_mov_b32 v{TZ}, {NEG}
        v_mov_b32 v{TZ+1}, 0
        v_add_u32 v{AB}, s{ABS}, v{VL16}
        v_add_u32 v{VH1}, {64*4096}, v{VL16}
        s_waitcnt lgkmcnt(0)""")
    vm = VM()
    def cpiece(c, i):
        o = [f"s_add_u32 m0, s{W4K}, {cslot(c)*32768}", f"s_add_u32 s{CSRC}, s{W4K}, {KVA_OFF + c*32768}"] if i == 0 else []
        return (f"C{c}", o + [f"buffer_load_dwordx4 v{VL16}, {sr(WS)}, s{CSRC} offen offset:{i*1024} sc1 lds"])
    def wpiece(i):
        return ("W", [f"s_add_u32 m0, s{W1K}, {i*8192}", f"buffer_load_dwordx4 v{VH1 if i >= 6 else VL16}, {sr(WS)}, s{WS6+i%6} offen sc1 lds"])
    def upiece(u, k):
        o = [f"s_add_u32 m0, s{W4K}, {(u%5)*32768}"] if k == 0 else []
        return (f"U{u}", o + [f"buffer_load_dwordx4 v{VWO[k]}, {sr(SW_ if u < 12 else SX_)}, s{UO+(u&3)} offen offset:{k*1024} lds"])
    def warm(i):
        return ("Z", [f"buffer_load_dwordx4 v[252:255], v{VW2+(i&3)}, {sr(SW_ if i < 4 else SX_)}, s{WOS} offen offset:{(i&3)*1024}"])
    def oload(n, half):
        return ("O", [f"buffer_load_dwordx4 {v(OFR+4*n,4)}, v{VO4[n&3]}, {sr(WS)}, s{OQ+(n>>2)} offen sc1"])
    bg = {n: [] for n in range(73)}
    bv = {n: [] for n in range(73)}
    for i in range(4): bg[i].append(cpiece(2, i))
    for i in range(4): bg[E1N + i // 2].append(cpiece(3, i))
    for i in range(12): bg[16 + i // 2].append(wpiece(i))
    bv[21] += [f"v_and_b32 v{TZ}, 31, v0", f"v_lshlrev_b32 v{TZ}, 2, v{TZ}"]
    bg[22].append(("G", [f"buffer_load_dword v{VG}, v{TZ}, {sr(WS)}, s{GSRC} offen sc1"]))
    for i in range(4): bg[26 + i // 2].append(cpiece(4, i))
    if WARM:
        for i in range(8): bg[28 + i].append(warm(i))
    for i in range(12): bg[39 + i // 3].append(cpiece(5 + i // 4, i & 3))
    for i in range(4): bg[45 + i].append(upiece(8, i))
    for i in range(4): bg[53 + i].append(upiece(9, i))
    for i in range(8): bg[65 + i].append(upiece(10 + i // 4, i & 3))
    for i in range(32): bg[50 + (2 * i) // 3].append(oload(i, 1))
    for i in range(4):
        bv[4 + i] += [f"v_fma_f32 v{MU+r}, -v{ML+r}, s{MUS}, v{TZ}" for r in range(4*i, 4*i+4)]
        bv[12 + i] += [f"v_mov_b32 v{CM+r}, s{CMS}" for r in range(4*i, 4*i+4)] + [f"v_mov_b32 v{L2+i}, 0"]
    bv[24] += [f"v_lshrrev_b32 v{VW2}, 3, v0", f"v_bfe_u32 v{TB}, v0, 4, 2", f"v_lshlrev_b32 v{TB}, 1, v{TB}", f"v_and_b32 v{TB+1}, 7, v0",
               f"v_xor_b32 v{TB}, v{TB}, v{TB+1}", f"v_lshlrev_b32 v{TB}, 4, v{TB}", f"v_lshl_add_u32 v{VW2}, v{VW2}, 11, v{TB}"]
    bv[25] += [f"v_add_u32 v{VW2+k}, {k*15360}, v{VW2}" for k in range(1, 4)]
    bv[NB0 + 8] += [f"v_and_b32 v{VOO}, 15, v0", f"v_bfe_u32 v{VOO+1}, v0, 4, 1", f"v_lshrrev_b32 v{VOO+2}, 5, v0",
                    f"v_lshlrev_b32 v{VXO}, 11, v{VOO}", f"v_lshl_add_u32 v{VXO}, v{VOO+1}, 5, v{VXO}", f"v_lshl_add_u32 v{VXO}, v{VOO+2}, 4, v{VXO}",
                    f"v_lshlrev_b32 v{VOO}, 4, v{VOO}", f"v_lshl_add_u32 v{VOO}, v{VOO+1}, 10, v{VOO}", f"v_lshl_add_u32 v{VOO}, v{VOO+2}, 8, v{VOO}"]
    bv[NB0 + 9] += [f"v_mov_b32 v{VWO[k]}, v{VW2+k}" for k in range(4)]
    bv[44] += [f"v_add_u32 v{VO4[0]}, s{KH10}, v{VL16}", f"v_xor_b32 v{VO4[1]}, 0x400, v{VO4[0]}", f"v_add_u32 v{VO4[2]}, 0x1000, v{VO4[0]}", f"v_add_u32 v{VO4[3]}, 0x1000, v{VO4[1]}",
               f"v_add_u32 v{VXW}, s{W4K}, v{VL16}", f"v_xor_b32 v{VXW+1}, 0x4000, v{VXW}"]
    ntr = [0]
    def bar(wait=None, pre=None, post=None):
        if pre:
            A.e(f"s_cmp_eq_u32 s3, 4\ns_cbranch_scc1 {P}{pre}")
            A.lab(f"{P}{pre}_r")
        if wait is not None: A.e(f"s_waitcnt vmcnt({wait})")
        A.e("s_barrier")
        if post:
            A.e(f"s_cmp_eq_u32 s3, 4\ns_cbranch_scc1 {P}{post}")
            A.lab(f"{P}{post}_r")
        trace(A, 34 + ntr[0]); ntr[0] += 1
    tops = {
        E1N: lambda: bar(0, post="sig1"),
        16: lambda: bar(vm.after("C3"), pre="poll1"),
        26: lambda: bar(vm.after("W")),
        39: lambda: bar(vm.after("C4")),
        45: lambda: bar(0, post="sig2"),
        50: lambda: bar(None, pre="poll2"),
        65: lambda: bar(vm.after("U8")),
    }
    bnd = [0] + sorted(tops) + [73]
    lvl = {}
    for a_, b_ in zip(bnd, bnd[1:]):
        for n in range(a_, b_): lvl[n] = 3 - (PRL * (n - a_)) // (b_ - a_)
    pw = {}
    def step(n):
        par = n & 1
        S, Sn, Pc, Pp = SB[par], SB[1-par], PB[par], PB[1-par]
        q = []
        for tag, lines in bg[n]:
            if tag[0] in os.environ.get("DROP", "") or XP & 1: continue
            q += [(tag if x.startswith("buffer") else None, x) for x in lines]
        nfront = max(0, min(4, len(q) - 1))
        def B(slot):
            k = (1 if slot >= 4 - nfront else 0) if slot < 4 else len(q)
            for _ in range(k):
                tag, x = q.pop(0)
                if " lds" in x and A.l[-1].strip().startswith("s_add_u32 m0"): A.e("s_nop 0")
                A.e(x)
                if tag: vm.add(tag)
        oprev, lprev = to(max(n - 1, 0))
        for k_, n_ in ((1, 16), (2, 50)):
            if n == n_ - PRE:
                A.e(f"s_cmp_eq_u32 s3, 4\ns_cbranch_scc1 {P}pre{k_}")
                A.lab(f"{P}pre{k_}_r")
                pw[k_] = len(vm.q)
            if n == n_: pw[k_] = len(vm.q) - pw[k_]
        if n in tops and not (XP & 4): tops[n]()
        if PRL and (n == 0 or lvl[n] != lvl[n - 1]): A.e(f"s_setprio {lvl[n]}")
        k, j = seq[n + 1]
        if k == "B" and 2 <= j <= 7:
            A.e(f"s_cmp_eq_u32 s{I0}, {j}\ns_cbranch_scc1 {P}cm{j}")
            A.lab(f"{P}cm{j}_r")
        A.e(mfma32(Sn, KF, tq(n + 1), tc(n + 1)))
        A.e(rdK(*taddr(n + 2))[0]); B(0)
        for j in (0, 1, 2, 3): A.e(ex(S, j))
        if n > 0: A.e(mfma32(oprev, VF, Pp, "0" if n - 1 in (0, NB0) else oprev))
        A.e(rdV(*taddr(n))[0]); B(1)
        A.e(cv(Pc, S, 0)); A.e(cv(Pc, S, 1))
        for j in (4, 5, 6): A.e(ex(S, j))
        A.e(mfma32(Sn, KF + 4, tq(n + 1) + 4, Sn))
        A.e(rdK(*taddr(n + 2))[1]); B(2)
        A.e(ex(S, 7)); A.e(cv(Pc, S, 2)); A.e(ex(S, 8)); A.e(cv(Pc, S, 3))
        if n > 0: A.e(mfma32(oprev, VF + 4, Pp + 4, oprev))
        A.e(rdV(*taddr(n))[1]); B(3)
        A.e(ex(S, 9)); A.e(ex(S, 10)); A.e(cv(Pc, S, 4))
        if not XP & 2:
            for x in bv[n]: A.e(x)
        A.e(ex(S, 11)); A.e(ex(S, 12)); A.e(cv(Pc, S, 5)); A.e(ex(S, 13)); A.e(ex(S, 14)); A.e(ex(S, 15))
        if n > 0: A.e(smf(lprev, Pp))
        B(4)
        A.e("s_waitcnt lgkmcnt(0)")
        A.e(cv(Pc, S, 6)); A.e(cv(Pc, S, 7))
    def finalize(tag, which, o, l, tmp):
        A.e(f"s_mov_b32 s63, 0")
        A.lab(f"{P}norm{tag}")
        A.e(f"""v_add_f32 v{T0}, v{l}, v{l+1}
            v_rcp_f32 v{tmp}, v{T0}""")
        if which == 0:
            A.e(f"""s_waitcnt vmcnt({vm.after('G')})
                v_sub_f32 v{tmp+1}, 1.0, v{VG}
                v_mul_f32 v{tmp}, v{tmp}, v{tmp+1}""")
        else:
            A.e(f"s_nop 0\nv_mul_f32 v{tmp}, v{tmp}, v{VG}")
        for i in range(8): A.e(f"v_pk_mul_f32 {v(o+2*i,2)}, {v(o+2*i,2)}, {v(tmp,2)} op_sel_hi:[1,0]")
        A.e(f"v_pk_add_f32 {v(tmp+2,2)}, {v(o,2)}, {v(o+2,2)}")
        for i in range(2, 8): A.e(f"v_pk_add_f32 {v(tmp+2,2)}, {v(tmp+2,2)}, {v(o+2*i,2)}")
        A.e(f"""v_sub_f32 v{tmp+2}, v{tmp+2}, v{tmp+2}
            v_fma_f32 v{tmp+2}, v{tmp+3}, v{tmp+2}, v{T0}
            v_cmp_le_f32 vcc, {f2u(2.0**-64)}, v{tmp+2}
            s_mov_b64 s[56:57], vcc
            v_cmp_ge_f32 vcc, {f2u(2.0**64)}, v{tmp+2}""")
        for i in range(8): A.e(f"v_cvt_pk_bf16_f32 v{tmp+i}, v{o+2*i}, v{o+2*i+1}")
        A.e(f"""s_and_b64 vcc, vcc, s[56:57]
            s_cmp_eq_u64 vcc, -1
            s_cselect_b32 s62, 1, s63
            s_cmp_eq_u32 s62, 0
            {"s_nop 0" if XP else f"s_cbranch_scc1 {P}slow{tag}"}
            buffer_store_dwordx4 {v(tmp,4)}, v{VOO}, {sr(WS)}, s{OSTB if which == 0 else OSTA} offen sc1
            buffer_store_dwordx4 {v(tmp+4,4)}, v{VOO}, {sr(WS)}, s{OSTB if which == 0 else OSTA} offen offset:512 sc1""")
        vm.add("S" + tag, 2)
    for n in range(73):
        step(n)
        if n == NB0 + 10 and not (XP & 8): finalize("B", 0, O2, L2, TB)
    A.e(mfma32(O, VF, PB[0], O))
    A.e("s_nop 0")
    A.e(mfma32(O, VF + 4, PB[0] + 4, O))
    A.e(smf(L, PB[0]))
    for h in range(8): A.e(f"s_sub_u32 s{OQ+h}, s{OQ+h}, 0x10000")
    A.e("s_setprio 0")
    st(A, "aend")
    if XP & 31: A.e(f"s_branch {P}end")
    AWO, OAC = 16, 64
    WFO = [32, 48]
    TA = SB[0]
    A.e(f"""v_lshrrev_b32 v20, 4, v0
        v_bfe_u32 v21, v0, 2, 2
        v_and_b32 v22, 1, v20
        v_lshl_add_u32 v22, v22, 2, v21
        v_lshrrev_b32 v23, 1, v20
        v_lshl_add_u32 v23, v23, 4, v22
        v_lshlrev_b32 v23, 7, v23
        v_and_b32 v20, 3, v0
        v_lshl_add_u32 v23, v20, 3, v23
        s_lshr_b32 s56, s3, 2
        s_lshl_b32 s56, s56, 12
        s_add_u32 s56, s56, {3*32768}
        v_add_u32 v23, s56, v23
        v_lshrrev_b32 v22, 1, v22""")
    for nb in range(4):
        A.e(f"v_xor_b32 v20, {nb}, v22\nv_lshl_add_u32 v{AWO+nb}, v20, 5, v23")
    finalize("A", 1, O, L, TA)
    st(A, "afin")

    def oreads(buf, i):
        return [f"ds_read_b64_tr_b16 {v(WFO[buf]+4*nb+2*jh,2)}, v{AWO+nb} offset:{i*8192+jh*1024}" for nb in range(4) for jh in range(2)]
    for r in oreads(0, 0): A.e(r)
    oidx = [i for i, t in enumerate(vm.q) if t == "O"] or [0] * 32
    def emit(x):
        for l_ in x[1]:
            if " lds" in l_ and A.l[-1].strip().startswith("s_add_u32 m0"): A.e("s_nop 0")
            A.e(l_)
        vm.add(x[0])
    def y1():
        st(A, "y1a")
        A.e("s_waitcnt vmcnt(0)\ns_barrier")
        st(A, "y1")
        A.e(f"""s_cmp_lg_u32 s3, 4
            s_cbranch_scc1 {P}y1""")
        signal(4, AN)
        A.lab(f"{P}y1")
    def ypre():
        A.e(f"""s_cmp_lg_u32 s3, 4
            s_cbranch_scc1 {P}yp
            v_and_b32 v20, 15, v0
            v_lshlrev_b32 v20, {FS}, v20
            s_lshl_b32 s56, s{RB2}, {FS+4}
            v_add_u32 v20, s56, v20""")
        poll_issue(20, 4)
        A.lab(f"{P}yp")
        pw[3] = len(vm.q)
    def ypoll():
        st(A, "y3a")
        A.e(f"""s_cmp_lg_u32 s3, 4
            s_cbranch_scc1 {P}pd3
            s_waitcnt vmcnt({len(vm.q) - pw[3]})""")
        poll("3", 20, 4, True, slp=SLP3)
    def ybar(*tags):
        if tags: A.e(f"s_waitcnt vmcnt({vm.after(*tags)})")
        A.e("s_barrier")
    pre = {j: [] for j in range(32)}
    obg = {j: [] for j in range(32)}
    pre[3].append(y1)
    pre[JP].append(ypoll)
    for j in sorted({7, 11, JP}):
        pre[j].append((lambda: ybar("U12", "U13")) if j == 11 else ybar)
    if DIAG: pre[JP].append(lambda: st(A, "y3"))
    pre[JV].append(lambda: ybar("U14", "U15"))
    if os.environ.get("DIAG") == "1": pre[16].append(lambda: st(A, "y4"))
    for k in range(8): obg[3 + k // 2].append(upiece(12 + k // 4, k & 3))
    nl = 0
    for j in range(JP, 32):
        c = 0
        while not (XP & 128) and nl < 32 and c < (LPS if j < 16 else 2) and nl // 2 < j:
            obg[j].append((f"OA{nl}", oload(nl, 0)[1])); nl += 1; c += 1
    for k in range(4): obg[7 + k].append(upiece(14, k))
    for k in range(4): obg[JU + k].append(upiece(15, k))
    for j in range(32):
        u, i = 8 + j // 4, j & 3
        q, buf = u & 3, i & 1
        order = [(nb, f if nb % 2 == 0 else 1 - f) for nb in range(4) for f in range(2)]
        if j == 31: order = [(nb, 1) for nb in range(4)] + [(3 - nb, 0) for nb in range(4)]
        ms = [mfma16(OAC + 4*(f*4+nb), WFO[buf]+4*nb, OFR+32*q+8*i+4*f, "0" if j == 0 else OAC + 4*(f*4+nb)) for nb, f in order]
        w = min(60, len(vm.q) - 1 - oidx[7]) if j == 0 else vm.after(f"OA{2*(j-16)+1}") if j >= 16 else None
        lg = 0 if (pre[j] or j == 31) else 4
        A.e(f"s_waitcnt lgkmcnt({lg})" if w is None else f"s_waitcnt lgkmcnt({lg}) vmcnt({w})")
        if i == 3 and u < 15:
            dl = ((u+1) % 5 - u % 5) * 32768
            for nb in range(4): A.e(f"v_add_u32 v{AWO+nb}, {dl & 0xffffffff}, v{AWO+nb}")
        if j == JP - PRE: ypre()
        for f in pre[j]: f()
        rd = oreads(1 - buf, (i + 1) & 3) if j < 31 else []
        b = list(obg[j])
        for k in range(8):
            if k == 4 and lg: A.e("s_waitcnt lgkmcnt(4)")
            A.e(ms[k])
            if rd: A.e(rd[k])
            if k % 2 == 1 and b: emit(b.pop(0))
        while b: emit(b.pop(0))
    st(A, "oend")
    if XP & 256: A.e(f"s_branch {P}end")
    srd(A, SX_, "s22", "s23", 4 * MB)
    for nb in range(4): A.e(f"ds_write_b128 v{VXW}, {v(OAC+16+4*nb,4)} offset:{32768+1024*nb}")
    A.e("s_waitcnt lgkmcnt(0)\ns_barrier")
    for nb in range(4): A.e(f"ds_read_b128 {v(32+4*nb,4)}, v{VXW+1} offset:{32768+1024*nb}")
    for a in range(2):
        A.e(f"s_waitcnt lgkmcnt({2 - 2*a})")
        for i in range(4): A.e(f"v_pk_add_f32 {v(OAC+8*a+2*i,2)}, {v(OAC+8*a+2*i,2)}, {v(32+8*a+2*i,2)}")
        for i in range(4): A.e(f"v_cvt_pk_bf16_f32 v{48+4*a+i}, v{OAC+8*a+2*i}, v{OAC+8*a+2*i+1}")
        A.e(f"""s_nop 0
            v_permlane16_swap_b32 v{48+4*a}, v{48+4*a+2}
            v_permlane16_swap_b32 v{48+4*a+1}, v{48+4*a+3}
            buffer_store_dwordx4 {v(48+4*a,4)}, v{VXO}, {sr(SX_)}, s{OUTS} offen offset:{64*a} {OFL}""")
    A.lab(f"{P}end")
    if E('HT', 0):
        A.e(f"""s_waitcnt vmcnt(0)
            s_memrealtime s[72:73]
            s_memtime s[76:77]
            s_waitcnt lgkmcnt(0)
            s_cmp_lg_u32 s3, 4
            s_cbranch_scc1 {P}end2
            s_mov_b64 exec, 1
            v_mov_b32 v0, 0
            s_not_b32 s56, s70
            v_mov_b32 v1, s56
            v_mov_b32 v2, s70
            v_mov_b32 v3, s72
            s_sub_u32 s76, s76, s74
            v_mov_b32 v4, s76
            buffer_atomic_umax v1, v0, {sr(DBG)}, 0 offen offset:8 sc1
            buffer_atomic_umax v2, v0, {sr(DBG)}, 0 offen offset:12 sc1
            buffer_atomic_umax v3, v0, {sr(DBG)}, 0 offen offset:16 sc1
            buffer_atomic_umax v4, v0, {sr(DBG)}, 0 offen offset:20 sc1""")
    stamp_flush(A, 0)
    trace_flush(A)
    A.lab(f"{P}end2")
    A.e("s_endpgm")

    AX, AW, VKO = 16, 18, 20
    XF, WF = [32, 48], 64
    ACC = 128
    A.lab(f"{P}compute")
    A.e(f"""v_and_b32 v8, 15, v0
        v_lshrrev_b32 v9, 4, v0
        v_bfe_u32 v10, v0, 1, 3
        s_and_b32 s56, s3, 1
        s_lshl_b32 s56, s56, 13
        v_xor_b32 v11, v9, v10
        v_lshlrev_b32 v11, 4, v11
        v_lshl_add_u32 v11, v8, 7, v11
        v_add_u32 v{AX}, s56, v11
        v_xor_b32 v{AX+1}, 64, v{AX}
        v_bfe_u32 v12, v0, 2, 2
        v_and_b32 v13, 3, v0
        v_lshl_add_u32 v14, v9, 3, v12
        v_lshlrev_b32 v14, 7, v14
        v_lshl_add_u32 v14, v13, 3, v14
        v_bfe_u32 v15, v0, 3, 2
        s_and_b32 s56, s3, 2
        v_xor_b32 v15, s56, v15
        v_lshl_add_u32 v14, v15, 5, v14
        v_add_u32 v{AW}, {XSZ}, v14
        v_xor_b32 v{AW+1}, 32, v{AW}
        v_and_b32 v8, 0x33, v0
        v_bfe_u32 v9, v0, 2, 1
        v_bfe_u32 v10, v0, 3, 1
        v_lshl_or_b32 v8, v9, 3, v8
        v_lshl_or_b32 v8, v10, 2, v8
        v_lshlrev_b32 v{VKO}, 4, v8
        s_waitcnt lgkmcnt(0)""")
    srds()
    A.e(f"""v_mov_b32 v21, 0
        s_or_b32 s56, s2, s3
        s_cmp_lg_u32 s56, 0
        s_cbranch_scc1 {P}ntag
        s_memrealtime s[56:57]
        s_waitcnt lgkmcnt(0)
        s_mul_i32 s57, s57, 0x9e3779b1
        s_xor_b32 s56, s56, s57
        s_or_b32 s56, s56, 1
        v_mov_b32 v22, s56
        buffer_store_dword v22, v21, {sr(DBG)}, 0 offen sc1""")
    A.lab(f"{P}ntag")
    zero(24, 4)
    for nm, fn in (("s", setup_s), ("v", setup_v)):
        A.lab(f"{P}set{nm}")
        fn()
        A.e(f"""s_cmp_ge_u32 s3, 4
            s_cbranch_scc1 {P}set{nm}_r""")
        if nm == "s":
            for i in range(8): A.e(mfma32(ACC + 16*i, 24, 24, "0"))
    A.e(f"""s_mov_b32 s58, 0
        s_mov_b32 s59, 0
        s_mov_b32 s60, {(-ST) & 0xffffffff}
        s_mov_b32 s61, {2*ST}
        s_mov_b32 s63, {f2u(CSCALE)}
        s_and_b32 s57, s{HEAD}, 24
        s_add_u32 s92, s{HEAD}, {4*GROT}
        s_and_b32 s92, s92, 7
        s_or_b32 s92, s92, s57
        s_lshl_b32 s92, s92, 6
        s_add_u32 s92, s92, s{RT}
        s_lshl_b32 s92, s92, 12
        s_add_u32 s92, s92, {KVB_OFF}
        s_add_u32 s93, s92, 4096
        s_add_u32 s96, s{HEAD}, {6*GROT}
        s_and_b32 s96, s96, 7
        s_or_b32 s96, s96, s57
        s_lshl_b32 s96, s96, 6
        s_add_u32 s96, s96, s{RT}
        s_lshl_b32 s96, s96, 12
        s_add_u32 s96, s96, {KVB_OFF}
        s_add_u32 s97, s96, 4096
        s_nop 0""")
    def rx(buf, ks, mb): return f"ds_read_b128 {v(XF[buf]+4*mb,4)}, v{AX+ks} offset:{mb*2048}"
    def rw(nb, ks, jh): return f"ds_read_b64_tr_b16 {v(WF+4*nb+2*jh,2)}, v{AW+(nb&1)} offset:{(nb>>1)*8192+ks*4096+jh*512}"
    st(A, "setup")
    A.e("s_barrier")
    st(A, "g0")
    for mb in range(4): A.e(rx(0, 0, mb))
    for nb in range(8):
        for jh in range(2): A.e(rw(nb, 0, jh))
        if nb == 4: A.e("s_waitcnt lgkmcnt(4)")
    A.raw(".p2align 6")
    A.lab(f"{P}g1")
    acc = lambda mb, nb: ACC + 4 * (nb * 4 + mb)
    for ks in range(2):
        for nb in range(8):
            if nb == 0: A.e("s_waitcnt lgkmcnt(4)")
            elif nb % 2 == 0: A.e("s_waitcnt lgkmcnt(8)") if not (ks == 1) else None
            for mb in range(4):
                m2 = mb if nb % 2 == 0 else 3 - mb
                d = acc(m2, nb)
                x, w = XF[ks] + 4 * m2, WF + 4 * nb
                A.e(mfma16(d, x, w, d) if nb >= 6 else mfma16(d, w, x, d))
                if ks == 1 and nb == 0:
                    if mb == 0:
                        A.e(f"""s_cmp_eq_u32 s58, 0
                            s_cselect_b32 s62, s61, s60
                            s_add_u32 s58, s58, s62""")
                    if mb == 1:
                        A.e(f"v_add_u32 v{AX}, s62, v{AX}\nv_add_u32 v{AX+1}, s62, v{AX+1}")
                    if mb == 2:
                        A.e(f"v_add_u32 v{AW}, s62, v{AW}\nv_add_u32 v{AW+1}, s62, v{AW+1}\ns_add_u32 s59, s59, 1")
                    if mb == 3:
                        A.e("s_waitcnt lgkmcnt(0)\ns_barrier")
                if nb >= 1 and mb < 2: A.e(rw(nb - 1, 1 - ks, mb))
                if 1 <= nb <= 4 and mb == 2: A.e(rx(1 - ks, 1 - ks, nb - 1))
                if ks == 1 and nb == 7 and mb == 2: A.e("s_cmp_lg_u32 s59, 16")
        A.e(rw(7, 1 - ks, 0)); A.e(rw(7, 1 - ks, 1))
    A.e(f"s_cbranch_scc1 {P}g1")
    st(A, "gend")
    T = 21
    A.e(f"""s_setprio {E('EPRIO', 0)}
        s_lshl_b32 s56, s3, 12
        s_add_u32 s56, s56, {MISC}
        v_add_u32 v{AX}, s56, v{VL16}
        s_mov_b32 s62, s63
        s_waitcnt lgkmcnt(0)""")
    pack(64, [[acc(2+rbk, db) for rbk in range(2)] for db in range(2)], False)
    A.e(f"""ds_write_b128 v{AX}, {v(64,4)}
        ds_write_b128 v{AX}, {v(68,4)} offset:1024""")
    pack(72, [[acc(2+rbk, 2+db) for rbk in range(2)] for db in range(2)], False)
    A.e(f"""ds_write_b128 v{AX}, {v(72,4)} offset:2048
        ds_write_b128 v{AX}, {v(76,4)} offset:3072""")
    pack(QA, [[acc(rbk, db) for rbk in range(2)] for db in range(2)], False)
    A.e("""s_waitcnt lgkmcnt(0)
        s_barrier""")
    for rtl in range(2):
        tk, tv = 80 + 8 * rtl, ACC + 8 * rtl
        so = "s92" if rtl == 0 else "s93"
        pack(tk, [[acc(2*rtl+rbk, 4+db) for rbk in range(2)] for db in range(2)], True)
        A.e(f"""buffer_store_dwordx4 {v(tk,4)}, v{VKO}, {sr(WS)}, {so} offen sc1
            buffer_store_dwordx4 {v(tk+4,4)}, v{VKO}, {sr(WS)}, {so} offen offset:1024 sc1""")
        pack(tv, [[acc(2*rtl+kb, 6+db) for db in range(2)] for kb in range(2)], False)
        so = "s96" if rtl == 0 else "s97"
        A.e(f"""buffer_store_dwordx4 {v(tv,4)}, v{VL16}, {sr(WS)}, {so} offen offset:2048 sc1
            buffer_store_dwordx4 {v(tv+4,4)}, v{VL16}, {sr(WS)}, {so} offen offset:3072 sc1""")
    pack(QB, [[acc(rbk, 2+db) for rbk in range(2)] for db in range(2)], False)
    A.e(f"s_branch {P}attn")

    if XP & 4:
        for l in ("sig1", "sig2", "poll1", "poll2"): A.lab(f"{P}{l}_r")
    if XP & 8: A.lab(f"{P}normB")
    for ph in (1, 2):
        A.lab(f"{P}sig{ph}")
        signal(ph + 1, TZ + 1)
        A.e(f"s_branch {P}sig{ph}_r")
    A.lab(f"{P}pre1")
    A.e(f"""v_lshrrev_b32 v{TZ+1}, 4, v0
        v_min_u32 v{TZ+1}, 2, v{TZ+1}
        v_sub_u32 v{TZ+1}, s{RB}, v{TZ+1}
        v_max_i32 v{TZ+1}, 0, v{TZ+1}
        v_lshlrev_b32 v{TZ+1}, 4, v{TZ+1}
        v_and_or_b32 v{TZ+1}, v0, 15, v{TZ+1}
        v_lshlrev_b32 v{TZ+1}, {FS}, v{TZ+1}""")
    poll_issue(TZ + 1, 2)
    A.e(f"s_branch {P}pre1_r")
    A.lab(f"{P}poll1")
    A.e(f"s_waitcnt vmcnt({pw[1]})")
    poll("1", TZ + 1, 2, True)
    A.e(f"s_branch {P}poll1_r")
    A.lab(f"{P}pre2")
    A.e(f"""v_and_b32 v{TZ+1}, 15, v0
        v_lshlrev_b32 v{TZ+1}, {FS}, v{TZ+1}
        s_lshl_b32 s56, s{RB2}, {FS+4}
        v_add_u32 v{TZ+1}, s56, v{TZ+1}""")
    poll_issue(TZ + 1, 3)
    A.e(f"s_branch {P}pre2_r")
    A.lab(f"{P}poll2")
    A.e(f"s_waitcnt vmcnt({pw[2]})")
    poll("2", TZ + 1, 3, True)
    A.e(f"s_branch {P}poll2_r")
    for j in range(2, 8):
        A.lab(f"{P}cm{j}")
        zero(CM, 16)
        A.e(f"s_nop 0\ns_branch {P}cm{j}_r")

    def slow(tag, q, o, l, kf, vf, S, C, Pp, M, setup):
        A.lab(f"{P}slow{tag}")
        A.e("s_waitcnt vmcnt(0)")
        A.e(setup)
        zero(o, 16); zero(l, 4)
        A.e(f"""v_mov_b32 v{M}, {NEG}
            s_mov_b32 s99, 0""")
        A.lab(f"{P}spass{tag}")
        A.e("s_mov_b32 s100, s98")
        A.lab(f"{P}stile{tag}")
        A.e(f"""s_lshl_b32 s56, s100, 12
            s_add_u32 s56, s56, s101
            buffer_load_dwordx4 {v(kf,4)}, v{VL16}, {sr(WS)}, s56 offen sc1
            buffer_load_dwordx4 {v(kf+4,4)}, v{VL16}, {sr(WS)}, s56 offen offset:1024 sc1
            buffer_load_dwordx4 {v(vf,4)}, v{VL16}, {sr(WS)}, s56 offen offset:2048 sc1
            buffer_load_dwordx4 {v(vf+4,4)}, v{VL16}, {sr(WS)}, s56 offen offset:3072 sc1
            s_cmp_eq_u32 s100, s96
            s_cselect_b32 s56, {NEG}, 0
            s_cmp_eq_u32 s100, s97
            s_cselect_b32 s57, {NEG}, 0
            v_mov_b32 v{M+2}, s56
            v_mov_b32 v{M+3}, s57""")
        for r in range(16):
            A.e(f"""v_cmp_le_i32 vcc, {keyl(r)}, v{VD}
                s_nop 1
                v_cndmask_b32 v{C+r}, v{M+2}, v{M+3}, vcc""")
        A.e("s_waitcnt vmcnt(0)\ns_nop 0")
        A.e(mfma32(S, kf, q, C))
        A.e(mfma32(S, kf + 4, q + 4, S))
        A.e(f"""s_nop 7
            s_nop 7
            s_cmp_eq_u32 s99, 0
            s_cbranch_scc0 {P}sp2{tag}""")
        for r in range(16): A.e(f"v_max_f32 v{M}, v{M}, v{S+r}")
        A.e(f"s_branch {P}snext{tag}")
        A.lab(f"{P}sp2{tag}")
        for r in range(16): A.e(f"v_sub_f32 v{S+r}, v{S+r}, v{M}")
        for r in range(16): A.e(ex(S, r))
        A.e("s_nop 0")
        for i in range(8): A.e(cv(Pp, S, i))
        A.e("s_nop 1")
        A.e(mfma32(o, vf, Pp, o))
        A.e(mfma32(o, vf + 4, Pp + 4, o))
        A.e(smf(l, Pp))
        A.e("s_nop 7\ns_nop 7")
        A.lab(f"{P}snext{tag}")
        A.e(f"""s_add_u32 s100, s100, 1
            s_cmp_le_u32 s100, s95
            s_cbranch_scc1 {P}stile{tag}
            s_cmp_eq_u32 s99, 0
            s_cbranch_scc0 {P}sdone{tag}
            v_mov_b32 v{M+1}, v{M}
            s_nop 1
            v_permlane32_swap_b32 v{M}, v{M+1}
            s_nop 1
            v_max_f32 v{M}, v{M}, v{M+1}
            s_mov_b32 s99, 1
            s_branch {P}spass{tag}""")
        A.lab(f"{P}sdone{tag}")
        A.e(f"""s_mov_b32 s63, 1
            s_branch {P}norm{tag}""")
    slow("B", QB, O2, L2, 196, 204, 212, 228, 244, 148,
         f"""s_lshl_b32 s101, s{HEADB}, 18
            s_add_u32 s101, s101, {KVB_OFF}
            s_sub_i32 s97, s{RT}, 8
            s_max_i32 s98, s97, 0
            s_mov_b32 s95, s{RT}
            s_mov_b32 s96, s{RT}""")
    slow("A", QA, O, L, KF, VF, SB[0], SB[1], PB[0], ML + 8,
         f"""s_mov_b32 s101, {KVA_OFF}
            s_mov_b32 s98, 0
            s_mov_b32 s95, 63
            s_mov_b32 s96, -1
            s_mov_b32 s97, -1""")
    A.raw(".p2align 4")
    A.lab(f"{P}last")
    A.e("s_endpgm")
    return kernel_desc(name, 256, 102)

if __name__ == "__main__":
    ref = open(f"cdna_kernels/{NAME}.s.ref").read().split("\n")
    hdr = [l for l in ref if l.startswith(";") and "@launch" not in l]
    A = Asm()
    d = gen(A, NAME + "_kernel")
    out = "\n".join(hdr) + "\n" + f"; @launch grid=(256,1,1) block=(512,1,1) lds={LDS}\n"
    out += '.amdgcn_target "amdgcn-amd-amdhsa--gfx950"\n.text\n' + A.text() + '.section .rodata,"a"\n' + d
    path = sys.argv[1] if len(sys.argv) > 1 else f"cdna_kernels/{NAME}.s"
    open(path, "w").write(out)
    print("wrote", path, len(out))
```

```python
from common import *
import sys
E = lambda k, d: int(os.environ.get(k, d))
STAG = 4
PART_OFF = 0
TPA = E('TPA', 5)
WARM = E('WARM', 1)
E1N = E('E1N', 12)
TPOLL = E('TPOLL', 14)
LPRIO = E('LPRIO', 3)
LPS = E('LPS', 2)
ROT = E('ROT', 0)
SLP = E('SLP', 12)
PFC = E('PFC', 0)
TOUCH = E('TOUCH', 0)
ZIG = E('ZIG', 3)
SFIRST = E('SFIRST', 1)
OFL = os.environ.get('OFL', '')
XP = E('XP', 0)
JP = E('JP', 11)
JU = E('JU', 13)
JV = E('JV', 21)
SLP3 = E('SLP3', 4)
PRL = E('PRL', 2)
ORD = E('ORD', 3)
SPRO = E('SPRO', 1)
TRED = E('TRED', 7)
TTAG = E('TTAG', 2)
RAFT = E('RAFT', 1)
TST = E('TST', 1)
TSA = E('TSA', TST + 2)
PRE = E('PRE', 2)
FS = E('FS', 4)
SPLIT = E('SPLIT', 0)
TS = E('TS', 14)
TV = E('TV', 15)
DEFD = ''
NS_ = E('NS', 0)
SUBR = E('SUBR', 1)
N5 = E('N5', 47)
N6 = E('N6', 53)
N2 = E('N2', 18)
CPS = E('CPS', 3)
NB0 = 28

XSZ = 16384
ST = 49152
MISC = 3 * ST
LDS = 163840
NEG = f2u(-1e30)
SPIN = 50000

VL16, AC, AN, VG, IDX, VD, T0 = 1, 2, 3, 4, 5, 6, 7
ONES, L = 8, 12
QB, QA = 16, 24
KF, VF = 32, 40
PB = [48, 56]
SB = [64, 80]
O = 96
ML = 112
OFR = 128
O2, L2, MU, CM, TB, AB, TZ = 128, 144, 148, 164, 180, 188, 189
WS, DBG, SX_, SW_, SS_ = 28, 32, 36, 40, 44
RB, HP, XCD, IDXS, RT, HEAD, RB2, CBK = 48, 49, 50, 51, 52, 53, 54, 55
HEADB = 65
W4K, W1K, I0, WOS, GSRC, ABS = 74, 75, 76, 77, 78, 79
WS6 = 80
MUS, CMS, OUTS, OSTA = 16, 17, 20, 21
OSTB, KH10, CSRC = 24, 25, 26
UO, OQ = 44, 4
NON = 64
FL_OFF = 4 * MB
GP_OFF = 5 * MB
GROT = E('GROT', 1)

def sr(b): return f"s[{b}:{b+3}]"
def mfma16(d, a, b, c):
    cs = c if isinstance(c, str) else v(c, 4)
    return f"v_mfma_f32_16x16x32_bf16 {v(d,4)}, {v(a,4)}, {v(b,4)}, {cs}"
def smf(l, p): return f"v_smfmac_f32_16x16x64_bf16 {v(l,4)}, {v(ONES,4)}, {v(p,8)}, v{IDX}"
def ex(S, i): return f"v_exp_f32 v{S+i}, v{S+i}"
def cv(Pp, S, i): return f"v_cvt_pk_bf16_f32 v{Pp+i}, v{S+2*i}, v{S+2*i+1}"
def keyl(r): return 16 * (r >> 3) + 4 * ((r >> 2) & 1) + (r & 3)

TRN = "setup,g0,pla,pl0,gend,attn,aend,afin,y1a,y1,y3a,y3,y4,oend".split(",")
TRL = {n: 44 + i for i, n in enumerate(TRN)}
def st(A, nm):
    if DIAG: trace(A, TRL[nm])

class VM:
    def __init__(self): self.q = []
    def add(self, tag, n=1): self.q += [tag] * n
    def after(self, *tags):
        if not any(t in tags for t in self.q): return 0
        last = max(i for i, t in enumerate(self.q) if t in tags)
        return len(self.q) - 1 - last

def pack_list(dst, blk, scale):
    o = []
    for a in range(2):
        for b in range(2):
            d = blk[a][b]
            if scale:
                for i in range(2): o.append(f"v_pk_mul_f32 {v(d+2*i,2)}, {v(d+2*i,2)}, s[62:63]")
            for i in range(2): o.append(f"v_cvt_pk_bf16_f32 v{dst+a*4+b*2+i}, v{d+2*i}, v{d+2*i+1}")
    for a in range(2):
        for i in range(2): o.append(f"v_permlane16_swap_b32 v{dst+a*4+i}, v{dst+a*4+2+i}")
    return o

def gen(A, name):
    P = "f_"
    kernel_head(A, name)
    A.e(f"""s_cmp_ge_u32 s2, 256
        s_cbranch_scc1 {P}end2""")
    stamp_init(A)
    if E('HT', 0): A.e("s_memrealtime s[70:71]\ns_memtime s[74:75]")
    if E('SCR', 0):
        A.e("""s_lshr_b32 s56, s2, 3
            s_lshr_b32 s57, s2, 5
            s_xor_b32 s56, s56, s57
            s_and_b32 s56, s56, 7
            s_xor_b32 s2, s2, s56""")
    A.e(f"""s_load_dwordx8 s[4:11], s[0:1], 0
        s_load_dwordx8 s[16:23], s[0:1], 48
        s_load_dwordx4 s[24:27], s[0:1], 80
        s_load_dwordx2 s[12:13], s[0:1], 32
        v_lshrrev_b32 v1, 6, v0
        v_and_b32 v0, 63, v0
        v_readfirstlane_b32 s3, v1
        s_and_b32 s{XCD}, s2, 7
        s_lshr_b32 s{IDXS}, s2, 3
        s_and_b32 s{RB}, s{XCD}, 1
        s_lshl_b32 s{RB}, s{RB}, 3
        s_and_b32 s56, s{IDXS}, 7
        s_add_u32 s{RB}, s{RB}, s56
        s_lshr_b32 s{HP}, s{XCD}, 1
        s_lshl_b32 s{HP}, s{HP}, 2
        s_lshr_b32 s56, s{IDXS}, 3
        s_add_u32 s{HP}, s{HP}, s56
        v_lshlrev_b32 v{VL16}, 4, v0
        s_cmp_lt_u32 s3, 4
        s_cbranch_scc1 {P}compute""")

    def srds():
        srd(A, WS, "s26", "s27", WS_USED)
        srd(A, DBG, "s24", "s25", 256)
        if DIAG: A.e(f"v_mov_b32 v{VD}, 0")
    def setup_v():
        vd = AN if DIAG else VD
        A.e(f"""v_and_b32 v{T0}, 31, v0
            v_lshrrev_b32 v{VG}, 5, v0
            v_lshlrev_b32 v{VG}, 3, v{VG}
            v_sub_u32 v{vd}, v{T0}, v{VG}
            v_mov_b32 v{VG}, {NEG}""")
        for r in range(16): A.e(f"v_subrev_u32 v{ML+r}, {keyl(r)}, v{vd}")
        for r in range(16): A.e(f"v_ashrrev_i32 v{ML+r}, 31, v{ML+r}")
        for r in range(16): A.e(f"v_and_b32 v{ML+r}, v{VG}, v{ML+r}")
        A.e(f"""v_bfe_i32 v{T0}, v0, 2, 1
            v_mov_b32 v{VG}, 0x3f803f80
            v_and_b32 v{ONES+2}, v{VG}, v{T0}
            v_xor_b32 v{ONES}, v{VG}, v{ONES+2}
            v_mov_b32 v{ONES+1}, v{ONES}
            v_mov_b32 v{ONES+3}, v{ONES+2}
            v_bfe_i32 v{T0}, v0, 0, 1
            v_and_b32 v{T0}, 0xaaaa, v{T0}
            v_or_b32 v{IDX}, 0x4444, v{T0}
            v_add_u32 v{AC}, 0x10000, v{VL16}
            v_add_u32 v{AN}, 0x20000, v{VL16}""")
        for i in range(4): A.e(f"v_mov_b32 v{L+i}, 0")
    def setup_s():
        A.e(f"""s_and_b32 s{RB2}, s{XCD}, 3
            s_lshl_b32 s{RB2}, s{RB2}, 2
            s_and_b32 s56, s{IDXS}, 3
            s_add_u32 s{RB2}, s{RB2}, s56
            s_lshl_b32 s{WOS}, s56, 19
            s_lshr_b32 s{CBK}, s{XCD}, 2
            s_lshl_b32 s{CBK}, s{CBK}, 3
            s_lshr_b32 s56, s{IDXS}, 2
            s_add_u32 s{CBK}, s{CBK}, s56
            s_and_b32 s56, s3, 1
            s_lshl_b32 s56, s56, 1
            s_lshr_b32 s{KH10}, s3, 2
            s_add_u32 s56, s56, s{KH10}
            s_lshl_b32 s{ABS}, s56, 12
            s_lshl_b32 s{RT}, s{RB}, 2
            s_add_u32 s{CSRC}, s{RT}, s{KH10}
            s_add_u32 s{RT}, s{RT}, s56
            s_bfe_u32 s56, s3, 0x10001
            s_mul_i32 s57, s56, 49152
            s_add_u32 s{ABS}, s{ABS}, s57
            s_lshl_b32 s{HEAD}, s{HP}, 1
            s_add_u32 s{HEAD}, s{HEAD}, s56
            s_add_u32 s56, s{HEAD}, {2*GROT}
            s_and_b32 s56, s56, 7
            s_and_b32 s57, s{HEAD}, 24
            s_or_b32 s{HEADB}, s56, s57
            s_lshl_b32 s{W4K}, s3, 12
            s_lshl_b32 s{W1K}, s3, 10
            s_sub_i32 s{I0}, 8, s{RT}
            s_cmp_gt_i32 s{I0}, 0
            s_cselect_b32 s{MUS}, 0, 1.0
            s_cmp_gt_i32 s{I0}, 1
            s_cselect_b32 s{CMS}, {NEG}, 0
            s_lshr_b32 s57, s{HEADB}, 1
            s_lshl_b32 s57, s57, 19
            s_and_b32 s27, s3, 3
            s_lshl_b32 s56, s27, 10
            s_add_u32 s57, s57, s56
            s_add_u32 s57, s57, {KVB_OFF}
            s_lshl_b32 s56, s{CSRC}, 12
            s_add_u32 s56, s56, s57
            s_sub_u32 s56, s56, 0x8000""")
        for i in range(6):
            A.e(f"s_max_u32 s{WS6+i}, s56, s57")
            if i < 5: A.e("s_addk_i32 s56, 0x2000")
        A.e(f"""s_lshl_b32 s56, s{RB2}, 2
            s_add_u32 s56, s56, s27
            s_lshl_b32 s{OUTS}, s56, 1
            s_add_u32 s{OUTS}, s{OUTS}, s{KH10}
            s_lshl_b32 s{OUTS}, s{OUTS}, 15
            s_lshl_b32 s57, s{CBK}, 7
            s_add_u32 s{OUTS}, s{OUTS}, s57
            s_lshl_b32 s{UO}, s3, 16
            s_add_u32 s{UO}, s{UO}, s57
            s_add_u32 s{WOS}, s{WOS}, s{UO}
            s_add_u32 s{UO+1}, s{UO}, 0x80000
            s_add_u32 s{UO+2}, s{UO}, 0x100000
            s_add_u32 s{UO+3}, s{UO}, 0x180000
            s_lshl_b32 s56, s56, 17
            s_lshl_b32 s57, s{KH10}, 11
            s_add_u32 s56, s56, s57
            s_add_u32 s{OQ}, s56, {O_OFF + 65536}
            s_movk_i32 s57, 0x2000""")
        if ROT:
            A.e(f"""s_mov_b32 s56, s{OQ}
                s_lshl_b32 s27, s{CBK}, 13""")
            for h in range(8):
                A.e(f"""s_and_b32 s27, s27, 0xffff
                    s_add_u32 s{OQ+h}, s56, s27
                    s_add_u32 s27, s27, s57""")
            A.e(f"s_lshl_b32 s27, s{CBK}, 18")
            for q in range(4):
                A.e(f"""s_add_u32 s{UO+q}, s{UO+q}, s27
                    s_and_b32 s{UO+q}, s{UO+q}, 0x1fffff""")
        else:
            for h in range(1, 8): A.e(f"s_add_u32 s{OQ+h}, s{OQ+h-1}, s57")
        A.e(f"""s_lshl_b32 s{GSRC}, s{RT}, 7
            s_add_u32 s{GSRC}, s{GSRC}, {G_OFF}
            s_lshl_b32 s56, s{RT}, 17
            s_add_u32 s56, s56, {O_OFF}
            s_lshl_b32 s{OSTA}, s{HEAD}, 11
            s_add_u32 s{OSTA}, s{OSTA}, s56
            s_lshl_b32 s{OSTB}, s{HEADB}, 11
            s_add_u32 s{OSTB}, s{OSTB}, s56
            s_add_u32 s{OSTB}, s{OSTB}, 0x10000
            s_lshl_b32 s{KH10}, s{KH10}, 10""")
    def pack(dst, blk, scale):
        for x in pack_list(dst, blk, scale): A.e(x)
    def zero(base, n):
        for i in range(n): A.e(f"v_mov_b32 v{base+i}, 0")
    def signal(phase, t1):
        A.e(f"""s_mov_b64 exec, 1
            v_mov_b32 v{T0}, s{NON}
            v_mov_b32 v{t1}, 0
            s_lshl_b32 s56, s{RB}, 4
            s_add_u32 s56, s56, s{HP}
            s_lshl_b32 s56, s56, {FS}
            s_add_u32 s56, s56, {FL_OFF + (256<<FS)*phase}
            buffer_store_dword v{T0}, v{t1}, {sr(WS)}, s56 offen sc1
            s_mov_b64 exec, -1""")
    def poll_issue(voff, phase, t1=None):
        A.e(f"""s_mov_b32 s62, {FL_OFF + (256<<FS)*phase}
            buffer_load_dword v{T0}, v{voff}, {sr(WS)}, s62 offen sc1""")
        if t1:
            for i in range(3): A.e(f"buffer_load_dword v{t1+i}, v{voff}, {sr(WS)}, s62 offen offset:{(i+1)<<FS} sc1")
    def poll(tag, voff, phase, first_issued, t1=None, slp=SLP):
        A.e(f"s_mov_b32 s57, {1 if ((XP & 32 and tag in '0a') or (XP & 64 and tag in '123')) else SPIN}")
        if first_issued: A.e(f"s_branch {P}pc{tag}")
        A.lab(f"{P}pl{tag}")
        poll_issue(voff, phase, t1)
        A.e("s_waitcnt vmcnt(0)")
        A.lab(f"{P}pc{tag}")
        A.e(f"v_cmp_eq_u32 vcc, s{NON}, v{T0}")
        if t1:
            for i in range(3):
                A.e(f"""s_mov_b64 s[62:63], vcc
                    v_cmp_eq_u32 vcc, s{NON}, v{t1+i}
                    s_and_b64 vcc, vcc, s[62:63]""")
        A.e(f"""s_cmp_eq_u64 vcc, -1
            s_cbranch_scc1 {P}pd{tag}
            s_sleep {slp}
            s_sub_u32 s57, s57, 1
            s_cmp_lg_u32 s57, 0
            s_cbranch_scc1 {P}pl{tag}""")
        A.lab(f"{P}pd{tag}")
    def tag_issue(d, z):
        A.e(f"""v_mov_b32 v{z}, 0
            buffer_load_dword v{d}, v{z}, {sr(DBG)}, 0 offen sc1""")
    def tag_get(lbl, d, z):
        A.e(f"s_mov_b32 s57, {SPIN}")
        A.lab(f"{P}tl{lbl}")
        A.e(f"""v_readfirstlane_b32 s{NON}, v{d}
            s_cmp_lg_u32 s{NON}, 0
            s_cbranch_scc1 {P}td{lbl}
            s_sleep 8
            buffer_load_dword v{d}, v{z}, {sr(DBG)}, 0 offen sc1
            s_waitcnt vmcnt(0)
            s_sub_u32 s57, s57, 1
            s_cmp_lg_u32 s57, 0
            s_cbranch_scc1 {P}tl{lbl}""")
        A.lab(f"{P}td{lbl}")
    gslot = lambda t: ((15 - t) % 3) * ST

    VX, VW, VS, AXS, AWS = 128, 130, 132, 136, 133
    SXF, SWF, SA = 144, 176, 208
    LW, KIND, PHI = 14, 15, 92
    XB, WB, WSTEP, KT, L4K, L8K, PSRC = 93, 94, 96, 98, 99, 100, 101
    L8X, WST2 = 2, 53
    A.e(f"""s_setprio {LPRIO}
        s_sub_u32 s{LW}, s3, 4
        v_lshrrev_b32 v9, 3, v0
        v_and_b32 v16, 7, v0
        v_lshrrev_b32 v17, 4, v0
        v_xor_b32 v17, v17, v16
        v_lshlrev_b32 v17, 4, v17
        v_lshl_add_u32 v{VX}, v9, 11, v17
        v_xor_b32 v{VX+1}, 64, v{VX}
        s_cmp_eq_u32 s{LW}, 0
        s_mov_b32 s57, 6144
        s_cselect_b32 s57, 2048, s57
        v_bfe_u32 v17, v0, 4, 1
        v_lshlrev_b32 v17, 1, v17
        v_xor_b32 v17, v17, v16
        v_lshlrev_b32 v17, 4, v17
        v_mul_u32_u24 v18, s57, v9
        v_add_u32 v{VW}, v18, v17
        v_xor_b32 v{VW+1}, 64, v{VW}
        s_lshl_b32 s{WSTEP}, s57, 3
        s_lshl_b32 s{XB}, s{RB}, 18
        s_lshl_b32 s56, s{LW}, 16
        s_add_u32 s{XB}, s{XB}, s56
        s_max_u32 s56, s{LW}, 1
        s_sub_u32 s56, s56, 1
        s_lshl_b32 s56, s56, 11
        s_mul_i32 s57, s{LW}, {GROT}
        s_add_u32 s57, s57, s{HP}
        s_and_b32 s57, s57, 3
        s_and_b32 s{WB}, s{HP}, 12
        s_or_b32 s57, s57, s{WB}
        s_lshl_b32 s57, s57, 7
        s_add_u32 s{WB}, s56, s57
        s_add_u32 s{PHI}, s{RB}, s{HP}
        s_and_b32 s{PHI}, s{PHI}, 3
        s_and_b32 s56, s{HP}, {12 if ORD == 3 else 4}
        s_or_b32 s{KT}, s{PHI}, s56
        s_lshl_b32 s{KT}, s{KT}, {0 if ORD == 3 else 1}
        s_lshl_b32 s{L4K}, s{LW}, 12
        s_lshl_b32 s{L8K}, s{LW}, 13
        s_add_u32 s{L8X}, s{L8K}, {XSZ}
        s_sub_u32 s{WST2}, s{WSTEP}, 0x400
        s_cmp_eq_u32 s{LW}, 0
        s_waitcnt lgkmcnt(0)
        s_cselect_b32 s{SW_}, s6, s16
        s_cselect_b32 s{SW_+1}, s7, s17
        s_mov_b32 s{SW_+2}, {6*MB}
        s_cselect_b32 s{SW_+2}, {2*MB}, s{SW_+2}
        s_mov_b32 s{SW_+3}, 0x20000""")
    srd(A, SX_, "s4", "s5", 4 * MB)
    gv = VM()
    def issue(t, lo=0, hi=12):
        if SUBR:
            assert (lo, hi) == (0, 12)
            gv.add(f"T{t}", 12)
            if t > 0:
                A.e(f"s_mov_b32 s59, {gslot(t)}")
                if (t & 3) == 0: A.e(f"s_add_u32 s{KT}, s{KT}, 4\ns_and_b32 s{KT}, s{KT}, 15")
                A.e(f"s_call_b64 s[0:1], {P}isub")
                return
            A.e(f"""s_mov_b32 s59, {gslot(0)}
                s_getpc_b64 s[0:1]""")
            A.lab(f"{P}ipc")
            A.e(f"""s_add_u32 s0, s0, {P}iret-{P}ipc
                s_addc_u32 s1, s1, 0""")
            A.lab(f"{P}isub")
            A.e(f"""s_add_u32 m0, s{L4K}, s59
                s_lshl_b32 s56, s{KT}, 7
                s_add_u32 s56, s56, s{XB}""")
            for i in range(4):
                A.e(f"buffer_load_dwordx4 v{VX+(i&1)}, {sr(SX_)}, s56 offen offset:{1024*i} lds")
                if i < 3: A.e(f"s_addk_i32 s56, {16384-1024}")
            A.e(f"""s_add_u32 m0, s{L8X}, s59
                s_mul_i32 s56, s{KT}, s{WSTEP}
                s_lshl_b32 s56, s56, 3
                s_add_u32 s56, s56, s{WB}""")
            for i in range(8):
                A.e(f"buffer_load_dwordx4 v{VW+(i&1)}, {sr(SW_)}, s56 offen offset:{1024*(i&3)} lds")
                if i == 3: A.e(f"s_addk_i32 m0, 0x1000\ns_addk_i32 s56, 0x1000")
                if i < 7: A.e(f"s_add_u32 s56, s56, s{WST2}")
            A.e(f"""s_add_u32 s56, s{KT}, 1
                s_and_b32 s56, s56, 3
                s_and_b32 s{KT}, s{KT}, 12
                s_or_b32 s{KT}, s{KT}, s56
                s_setpc_b64 s[0:1]""")
            A.lab(f"{P}iret")
            return
        for i in range(lo, hi):
            if i < 4:
                if i == lo:
                    A.e(f"""s_add_u32 m0, s{L4K}, {gslot(t) + 1024*i}
                        s_lshl_b32 s56, s{KT}, 7
                        s_add_u32 s56, s56, s{XB}""")
                    if i: A.e(f"s_add_u32 s56, s56, {16384*i}")
                else: A.e("s_add_u32 m0, m0, 1024\ns_add_u32 s56, s56, 16384")
                A.e(f"buffer_load_dwordx4 v{VX+(i&1)}, {sr(SX_)}, s56 offen lds")
            else:
                if i == lo or i == 4:
                    A.e(f"""s_add_u32 m0, s{L8K}, {gslot(t) + XSZ + 1024*(i-4)}
                        s_lshl_b32 s56, s{KT}, 3""")
                    if i > 4: A.e(f"s_add_u32 s56, s56, {i-4}")
                    A.e(f"""s_mul_i32 s56, s56, s{WSTEP}
                        s_add_u32 s56, s56, s{WB}""")
                else: A.e(f"s_add_u32 m0, m0, 1024\ns_add_u32 s56, s56, s{WSTEP}")
                A.e(f"buffer_load_dwordx4 v{VW+(i&1)}, {sr(SW_)}, s56 offen lds")
            gv.add(f"T{t}")
        if hi == 12 and t < 15:
            pm = 3 if ORD == 3 else 7
            A.e(f"""s_add_u32 s56, s{KT}, 1
                s_and_b32 s56, s56, {pm}""")
            if (t & pm) == pm: A.e(f"s_add_u32 s{KT}, s{KT}, {pm+1}")
            A.e(f"""s_and_b32 s{KT}, s{KT}, {15 - pm}
                s_or_b32 s{KT}, s{KT}, s56""")
    DEF = {int(x.split(":")[0]): int(x.split(":")[1]) for x in os.environ.get("DEF", DEFD).split(",") if x}
    marks = {}
    A.e(f"s_mov_b32 s95, s{KT}")
    issue(0)
    SG, GA, AGS, PI = 32, 64, 134, 97
    A.e(f"s_and_b32 s{KIND}, s{PHI}, 1" if ORD == 3 else f"s_lshr_b32 s{KIND}, s{HP}, 3")
    A.e(f"""s_cmp_eq_u32 s{KIND}, 0
        s_cselect_b32 s{SS_}, s8, s10
        s_cselect_b32 s{SS_+1}, s9, s11
        s_mov_b32 s{SS_+2}, 65536
        s_mov_b32 s{SS_+3}, 0x20000
        s_cmp_lt_u32 s{LW}, 2
        s_cselect_b32 s56, s95, s{KT}
        s_lshl_b32 s56, s56, 12
        s_and_b32 s57, s{LW}, 1
        s_lshl_b32 s57, s57, 11
        s_add_u32 s56, s56, s57
        s_lshl_b32 s57, s{LW}, 11
        s_add_u32 m0, s57, {MISC}
        v_mov_b32 v17, s95
        buffer_load_dwordx4 v{VL16}, {sr(SS_)}, s56 offen lds
        buffer_load_dwordx4 v{VL16}, {sr(SS_)}, s56 offen offset:1024 lds
        v_mov_b32 v18, s{KT}
        v_cmp_gt_u32 vcc, 8, v0
        v_lshlrev_b32 v19, 4, v16
        v_lshrrev_b32 v20, 4, v0
        v_cndmask_b32 v17, v18, v17, vcc
        v_lshl_add_u32 v19, v17, 7, v19
        v_lshl_add_u32 v19, v20, 16, v19
        s_lshl_b32 s57, s{LW}, 10
        s_add_u32 s57, s57, {MISC + 8192}
        s_mov_b32 m0, s57""")
    srd(A, 60, "s20", "s21", 2048)
    A.e(f"""buffer_load_dwordx4 v19, s[60:63], 0 offen lds
        v_lshrrev_b32 v17, 5, v0
        v_lshl_add_u32 v{AGS}, v17, 4, s57""")
    srds()
    A.e(f"""v_and_b32 v16, 31, v0
        v_lshrrev_b32 v17, 5, v0
        v_bfe_u32 v18, v0, 1, 3
        v_xor_b32 v19, v17, v18
        v_lshlrev_b32 v19, 4, v19
        v_lshl_add_u32 v19, v16, 7, v19
        v_add_u32 v{AXS}, s{L4K}, v19
        v_xor_b32 v{AXS+1}, 32, v{AXS}
        v_xor_b32 v{AXS+2}, 64, v{AXS}
        v_xor_b32 v{AXS+3}, 0x60, v{AXS}
        v_bfe_u32 v18, v0, 2, 2
        v_lshl_add_u32 v19, v17, 3, v18
        v_lshlrev_b32 v19, 6, v19
        v_bfe_u32 v18, v0, 4, 1
        v_lshl_add_u32 v19, v18, 5, v19
        v_and_b32 v18, 3, v0
        v_bfe_u32 v20, v0, 1, 1
        v_and_b32 v21, 1, v0
        v_lshl_or_b32 v20, v21, 1, v20
        s_cmp_eq_u32 s{KIND}, 0
        s_cselect_b64 vcc, -1, 0
        v_cndmask_b32 v18, v18, v20, vcc
        v_lshl_add_u32 v19, v18, 3, v19
        v_add_u32 v{AWS}, {MISC}, v19
        v_lshlrev_b32 v{VS}, 2, v0
        v_mov_b32 v{GA}, 0
        v_mov_b32 v{GA+1}, 0
        s_lshr_b32 s{PI}, s95, 1
        s_lshl_b32 s{PSRC}, s{RB}, 1
        s_add_u32 s{PSRC}, s{PSRC}, s{KIND}
        s_lshl_b32 s{PSRC}, s{PSRC}, 17
        s_add_u32 s{PSRC}, s{PSRC}, {PART_OFF}""")
    st(A, "setup")
    issue(1)
    A.e(f"s_waitcnt vmcnt({12 if SPLIT else 15})")
    st(A, "g0")
    RL = SXF
    def lsignal(t, ph):
        A.e(f"""s_cmp_lg_u32 s{LW}, 0
            s_cbranch_scc1 {P}ls{t}""")
        signal(ph, 17)
        A.lab(f"{P}ls{t}")
    def side_compute(ks):
        tg = ks[0]
        A.e(f"""s_cmp_eq_u32 s{KIND}, 1
            s_cbranch_scc1 {P}lv{tg}""")
        for k in ks: A.e(f"ds_read_b128 {v(SG+4*k,4)}, v{AGS} offset:{32*k}")
        A.e(f"s_waitcnt lgkmcnt({len(ks)})")
        for k in ks: A.e(mfma32(SA, SWF + 4*k, SXF + 4*k, "0" if k == 0 else SA))
        A.e("s_waitcnt lgkmcnt(0)")
        for k in range(4*ks[0], 4*ks[-1]+4): A.e(f"v_dot2_f32_bf16 v{GA+(k&1)}, v{SXF+k}, v{SG+k}, v{GA+(k&1)}")
        A.e(f"s_branch {P}lw{tg}")
        A.lab(f"{P}lv{tg}")
        A.e("s_waitcnt lgkmcnt(0)")
        for k in ks: A.e(mfma32(SA, SXF + 4*k, SWF + 4*k, "0" if k == 0 else SA))
        A.lab(f"{P}lw{tg}")
    def reduce_store():
        A.e(f"""s_lshl_b32 s56, s{RB}, 2
            s_lshr_b32 s57, s{PI}, 1
            s_add_u32 s56, s56, s57
            s_cmp_lg_u32 s{LW}, 0
            s_cbranch_scc1 {P}lgate""")
        for st_ in (32, 16, 8):
            for i in range(0, st_, 2): A.e(f"v_pk_add_f32 {v(RL+i,2)}, {v(RL+i,2)}, {v(RL+st_+i,2)}")
        A.e(f"""s_cmp_eq_u32 s{KIND}, 0
            s_cselect_b32 s57, {f2u(CSCALE)}, 1.0""")
        for i in range(8): A.e(f"v_mul_f32 v{RL+i}, s57, v{RL+i}")
        for i in range(4): A.e(f"v_cvt_pk_bf16_f32 v{SA+i}, v{RL+2*i}, v{RL+2*i+1}")
        A.e(f"""s_lshl_b32 s56, s56, 12
            s_lshl_b32 s57, s{KIND}, 11
            s_add_u32 s56, s56, s57
            s_and_b32 s57, s{PI}, 1
            s_lshl_b32 s57, s57, 10
            s_add_u32 s56, s56, s57
            s_add_u32 s56, s56, {KVA_OFF}
            buffer_store_dwordx4 {v(SA,4)}, v{VL16}, {sr(WS)}, s56 offen sc1
            s_branch {P}lsd""")
        A.lab(f"{P}lgate")
        A.e(f"""s_cmp_lg_u32 s58, 1
            s_cbranch_scc1 {P}lsd""")
        for i in range(1, 8): A.e(f"v_add_f32 v{RL}, v{RL}, v{RL+i}")
        A.e(f"""v_mov_b32 v{RL+1}, v{RL}
            s_lshl_b32 s56, s56, 7
            s_add_u32 s56, s56, {G_OFF}
            v_permlane32_swap_b32 v{RL}, v{RL+1}
            v_and_b32 v16, 31, v0
            v_add_f32 v{RL}, v{RL}, v{RL+1}
            v_mul_f32 v{RL}, {f2u(-LOG2E)}, v{RL}
            v_exp_f32 v{RL}, v{RL}
            v_lshlrev_b32 v16, 2, v16
            v_add_f32 v{RL}, 1.0, v{RL}
            v_rcp_f32 v{RL}, v{RL}
            s_nop 0
            buffer_store_dword v{RL}, v16, {sr(WS)}, s56 offen sc1""")
        A.lab(f"{P}lsd")
    for t in range(16):
        A.e("s_barrier")
        trace(A, t)
        if t < 2:
            for k in range(4): A.e(f"ds_read_b128 {v(SXF+16*t+4*k,4)}, v{AXS+k}")
        if t == 0:
            for k in range(4): A.e(f"v_add_u32 v{AXS+k}, {gslot(1) - gslot(0)}, v{AXS+k}")
        ks = ([list(range(4)), list(range(4, 8))] if SPLIT else [[], list(range(8))])[t] if t < 2 else []
        for k in ks:
            A.e(f"""ds_read_b64_tr_b16 {v(SWF+4*k,2)}, v{AWS} offset:{1024*k}
                ds_read_b64_tr_b16 {v(SWF+4*k+2,2)}, v{AWS} offset:{1024*k+256}""")
            if k in (3, 7): A.e("s_waitcnt lgkmcnt(4)")
        if t == 1:
            tag_issue(18, 17); marks.setdefault(2, []).append(len(gv.q))
        if ks and SFIRST and not NS_ & 1: side_compute(ks)
        if t == TSA: lsignal(t, 0)
        if t == TRED + 1 + RAFT: lsignal(t, 1)
        if t == TPA:
            A.e(f"""s_and_b32 s58, s{PI}, 1
                s_add_u32 s58, s58, s{KIND}
                s_add_u32 s58, s58, s{LW}
                s_cmp_eq_u32 s{LW}, 0
                s_cselect_b32 s58, 0, s58
                v_and_b32 v16, 7, v0
                v_lshlrev_b32 v16, {FS+1 if ORD == 3 else FS}, v16
                s_and_b32 s57, s{HP}, {1 if ORD == 3 else 8}
                s_lshl_b32 s56, s{RB}, 4
                s_add_u32 s56, s56, s57
                s_lshl_b32 s56, s56, {FS}
                v_add_u32 v16, s56, v16
                s_cmp_ge_u32 s58, 2
                s_cbranch_scc1 {P}lta""")
            poll_issue(16, 0)
            A.lab(f"{P}lta")
            marks.setdefault(t, []).append(len(gv.q))
        if t == TPOLL:
            A.e(f"""v_lshlrev_b32 v16, {FS+2}, v0
                s_cmp_lg_u32 s{LW}, 0
                s_cbranch_scc1 {P}lt0""")
            poll_issue(16, 1, 17)
            A.lab(f"{P}lt0")
            marks.setdefault(t, []).append(len(gv.q))
        if t == TRED and not RAFT:
            reduce_store(); marks.setdefault(t, []).append(len(gv.q))
        if DEF.get(t - 1): issue(t + 1, 12 - DEF[t - 1], 12)
        if t + 2 < 16: issue(t + 2, 0, 12 - DEF.get(t, 0))
        if t == 0: A.e("s_waitcnt lgkmcnt(0)")
        if ks and not SFIRST:
            side_compute(ks)
            A.e("s_nop 7")
        if t == TST and not NS_ & 2:
            A.e(f"""s_lshl_b32 s56, s{LW}, 3
                s_add_u32 s56, s56, s{PI}
                s_lshl_b32 s57, s56, 12
                s_add_u32 s57, s57, s{PSRC}
                v_add_f32 v{GA}, v{GA}, v{GA+1}""")
            for q in range(4): A.e(f"buffer_store_dwordx4 {v(SA+4*q,4)}, v{VL16}, {sr(WS)}, s57 offen offset:{1024*q} sc1")
            A.e(f"""s_cmp_eq_u32 s{KIND}, 1
                s_cbranch_scc1 {P}lp1
                s_lshl_b32 s57, s{RB}, 5
                s_add_u32 s56, s56, s57
                s_lshl_b32 s56, s56, 8
                s_add_u32 s56, s56, {GP_OFF}
                buffer_store_dword v{GA}, v{VS}, {sr(WS)}, s56 offen sc1""")
            A.lab(f"{P}lp1")
            gv.add("S", 4); marks.setdefault(TSA - 1, []).append(len(gv.q))
        if t == TRED and RAFT and not NS_ & 8:
            reduce_store(); marks.setdefault(t + 1, []).append(len(gv.q))
        ncs = 0
        if t > TPOLL and (t == TPOLL + 1 or t == 15):
            cs = []
            if t == TPOLL + 1: cs.append((0, 3))
            if t == 15: cs.append((1, 2))
            for c, slot in cs:
                for hf in range(2):
                    A.e(f"""s_add_u32 m0, s{L8K}, {slot*32768 + hf*4096}
                        s_add_u32 s56, s{L8K}, {KVA_OFF + c*32768 + hf*4096}""")
                    for i in range(4): A.e(f"buffer_load_dwordx4 v{VL16}, {sr(WS)}, s56 offen offset:{1024*i} sc1 lds")
                gv.add('C', 8)
        for nm, tt in (("s", TS), ("v", TV)):
            if t == tt:
                A.e(f"s_branch {P}set{nm}")
                A.lab(f"{P}set{nm}_r")
        if t < 15: A.e(f"s_waitcnt vmcnt({min([gv.after(f'T{t+1}')] + [len(gv.q) - m for m in marks.get(t, [])])})")
        if t == 2: tag_get("l", 18, 17)
        if t == TPA and not NS_ & 4:
            A.e(f"""s_cmp_ge_u32 s58, 2
                s_cbranch_scc1 {P}lp2""")
            poll("a", 16, 0, True)
            st(A, "pla")
            A.e(f"""s_lshr_b32 s56, s{PI}, 1
                s_cmp_eq_u32 s58, 1
                s_cbranch_scc1 {P}lp3
                s_lshl_b32 s56, s56, 15
                s_and_b32 s57, s{PI}, 1
                s_lshl_b32 s57, s57, 11
                s_add_u32 s56, s56, s57
                s_add_u32 s56, s56, s{PSRC}""")
            for q in range(8):
                A.e(f"""buffer_load_dwordx4 {v(RL+8*q,4)}, v{VL16}, {sr(WS)}, s56 offen sc1
                    buffer_load_dwordx4 {v(RL+8*q+4,4)}, v{VL16}, {sr(WS)}, s56 offen offset:1024 sc1""")
                if q < 7: A.e("s_add_u32 s56, s56, 4096")
            A.e(f"s_branch {P}lp2")
            A.lab(f"{P}lp3")
            A.e(f"""s_lshl_b32 s57, s{RB}, 2
                s_add_u32 s56, s56, s57
                s_lshl_b32 s56, s56, 11
                s_add_u32 s56, s56, {GP_OFF}""")
            for q in range(8): A.e(f"buffer_load_dword v{RL+q}, v{VS}, {sr(WS)}, s56 offen offset:{256*q} sc1")
            A.lab(f"{P}lp2")
            marks.setdefault(TRED - 1, []).append(len(gv.q))
        if t == TPOLL:
            A.e(f"""s_cmp_lg_u32 s{LW}, 0
                s_cbranch_scc1 {P}pd0""")
            poll("0", 16, 1, True, t1=17)
            st(A, "pl0")
    A.e(f"""s_add_u32 s56, s{L4K}, {MISC}
        v_add_u32 v16, s56, v{VL16}
        s_setprio 0
        s_waitcnt vmcnt(0)
        s_barrier""")
    st(A, "gend")
    A.e(f"""ds_read_b128 {v(QA,4)}, v16
        ds_read_b128 {v(QA+4,4)}, v16 offset:1024
        ds_read_b128 {v(QB+4,4)}, v16 offset:3072
        ds_read_b128 {v(QB,4)}, v16 offset:2048""")

    A.lab(f"{P}attn")
    if E('STOPG', 0): A.e(f"s_branch {P}end")
    st(A, "attn")
    VOO, VXW, VXO = ML, ML + 12, ML + 14
    VWO = [ML + 4, ML + 1, ML + 2, ML + 3]
    VO4 = [ML + 5, ML + 6, ML + 7, ML + 15]
    VW2, VH1 = 192, 191
    def la(off): return ([VL16, AC, AN][off >> 16], off & 0xffff)
    def rdK(addr, off): return [f"ds_read_b128 {v(KF+4*i,4)}, v{addr} offset:{off+1024*i}" for i in range(2)]
    def rdV(addr, off): return [f"ds_read_b128 {v(VF+4*i,4)}, v{addr} offset:{off+2048+1024*i}" for i in range(2)]
    cslot = lambda c: {0: 3, 1: 2, 2: 4}.get(c, c % 5)
    seq = [("A", j) for j in range(NB0)] + [("B", i) for i in range(9)] + [("A", j) for j in range(NB0, 64)]
    seq += [("A", 63), ("A", 63)]
    def taddr(n):
        k, j = seq[n]
        return la(cslot(j >> 3) * 32768 + (j & 7) * 4096) if k == "A" else (AB, j * 4096)
    def tq(n): return QA if seq[n][0] == "A" else QB
    def tc(n):
        k, j = seq[n]
        return "0" if k == "A" else (MU if j == 0 else ML if j == 8 else CM)
    def to(n): return (O, L) if seq[n][0] == "A" else (O2, L2)
    for x in rdK(*taddr(0)): A.e(x)
    srd(A, SW_, "s18", "s19", 2 * MB)
    A.e("s_waitcnt lgkmcnt(0)")
    A.e(mfma32(SB[0], KF, QA, "0"))
    A.e(mfma32(SB[0], KF + 4, QA + 4, SB[0]))
    for x in rdK(*taddr(1)): A.e(x)
    srd(A, SX_, "s12", "s13", 2 * MB)
    A.e(f"""v_mov_b32 v{TZ}, {NEG}
        v_mov_b32 v{TZ+1}, 0
        v_add_u32 v{AB}, s{ABS}, v{VL16}
        v_add_u32 v{VH1}, {64*4096}, v{VL16}
        s_waitcnt lgkmcnt(0)""")
    vm = VM()
    def cpiece(c, i):
        o = [f"s_add_u32 m0, s{W4K}, {cslot(c)*32768}", f"s_add_u32 s{CSRC}, s{W4K}, {KVA_OFF + c*32768}"] if i == 0 else []
        return (f"C{c}", o + [f"buffer_load_dwordx4 v{VL16}, {sr(WS)}, s{CSRC} offen offset:{i*1024} sc1 lds"])
    def wpiece(i):
        return ("W", [f"s_add_u32 m0, s{W1K}, {i*8192}", f"buffer_load_dwordx4 v{VH1 if i >= 6 else VL16}, {sr(WS)}, s{WS6+i%6} offen sc1 lds"])
    def upiece(u, k):
        o = [f"s_add_u32 m0, s{W4K}, {(u%5)*32768}"] if k == 0 else []
        return (f"U{u}", o + [f"buffer_load_dwordx4 v{VWO[k]}, {sr(SW_ if u < 12 else SX_)}, s{UO+(u&3)} offen offset:{k*1024} lds"])
    def warm(i):
        return ("Z", [f"buffer_load_dwordx4 v[252:255], v{VW2+(i&3)}, {sr(SW_ if i < 4 else SX_)}, s{WOS} offen offset:{(i&3)*1024}"])
    def oload(n, half):
        return ("O", [f"buffer_load_dwordx4 {v(OFR+4*n,4)}, v{VO4[n&3]}, {sr(WS)}, s{OQ+(n>>2)} offen sc1"])
    bg = {n: [] for n in range(73)}
    bv = {n: [] for n in range(73)}
    for i in range(4): bg[i].append(cpiece(2, i))
    for i in range(4): bg[E1N + i // 2].append(cpiece(3, i))
    for i in range(12): bg[N2 + i // 2].append(wpiece(i))
    bv[N2 + 5] += [f"v_and_b32 v{TZ}, 31, v0", f"v_lshlrev_b32 v{TZ}, 2, v{TZ}"]
    bg[N2 + 6].append(("G", [f"buffer_load_dword v{VG}, v{TZ}, {sr(WS)}, s{GSRC} offen sc1"]))
    for i in range(4): bg[26 + i // 2].append(cpiece(4, i))
    if WARM:
        for i in range(8): bg[28 + i].append(warm(i))
    for i in range(12): bg[39 + i // CPS].append(cpiece(5 + i // 4, i & 3))
    for i in range(4): bg[N5 + i].append(upiece(8, i))
    for i in range(4): bg[N6 + 3 + i].append(upiece(9, i))
    for i in range(8): bg[65 + i].append(upiece(10 + i // 4, i & 3))
    for i in range(32): bg[N6 + ((71 - N6) * i) // 31].append(oload(i, 1))
    for i in range(4):
        bv[4 + i] += [f"v_fma_f32 v{MU+r}, -v{ML+r}, s{MUS}, v{TZ}" for r in range(4*i, 4*i+4)]
        bv[12 + i] += [f"v_mov_b32 v{CM+r}, s{CMS}" for r in range(4*i, 4*i+4)] + [f"v_mov_b32 v{L2+i}, 0"]
    bv[24] += [f"v_lshrrev_b32 v{VW2}, 3, v0", f"v_bfe_u32 v{TB}, v0, 4, 2", f"v_lshlrev_b32 v{TB}, 1, v{TB}", f"v_and_b32 v{TB+1}, 7, v0",
               f"v_xor_b32 v{TB}, v{TB}, v{TB+1}", f"v_lshlrev_b32 v{TB}, 4, v{TB}", f"v_lshl_add_u32 v{VW2}, v{VW2}, 11, v{TB}"]
    bv[25] += [f"v_add_u32 v{VW2+k}, {k*15360}, v{VW2}" for k in range(1, 4)]
    bv[NB0 + 8] += [f"v_and_b32 v{VOO}, 15, v0", f"v_bfe_u32 v{VOO+1}, v0, 4, 1", f"v_lshrrev_b32 v{VOO+2}, 5, v0",
                    f"v_lshlrev_b32 v{VXO}, 11, v{VOO}", f"v_lshl_add_u32 v{VXO}, v{VOO+1}, 5, v{VXO}", f"v_lshl_add_u32 v{VXO}, v{VOO+2}, 4, v{VXO}",
                    f"v_lshlrev_b32 v{VOO}, 4, v{VOO}", f"v_lshl_add_u32 v{VOO}, v{VOO+1}, 10, v{VOO}", f"v_lshl_add_u32 v{VOO}, v{VOO+2}, 8, v{VOO}"]
    bv[NB0 + 9] += [f"v_mov_b32 v{VWO[k]}, v{VW2+k}" for k in range(4)]
    bv[44] += [f"v_add_u32 v{VO4[0]}, s{KH10}, v{VL16}", f"v_xor_b32 v{VO4[1]}, 0x400, v{VO4[0]}", f"v_add_u32 v{VO4[2]}, 0x1000, v{VO4[0]}", f"v_add_u32 v{VO4[3]}, 0x1000, v{VO4[1]}",
               f"v_add_u32 v{VXW}, s{W4K}, v{VL16}", f"v_xor_b32 v{VXW+1}, 0x4000, v{VXW}"]
    ntr = [0]
    def bar(wait=None, pre=None, post=None):
        if pre:
            A.e(f"s_cmp_eq_u32 s3, 4\ns_cbranch_scc1 {P}{pre}")
            A.lab(f"{P}{pre}_r")
        if wait is not None: A.e(f"s_waitcnt vmcnt({wait})")
        A.e("s_barrier")
        if post:
            A.e(f"s_cmp_eq_u32 s3, 4\ns_cbranch_scc1 {P}{post}")
            A.lab(f"{P}{post}_r")
        trace(A, 34 + ntr[0]); ntr[0] += 1
    tops = {
        E1N: lambda: bar(0, post="sig1"),
        N2: lambda: bar(vm.after("C3"), pre="poll1"),
        26: lambda: bar(vm.after("W")),
        39: lambda: bar(vm.after("C4")),
        N5: lambda: bar(0, post="sig2"),
        N6: lambda: bar(None, pre="poll2"),
        65: lambda: bar(vm.after("U8")),
    }
    bnd = [0] + sorted(tops) + [73]
    lvl = {}
    for a_, b_ in zip(bnd, bnd[1:]):
        for n in range(a_, b_): lvl[n] = 3 - (PRL * (n - a_)) // (b_ - a_)
    pw = {}
    def step(n):
        par = n & 1
        S, Sn, Pc, Pp = SB[par], SB[1-par], PB[par], PB[1-par]
        q = []
        for tag, lines in bg[n]:
            if tag[0] in os.environ.get("DROP", "") or XP & 1: continue
            q += [(tag if x.startswith("buffer") else None, x) for x in lines]
        nfront = max(0, min(4, len(q) - 1))
        def B(slot):
            k = (1 if slot >= 4 - nfront else 0) if slot < 4 else len(q)
            for _ in range(k):
                tag, x = q.pop(0)
                if " lds" in x and A.l[-1].strip().startswith("s_add_u32 m0"): A.e("s_nop 0")
                A.e(x)
                if tag: vm.add(tag)
        oprev, lprev = to(max(n - 1, 0))
        for k_, n_ in ((1, N2), (2, N6)):
            if n == n_ - PRE:
                A.e(f"s_cmp_eq_u32 s3, 4\ns_cbranch_scc1 {P}pre{k_}")
                A.lab(f"{P}pre{k_}_r")
                pw[k_] = len(vm.q)
            if n == n_: pw[k_] = len(vm.q) - pw[k_]
        if n in tops and not (XP & 4): tops[n]()
        if PRL and (n == 0 or lvl[n] != lvl[n - 1]): A.e(f"s_setprio {lvl[n]}")
        k, j = seq[n + 1]
        if k == "B" and 2 <= j <= 7:
            A.e(f"s_cmp_eq_u32 s{I0}, {j}\ns_cbranch_scc1 {P}cm{j}")
            A.lab(f"{P}cm{j}_r")
        A.e(mfma32(Sn, KF, tq(n + 1), tc(n + 1)))
        A.e(rdK(*taddr(n + 2))[0]); B(0)
        for j in (0, 1, 2, 3): A.e(ex(S, j))
        if n > 0: A.e(mfma32(oprev, VF, Pp, "0" if n - 1 in (0, NB0) else oprev))
        A.e(rdV(*taddr(n))[0]); B(1)
        A.e(cv(Pc, S, 0)); A.e(cv(Pc, S, 1))
        for j in (4, 5, 6): A.e(ex(S, j))
        A.e(mfma32(Sn, KF + 4, tq(n + 1) + 4, Sn))
        A.e(rdK(*taddr(n + 2))[1]); B(2)
        A.e(ex(S, 7)); A.e(cv(Pc, S, 2)); A.e(ex(S, 8)); A.e(cv(Pc, S, 3))
        if n > 0: A.e(mfma32(oprev, VF + 4, Pp + 4, oprev))
        A.e(rdV(*taddr(n))[1]); B(3)
        A.e(ex(S, 9)); A.e(ex(S, 10)); A.e(cv(Pc, S, 4))
        if not XP & 2:
            for x in bv[n]: A.e(x)
        A.e(ex(S, 11)); A.e(ex(S, 12)); A.e(cv(Pc, S, 5)); A.e(ex(S, 13)); A.e(ex(S, 14)); A.e(ex(S, 15))
        if n > 0: A.e(smf(lprev, Pp))
        B(4)
        A.e("s_waitcnt lgkmcnt(0)")
        A.e(cv(Pc, S, 6)); A.e(cv(Pc, S, 7))
    def finalize(tag, which, o, l, tmp):
        A.e(f"s_mov_b32 s63, 0")
        A.lab(f"{P}norm{tag}")
        A.e(f"""v_add_f32 v{T0}, v{l}, v{l+1}
            v_rcp_f32 v{tmp}, v{T0}""")
        if which == 0:
            A.e(f"""s_waitcnt vmcnt({vm.after('G')})
                v_sub_f32 v{tmp+1}, 1.0, v{VG}
                v_mul_f32 v{tmp}, v{tmp}, v{tmp+1}""")
        else:
            A.e(f"s_nop 0\nv_mul_f32 v{tmp}, v{tmp}, v{VG}")
        for i in range(8): A.e(f"v_pk_mul_f32 {v(o+2*i,2)}, {v(o+2*i,2)}, {v(tmp,2)} op_sel_hi:[1,0]")
        A.e(f"v_pk_add_f32 {v(tmp+2,2)}, {v(o,2)}, {v(o+2,2)}")
        for i in range(2, 8): A.e(f"v_pk_add_f32 {v(tmp+2,2)}, {v(tmp+2,2)}, {v(o+2*i,2)}")
        A.e(f"""v_sub_f32 v{tmp+2}, v{tmp+2}, v{tmp+2}
            v_fma_f32 v{tmp+2}, v{tmp+3}, v{tmp+2}, v{T0}
            v_cmp_le_f32 vcc, {f2u(2.0**-64)}, v{tmp+2}
            s_mov_b64 s[56:57], vcc
            v_cmp_ge_f32 vcc, {f2u(2.0**64)}, v{tmp+2}""")
        for i in range(8): A.e(f"v_cvt_pk_bf16_f32 v{tmp+i}, v{o+2*i}, v{o+2*i+1}")
        A.e(f"""s_and_b64 vcc, vcc, s[56:57]
            s_cmp_eq_u64 vcc, -1
            s_cselect_b32 s62, 1, s63
            s_cmp_eq_u32 s62, 0
            {"s_nop 0" if XP else f"s_cbranch_scc1 {P}slow{tag}"}
            buffer_store_dwordx4 {v(tmp,4)}, v{VOO}, {sr(WS)}, s{OSTB if which == 0 else OSTA} offen sc1
            buffer_store_dwordx4 {v(tmp+4,4)}, v{VOO}, {sr(WS)}, s{OSTB if which == 0 else OSTA} offen offset:512 sc1""")
        vm.add("S" + tag, 2)
    for n in range(73):
        step(n)
        if n == NB0 + 10 and not (XP & 8): finalize("B", 0, O2, L2, TB)
    A.e(mfma32(O, VF, PB[0], O))
    A.e("s_nop 0")
    A.e(mfma32(O, VF + 4, PB[0] + 4, O))
    A.e(smf(L, PB[0]))
    for h in range(8): A.e(f"s_sub_u32 s{OQ+h}, s{OQ+h}, 0x10000")
    A.e("s_setprio 0")
    st(A, "aend")
    if XP & 31: A.e(f"s_branch {P}end")
    AWO, OAC = 16, 64
    WFO = [32, 48]
    TA = SB[0]
    A.e(f"""v_lshrrev_b32 v20, 4, v0
        v_bfe_u32 v21, v0, 2, 2
        v_and_b32 v22, 1, v20
        v_lshl_add_u32 v22, v22, 2, v21
        v_lshrrev_b32 v23, 1, v20
        v_lshl_add_u32 v23, v23, 4, v22
        v_lshlrev_b32 v23, 7, v23
        v_and_b32 v20, 3, v0
        v_lshl_add_u32 v23, v20, 3, v23
        s_lshr_b32 s56, s3, 2
        s_lshl_b32 s56, s56, 12
        s_add_u32 s56, s56, {3*32768}
        v_add_u32 v23, s56, v23
        v_lshrrev_b32 v22, 1, v22""")
    for nb in range(4):
        A.e(f"v_xor_b32 v20, {nb}, v22\nv_lshl_add_u32 v{AWO+nb}, v20, 5, v23")
    finalize("A", 1, O, L, TA)
    st(A, "afin")

    def oreads(buf, i):
        return [f"ds_read_b64_tr_b16 {v(WFO[buf]+4*nb+2*jh,2)}, v{AWO+nb} offset:{i*8192+jh*1024}" for nb in range(4) for jh in range(2)]
    for r in oreads(0, 0): A.e(r)
    oidx = [i for i, t in enumerate(vm.q) if t == "O"] or [0] * 32
    def emit(x):
        for l_ in x[1]:
            if " lds" in l_ and A.l[-1].strip().startswith("s_add_u32 m0"): A.e("s_nop 0")
            A.e(l_)
        vm.add(x[0])
    def y1():
        st(A, "y1a")
        A.e("s_waitcnt vmcnt(0)\ns_barrier")
        st(A, "y1")
        A.e(f"""s_cmp_lg_u32 s3, 4
            s_cbranch_scc1 {P}y1""")
        signal(4, AN)
        A.lab(f"{P}y1")
    def ypre():
        A.e(f"""s_cmp_lg_u32 s3, 4
            s_cbranch_scc1 {P}yp
            v_and_b32 v20, 15, v0
            v_lshlrev_b32 v20, {FS}, v20
            s_lshl_b32 s56, s{RB2}, {FS+4}
            v_add_u32 v20, s56, v20""")
        poll_issue(20, 4)
        A.lab(f"{P}yp")
        pw[3] = len(vm.q)
    def ypoll():
        st(A, "y3a")
        A.e(f"""s_cmp_lg_u32 s3, 4
            s_cbranch_scc1 {P}pd3
            s_waitcnt vmcnt({len(vm.q) - pw[3]})""")
        poll("3", 20, 4, True, slp=SLP3)
    def ybar(*tags):
        if tags: A.e(f"s_waitcnt vmcnt({vm.after(*tags)})")
        A.e("s_barrier")
    pre = {j: [] for j in range(32)}
    obg = {j: [] for j in range(32)}
    pre[3].append(y1)
    pre[JP].append(ypoll)
    for j in sorted({7, 11, JP}):
        pre[j].append((lambda: ybar("U12", "U13")) if j == 11 else ybar)
    if DIAG: pre[JP].append(lambda: st(A, "y3"))
    pre[JV].append(lambda: ybar("U14", "U15"))
    if os.environ.get("DIAG") == "1": pre[16].append(lambda: st(A, "y4"))
    for k in range(8): obg[3 + k // 2].append(upiece(12 + k // 4, k & 3))
    nl = 0
    for j in range(JP, 32):
        c = 0
        while not (XP & 128) and nl < 32 and c < (LPS if j < 16 else 2) and nl // 2 < j:
            obg[j].append((f"OA{nl}", oload(nl, 0)[1])); nl += 1; c += 1
    for k in range(4): obg[7 + k].append(upiece(14, k))
    for k in range(4): obg[JU + k].append(upiece(15, k))
    for j in range(32):
        u, i = 8 + j // 4, j & 3
        q, buf = u & 3, i & 1
        order = [(nb, f if nb % 2 == 0 else 1 - f) for nb in range(4) for f in range(2)]
        if j == 31: order = [(nb, 1) for nb in range(4)] + [(3 - nb, 0) for nb in range(4)]
        ms = [mfma16(OAC + 4*(f*4+nb), WFO[buf]+4*nb, OFR+32*q+8*i+4*f, "0" if j == 0 else OAC + 4*(f*4+nb)) for nb, f in order]
        w = min(60, len(vm.q) - 1 - oidx[7]) if j == 0 else vm.after(f"OA{2*(j-16)+1}") if j >= 16 else None
        lg = 0 if (pre[j] or j == 31) else 4
        A.e(f"s_waitcnt lgkmcnt({lg})" if w is None else f"s_waitcnt lgkmcnt({lg}) vmcnt({w})")
        if i == 3 and u < 15:
            dl = ((u+1) % 5 - u % 5) * 32768
            for nb in range(4): A.e(f"v_add_u32 v{AWO+nb}, {dl & 0xffffffff}, v{AWO+nb}")
        if j == JP - PRE: ypre()
        for f in pre[j]: f()
        rd = oreads(1 - buf, (i + 1) & 3) if j < 31 else []
        b = list(obg[j])
        for k in range(8):
            if k == 4 and lg: A.e("s_waitcnt lgkmcnt(4)")
            A.e(ms[k])
            if rd: A.e(rd[k])
            if k % 2 == 1 and b: emit(b.pop(0))
        while b: emit(b.pop(0))
    st(A, "oend")
    if XP & 256: A.e(f"s_branch {P}end")
    srd(A, SX_, "s22", "s23", 4 * MB)
    for nb in range(4): A.e(f"ds_write_b128 v{VXW}, {v(OAC+16+4*nb,4)} offset:{32768+1024*nb}")
    A.e("s_waitcnt lgkmcnt(0)\ns_barrier")
    for nb in range(4): A.e(f"ds_read_b128 {v(32+4*nb,4)}, v{VXW+1} offset:{32768+1024*nb}")
    for a in range(2):
        A.e(f"s_waitcnt lgkmcnt({2 - 2*a})")
        for i in range(4): A.e(f"v_pk_add_f32 {v(OAC+8*a+2*i,2)}, {v(OAC+8*a+2*i,2)}, {v(32+8*a+2*i,2)}")
        for i in range(4): A.e(f"v_cvt_pk_bf16_f32 v{48+4*a+i}, v{OAC+8*a+2*i}, v{OAC+8*a+2*i+1}")
        A.e(f"""s_nop 0
            v_permlane16_swap_b32 v{48+4*a}, v{48+4*a+2}
            v_permlane16_swap_b32 v{48+4*a+1}, v{48+4*a+3}
            buffer_store_dwordx4 {v(48+4*a,4)}, v{VXO}, {sr(SX_)}, s{OUTS} offen offset:{64*a} {OFL}""")
    A.lab(f"{P}end")
    if E('HT', 0):
        A.e(f"""s_waitcnt vmcnt(0)
            s_memrealtime s[72:73]
            s_memtime s[76:77]
            s_waitcnt lgkmcnt(0)
            s_cmp_lg_u32 s3, 4
            s_cbranch_scc1 {P}end2
            s_mov_b64 exec, 1
            v_mov_b32 v0, 0
            s_not_b32 s56, s70
            v_mov_b32 v1, s56
            v_mov_b32 v2, s70
            v_mov_b32 v3, s72
            s_sub_u32 s76, s76, s74
            v_mov_b32 v4, s76
            buffer_atomic_umax v1, v0, {sr(DBG)}, 0 offen offset:8 sc1
            buffer_atomic_umax v2, v0, {sr(DBG)}, 0 offen offset:12 sc1
            buffer_atomic_umax v3, v0, {sr(DBG)}, 0 offen offset:16 sc1
            buffer_atomic_umax v4, v0, {sr(DBG)}, 0 offen offset:20 sc1""")
    stamp_flush(A, 0)
    trace_flush(A)
    A.lab(f"{P}end2")
    A.e("s_endpgm")

    AX, AW, VKO = 16, 18, 20
    XF, WF = [32, 48], 64
    ACC = 128
    A.lab(f"{P}compute")
    A.e(f"""v_and_b32 v8, 15, v0
        v_lshrrev_b32 v9, 4, v0
        v_bfe_u32 v10, v0, 1, 3
        s_and_b32 s56, s3, 1
        s_lshl_b32 s56, s56, 13
        v_xor_b32 v11, v9, v10
        v_lshlrev_b32 v11, 4, v11
        v_lshl_add_u32 v11, v8, 7, v11
        v_add_u32 v{AX}, s56, v11
        v_xor_b32 v{AX+1}, 64, v{AX}
        v_bfe_u32 v12, v0, 2, 2
        v_and_b32 v13, 3, v0
        v_lshl_add_u32 v14, v9, 3, v12
        v_lshlrev_b32 v14, 7, v14
        v_lshl_add_u32 v14, v13, 3, v14
        v_bfe_u32 v15, v0, 3, 2
        s_and_b32 s56, s3, 2
        v_xor_b32 v15, s56, v15
        v_lshl_add_u32 v14, v15, 5, v14
        v_add_u32 v{AW}, {XSZ}, v14
        v_xor_b32 v{AW+1}, 32, v{AW}
        v_and_b32 v8, 0x33, v0
        v_bfe_u32 v9, v0, 2, 1
        v_bfe_u32 v10, v0, 3, 1
        v_lshl_or_b32 v8, v9, 3, v8
        v_lshl_or_b32 v8, v10, 2, v8
        v_lshlrev_b32 v{VKO}, 4, v8
        s_waitcnt lgkmcnt(0)""")
    srds()
    A.e(f"""v_mov_b32 v21, 0
        s_or_b32 s56, s2, s3
        s_cmp_lg_u32 s56, 0
        s_cbranch_scc1 {P}ntag
        s_memrealtime s[56:57]
        s_waitcnt lgkmcnt(0)
        s_mul_i32 s57, s57, 0x9e3779b1
        s_xor_b32 s56, s56, s57
        s_or_b32 s56, s56, 1
        v_mov_b32 v22, s56
        buffer_store_dword v22, v21, {sr(DBG)}, 0 offen sc1""")
    A.lab(f"{P}ntag")
    zero(24, 4)
    for nm, fn in (("s", setup_s), ("v", setup_v)):
        A.lab(f"{P}set{nm}")
        fn()
        A.e(f"""s_cmp_ge_u32 s3, 4
            s_cbranch_scc1 {P}set{nm}_r""")
        if nm == "s":
            for i in range(8): A.e(mfma32(ACC + 16*i, 24, 24, "0"))
    A.e(f"""s_mov_b32 s58, 0
        s_mov_b32 s59, 0
        s_mov_b32 s60, {(-ST) & 0xffffffff}
        s_mov_b32 s61, {2*ST}
        s_mov_b32 s63, {f2u(CSCALE)}
        s_and_b32 s57, s{HEAD}, 24
        s_add_u32 s92, s{HEAD}, {4*GROT}
        s_and_b32 s92, s92, 7
        s_or_b32 s92, s92, s57
        s_lshl_b32 s92, s92, 6
        s_add_u32 s92, s92, s{RT}
        s_lshl_b32 s92, s92, 12
        s_add_u32 s92, s92, {KVB_OFF}
        s_add_u32 s93, s92, 4096
        s_add_u32 s96, s{HEAD}, {6*GROT}
        s_and_b32 s96, s96, 7
        s_or_b32 s96, s96, s57
        s_lshl_b32 s96, s96, 6
        s_add_u32 s96, s96, s{RT}
        s_lshl_b32 s96, s96, 12
        s_add_u32 s96, s96, {KVB_OFF}
        s_add_u32 s97, s96, 4096
        s_nop 0""")
    def rx(buf, ks, mb): return f"ds_read_b128 {v(XF[buf]+4*mb,4)}, v{AX+ks} offset:{mb*2048}"
    def rw(nb, ks, jh): return f"ds_read_b64_tr_b16 {v(WF+4*nb+2*jh,2)}, v{AW+(nb&1)} offset:{(nb>>1)*8192+ks*4096+jh*512}"
    st(A, "setup")
    A.e("s_barrier")
    st(A, "g0")
    for mb in range(4): A.e(rx(0, 0, mb))
    for nb in range(8):
        for jh in range(2): A.e(rw(nb, 0, jh))
        if nb == 4: A.e("s_waitcnt lgkmcnt(4)")
    A.e(f"s_branch {P}g1m")
    A.raw(".p2align 6")
    A.lab(f"{P}g1")
    acc = lambda mb, nb: ACC + 4 * (nb * 4 + mb)
    for ks in (1, 0):
        if ks == 0: A.lab(f"{P}g1m")
        for nb in range(8):
            if nb == 0: A.e("s_waitcnt lgkmcnt(4)")
            elif nb == 4 and ks == 0: A.e("s_waitcnt lgkmcnt(8)")
            for mb in range(4):
                m2 = mb if nb % 2 == 0 else 3 - mb
                d = acc(m2, nb)
                x, w = XF[ks] + 4 * m2, WF + 4 * nb
                A.e(mfma16(d, x, w, d) if nb >= 6 else mfma16(d, w, x, d))
                if ks == 1 and nb == 0:
                    if mb == 0:
                        A.e(f"""s_cmp_eq_u32 s58, 0
                            s_cselect_b32 s62, s61, s60
                            s_add_u32 s58, s58, s62""")
                    if mb == 1:
                        A.e(f"v_add_u32 v{AX}, s62, v{AX}\nv_add_u32 v{AX+1}, s62, v{AX+1}")
                    if mb == 2:
                        A.e(f"v_add_u32 v{AW}, s62, v{AW}\nv_add_u32 v{AW+1}, s62, v{AW+1}\ns_add_u32 s59, s59, 1")
                    if mb == 3:
                        A.e("s_waitcnt lgkmcnt(0)\ns_barrier")
                if nb >= 1 and mb < 2: A.e(rw(nb - 1, 1 - ks, mb))
                if 1 <= nb <= 4 and mb == 2: A.e(rx(1 - ks, 1 - ks, nb - 1))
                if ks == 0 and nb == 7 and mb == 2: A.e("s_cmp_lg_u32 s59, 15")
        A.e(rw(7, 1 - ks, 0)); A.e(rw(7, 1 - ks, 1))
    A.e(f"s_cbranch_scc1 {P}g1")
    A.lab(f"{P}glast")
    T = 21
    order = [(m, n) for g in ((2, 0), (2, 2), (0, 0), (0, 2)) for (m, n) in ((g[0], g[1]), (g[0]+1, g[1]), (g[0]+1, g[1]+1), (g[0], g[1]+1))]
    order += [(mb if nb % 2 == 0 else 3 - mb, nb) for nb in range(4, 8) for mb in range(4)]
    fill = pack_list(32, [[acc(2+rbk, db) for rbk in range(2)] for db in range(2)], False)
    fill += [f"ds_write_b128 v{AX}, {v(32,4)}", f"ds_write_b128 v{AX}, {v(36,4)} offset:1024"]
    fill += pack_list(40, [[acc(2+rbk, 2+db) for rbk in range(2)] for db in range(2)], False)
    fill += [f"ds_write_b128 v{AX}, {v(40,4)} offset:2048", f"ds_write_b128 v{AX}, {v(44,4)} offset:3072"]
    qa0 = pack_list(QA, [[acc(rbk, db) for rbk in range(2)] for db in range(2)], False)
    fill += qa0[:6] + ["s_waitcnt lgkmcnt(0)\ns_barrier"] + qa0[6:]
    A.e("s_waitcnt lgkmcnt(4)")
    for k, (mb, nb) in enumerate(order):
        d = acc(mb, nb)
        x, w = XF[1] + 4 * mb, WF + 4 * nb
        A.e(mfma16(d, x, w, d) if nb >= 6 else mfma16(d, w, x, d))
        if k == 0: A.e(f"s_add_u32 s56, s{W4K}, {MISC}\ns_mov_b32 s62, s63")
        if k == 1: A.e(f"v_add_u32 v{AX}, s56, v{VL16}")
        if k == 8: A.e("s_waitcnt lgkmcnt(0)")
        if k >= 10:
            for _ in range(2):
                if fill: A.e(fill.pop(0))
    st(A, "gend")
    while fill: A.e(fill.pop(0))
    for rtl in range(2):
        tk, tv = 80 + 8 * rtl, ACC + 8 * rtl
        so = "s92" if rtl == 0 else "s93"
        pack(tk, [[acc(2*rtl+rbk, 4+db) for rbk in range(2)] for db in range(2)], True)
        A.e(f"""buffer_store_dwordx4 {v(tk,4)}, v{VKO}, {sr(WS)}, {so} offen sc1
            buffer_store_dwordx4 {v(tk+4,4)}, v{VKO}, {sr(WS)}, {so} offen offset:1024 sc1""")
        pack(tv, [[acc(2*rtl+kb, 6+db) for db in range(2)] for kb in range(2)], False)
        so = "s96" if rtl == 0 else "s97"
        A.e(f"""buffer_store_dwordx4 {v(tv,4)}, v{VL16}, {sr(WS)}, {so} offen offset:2048 sc1
            buffer_store_dwordx4 {v(tv+4,4)}, v{VL16}, {sr(WS)}, {so} offen offset:3072 sc1""")
    pack(QB, [[acc(rbk, 2+db) for rbk in range(2)] for db in range(2)], False)
    A.e(f"s_branch {P}attn")

    if XP & 4:
        for l in ("sig1", "sig2", "poll1", "poll2"): A.lab(f"{P}{l}_r")
    if XP & 8: A.lab(f"{P}normB")
    for ph in (1, 2):
        A.lab(f"{P}sig{ph}")
        signal(ph + 1, TZ + 1)
        A.e(f"s_branch {P}sig{ph}_r")
    A.lab(f"{P}pre1")
    A.e(f"""v_lshrrev_b32 v{TZ+1}, 4, v0
        v_min_u32 v{TZ+1}, 2, v{TZ+1}
        v_sub_u32 v{TZ+1}, s{RB}, v{TZ+1}
        v_max_i32 v{TZ+1}, 0, v{TZ+1}
        v_lshlrev_b32 v{TZ+1}, 4, v{TZ+1}
        v_and_or_b32 v{TZ+1}, v0, 15, v{TZ+1}
        v_lshlrev_b32 v{TZ+1}, {FS}, v{TZ+1}""")
    poll_issue(TZ + 1, 2)
    A.e(f"s_branch {P}pre1_r")
    A.lab(f"{P}poll1")
    A.e(f"s_waitcnt vmcnt({pw[1]})")
    poll("1", TZ + 1, 2, True)
    A.e(f"s_branch {P}poll1_r")
    A.lab(f"{P}pre2")
    A.e(f"""v_and_b32 v{TZ+1}, 15, v0
        v_lshlrev_b32 v{TZ+1}, {FS}, v{TZ+1}
        s_lshl_b32 s56, s{RB2}, {FS+4}
        v_add_u32 v{TZ+1}, s56, v{TZ+1}""")
    poll_issue(TZ + 1, 3)
    A.e(f"s_branch {P}pre2_r")
    A.lab(f"{P}poll2")
    A.e(f"s_waitcnt vmcnt({pw[2]})")
    poll("2", TZ + 1, 3, True)
    A.e(f"s_branch {P}poll2_r")
    for j in range(2, 8):
        A.lab(f"{P}cm{j}")
        zero(CM, 16)
        A.e(f"s_nop 0\ns_branch {P}cm{j}_r")

    def slow(tag, q, o, l, kf, vf, S, C, Pp, M, setup):
        A.lab(f"{P}slow{tag}")
        A.e("s_waitcnt vmcnt(0)")
        A.e(setup)
        zero(o, 16); zero(l, 4)
        A.e(f"""v_mov_b32 v{M}, {NEG}
            s_mov_b32 s99, 0""")
        A.lab(f"{P}spass{tag}")
        A.e("s_mov_b32 s100, s98")
        A.lab(f"{P}stile{tag}")
        A.e(f"""s_lshl_b32 s56, s100, 12
            s_add_u32 s56, s56, s101
            buffer_load_dwordx4 {v(kf,4)}, v{VL16}, {sr(WS)}, s56 offen sc1
            buffer_load_dwordx4 {v(kf+4,4)}, v{VL16}, {sr(WS)}, s56 offen offset:1024 sc1
            buffer_load_dwordx4 {v(vf,4)}, v{VL16}, {sr(WS)}, s56 offen offset:2048 sc1
            buffer_load_dwordx4 {v(vf+4,4)}, v{VL16}, {sr(WS)}, s56 offen offset:3072 sc1
            s_cmp_eq_u32 s100, s96
            s_cselect_b32 s56, {NEG}, 0
            s_cmp_eq_u32 s100, s97
            s_cselect_b32 s57, {NEG}, 0
            v_mov_b32 v{M+2}, s56
            v_mov_b32 v{M+3}, s57""")
        for r in range(16):
            A.e(f"""v_cmp_le_i32 vcc, {keyl(r)}, v{VD}
                s_nop 1
                v_cndmask_b32 v{C+r}, v{M+2}, v{M+3}, vcc""")
        A.e("s_waitcnt vmcnt(0)\ns_nop 0")
        A.e(mfma32(S, kf, q, C))
        A.e(mfma32(S, kf + 4, q + 4, S))
        A.e(f"""s_nop 7
            s_nop 7
            s_cmp_eq_u32 s99, 0
            s_cbranch_scc0 {P}sp2{tag}""")
        for r in range(16): A.e(f"v_max_f32 v{M}, v{M}, v{S+r}")
        A.e(f"s_branch {P}snext{tag}")
        A.lab(f"{P}sp2{tag}")
        for r in range(16): A.e(f"v_sub_f32 v{S+r}, v{S+r}, v{M}")
        for r in range(16): A.e(ex(S, r))
        A.e("s_nop 0")
        for i in range(8): A.e(cv(Pp, S, i))
        A.e("s_nop 1")
        A.e(mfma32(o, vf, Pp, o))
        A.e(mfma32(o, vf + 4, Pp + 4, o))
        A.e(smf(l, Pp))
        A.e("s_nop 7\ns_nop 7")
        A.lab(f"{P}snext{tag}")
        A.e(f"""s_add_u32 s100, s100, 1
            s_cmp_le_u32 s100, s95
            s_cbranch_scc1 {P}stile{tag}
            s_cmp_eq_u32 s99, 0
            s_cbranch_scc0 {P}sdone{tag}
            v_mov_b32 v{M+1}, v{M}
            s_nop 1
            v_permlane32_swap_b32 v{M}, v{M+1}
            s_nop 1
            v_max_f32 v{M}, v{M}, v{M+1}
            s_mov_b32 s99, 1
            s_branch {P}spass{tag}""")
        A.lab(f"{P}sdone{tag}")
        A.e(f"""s_mov_b32 s63, 1
            s_branch {P}norm{tag}""")
    slow("B", QB, O2, L2, 196, 204, 212, 228, 244, 148,
         f"""s_lshl_b32 s101, s{HEADB}, 18
            s_add_u32 s101, s101, {KVB_OFF}
            s_sub_i32 s97, s{RT}, 8
            s_max_i32 s98, s97, 0
            s_mov_b32 s95, s{RT}
            s_mov_b32 s96, s{RT}""")
    slow("A", QA, O, L, KF, VF, SB[0], SB[1], PB[0], ML + 8,
         f"""s_mov_b32 s101, {KVA_OFF}
            s_mov_b32 s98, 0
            s_mov_b32 s95, 63
            s_mov_b32 s96, -1
            s_mov_b32 s97, -1""")
    A.raw(".p2align 4")
    A.lab(f"{P}last")
    A.e("s_endpgm")
    return kernel_desc(name, 256, 102)

if __name__ == "__main__":
    ref = open(f"cdna_kernels/{NAME}.s.ref").read().split("\n")
    hdr = [l for l in ref if l.startswith(";") and "@launch" not in l]
    A = Asm()
    d = gen(A, NAME + "_kernel")
    out = "\n".join(hdr) + "\n" + f"; @launch grid=(256,1,1) block=(512,1,1) lds={LDS}\n"
    out += '.amdgcn_target "amdgcn-amd-amdhsa--gfx950"\n.text\n' + A.text() + '.section .rodata,"a"\n' + d
    path = sys.argv[1] if len(sys.argv) > 1 else f"cdna_kernels/{NAME}.s"
    open(path, "w").write(out)
    print("wrote", path, len(out))
```

```python
from common import *
import sys
E = lambda k, d: int(os.environ.get(k, d))
STAG = 4
PART_OFF = 0
TPA = E('TPA', 4)
WARM = E('WARM', 1)
E1N = E('E1N', 12)
TPOLL = E('TPOLL', 14)
LPRIO = E('LPRIO', 3)
LPS = E('LPS', 2)
ROT = E('ROT', 0)
SLP = E('SLP', 12)
PFC = E('PFC', 0)
TOUCH = E('TOUCH', 0)
ZIG = E('ZIG', 3)
SFIRST = E('SFIRST', 0)
OFL = os.environ.get('OFL', '')
XP = E('XP', 0)
JP = E('JP', 11)
JU = E('JU', 13)
JV = E('JV', 21)
SLP3 = E('SLP3', 4)
PRL = E('PRL', 2)
ORD = E('ORD', 3)
SPRO = E('SPRO', 1)
TRED = E('TRED', 6)
TTAG = E('TTAG', 2)
RAFT = E('RAFT', 1)
TST = E('TST', 1)
TSA = E('TSA', TST + 2)
PRE = E('PRE', 2)
FS = E('FS', 4)
SPLIT = E('SPLIT', 1)
TS = E('TS', 14)
TV = E('TV', 15)
DEFD = ''
NS_ = E('NS', 0)
SUBR = E('SUBR', 1)
N5 = E('N5', 47)
N6 = E('N6', 53)
N2 = E('N2', 18)
CPS = E('CPS', 3)
PBF = E('PBF', 1)
GB = E('GB', 8)
NB0 = 28

XSZ = 16384
ST = 49152
MISC = 3 * ST
LDS = 163840
NEG = f2u(-1e30)
SPIN = 50000

VL16, AC, AN, VG, IDX, VD, T0 = 1, 2, 3, 4, 5, 6, 7
ONES, L = 8, 12
QB, QA = 16, 24
KF, VF = 32, 40
PB = [48, 56]
SB = [64, 80]
O = 96
ML = 112
OFR = 128
O2, L2, MU, CM, TB, AB, TZ = 128, 144, 148, 164, 180, 188, 189
WS, DBG, SX_, SW_, SS_ = 28, 32, 36, 40, 44
RB, HP, XCD, IDXS, RT, HEAD, RB2, CBK = 48, 49, 50, 51, 52, 53, 54, 55
HEADB = 65
W4K, W1K, I0, WOS, GSRC, ABS = 74, 75, 76, 77, 78, 79
WS6 = 80
MUS, CMS, OUTS, OSTA = 16, 17, 20, 21
OSTB, KH10, CSRC = 24, 25, 26
UO, OQ = 44, 4
NON = 64
FL_OFF = 4 * MB
GP_OFF = 5 * MB
GROT = E('GROT', 1)

def sr(b): return f"s[{b}:{b+3}]"
def mfma16(d, a, b, c):
    cs = c if isinstance(c, str) else v(c, 4)
    return f"v_mfma_f32_16x16x32_bf16 {v(d,4)}, {v(a,4)}, {v(b,4)}, {cs}"
def smf(l, p): return f"v_smfmac_f32_16x16x64_bf16 {v(l,4)}, {v(ONES,4)}, {v(p,8)}, v{IDX}"
def ex(S, i): return f"v_exp_f32 v{S+i}, v{S+i}"
def cv(Pp, S, i): return f"v_cvt_pk_bf16_f32 v{Pp+i}, v{S+2*i}, v{S+2*i+1}"
def keyl(r): return 16 * (r >> 3) + 4 * ((r >> 2) & 1) + (r & 3)

TRN = "setup,g0,pla,pl0,gend,attn,aend,afin,y1a,y1,y3a,y3,y4,oend".split(",")
TRL = {n: 44 + i for i, n in enumerate(TRN)}
def st(A, nm):
    if DIAG: trace(A, TRL[nm])

class VM:
    def __init__(self): self.q = []
    def add(self, tag, n=1): self.q += [tag] * n
    def after(self, *tags):
        if not any(t in tags for t in self.q): return 0
        last = max(i for i, t in enumerate(self.q) if t in tags)
        return len(self.q) - 1 - last

def pack_list(dst, blk, scale):
    o = []
    for a in range(2):
        for b in range(2):
            d = blk[a][b]
            if scale:
                for i in range(2): o.append(f"v_pk_mul_f32 {v(d+2*i,2)}, {v(d+2*i,2)}, s[62:63]")
            for i in range(2): o.append(f"v_cvt_pk_bf16_f32 v{dst+a*4+b*2+i}, v{d+2*i}, v{d+2*i+1}")
    for a in range(2):
        for i in range(2): o.append(f"v_permlane16_swap_b32 v{dst+a*4+i}, v{dst+a*4+2+i}")
    return o

def gen(A, name):
    P = "f_"
    kernel_head(A, name)
    A.e(f"""s_cmp_ge_u32 s2, 256
        s_cbranch_scc1 {P}end2""")
    stamp_init(A)
    if E('HT', 0): A.e("s_memrealtime s[70:71]\ns_memtime s[74:75]")
    if E('SCR', 0):
        A.e("""s_lshr_b32 s56, s2, 3
            s_lshr_b32 s57, s2, 5
            s_xor_b32 s56, s56, s57
            s_and_b32 s56, s56, 7
            s_xor_b32 s2, s2, s56""")
    A.e(f"""s_load_dwordx8 s[4:11], s[0:1], 0
        s_load_dwordx8 s[16:23], s[0:1], 48
        s_load_dwordx4 s[24:27], s[0:1], 80
        s_load_dwordx2 s[12:13], s[0:1], 32
        v_lshrrev_b32 v1, 6, v0
        v_and_b32 v0, 63, v0
        v_readfirstlane_b32 s3, v1
        s_and_b32 s{XCD}, s2, 7
        s_lshr_b32 s{IDXS}, s2, 3
        s_and_b32 s{RB}, s{XCD}, 1
        s_lshl_b32 s{RB}, s{RB}, 3
        s_and_b32 s56, s{IDXS}, 7
        s_add_u32 s{RB}, s{RB}, s56
        s_lshr_b32 s{HP}, s{XCD}, 1
        s_lshl_b32 s{HP}, s{HP}, 2
        s_lshr_b32 s56, s{IDXS}, 3
        s_add_u32 s{HP}, s{HP}, s56
        v_lshlrev_b32 v{VL16}, 4, v0
        s_cmp_lt_u32 s3, 4
        s_cbranch_scc1 {P}compute""")

    def srds():
        srd(A, WS, "s26", "s27", WS_USED)
        srd(A, DBG, "s24", "s25", 256)
        if DIAG: A.e(f"v_mov_b32 v{VD}, 0")
    def setup_v():
        vd = AN if DIAG else VD
        A.e(f"""v_and_b32 v{T0}, 31, v0
            v_lshrrev_b32 v{VG}, 5, v0
            v_lshlrev_b32 v{VG}, 3, v{VG}
            v_sub_u32 v{vd}, v{T0}, v{VG}
            v_mov_b32 v{VG}, {NEG}""")
        for r in range(16): A.e(f"v_subrev_u32 v{ML+r}, {keyl(r)}, v{vd}")
        for r in range(16): A.e(f"v_ashrrev_i32 v{ML+r}, 31, v{ML+r}")
        for r in range(16): A.e(f"v_and_b32 v{ML+r}, v{VG}, v{ML+r}")
        A.e(f"""v_bfe_i32 v{T0}, v0, 2, 1
            v_mov_b32 v{VG}, 0x3f803f80
            v_and_b32 v{ONES+2}, v{VG}, v{T0}
            v_xor_b32 v{ONES}, v{VG}, v{ONES+2}
            v_mov_b32 v{ONES+1}, v{ONES}
            v_mov_b32 v{ONES+3}, v{ONES+2}
            v_bfe_i32 v{T0}, v0, 0, 1
            v_and_b32 v{T0}, 0xaaaa, v{T0}
            v_or_b32 v{IDX}, 0x4444, v{T0}
            v_add_u32 v{AC}, 0x10000, v{VL16}
            v_add_u32 v{AN}, 0x20000, v{VL16}""")
        for i in range(4): A.e(f"v_mov_b32 v{L+i}, 0")
    def setup_s():
        A.e(f"""s_and_b32 s{RB2}, s{XCD}, 3
            s_lshl_b32 s{RB2}, s{RB2}, 2
            s_and_b32 s56, s{IDXS}, 3
            s_add_u32 s{RB2}, s{RB2}, s56
            s_lshl_b32 s{WOS}, s56, 19
            s_lshr_b32 s{CBK}, s{XCD}, 2
            s_lshl_b32 s{CBK}, s{CBK}, 3
            s_lshr_b32 s56, s{IDXS}, 2
            s_add_u32 s{CBK}, s{CBK}, s56
            s_and_b32 s56, s3, 1
            s_lshl_b32 s56, s56, 1
            s_lshr_b32 s{KH10}, s3, 2
            s_add_u32 s56, s56, s{KH10}
            s_lshl_b32 s{ABS}, s56, 12
            s_lshl_b32 s{RT}, s{RB}, 2
            s_add_u32 s{CSRC}, s{RT}, s{KH10}
            s_add_u32 s{RT}, s{RT}, s56
            s_bfe_u32 s56, s3, 0x10001
            s_mul_i32 s57, s56, 49152
            s_add_u32 s{ABS}, s{ABS}, s57
            s_lshl_b32 s{HEAD}, s{HP}, 1
            s_add_u32 s{HEAD}, s{HEAD}, s56
            s_add_u32 s56, s{HEAD}, {2*GROT}
            s_and_b32 s56, s56, 7
            s_and_b32 s57, s{HEAD}, 24
            s_or_b32 s{HEADB}, s56, s57
            s_lshl_b32 s{W4K}, s3, 12
            s_lshl_b32 s{W1K}, s3, 10
            s_sub_i32 s{I0}, 8, s{RT}
            s_cmp_gt_i32 s{I0}, 0
            s_cselect_b32 s{MUS}, 0, 1.0
            s_cmp_gt_i32 s{I0}, 1
            s_cselect_b32 s{CMS}, {NEG}, 0
            s_lshr_b32 s57, s{HEADB}, 1
            s_lshl_b32 s57, s57, 19
            s_and_b32 s27, s3, 3
            s_lshl_b32 s56, s27, 10
            s_add_u32 s57, s57, s56
            s_add_u32 s57, s57, {KVB_OFF}
            s_lshl_b32 s56, s{CSRC}, 12
            s_add_u32 s56, s56, s57
            s_sub_u32 s56, s56, 0x8000""")
        for i in range(6):
            A.e(f"s_max_u32 s{WS6+i}, s56, s57")
            if i < 5: A.e("s_addk_i32 s56, 0x2000")
        A.e(f"""s_lshl_b32 s56, s{RB2}, 2
            s_add_u32 s56, s56, s27
            s_lshl_b32 s{OUTS}, s56, 1
            s_add_u32 s{OUTS}, s{OUTS}, s{KH10}
            s_lshl_b32 s{OUTS}, s{OUTS}, 15
            s_lshl_b32 s57, s{CBK}, 7
            s_add_u32 s{OUTS}, s{OUTS}, s57
            s_lshl_b32 s{UO}, s3, 16
            s_add_u32 s{UO}, s{UO}, s57
            s_add_u32 s{WOS}, s{WOS}, s{UO}
            s_add_u32 s{UO+1}, s{UO}, 0x80000
            s_add_u32 s{UO+2}, s{UO}, 0x100000
            s_add_u32 s{UO+3}, s{UO}, 0x180000
            s_lshl_b32 s56, s56, 17
            s_lshl_b32 s57, s{KH10}, 11
            s_add_u32 s56, s56, s57
            s_add_u32 s{OQ}, s56, {O_OFF + 65536}
            s_movk_i32 s57, 0x2000""")
        if ROT:
            A.e(f"""s_mov_b32 s56, s{OQ}
                s_lshl_b32 s27, s{CBK}, 13""")
            for h in range(8):
                A.e(f"""s_and_b32 s27, s27, 0xffff
                    s_add_u32 s{OQ+h}, s56, s27
                    s_add_u32 s27, s27, s57""")
            A.e(f"s_lshl_b32 s27, s{CBK}, 18")
            for q in range(4):
                A.e(f"""s_add_u32 s{UO+q}, s{UO+q}, s27
                    s_and_b32 s{UO+q}, s{UO+q}, 0x1fffff""")
        else:
            for h in range(1, 8): A.e(f"s_add_u32 s{OQ+h}, s{OQ+h-1}, s57")
        A.e(f"""s_lshl_b32 s{GSRC}, s{RT}, 7
            s_add_u32 s{GSRC}, s{GSRC}, {G_OFF}
            s_lshl_b32 s56, s{RT}, 17
            s_add_u32 s56, s56, {O_OFF}
            s_lshl_b32 s{OSTA}, s{HEAD}, 11
            s_add_u32 s{OSTA}, s{OSTA}, s56
            s_lshl_b32 s{OSTB}, s{HEADB}, 11
            s_add_u32 s{OSTB}, s{OSTB}, s56
            s_add_u32 s{OSTB}, s{OSTB}, 0x10000
            s_lshl_b32 s{KH10}, s{KH10}, 10""")
    def pack(dst, blk, scale):
        for x in pack_list(dst, blk, scale): A.e(x)
    def zero(base, n):
        for i in range(n): A.e(f"v_mov_b32 v{base+i}, 0")
    def signal(phase, t1):
        A.e(f"""s_mov_b64 exec, 1
            v_mov_b32 v{T0}, s{NON}
            v_mov_b32 v{t1}, 0
            s_lshl_b32 s56, s{RB}, 4
            s_add_u32 s56, s56, s{HP}
            s_lshl_b32 s56, s56, {FS}
            s_add_u32 s56, s56, {FL_OFF + (256<<FS)*phase}
            buffer_store_dword v{T0}, v{t1}, {sr(WS)}, s56 offen sc1
            s_mov_b64 exec, -1""")
    def poll_issue(voff, phase, t1=None):
        A.e(f"""s_mov_b32 s62, {FL_OFF + (256<<FS)*phase}
            buffer_load_dword v{T0}, v{voff}, {sr(WS)}, s62 offen sc1""")
        if t1:
            for i in range(3): A.e(f"buffer_load_dword v{t1+i}, v{voff}, {sr(WS)}, s62 offen offset:{(i+1)<<FS} sc1")
    def poll(tag, voff, phase, first_issued, t1=None, slp=SLP):
        A.e(f"s_mov_b32 s57, {1 if ((XP & 32 and tag in '0a') or (XP & 64 and tag in '123')) else SPIN}")
        if first_issued: A.e(f"s_branch {P}pc{tag}")
        A.lab(f"{P}pl{tag}")
        poll_issue(voff, phase, t1)
        A.e("s_waitcnt vmcnt(0)")
        A.lab(f"{P}pc{tag}")
        A.e(f"v_cmp_eq_u32 vcc, s{NON}, v{T0}")
        if t1:
            for i in range(3):
                A.e(f"""s_mov_b64 s[62:63], vcc
                    v_cmp_eq_u32 vcc, s{NON}, v{t1+i}
                    s_and_b64 vcc, vcc, s[62:63]""")
        A.e(f"""s_cmp_eq_u64 vcc, -1
            s_cbranch_scc1 {P}pd{tag}
            s_sleep {slp}
            s_sub_u32 s57, s57, 1
            s_cmp_lg_u32 s57, 0
            s_cbranch_scc1 {P}pl{tag}""")
        A.lab(f"{P}pd{tag}")
    def tag_issue(d, z):
        A.e(f"""v_mov_b32 v{z}, 0
            buffer_load_dword v{d}, v{z}, {sr(DBG)}, 0 offen sc1""")
    def tag_get(lbl, d, z):
        A.e(f"s_mov_b32 s57, {SPIN}")
        A.lab(f"{P}tl{lbl}")
        A.e(f"""v_readfirstlane_b32 s{NON}, v{d}
            s_cmp_lg_u32 s{NON}, 0
            s_cbranch_scc1 {P}td{lbl}
            s_sleep 8
            buffer_load_dword v{d}, v{z}, {sr(DBG)}, 0 offen sc1
            s_waitcnt vmcnt(0)
            s_sub_u32 s57, s57, 1
            s_cmp_lg_u32 s57, 0
            s_cbranch_scc1 {P}tl{lbl}""")
        A.lab(f"{P}td{lbl}")
    gslot = lambda t: ((15 - t) % 3) * ST

    VX, VW, VS, AXS, AWS = 128, 130, 132, 136, 133
    SXF, SWF, SA = 144, 176, 208
    LW, KIND, PHI = 14, 15, 92
    XB, WB, WSTEP, KT, L4K, L8K, PSRC = 93, 94, 96, 98, 99, 100, 101
    L8X, WST2 = 2, 53
    A.e(f"""s_setprio {LPRIO}
        s_sub_u32 s{LW}, s3, 4
        v_lshrrev_b32 v9, 3, v0
        v_and_b32 v16, 7, v0
        v_lshrrev_b32 v17, 4, v0
        v_xor_b32 v17, v17, v16
        v_lshlrev_b32 v17, 4, v17
        v_lshl_add_u32 v{VX}, v9, 11, v17
        v_xor_b32 v{VX+1}, 64, v{VX}
        s_cmp_eq_u32 s{LW}, 0
        s_mov_b32 s57, 6144
        s_cselect_b32 s57, 2048, s57
        v_bfe_u32 v17, v0, 4, 1
        v_lshlrev_b32 v17, 1, v17
        v_xor_b32 v17, v17, v16
        v_lshlrev_b32 v17, 4, v17
        v_mul_u32_u24 v18, s57, v9
        v_add_u32 v{VW}, v18, v17
        v_xor_b32 v{VW+1}, 64, v{VW}
        s_lshl_b32 s{WSTEP}, s57, 3
        s_lshl_b32 s{XB}, s{RB}, 18
        s_lshl_b32 s56, s{LW}, 16
        s_add_u32 s{XB}, s{XB}, s56
        s_max_u32 s56, s{LW}, 1
        s_sub_u32 s56, s56, 1
        s_lshl_b32 s56, s56, 11
        s_mul_i32 s57, s{LW}, {GROT}
        s_add_u32 s57, s57, s{HP}
        s_and_b32 s57, s57, 3
        s_and_b32 s{WB}, s{HP}, 12
        s_or_b32 s57, s57, s{WB}
        s_lshl_b32 s57, s57, 7
        s_add_u32 s{WB}, s56, s57
        s_add_u32 s{PHI}, s{RB}, s{HP}
        s_and_b32 s{PHI}, s{PHI}, 3
        s_and_b32 s56, s{HP}, {12 if ORD == 3 else 4}
        s_or_b32 s{KT}, s{PHI}, s56
        s_lshl_b32 s{KT}, s{KT}, {0 if ORD == 3 else 1}
        s_lshl_b32 s{L4K}, s{LW}, 12
        s_lshl_b32 s{L8K}, s{LW}, 13
        s_add_u32 s{L8X}, s{L8K}, {XSZ}
        s_sub_u32 s{WST2}, s{WSTEP}, 0x400
        s_cmp_eq_u32 s{LW}, 0
        s_waitcnt lgkmcnt(0)
        s_cselect_b32 s{SW_}, s6, s16
        s_cselect_b32 s{SW_+1}, s7, s17
        s_mov_b32 s{SW_+2}, {6*MB}
        s_cselect_b32 s{SW_+2}, {2*MB}, s{SW_+2}
        s_mov_b32 s{SW_+3}, 0x20000""")
    srd(A, SX_, "s4", "s5", 4 * MB)
    gv = VM()
    def issue(t, lo=0, hi=12):
        if SUBR:
            assert (lo, hi) == (0, 12)
            gv.add(f"T{t}", 12)
            if t > 0:
                A.e(f"s_mov_b32 s59, {gslot(t)}")
                if (t & 3) == 0: A.e(f"s_add_u32 s{KT}, s{KT}, 4\ns_and_b32 s{KT}, s{KT}, 15")
                A.e(f"s_call_b64 s[0:1], {P}isub")
                return
            A.e(f"""s_mov_b32 s59, {gslot(0)}
                s_getpc_b64 s[0:1]""")
            A.lab(f"{P}ipc")
            A.e(f"""s_add_u32 s0, s0, {P}iret-{P}ipc
                s_addc_u32 s1, s1, 0""")
            A.lab(f"{P}isub")
            A.e(f"""s_add_u32 m0, s{L4K}, s59
                s_lshl_b32 s56, s{KT}, 7
                s_add_u32 s56, s56, s{XB}""")
            for i in range(4):
                A.e(f"buffer_load_dwordx4 v{VX+(i&1)}, {sr(SX_)}, s56 offen offset:{1024*i} lds")
                if i < 3: A.e(f"s_addk_i32 s56, {16384-1024}")
            A.e(f"""s_add_u32 m0, s{L8X}, s59
                s_mul_i32 s56, s{KT}, s{WSTEP}
                s_lshl_b32 s56, s56, 3
                s_add_u32 s56, s56, s{WB}""")
            for i in range(8):
                A.e(f"buffer_load_dwordx4 v{VW+(i&1)}, {sr(SW_)}, s56 offen offset:{1024*(i&3)} lds")
                if i == 3: A.e(f"s_addk_i32 m0, 0x1000\ns_addk_i32 s56, 0x1000")
                if i < 7: A.e(f"s_add_u32 s56, s56, s{WST2}")
            A.e(f"""s_add_u32 s56, s{KT}, 1
                s_and_b32 s56, s56, 3
                s_and_b32 s{KT}, s{KT}, 12
                s_or_b32 s{KT}, s{KT}, s56
                s_setpc_b64 s[0:1]""")
            A.lab(f"{P}iret")
            return
        for i in range(lo, hi):
            if i < 4:
                if i == lo:
                    A.e(f"""s_add_u32 m0, s{L4K}, {gslot(t) + 1024*i}
                        s_lshl_b32 s56, s{KT}, 7
                        s_add_u32 s56, s56, s{XB}""")
                    if i: A.e(f"s_add_u32 s56, s56, {16384*i}")
                else: A.e("s_add_u32 m0, m0, 1024\ns_add_u32 s56, s56, 16384")
                A.e(f"buffer_load_dwordx4 v{VX+(i&1)}, {sr(SX_)}, s56 offen lds")
            else:
                if i == lo or i == 4:
                    A.e(f"""s_add_u32 m0, s{L8K}, {gslot(t) + XSZ + 1024*(i-4)}
                        s_lshl_b32 s56, s{KT}, 3""")
                    if i > 4: A.e(f"s_add_u32 s56, s56, {i-4}")
                    A.e(f"""s_mul_i32 s56, s56, s{WSTEP}
                        s_add_u32 s56, s56, s{WB}""")
                else: A.e(f"s_add_u32 m0, m0, 1024\ns_add_u32 s56, s56, s{WSTEP}")
                A.e(f"buffer_load_dwordx4 v{VW+(i&1)}, {sr(SW_)}, s56 offen lds")
            gv.add(f"T{t}")
        if hi == 12 and t < 15:
            pm = 3 if ORD == 3 else 7
            A.e(f"""s_add_u32 s56, s{KT}, 1
                s_and_b32 s56, s56, {pm}""")
            if (t & pm) == pm: A.e(f"s_add_u32 s{KT}, s{KT}, {pm+1}")
            A.e(f"""s_and_b32 s{KT}, s{KT}, {15 - pm}
                s_or_b32 s{KT}, s{KT}, s56""")
    DEF = {int(x.split(":")[0]): int(x.split(":")[1]) for x in os.environ.get("DEF", DEFD).split(",") if x}
    marks = {}
    A.e(f"s_mov_b32 s95, s{KT}")
    issue(0)
    SG, GA, AGS, PI = 32, 64, 134, 97
    A.e(f"s_and_b32 s{KIND}, s{PHI}, 1" if ORD == 3 else f"s_lshr_b32 s{KIND}, s{HP}, 3")
    A.e(f"""s_cmp_eq_u32 s{KIND}, 0
        s_cselect_b32 s{SS_}, s8, s10
        s_cselect_b32 s{SS_+1}, s9, s11
        s_mov_b32 s{SS_+2}, 65536
        s_mov_b32 s{SS_+3}, 0x20000
        s_cmp_lt_u32 s{LW}, 2
        s_cselect_b32 s56, s95, s{KT}
        s_lshl_b32 s56, s56, 12
        s_and_b32 s57, s{LW}, 1
        s_lshl_b32 s57, s57, 11
        s_add_u32 s56, s56, s57
        s_lshl_b32 s57, s{LW}, 11
        s_add_u32 m0, s57, {MISC}
        v_mov_b32 v17, s95
        buffer_load_dwordx4 v{VL16}, {sr(SS_)}, s56 offen lds
        buffer_load_dwordx4 v{VL16}, {sr(SS_)}, s56 offen offset:1024 lds
        v_mov_b32 v18, s{KT}
        v_cmp_gt_u32 vcc, 8, v0
        v_lshlrev_b32 v19, 4, v16
        v_lshrrev_b32 v20, 4, v0
        v_cndmask_b32 v17, v18, v17, vcc
        v_lshl_add_u32 v19, v17, 7, v19
        v_lshl_add_u32 v19, v20, 16, v19
        s_lshl_b32 s57, s{LW}, 10
        s_add_u32 s57, s57, {MISC + 8192}
        s_mov_b32 m0, s57""")
    srd(A, 60, "s20", "s21", 2048)
    A.e(f"""buffer_load_dwordx4 v19, s[60:63], 0 offen lds
        v_lshrrev_b32 v17, 5, v0
        v_lshl_add_u32 v{AGS}, v17, 4, s57""")
    srds()
    A.e(f"""v_and_b32 v16, 31, v0
        v_lshrrev_b32 v17, 5, v0
        v_bfe_u32 v18, v0, 1, 3
        v_xor_b32 v19, v17, v18
        v_lshlrev_b32 v19, 4, v19
        v_lshl_add_u32 v19, v16, 7, v19
        v_add_u32 v{AXS}, s{L4K}, v19
        v_xor_b32 v{AXS+1}, 32, v{AXS}
        v_xor_b32 v{AXS+2}, 64, v{AXS}
        v_xor_b32 v{AXS+3}, 0x60, v{AXS}
        v_bfe_u32 v18, v0, 2, 2
        v_lshl_add_u32 v19, v17, 3, v18
        v_lshlrev_b32 v19, 6, v19
        v_bfe_u32 v18, v0, 4, 1
        v_lshl_add_u32 v19, v18, 5, v19
        v_and_b32 v18, 3, v0
        v_bfe_u32 v20, v0, 1, 1
        v_and_b32 v21, 1, v0
        v_lshl_or_b32 v20, v21, 1, v20
        s_cmp_eq_u32 s{KIND}, 0
        s_cselect_b64 vcc, -1, 0
        v_cndmask_b32 v18, v18, v20, vcc
        v_lshl_add_u32 v19, v18, 3, v19
        v_add_u32 v{AWS}, {MISC}, v19
        v_lshlrev_b32 v{VS}, 2, v0
        v_mov_b32 v{GA}, 0
        v_mov_b32 v{GA+1}, 0
        s_lshr_b32 s{PI}, s95, 1
        s_lshl_b32 s{PSRC}, s{RB}, 1
        s_add_u32 s{PSRC}, s{PSRC}, s{KIND}
        s_lshl_b32 s{PSRC}, s{PSRC}, 17
        s_add_u32 s{PSRC}, s{PSRC}, {PART_OFF}""")
    st(A, "setup")
    issue(1)
    A.e(f"s_waitcnt vmcnt({12 if SPLIT else 15})")
    st(A, "g0")
    RL = SXF
    def lsignal(t, ph):
        A.e(f"""s_cmp_lg_u32 s{LW}, 0
            s_cbranch_scc1 {P}ls{t}""")
        signal(ph, 17)
        A.lab(f"{P}ls{t}")
    def side_compute(ks):
        tg = ks[0]
        A.e(f"""s_cmp_eq_u32 s{KIND}, 1
            s_cbranch_scc1 {P}lv{tg}""")
        for k in ks: A.e(f"ds_read_b128 {v(SG+4*k,4)}, v{AGS} offset:{32*k}")
        A.e(f"s_waitcnt lgkmcnt({len(ks)})")
        for k in ks: A.e(mfma32(SA, SWF + 4*k, SXF + 4*k, "0" if k == 0 else SA))
        A.e("s_waitcnt lgkmcnt(0)")
        for k in range(4*ks[0], 4*ks[-1]+4): A.e(f"v_dot2_f32_bf16 v{GA+(k&1)}, v{SXF+k}, v{SG+k}, v{GA+(k&1)}")
        A.e(f"s_branch {P}lw{tg}")
        A.lab(f"{P}lv{tg}")
        A.e("s_waitcnt lgkmcnt(0)")
        for k in ks: A.e(mfma32(SA, SXF + 4*k, SWF + 4*k, "0" if k == 0 else SA))
        A.lab(f"{P}lw{tg}")
    def reduce_store():
        A.e(f"""s_lshl_b32 s56, s{RB}, 2
            s_lshr_b32 s57, s{PI}, 1
            s_add_u32 s56, s56, s57
            s_cmp_lg_u32 s{LW}, 0
            s_cbranch_scc1 {P}lgate""")
        if PBF:
            A.e("v_mov_b32 v20, 0x3f80\nv_mov_b32 v21, 1.0")
            for q in range(8):
                for i in range(8): A.e(f"v_dot2_f32_bf16 v{RL+i}, v{RL+8+4*q+(i>>1)}, v{20+(i&1)}, " + ("0" if q == 0 else f"v{RL+i}"))
            A.e("s_nop 0")
        else:
            for st_ in (32, 16, 8):
                for i in range(0, st_, 2): A.e(f"v_pk_add_f32 {v(RL+i,2)}, {v(RL+i,2)}, {v(RL+st_+i,2)}")
        A.e(f"""s_cmp_eq_u32 s{KIND}, 0
            s_cselect_b32 s57, {f2u(CSCALE)}, 1.0""")
        for i in range(8): A.e(f"v_mul_f32 v{RL+i}, s57, v{RL+i}")
        for i in range(4): A.e(f"v_cvt_pk_bf16_f32 v{SA+i}, v{RL+2*i}, v{RL+2*i+1}")
        A.e(f"""s_lshl_b32 s56, s56, 12
            s_lshl_b32 s57, s{KIND}, 11
            s_add_u32 s56, s56, s57
            s_and_b32 s57, s{PI}, 1
            s_lshl_b32 s57, s57, 10
            s_add_u32 s56, s56, s57
            s_add_u32 s56, s56, {KVA_OFF}
            buffer_store_dwordx4 {v(SA,4)}, v{VL16}, {sr(WS)}, s56 offen sc1
            s_branch {P}lsd""")
        A.lab(f"{P}lgate")
        A.e(f"""s_cmp_lg_u32 s58, 1
            s_cbranch_scc1 {P}lsd""")
        for i in range(1, 8): A.e(f"v_add_f32 v{RL}, v{RL}, v{RL+i}")
        A.e(f"""v_mov_b32 v{RL+1}, v{RL}
            s_lshl_b32 s56, s56, 7
            s_add_u32 s56, s56, {G_OFF}
            v_permlane32_swap_b32 v{RL}, v{RL+1}
            v_and_b32 v16, 31, v0
            v_add_f32 v{RL}, v{RL}, v{RL+1}
            v_mul_f32 v{RL}, {f2u(-LOG2E)}, v{RL}
            v_exp_f32 v{RL}, v{RL}
            v_lshlrev_b32 v16, 2, v16
            v_add_f32 v{RL}, 1.0, v{RL}
            v_rcp_f32 v{RL}, v{RL}
            s_nop 0
            buffer_store_dword v{RL}, v16, {sr(WS)}, s56 offen sc1""")
        A.lab(f"{P}lsd")
    for t in range(16):
        A.e("s_barrier")
        trace(A, t)
        if t < 2:
            for k in range(4): A.e(f"ds_read_b128 {v(SXF+16*t+4*k,4)}, v{AXS+k}")
        if t == 0:
            for k in range(4): A.e(f"v_add_u32 v{AXS+k}, {gslot(1) - gslot(0)}, v{AXS+k}")
        ks = ([list(range(4)), list(range(4, 8))] if SPLIT else [[], list(range(8))])[t] if t < 2 else []
        for k in ks:
            A.e(f"""ds_read_b64_tr_b16 {v(SWF+4*k,2)}, v{AWS} offset:{1024*k}
                ds_read_b64_tr_b16 {v(SWF+4*k+2,2)}, v{AWS} offset:{1024*k+256}""")
            if k in (3, 7): A.e("s_waitcnt lgkmcnt(4)")
        if t == 1:
            tag_issue(18, 17); marks.setdefault(2, []).append(len(gv.q))
        if ks and SFIRST and not NS_ & 1: side_compute(ks)
        if t == TSA: lsignal(t, 0)
        if t == TRED + 1 + RAFT: lsignal(t, 1)
        if t == TPA:
            A.e(f"""s_and_b32 s58, s{PI}, 1
                s_add_u32 s58, s58, s{KIND}
                s_add_u32 s58, s58, s{LW}
                s_cmp_eq_u32 s{LW}, 0
                s_cselect_b32 s58, 0, s58
                v_and_b32 v16, 7, v0
                v_lshlrev_b32 v16, {FS+1 if ORD == 3 else FS}, v16
                s_and_b32 s57, s{HP}, {1 if ORD == 3 else 8}
                s_lshl_b32 s56, s{RB}, 4
                s_add_u32 s56, s56, s57
                s_lshl_b32 s56, s56, {FS}
                v_add_u32 v16, s56, v16
                s_cmp_ge_u32 s58, 2
                s_cbranch_scc1 {P}lta""")
            poll_issue(16, 0)
            A.lab(f"{P}lta")
            marks.setdefault(t, []).append(len(gv.q))
        if t == TPOLL:
            A.e(f"""v_lshlrev_b32 v16, {FS+2}, v0
                s_cmp_lg_u32 s{LW}, 0
                s_cbranch_scc1 {P}lt0""")
            poll_issue(16, 1, 17)
            A.lab(f"{P}lt0")
            marks.setdefault(t, []).append(len(gv.q))
        if t == TRED and not RAFT:
            reduce_store(); marks.setdefault(t, []).append(len(gv.q))
        if DEF.get(t - 1): issue(t + 1, 12 - DEF[t - 1], 12)
        if t + 2 < 16: issue(t + 2, 0, 12 - DEF.get(t, 0))
        if t == 0: A.e("s_waitcnt lgkmcnt(0)")
        if ks and not SFIRST:
            side_compute(ks)
            A.e("s_nop 7")
        if t == TST and not NS_ & 2:
            A.e(f"""s_lshl_b32 s56, s{LW}, 3
                s_add_u32 s56, s56, s{PI}
                s_lshl_b32 s57, s56, 12
                s_add_u32 s57, s57, s{PSRC}
                v_add_f32 v{GA}, v{GA}, v{GA+1}""")
            if PBF:
                for i in range(8): A.e(f"v_cvt_pk_bf16_f32 v{SA+16+i}, v{SA+2*i}, v{SA+2*i+1}")
                for q in range(2): A.e(f"buffer_store_dwordx4 {v(SA+16+4*q,4)}, v{VL16}, {sr(WS)}, s57 offen offset:{2048*q} sc1")
            else:
                for q in range(4): A.e(f"buffer_store_dwordx4 {v(SA+4*q,4)}, v{VL16}, {sr(WS)}, s57 offen offset:{1024*q} sc1")
            A.e(f"""s_cmp_eq_u32 s{KIND}, 1
                s_cbranch_scc1 {P}lp1
                s_lshl_b32 s57, s{RB}, 5
                s_add_u32 s56, s56, s57
                s_lshl_b32 s56, s56, 8
                s_add_u32 s56, s56, {GP_OFF}
                buffer_store_dword v{GA}, v{VS}, {sr(WS)}, s56 offen sc1""")
            A.lab(f"{P}lp1")
            gv.add("S", 2 if PBF else 4); marks.setdefault(TSA - 1, []).append(len(gv.q))
        if t == TRED and RAFT and not NS_ & 8:
            reduce_store(); marks.setdefault(t + 1, []).append(len(gv.q))
        ncs = 0
        if t > TPOLL and (t == TPOLL + 1 or t == 15):
            cs = []
            if t == TPOLL + 1: cs.append((0, 3))
            if t == 15: cs.append((1, 2))
            for c, slot in cs:
                for hf in range(2):
                    A.e(f"""s_add_u32 m0, s{L8K}, {slot*32768 + hf*4096}
                        s_add_u32 s56, s{L8K}, {KVA_OFF + c*32768 + hf*4096}""")
                    for i in range(4): A.e(f"buffer_load_dwordx4 v{VL16}, {sr(WS)}, s56 offen offset:{1024*i} sc1 lds")
                gv.add('C', 8)
        for nm, tt in (("s", TS), ("v", TV)):
            if t == tt:
                A.e(f"s_branch {P}set{nm}")
                A.lab(f"{P}set{nm}_r")
        if t < 15: A.e(f"s_waitcnt vmcnt({min([gv.after(f'T{t+1}')] + [len(gv.q) - m for m in marks.get(t, [])])})")
        if t == 2: tag_get("l", 18, 17)
        if t == TPA and not NS_ & 4:
            A.e(f"""s_cmp_ge_u32 s58, 2
                s_cbranch_scc1 {P}lp2""")
            poll("a", 16, 0, True)
            st(A, "pla")
            A.e(f"""s_lshr_b32 s56, s{PI}, 1
                s_cmp_eq_u32 s58, 1
                s_cbranch_scc1 {P}lp3
                s_lshl_b32 s56, s56, 15
                s_and_b32 s57, s{PI}, 1
                s_lshl_b32 s57, s57, 11
                s_add_u32 s56, s56, s57
                s_add_u32 s56, s56, s{PSRC}""")
            for q in range(8):
                if PBF: A.e(f"buffer_load_dwordx4 {v(RL+8+4*q,4)}, v{VL16}, {sr(WS)}, s56 offen sc1")
                else: A.e(f"""buffer_load_dwordx4 {v(RL+8*q,4)}, v{VL16}, {sr(WS)}, s56 offen sc1
                    buffer_load_dwordx4 {v(RL+8*q+4,4)}, v{VL16}, {sr(WS)}, s56 offen offset:1024 sc1""")
                if q < 7: A.e("s_add_u32 s56, s56, 4096")
            A.e(f"s_branch {P}lp2")
            A.lab(f"{P}lp3")
            A.e(f"""s_lshl_b32 s57, s{RB}, 2
                s_add_u32 s56, s56, s57
                s_lshl_b32 s56, s56, 11
                s_add_u32 s56, s56, {GP_OFF}""")
            for q in range(8): A.e(f"buffer_load_dword v{RL+q}, v{VS}, {sr(WS)}, s56 offen offset:{256*q} sc1")
            A.lab(f"{P}lp2")
            marks.setdefault(TRED - 1, []).append(len(gv.q))
        if t == TPOLL:
            A.e(f"""s_cmp_lg_u32 s{LW}, 0
                s_cbranch_scc1 {P}pd0""")
            poll("0", 16, 1, True, t1=17)
            st(A, "pl0")
    A.e(f"""s_add_u32 s56, s{L4K}, {MISC}
        v_add_u32 v16, s56, v{VL16}
        s_setprio 0
        s_waitcnt vmcnt(0)
        s_barrier""")
    st(A, "gend")
    A.e(f"""ds_read_b128 {v(QA,4)}, v16
        ds_read_b128 {v(QA+4,4)}, v16 offset:1024
        ds_read_b128 {v(QB+4,4)}, v16 offset:3072
        ds_read_b128 {v(QB,4)}, v16 offset:2048""")

    A.lab(f"{P}attn")
    if E('STOPG', 0): A.e(f"s_branch {P}end")
    st(A, "attn")
    VOO, VXW, VXO = ML, ML + 12, ML + 14
    VWO = [ML + 4, ML + 1, ML + 2, ML + 3]
    VO4 = [ML + 5, ML + 6, ML + 7, ML + 15]
    VW2, VH1 = 192, 191
    def la(off): return ([VL16, AC, AN][off >> 16], off & 0xffff)
    def rdK(addr, off): return [f"ds_read_b128 {v(KF+4*i,4)}, v{addr} offset:{off+1024*i}" for i in range(2)]
    def rdV(addr, off): return [f"ds_read_b128 {v(VF+4*i,4)}, v{addr} offset:{off+2048+1024*i}" for i in range(2)]
    cslot = lambda c: {0: 3, 1: 2, 2: 4}.get(c, c % 5)
    seq = [("A", j) for j in range(NB0)] + [("B", i) for i in range(9)] + [("A", j) for j in range(NB0, 64)]
    seq += [("A", 63), ("A", 63)]
    def taddr(n):
        k, j = seq[n]
        return la(cslot(j >> 3) * 32768 + (j & 7) * 4096) if k == "A" else (AB, j * 4096)
    def tq(n): return QA if seq[n][0] == "A" else QB
    def tc(n):
        k, j = seq[n]
        return "0" if k == "A" else (MU if j == 0 else ML if j == 8 else CM)
    def to(n): return (O, L) if seq[n][0] == "A" else (O2, L2)
    for x in rdK(*taddr(0)): A.e(x)
    srd(A, SW_, "s18", "s19", 2 * MB)
    A.e("s_waitcnt lgkmcnt(0)")
    A.e(mfma32(SB[0], KF, QA, "0"))
    A.e(mfma32(SB[0], KF + 4, QA + 4, SB[0]))
    for x in rdK(*taddr(1)): A.e(x)
    srd(A, SX_, "s12", "s13", 2 * MB)
    A.e(f"""v_mov_b32 v{TZ}, {NEG}
        v_mov_b32 v{TZ+1}, 0
        v_add_u32 v{AB}, s{ABS}, v{VL16}
        v_add_u32 v{VH1}, {64*4096}, v{VL16}
        s_waitcnt lgkmcnt(0)""")
    vm = VM()
    def cpiece(c, i):
        o = [f"s_add_u32 m0, s{W4K}, {cslot(c)*32768}", f"s_add_u32 s{CSRC}, s{W4K}, {KVA_OFF + c*32768}"] if i == 0 else []
        return (f"C{c}", o + [f"buffer_load_dwordx4 v{VL16}, {sr(WS)}, s{CSRC} offen offset:{i*1024} sc1 lds"])
    def wpiece(i):
        return ("W", [f"s_add_u32 m0, s{W1K}, {i*8192}", f"buffer_load_dwordx4 v{VH1 if i >= 6 else VL16}, {sr(WS)}, s{WS6+i%6} offen sc1 lds"])
    def upiece(u, k):
        o = [f"s_add_u32 m0, s{W4K}, {(u%5)*32768}"] if k == 0 else []
        return (f"U{u}", o + [f"buffer_load_dwordx4 v{VWO[k]}, {sr(SW_ if u < 12 else SX_)}, s{UO+(u&3)} offen offset:{k*1024} lds"])
    def warm(i):
        return ("Z", [f"buffer_load_dwordx4 v[252:255], v{VW2+(i&3)}, {sr(SW_ if i < 4 else SX_)}, s{WOS} offen offset:{(i&3)*1024}"])
    def oload(n, half):
        return ("O", [f"buffer_load_dwordx4 {v(OFR+4*n,4)}, v{VO4[n&3]}, {sr(WS)}, s{OQ+(n>>2)} offen sc1"])
    bg = {n: [] for n in range(73)}
    bv = {n: [] for n in range(73)}
    for i in range(4): bg[i].append(cpiece(2, i))
    for i in range(4): bg[E1N + i // 2].append(cpiece(3, i))
    for i in range(12): bg[N2 + i // 2].append(wpiece(i))
    bv[N2 + 5] += [f"v_and_b32 v{TZ}, 31, v0", f"v_lshlrev_b32 v{TZ}, 2, v{TZ}"]
    bg[N2 + 6].append(("G", [f"buffer_load_dword v{VG}, v{TZ}, {sr(WS)}, s{GSRC} offen sc1"]))
    for i in range(4): bg[26 + i // 2].append(cpiece(4, i))
    if WARM:
        for i in range(8): bg[28 + i].append(warm(i))
    for i in range(12): bg[39 + i // CPS].append(cpiece(5 + i // 4, i & 3))
    for i in range(4): bg[N5 + i].append(upiece(8, i))
    for i in range(4): bg[N6 + 3 + i].append(upiece(9, i))
    for i in range(8): bg[65 + i].append(upiece(10 + i // 4, i & 3))
    for i in range(32): bg[N6 + ((71 - N6) * i) // 31].append(oload(i, 1))
    for i in range(4):
        bv[4 + i] += [f"v_fma_f32 v{MU+r}, -v{ML+r}, s{MUS}, v{TZ}" for r in range(4*i, 4*i+4)]
        bv[12 + i] += [f"v_mov_b32 v{CM+r}, s{CMS}" for r in range(4*i, 4*i+4)] + [f"v_mov_b32 v{L2+i}, 0"]
    bv[24] += [f"v_lshrrev_b32 v{VW2}, 3, v0", f"v_bfe_u32 v{TB}, v0, 4, 2", f"v_lshlrev_b32 v{TB}, 1, v{TB}", f"v_and_b32 v{TB+1}, 7, v0",
               f"v_xor_b32 v{TB}, v{TB}, v{TB+1}", f"v_lshlrev_b32 v{TB}, 4, v{TB}", f"v_lshl_add_u32 v{VW2}, v{VW2}, 11, v{TB}"]
    bv[25] += [f"v_add_u32 v{VW2+k}, {k*15360}, v{VW2}" for k in range(1, 4)]
    bv[NB0 + 8] += [f"v_and_b32 v{VOO}, 15, v0", f"v_bfe_u32 v{VOO+1}, v0, 4, 1", f"v_lshrrev_b32 v{VOO+2}, 5, v0",
                    f"v_lshlrev_b32 v{VXO}, 11, v{VOO}", f"v_lshl_add_u32 v{VXO}, v{VOO+1}, 5, v{VXO}", f"v_lshl_add_u32 v{VXO}, v{VOO+2}, 4, v{VXO}",
                    f"v_lshlrev_b32 v{VOO}, 4, v{VOO}", f"v_lshl_add_u32 v{VOO}, v{VOO+1}, 10, v{VOO}", f"v_lshl_add_u32 v{VOO}, v{VOO+2}, 8, v{VOO}"]
    bv[NB0 + 9] += [f"v_mov_b32 v{VWO[k]}, v{VW2+k}" for k in range(4)]
    bv[44] += [f"v_add_u32 v{VO4[0]}, s{KH10}, v{VL16}", f"v_xor_b32 v{VO4[1]}, 0x400, v{VO4[0]}", f"v_add_u32 v{VO4[2]}, 0x1000, v{VO4[0]}", f"v_add_u32 v{VO4[3]}, 0x1000, v{VO4[1]}",
               f"v_add_u32 v{VXW}, s{W4K}, v{VL16}", f"v_xor_b32 v{VXW+1}, 0x4000, v{VXW}"]
    ntr = [0]
    def bar(wait=None, pre=None, post=None):
        if pre:
            A.e(f"s_cmp_eq_u32 s3, 4\ns_cbranch_scc1 {P}{pre}")
            A.lab(f"{P}{pre}_r")
        if wait is not None: A.e(f"s_waitcnt vmcnt({wait})")
        A.e("s_barrier")
        if post:
            A.e(f"s_cmp_eq_u32 s3, 4\ns_cbranch_scc1 {P}{post}")
            A.lab(f"{P}{post}_r")
        trace(A, 34 + ntr[0]); ntr[0] += 1
    tops = {
        E1N: lambda: bar(0, post="sig1"),
        N2: lambda: bar(vm.after("C3"), pre="poll1"),
        26: lambda: bar(vm.after("W")),
        39: lambda: bar(vm.after("C4")),
        N5: lambda: bar(0, post="sig2"),
        N6: lambda: bar(None, pre="poll2"),
        65: lambda: bar(vm.after("U8")),
    }
    bnd = [0] + sorted(tops) + [73]
    lvl = {}
    for a_, b_ in zip(bnd, bnd[1:]):
        for n in range(a_, b_): lvl[n] = 3 - (PRL * (n - a_)) // (b_ - a_)
    pw = {}
    def step(n):
        par = n & 1
        S, Sn, Pc, Pp = SB[par], SB[1-par], PB[par], PB[1-par]
        q = []
        for tag, lines in bg[n]:
            if tag[0] in os.environ.get("DROP", "") or XP & 1: continue
            q += [(tag if x.startswith("buffer") else None, x) for x in lines]
        nfront = max(0, min(4, len(q) - 1))
        def B(slot):
            k = (1 if slot >= 4 - nfront else 0) if slot < 4 else len(q)
            for _ in range(k):
                tag, x = q.pop(0)
                if " lds" in x and A.l[-1].strip().startswith("s_add_u32 m0"): A.e("s_nop 0")
                A.e(x)
                if tag: vm.add(tag)
        oprev, lprev = to(max(n - 1, 0))
        for k_, n_ in ((1, N2), (2, N6)):
            if n == n_ - PRE:
                A.e(f"s_cmp_eq_u32 s3, 4\ns_cbranch_scc1 {P}pre{k_}")
                A.lab(f"{P}pre{k_}_r")
                pw[k_] = len(vm.q)
            if n == n_: pw[k_] = len(vm.q) - pw[k_]
        if n in tops and not (XP & 4): tops[n]()
        if PRL and (n == 0 or lvl[n] != lvl[n - 1]): A.e(f"s_setprio {lvl[n]}")
        k, j = seq[n + 1]
        if k == "B" and 2 <= j <= 7:
            A.e(f"s_cmp_eq_u32 s{I0}, {j}\ns_cbranch_scc1 {P}cm{j}")
            A.lab(f"{P}cm{j}_r")
        A.e(mfma32(Sn, KF, tq(n + 1), tc(n + 1)))
        A.e(rdK(*taddr(n + 2))[0]); B(0)
        for j in (0, 1, 2, 3): A.e(ex(S, j))
        if n > 0: A.e(mfma32(oprev, VF, Pp, "0" if n - 1 in (0, NB0) else oprev))
        A.e(rdV(*taddr(n))[0]); B(1)
        A.e(cv(Pc, S, 0)); A.e(cv(Pc, S, 1))
        for j in (4, 5, 6): A.e(ex(S, j))
        A.e(mfma32(Sn, KF + 4, tq(n + 1) + 4, Sn))
        A.e(rdK(*taddr(n + 2))[1]); B(2)
        A.e(ex(S, 7)); A.e(cv(Pc, S, 2)); A.e(ex(S, 8)); A.e(cv(Pc, S, 3))
        if n > 0: A.e(mfma32(oprev, VF + 4, Pp + 4, oprev))
        A.e(rdV(*taddr(n))[1]); B(3)
        A.e(ex(S, 9)); A.e(ex(S, 10)); A.e(cv(Pc, S, 4))
        if not XP & 2:
            for x in bv[n]: A.e(x)
        A.e(ex(S, 11)); A.e(ex(S, 12)); A.e(cv(Pc, S, 5)); A.e(ex(S, 13)); A.e(ex(S, 14)); A.e(ex(S, 15))
        if n > 0: A.e(smf(lprev, Pp))
        B(4)
        A.e("s_waitcnt lgkmcnt(0)")
        A.e(cv(Pc, S, 6)); A.e(cv(Pc, S, 7))
    def finalize(tag, which, o, l, tmp):
        A.e(f"s_mov_b32 s63, 0")
        A.lab(f"{P}norm{tag}")
        A.e(f"""v_add_f32 v{T0}, v{l}, v{l+1}
            v_rcp_f32 v{tmp}, v{T0}""")
        if which == 0:
            A.e(f"""s_waitcnt vmcnt({vm.after('G')})
                v_sub_f32 v{tmp+1}, 1.0, v{VG}
                v_mul_f32 v{tmp}, v{tmp}, v{tmp+1}""")
        else:
            A.e(f"s_nop 0\nv_mul_f32 v{tmp}, v{tmp}, v{VG}")
        for i in range(8): A.e(f"v_pk_mul_f32 {v(o+2*i,2)}, {v(o+2*i,2)}, {v(tmp,2)} op_sel_hi:[1,0]")
        A.e(f"v_pk_add_f32 {v(tmp+2,2)}, {v(o,2)}, {v(o+2,2)}")
        for i in range(2, 8): A.e(f"v_pk_add_f32 {v(tmp+2,2)}, {v(tmp+2,2)}, {v(o+2*i,2)}")
        A.e(f"""v_sub_f32 v{tmp+2}, v{tmp+2}, v{tmp+2}
            v_fma_f32 v{tmp+2}, v{tmp+3}, v{tmp+2}, v{T0}
            v_cmp_le_f32 vcc, {f2u(2.0**-64)}, v{tmp+2}
            s_mov_b64 s[56:57], vcc
            v_cmp_ge_f32 vcc, {f2u(2.0**64)}, v{tmp+2}""")
        for i in range(8): A.e(f"v_cvt_pk_bf16_f32 v{tmp+i}, v{o+2*i}, v{o+2*i+1}")
        A.e(f"""s_and_b64 vcc, vcc, s[56:57]
            s_cmp_eq_u64 vcc, -1
            s_cselect_b32 s62, 1, s63
            s_cmp_eq_u32 s62, 0
            {"s_nop 0" if XP else f"s_cbranch_scc1 {P}slow{tag}"}
            buffer_store_dwordx4 {v(tmp,4)}, v{VOO}, {sr(WS)}, s{OSTB if which == 0 else OSTA} offen sc1
            buffer_store_dwordx4 {v(tmp+4,4)}, v{VOO}, {sr(WS)}, s{OSTB if which == 0 else OSTA} offen offset:512 sc1""")
        vm.add("S" + tag, 2)
    for n in range(73):
        step(n)
        if n == NB0 + 10 and not (XP & 8): finalize("B", 0, O2, L2, TB)
    A.e(mfma32(O, VF, PB[0], O))
    A.e("s_nop 0")
    A.e(mfma32(O, VF + 4, PB[0] + 4, O))
    A.e(smf(L, PB[0]))
    for h in range(8): A.e(f"s_sub_u32 s{OQ+h}, s{OQ+h}, 0x10000")
    A.e("s_setprio 0")
    st(A, "aend")
    if XP & 31: A.e(f"s_branch {P}end")
    AWO, OAC = 16, 64
    WFO = [32, 48]
    TA = SB[0]
    A.e(f"""v_lshrrev_b32 v20, 4, v0
        v_bfe_u32 v21, v0, 2, 2
        v_and_b32 v22, 1, v20
        v_lshl_add_u32 v22, v22, 2, v21
        v_lshrrev_b32 v23, 1, v20
        v_lshl_add_u32 v23, v23, 4, v22
        v_lshlrev_b32 v23, 7, v23
        v_and_b32 v20, 3, v0
        v_lshl_add_u32 v23, v20, 3, v23
        s_lshr_b32 s56, s3, 2
        s_lshl_b32 s56, s56, 12
        s_add_u32 s56, s56, {3*32768}
        v_add_u32 v23, s56, v23
        v_lshrrev_b32 v22, 1, v22""")
    for nb in range(4):
        A.e(f"v_xor_b32 v20, {nb}, v22\nv_lshl_add_u32 v{AWO+nb}, v20, 5, v23")
    finalize("A", 1, O, L, TA)
    st(A, "afin")

    def oreads(buf, i):
        return [f"ds_read_b64_tr_b16 {v(WFO[buf]+4*nb+2*jh,2)}, v{AWO+nb} offset:{i*8192+jh*1024}" for nb in range(4) for jh in range(2)]
    for r in oreads(0, 0): A.e(r)
    oidx = [i for i, t in enumerate(vm.q) if t == "O"] or [0] * 32
    def emit(x):
        for l_ in x[1]:
            if " lds" in l_ and A.l[-1].strip().startswith("s_add_u32 m0"): A.e("s_nop 0")
            A.e(l_)
        vm.add(x[0])
    def y1():
        st(A, "y1a")
        A.e("s_waitcnt vmcnt(0)\ns_barrier")
        st(A, "y1")
        A.e(f"""s_cmp_lg_u32 s3, 4
            s_cbranch_scc1 {P}y1""")
        signal(4, AN)
        A.lab(f"{P}y1")
    def ypre():
        A.e(f"""s_cmp_lg_u32 s3, 4
            s_cbranch_scc1 {P}yp
            v_and_b32 v20, 15, v0
            v_lshlrev_b32 v20, {FS}, v20
            s_lshl_b32 s56, s{RB2}, {FS+4}
            v_add_u32 v20, s56, v20""")
        poll_issue(20, 4)
        A.lab(f"{P}yp")
        pw[3] = len(vm.q)
    def ypoll():
        st(A, "y3a")
        A.e(f"""s_cmp_lg_u32 s3, 4
            s_cbranch_scc1 {P}pd3
            s_waitcnt vmcnt({len(vm.q) - pw[3]})""")
        poll("3", 20, 4, True, slp=SLP3)
    def ybar(*tags):
        if tags: A.e(f"s_waitcnt vmcnt({vm.after(*tags)})")
        A.e("s_barrier")
    pre = {j: [] for j in range(32)}
    obg = {j: [] for j in range(32)}
    pre[3].append(y1)
    pre[JP].append(ypoll)
    for j in sorted({7, 11, JP}):
        pre[j].append((lambda: ybar("U12", "U13")) if j == 11 else ybar)
    if DIAG: pre[JP].append(lambda: st(A, "y3"))
    pre[JV].append(lambda: ybar("U14", "U15"))
    if os.environ.get("DIAG") == "1": pre[16].append(lambda: st(A, "y4"))
    for k in range(8): obg[3 + k // 2].append(upiece(12 + k // 4, k & 3))
    nl = 0
    for j in range(JP, 32):
        c = 0
        while not (XP & 128) and nl < 32 and c < (LPS if j < 16 else 2) and nl // 2 < j:
            obg[j].append((f"OA{nl}", oload(nl, 0)[1])); nl += 1; c += 1
    for k in range(4): obg[7 + k].append(upiece(14, k))
    for k in range(4): obg[JU + k].append(upiece(15, k))
    for j in range(32):
        u, i = 8 + j // 4, j & 3
        q, buf = u & 3, i & 1
        order = [(nb, f if nb % 2 == 0 else 1 - f) for nb in range(4) for f in range(2)]
        if j == 31: order = [(nb, 1) for nb in range(4)] + [(3 - nb, 0) for nb in range(4)]
        ms = [mfma16(OAC + 4*(f*4+nb), WFO[buf]+4*nb, OFR+32*q+8*i+4*f, "0" if j == 0 else OAC + 4*(f*4+nb)) for nb, f in order]
        w = min(60, len(vm.q) - 1 - oidx[7]) if j == 0 else vm.after(f"OA{2*(j-16)+1}") if j >= 16 else None
        lg = 0 if (pre[j] or j == 31) else 4
        A.e(f"s_waitcnt lgkmcnt({lg})" if w is None else f"s_waitcnt lgkmcnt({lg}) vmcnt({w})")
        if i == 3 and u < 15:
            dl = ((u+1) % 5 - u % 5) * 32768
            for nb in range(4): A.e(f"v_add_u32 v{AWO+nb}, {dl & 0xffffffff}, v{AWO+nb}")
        if j == JP - PRE: ypre()
        for f in pre[j]: f()
        rd = oreads(1 - buf, (i + 1) & 3) if j < 31 else []
        b = list(obg[j])
        for k in range(8):
            if k == 4 and lg: A.e("s_waitcnt lgkmcnt(4)")
            A.e(ms[k])
            if rd: A.e(rd[k])
            if k % 2 == 1 and b: emit(b.pop(0))
        while b: emit(b.pop(0))
    st(A, "oend")
    if XP & 256: A.e(f"s_branch {P}end")
    srd(A, SX_, "s22", "s23", 4 * MB)
    for nb in range(4): A.e(f"ds_write_b128 v{VXW}, {v(OAC+16+4*nb,4)} offset:{32768+1024*nb}")
    A.e("s_waitcnt lgkmcnt(0)\ns_barrier")
    for nb in range(4): A.e(f"ds_read_b128 {v(32+4*nb,4)}, v{VXW+1} offset:{32768+1024*nb}")
    for a in range(2):
        A.e(f"s_waitcnt lgkmcnt({2 - 2*a})")
        for i in range(4): A.e(f"v_pk_add_f32 {v(OAC+8*a+2*i,2)}, {v(OAC+8*a+2*i,2)}, {v(32+8*a+2*i,2)}")
        for i in range(4): A.e(f"v_cvt_pk_bf16_f32 v{48+4*a+i}, v{OAC+8*a+2*i}, v{OAC+8*a+2*i+1}")
        A.e(f"""s_nop 0
            v_permlane16_swap_b32 v{48+4*a}, v{48+4*a+2}
            v_permlane16_swap_b32 v{48+4*a+1}, v{48+4*a+3}
            buffer_store_dwordx4 {v(48+4*a,4)}, v{VXO}, {sr(SX_)}, s{OUTS} offen offset:{64*a} {OFL}""")
    A.lab(f"{P}end")
    if E('HT', 0):
        A.e(f"""s_waitcnt vmcnt(0)
            s_memrealtime s[72:73]
            s_memtime s[76:77]
            s_waitcnt lgkmcnt(0)
            s_cmp_lg_u32 s3, 4
            s_cbranch_scc1 {P}end2
            s_mov_b64 exec, 1
            v_mov_b32 v0, 0
            s_not_b32 s56, s70
            v_mov_b32 v1, s56
            v_mov_b32 v2, s70
            v_mov_b32 v3, s72
            s_sub_u32 s76, s76, s74
            v_mov_b32 v4, s76
            buffer_atomic_umax v1, v0, {sr(DBG)}, 0 offen offset:8 sc1
            buffer_atomic_umax v2, v0, {sr(DBG)}, 0 offen offset:12 sc1
            buffer_atomic_umax v3, v0, {sr(DBG)}, 0 offen offset:16 sc1
            buffer_atomic_umax v4, v0, {sr(DBG)}, 0 offen offset:20 sc1""")
    stamp_flush(A, 0)
    trace_flush(A)
    A.lab(f"{P}end2")
    A.e("s_endpgm")

    AX, AW, VKO = 16, 18, 20
    XF, WF = [32, 48], 64
    ACC = 128
    A.lab(f"{P}compute")
    A.e(f"""v_and_b32 v8, 15, v0
        v_lshrrev_b32 v9, 4, v0
        v_bfe_u32 v10, v0, 1, 3
        s_and_b32 s56, s3, 1
        s_lshl_b32 s56, s56, 13
        v_xor_b32 v11, v9, v10
        v_lshlrev_b32 v11, 4, v11
        v_lshl_add_u32 v11, v8, 7, v11
        v_add_u32 v{AX}, s56, v11
        v_xor_b32 v{AX+1}, 64, v{AX}
        v_bfe_u32 v12, v0, 2, 2
        v_and_b32 v13, 3, v0
        v_lshl_add_u32 v14, v9, 3, v12
        v_lshlrev_b32 v14, 7, v14
        v_lshl_add_u32 v14, v13, 3, v14
        v_bfe_u32 v15, v0, 3, 2
        s_and_b32 s56, s3, 2
        v_xor_b32 v15, s56, v15
        v_lshl_add_u32 v14, v15, 5, v14
        v_add_u32 v{AW}, {XSZ}, v14
        v_xor_b32 v{AW+1}, 32, v{AW}
        v_and_b32 v8, 0x33, v0
        v_bfe_u32 v9, v0, 2, 1
        v_bfe_u32 v10, v0, 3, 1
        v_lshl_or_b32 v8, v9, 3, v8
        v_lshl_or_b32 v8, v10, 2, v8
        v_lshlrev_b32 v{VKO}, 4, v8
        s_waitcnt lgkmcnt(0)""")
    srds()
    A.e(f"""v_mov_b32 v21, 0
        s_or_b32 s56, s2, s3
        s_cmp_lg_u32 s56, 0
        s_cbranch_scc1 {P}ntag
        s_memrealtime s[56:57]
        s_waitcnt lgkmcnt(0)
        s_mul_i32 s57, s57, 0x9e3779b1
        s_xor_b32 s56, s56, s57
        s_or_b32 s56, s56, 1
        v_mov_b32 v22, s56
        buffer_store_dword v22, v21, {sr(DBG)}, 0 offen sc1""")
    A.lab(f"{P}ntag")
    zero(24, 4)
    for nm, fn in (("s", setup_s), ("v", setup_v)):
        A.lab(f"{P}set{nm}")
        fn()
        A.e(f"""s_cmp_ge_u32 s3, 4
            s_cbranch_scc1 {P}set{nm}_r""")
        if nm == "s":
            for i in range(8): A.e(mfma32(ACC + 16*i, 24, 24, "0"))
    A.e(f"""s_mov_b32 s58, 0
        s_mov_b32 s59, 0
        s_mov_b32 s60, {(-ST) & 0xffffffff}
        s_mov_b32 s61, {2*ST}
        s_mov_b32 s63, {f2u(CSCALE)}
        s_and_b32 s57, s{HEAD}, 24
        s_add_u32 s92, s{HEAD}, {4*GROT}
        s_and_b32 s92, s92, 7
        s_or_b32 s92, s92, s57
        s_lshl_b32 s92, s92, 6
        s_add_u32 s92, s92, s{RT}
        s_lshl_b32 s92, s92, 12
        s_add_u32 s92, s92, {KVB_OFF}
        s_add_u32 s93, s92, 4096
        s_add_u32 s96, s{HEAD}, {6*GROT}
        s_and_b32 s96, s96, 7
        s_or_b32 s96, s96, s57
        s_lshl_b32 s96, s96, 6
        s_add_u32 s96, s96, s{RT}
        s_lshl_b32 s96, s96, 12
        s_add_u32 s96, s96, {KVB_OFF}
        s_add_u32 s97, s96, 4096
        s_nop 0""")
    def rx(buf, ks, mb): return f"ds_read_b128 {v(XF[buf]+4*mb,4)}, v{AX+ks} offset:{mb*2048}"
    def rw(nb, ks, jh): return f"ds_read_b64_tr_b16 {v(WF+4*nb+2*jh,2)}, v{AW+(nb&1)} offset:{(nb>>1)*8192+ks*4096+jh*512}"
    st(A, "setup")
    A.e("s_barrier")
    st(A, "g0")
    for mb in range(4): A.e(rx(0, 0, mb))
    for nb in range(7):
        for jh in range(2): A.e(rw(nb, 0, jh))
        if nb == 4: A.e("s_waitcnt lgkmcnt(4)")
    A.e(f"s_waitcnt lgkmcnt(2)\ns_branch {P}g1m")
    A.raw(".p2align 6")
    A.lab(f"{P}g1")
    acc = lambda mb, nb: ACC + 4 * (nb * 4 + mb)
    for ks in (1, 0):
        if ks == 0: A.lab(f"{P}g1m")
        post = {k: [] for k in range(32)}
        post[0].append(rw(7, ks, 0)); post[1].append(rw(7, ks, 1))
        if ks == 0:
            for nb in range(1, 8):
                for jh in range(2): post[4*nb + jh].append(rw(nb - 1, 1, jh))
            for m in range(4): post[4*(m+1) + 2].append(rx(1, 1, m))
            post[19].append("s_waitcnt lgkmcnt(8)")
            post[27].append("s_cmp_lg_u32 s59, 15")
        else:
            post[2].append("s_cmp_eq_u32 s58, 0"); post[2].append("s_cselect_b32 s62, s61, s60")
            post[3] += [f"v_add_u32 v{AX}, s62, v{AX}", f"v_add_u32 v{AX+1}, s62, v{AX+1}"]
            post[4] += [f"v_add_u32 v{AW}, s62, v{AW}", f"v_add_u32 v{AW+1}, s62, v{AW+1}"]
            post[5] += ["s_add_u32 s58, s58, s62", "s_add_u32 s59, s59, 1"]
            post[GB] += ["s_waitcnt lgkmcnt(0)", "s_barrier"]
            seq_ = [rw(0, 0, 0), rw(0, 0, 1), rx(0, 0, 0)]
            k = GB + 1
            rest = []
            for nb in range(1, 7): rest += [(4*(nb+1), rw(nb, 0, 0)), (4*(nb+1), rw(nb, 0, 1))]
            xs = [rx(0, 0, m) for m in range(1, 4)]
            for x in seq_: post[k].append(x); k += 1
            while rest or xs:
                if rest and rest[0][0] <= k: post[k].append(rest.pop(0)[1])
                elif xs: post[k].append(xs.pop(0))
                k += 1
            assert k <= 31
        post[30].append("s_waitcnt lgkmcnt(2)")
        for nb in range(8):
            for mb in range(4):
                m2 = mb if nb % 2 == 0 else 3 - mb
                d = acc(m2, nb)
                x, w = XF[ks] + 4 * m2, WF + 4 * nb
                A.e(mfma16(d, x, w, d) if nb >= 6 else mfma16(d, w, x, d))
                for x_ in post[4*nb + mb]: A.e(x_)
    A.e(f"s_cbranch_scc1 {P}g1")
    A.lab(f"{P}glast")
    T = 21
    order = [(m, n) for g in ((2, 0), (2, 2), (0, 0), (0, 2)) for (m, n) in ((g[0], g[1]), (g[0]+1, g[1]), (g[0]+1, g[1]+1), (g[0], g[1]+1))]
    order += [(mb if nb % 2 == 0 else 3 - mb, nb) for nb in range(4, 8) for mb in range(4)]
    fill = pack_list(32, [[acc(2+rbk, db) for rbk in range(2)] for db in range(2)], False)
    fill += [f"ds_write_b128 v{AX}, {v(32,4)}", f"ds_write_b128 v{AX}, {v(36,4)} offset:1024"]
    fill += pack_list(40, [[acc(2+rbk, 2+db) for rbk in range(2)] for db in range(2)], False)
    fill += [f"ds_write_b128 v{AX}, {v(40,4)} offset:2048", f"ds_write_b128 v{AX}, {v(44,4)} offset:3072"]
    qa0 = pack_list(QA, [[acc(rbk, db) for rbk in range(2)] for db in range(2)], False)
    fill += qa0[:6] + ["s_waitcnt lgkmcnt(0)\ns_barrier"] + qa0[6:]
    for k, (mb, nb) in enumerate(order):
        d = acc(mb, nb)
        x, w = XF[1] + 4 * mb, WF + 4 * nb
        A.e(mfma16(d, x, w, d) if nb >= 6 else mfma16(d, w, x, d))
        if k < 2: A.e(rw(7, 1, k))
        if k == 2: A.e(f"s_add_u32 s56, s{W4K}, {MISC}\ns_mov_b32 s62, s63")
        if k == 3: A.e(f"v_add_u32 v{AX}, s56, v{VL16}")
        if k == 8: A.e("s_waitcnt lgkmcnt(0)")
        if k >= 10:
            for _ in range(2):
                if fill: A.e(fill.pop(0))
    st(A, "gend")
    while fill: A.e(fill.pop(0))
    for rtl in range(2):
        tk, tv = 80 + 8 * rtl, ACC + 8 * rtl
        so = "s92" if rtl == 0 else "s93"
        pack(tk, [[acc(2*rtl+rbk, 4+db) for rbk in range(2)] for db in range(2)], True)
        A.e(f"""buffer_store_dwordx4 {v(tk,4)}, v{VKO}, {sr(WS)}, {so} offen sc1
            buffer_store_dwordx4 {v(tk+4,4)}, v{VKO}, {sr(WS)}, {so} offen offset:1024 sc1""")
        pack(tv, [[acc(2*rtl+kb, 6+db) for db in range(2)] for kb in range(2)], False)
        so = "s96" if rtl == 0 else "s97"
        A.e(f"""buffer_store_dwordx4 {v(tv,4)}, v{VL16}, {sr(WS)}, {so} offen offset:2048 sc1
            buffer_store_dwordx4 {v(tv+4,4)}, v{VL16}, {sr(WS)}, {so} offen offset:3072 sc1""")
    pack(QB, [[acc(rbk, 2+db) for rbk in range(2)] for db in range(2)], False)
    A.e(f"s_branch {P}attn")

    if XP & 4:
        for l in ("sig1", "sig2", "poll1", "poll2"): A.lab(f"{P}{l}_r")
    if XP & 8: A.lab(f"{P}normB")
    for ph in (1, 2):
        A.lab(f"{P}sig{ph}")
        signal(ph + 1, TZ + 1)
        A.e(f"s_branch {P}sig{ph}_r")
    A.lab(f"{P}pre1")
    A.e(f"""v_lshrrev_b32 v{TZ+1}, 4, v0
        v_min_u32 v{TZ+1}, 2, v{TZ+1}
        v_sub_u32 v{TZ+1}, s{RB}, v{TZ+1}
        v_max_i32 v{TZ+1}, 0, v{TZ+1}
        v_lshlrev_b32 v{TZ+1}, 4, v{TZ+1}
        v_and_or_b32 v{TZ+1}, v0, 15, v{TZ+1}
        v_lshlrev_b32 v{TZ+1}, {FS}, v{TZ+1}""")
    poll_issue(TZ + 1, 2)
    A.e(f"s_branch {P}pre1_r")
    A.lab(f"{P}poll1")
    A.e(f"s_waitcnt vmcnt({pw[1]})")
    poll("1", TZ + 1, 2, True)
    A.e(f"s_branch {P}poll1_r")
    A.lab(f"{P}pre2")
    A.e(f"""v_and_b32 v{TZ+1}, 15, v0
        v_lshlrev_b32 v{TZ+1}, {FS}, v{TZ+1}
        s_lshl_b32 s56, s{RB2}, {FS+4}
        v_add_u32 v{TZ+1}, s56, v{TZ+1}""")
    poll_issue(TZ + 1, 3)
    A.e(f"s_branch {P}pre2_r")
    A.lab(f"{P}poll2")
    A.e(f"s_waitcnt vmcnt({pw[2]})")
    poll("2", TZ + 1, 3, True)
    A.e(f"s_branch {P}poll2_r")
    for j in range(2, 8):
        A.lab(f"{P}cm{j}")
        zero(CM, 16)
        A.e(f"s_nop 0\ns_branch {P}cm{j}_r")

    def slow(tag, q, o, l, kf, vf, S, C, Pp, M, setup):
        A.lab(f"{P}slow{tag}")
        A.e("s_waitcnt vmcnt(0)")
        A.e(setup)
        zero(o, 16); zero(l, 4)
        A.e(f"""v_mov_b32 v{M}, {NEG}
            s_mov_b32 s99, 0""")
        A.lab(f"{P}spass{tag}")
        A.e("s_mov_b32 s100, s98")
        A.lab(f"{P}stile{tag}")
        A.e(f"""s_lshl_b32 s56, s100, 12
            s_add_u32 s56, s56, s101
            buffer_load_dwordx4 {v(kf,4)}, v{VL16}, {sr(WS)}, s56 offen sc1
            buffer_load_dwordx4 {v(kf+4,4)}, v{VL16}, {sr(WS)}, s56 offen offset:1024 sc1
            buffer_load_dwordx4 {v(vf,4)}, v{VL16}, {sr(WS)}, s56 offen offset:2048 sc1
            buffer_load_dwordx4 {v(vf+4,4)}, v{VL16}, {sr(WS)}, s56 offen offset:3072 sc1
            s_cmp_eq_u32 s100, s96
            s_cselect_b32 s56, {NEG}, 0
            s_cmp_eq_u32 s100, s97
            s_cselect_b32 s57, {NEG}, 0
            v_mov_b32 v{M+2}, s56
            v_mov_b32 v{M+3}, s57""")
        for r in range(16):
            A.e(f"""v_cmp_le_i32 vcc, {keyl(r)}, v{VD}
                s_nop 1
                v_cndmask_b32 v{C+r}, v{M+2}, v{M+3}, vcc""")
        A.e("s_waitcnt vmcnt(0)\ns_nop 0")
        A.e(mfma32(S, kf, q, C))
        A.e(mfma32(S, kf + 4, q + 4, S))
        A.e(f"""s_nop 7
            s_nop 7
            s_cmp_eq_u32 s99, 0
            s_cbranch_scc0 {P}sp2{tag}""")
        for r in range(16): A.e(f"v_max_f32 v{M}, v{M}, v{S+r}")
        A.e(f"s_branch {P}snext{tag}")
        A.lab(f"{P}sp2{tag}")
        for r in range(16): A.e(f"v_sub_f32 v{S+r}, v{S+r}, v{M}")
        for r in range(16): A.e(ex(S, r))
        A.e("s_nop 0")
        for i in range(8): A.e(cv(Pp, S, i))
        A.e("s_nop 1")
        A.e(mfma32(o, vf, Pp, o))
        A.e(mfma32(o, vf + 4, Pp + 4, o))
        A.e(smf(l, Pp))
        A.e("s_nop 7\ns_nop 7")
        A.lab(f"{P}snext{tag}")
        A.e(f"""s_add_u32 s100, s100, 1
            s_cmp_le_u32 s100, s95
            s_cbranch_scc1 {P}stile{tag}
            s_cmp_eq_u32 s99, 0
            s_cbranch_scc0 {P}sdone{tag}
            v_mov_b32 v{M+1}, v{M}
            s_nop 1
            v_permlane32_swap_b32 v{M}, v{M+1}
            s_nop 1
            v_max_f32 v{M}, v{M}, v{M+1}
            s_mov_b32 s99, 1
            s_branch {P}spass{tag}""")
        A.lab(f"{P}sdone{tag}")
        A.e(f"""s_mov_b32 s63, 1
            s_branch {P}norm{tag}""")
    slow("B", QB, O2, L2, 196, 204, 212, 228, 244, 148,
         f"""s_lshl_b32 s101, s{HEADB}, 18
            s_add_u32 s101, s101, {KVB_OFF}
            s_sub_i32 s97, s{RT}, 8
            s_max_i32 s98, s97, 0
            s_mov_b32 s95, s{RT}
            s_mov_b32 s96, s{RT}""")
    slow("A", QA, O, L, KF, VF, SB[0], SB[1], PB[0], ML + 8,
         f"""s_mov_b32 s101, {KVA_OFF}
            s_mov_b32 s98, 0
            s_mov_b32 s95, 63
            s_mov_b32 s96, -1
            s_mov_b32 s97, -1""")
    A.raw(".p2align 4")
    A.lab(f"{P}last")
    A.e("s_endpgm")
    return kernel_desc(name, 256, 102)

if __name__ == "__main__":
    ref = open(f"cdna_kernels/{NAME}.s.ref").read().split("\n")
    hdr = [l for l in ref if l.startswith(";") and "@launch" not in l]
    A = Asm()
    d = gen(A, NAME + "_kernel")
    out = "\n".join(hdr) + "\n" + f"; @launch grid=(256,1,1) block=(512,1,1) lds={LDS}\n"
    out += '.amdgcn_target "amdgcn-amd-amdhsa--gfx950"\n.text\n' + A.text() + '.section .rodata,"a"\n' + d
    path = sys.argv[1] if len(sys.argv) > 1 else f"cdna_kernels/{NAME}.s"
    open(path, "w").write(out)
    print("wrote", path, len(out))
```

```python
from common import *
import sys
E = lambda k, d: int(os.environ.get(k, d))
STAG = 4
PART_OFF = 0
TPA = E('TPA', 8)
WARM = E('WARM', 1)
E1N = E('E1N', 12)
TPOLL = E('TPOLL', 14)
LPRIO = E('LPRIO', 3)
LPS = E('LPS', 2)
ROT = E('ROT', 0)
SLP = E('SLP', 12)
PFC = E('PFC', 0)
TOUCH = E('TOUCH', 0)
ZIG = E('ZIG', 3)
SFIRST = E('SFIRST', 0)
OFL = os.environ.get('OFL', '')
XP = E('XP', 0)
JP = E('JP', 11)
JU = E('JU', 13)
JV = E('JV', 21)
SLP3 = E('SLP3', 4)
PRL = E('PRL', 2)
ORD = E('ORD', 3)
SPRO = E('SPRO', 1)
TRED = E('TRED', 10)
TTAG = E('TTAG', 2)
RAFT = E('RAFT', 0)
TST = E('TST', 3)
TSA = E('TSA', TST + 2)
PRE = E('PRE', 2)
FS = E('FS', 4)
SPLIT = E('SPLIT', 1)
TS = E('TS', 14)
TV = E('TV', 15)
DEFD = ''
NS_ = E('NS', 0)
SUBR = E('SUBR', 1)
N5 = E('N5', 47)
N6 = E('N6', 53)
N2 = E('N2', 18)
CPS = E('CPS', 3)
PBF = E('PBF', 1)
GB = E('GB', 8)
NB0 = 28

XSZ = 16384
ST = 49152
MISC = 3 * ST
LDS = 163840
NEG = f2u(-1e30)
SPIN = 50000

VL16, AC, AN, VG, IDX, VD, T0 = 1, 2, 3, 4, 5, 6, 7
ONES, L = 8, 12
QB, QA = 16, 24
KF, VF = 32, 40
PB = [48, 56]
SB = [64, 80]
O = 96
ML = 112
OFR = 128
O2, L2, MU, CM, TB, AB, TZ = 128, 144, 148, 164, 180, 188, 189
WS, DBG, SX_, SW_, SS_ = 28, 32, 36, 40, 44
RB, HP, XCD, IDXS, RT, HEAD, RB2, CBK = 48, 49, 50, 51, 52, 53, 54, 55
HEADB = 65
W4K, W1K, I0, WOS, GSRC, ABS = 74, 75, 76, 77, 78, 79
WS6 = 80
MUS, CMS, OUTS, OSTA = 16, 17, 20, 21
OSTB, KH10, CSRC = 24, 25, 26
UO, OQ = 44, 4
NON = 64
FL_OFF = 4 * MB
GP_OFF = 5 * MB
GROT = E('GROT', 1)

def sr(b): return f"s[{b}:{b+3}]"
def mfma16(d, a, b, c):
    cs = c if isinstance(c, str) else v(c, 4)
    return f"v_mfma_f32_16x16x32_bf16 {v(d,4)}, {v(a,4)}, {v(b,4)}, {cs}"
def smf(l, p): return f"v_smfmac_f32_16x16x64_bf16 {v(l,4)}, {v(ONES,4)}, {v(p,8)}, v{IDX}"
def ex(S, i): return f"v_exp_f32 v{S+i}, v{S+i}"
def cv(Pp, S, i): return f"v_cvt_pk_bf16_f32 v{Pp+i}, v{S+2*i}, v{S+2*i+1}"
def keyl(r): return 16 * (r >> 3) + 4 * ((r >> 2) & 1) + (r & 3)

TRN = "setup,g0,pla,pl0,gend,attn,aend,afin,y1a,y1,y3a,y3,y4,oend".split(",")
TRL = {n: 44 + i for i, n in enumerate(TRN)}
def st(A, nm):
    if DIAG: trace(A, TRL[nm])

class VM:
    def __init__(self): self.q = []
    def add(self, tag, n=1): self.q += [tag] * n
    def after(self, *tags):
        if not any(t in tags for t in self.q): return 0
        last = max(i for i, t in enumerate(self.q) if t in tags)
        return len(self.q) - 1 - last

def pack_list(dst, blk, scale):
    o = []
    for a in range(2):
        for b in range(2):
            d = blk[a][b]
            if scale:
                for i in range(2): o.append(f"v_pk_mul_f32 {v(d+2*i,2)}, {v(d+2*i,2)}, s[62:63]")
            for i in range(2): o.append(f"v_cvt_pk_bf16_f32 v{dst+a*4+b*2+i}, v{d+2*i}, v{d+2*i+1}")
    for a in range(2):
        for i in range(2): o.append(f"v_permlane16_swap_b32 v{dst+a*4+i}, v{dst+a*4+2+i}")
    return o

def gen(A, name):
    P = "f_"
    kernel_head(A, name)
    A.e(f"""s_cmp_ge_u32 s2, 256
        s_cbranch_scc1 {P}end2""")
    stamp_init(A)
    if E('HT', 0): A.e("s_memrealtime s[70:71]\ns_memtime s[74:75]")
    if E('SCR', 0):
        A.e("""s_lshr_b32 s56, s2, 3
            s_lshr_b32 s57, s2, 5
            s_xor_b32 s56, s56, s57
            s_and_b32 s56, s56, 7
            s_xor_b32 s2, s2, s56""")
    A.e(f"""s_load_dwordx8 s[4:11], s[0:1], 0
        s_load_dwordx8 s[16:23], s[0:1], 48
        s_load_dwordx4 s[24:27], s[0:1], 80
        s_load_dwordx2 s[12:13], s[0:1], 32
        v_lshrrev_b32 v1, 6, v0
        v_and_b32 v0, 63, v0
        v_readfirstlane_b32 s3, v1
        s_and_b32 s{XCD}, s2, 7
        s_lshr_b32 s{IDXS}, s2, 3
        s_and_b32 s{RB}, s{XCD}, 1
        s_lshl_b32 s{RB}, s{RB}, 3
        s_and_b32 s56, s{IDXS}, 7
        s_add_u32 s{RB}, s{RB}, s56
        s_lshr_b32 s{HP}, s{XCD}, 1
        s_lshl_b32 s{HP}, s{HP}, 2
        s_lshr_b32 s56, s{IDXS}, 3
        s_add_u32 s{HP}, s{HP}, s56
        v_lshlrev_b32 v{VL16}, 4, v0
        s_cmp_lt_u32 s3, 4
        s_cbranch_scc1 {P}compute""")

    def srds():
        srd(A, WS, "s26", "s27", WS_USED)
        srd(A, DBG, "s24", "s25", 256)
        if DIAG: A.e(f"v_mov_b32 v{VD}, 0")
    def setup_v():
        vd = AN if DIAG else VD
        A.e(f"""v_and_b32 v{T0}, 31, v0
            v_lshrrev_b32 v{VG}, 5, v0
            v_lshlrev_b32 v{VG}, 3, v{VG}
            v_sub_u32 v{vd}, v{T0}, v{VG}
            v_mov_b32 v{VG}, {NEG}""")
        for r in range(16): A.e(f"v_subrev_u32 v{ML+r}, {keyl(r)}, v{vd}")
        for r in range(16): A.e(f"v_ashrrev_i32 v{ML+r}, 31, v{ML+r}")
        for r in range(16): A.e(f"v_and_b32 v{ML+r}, v{VG}, v{ML+r}")
        A.e(f"""v_bfe_i32 v{T0}, v0, 2, 1
            v_mov_b32 v{VG}, 0x3f803f80
            v_and_b32 v{ONES+2}, v{VG}, v{T0}
            v_xor_b32 v{ONES}, v{VG}, v{ONES+2}
            v_mov_b32 v{ONES+1}, v{ONES}
            v_mov_b32 v{ONES+3}, v{ONES+2}
            v_bfe_i32 v{T0}, v0, 0, 1
            v_and_b32 v{T0}, 0xaaaa, v{T0}
            v_or_b32 v{IDX}, 0x4444, v{T0}
            v_add_u32 v{AC}, 0x10000, v{VL16}
            v_add_u32 v{AN}, 0x20000, v{VL16}""")
        for i in range(4): A.e(f"v_mov_b32 v{L+i}, 0")
    def setup_s():
        A.e(f"""s_and_b32 s{RB2}, s{XCD}, 3
            s_lshl_b32 s{RB2}, s{RB2}, 2
            s_and_b32 s56, s{IDXS}, 3
            s_add_u32 s{RB2}, s{RB2}, s56
            s_lshl_b32 s{WOS}, s56, 19
            s_lshr_b32 s{CBK}, s{XCD}, 2
            s_lshl_b32 s{CBK}, s{CBK}, 3
            s_lshr_b32 s56, s{IDXS}, 2
            s_add_u32 s{CBK}, s{CBK}, s56
            s_and_b32 s56, s3, 1
            s_lshl_b32 s56, s56, 1
            s_lshr_b32 s{KH10}, s3, 2
            s_add_u32 s56, s56, s{KH10}
            s_lshl_b32 s{ABS}, s56, 12
            s_lshl_b32 s{RT}, s{RB}, 2
            s_add_u32 s{CSRC}, s{RT}, s{KH10}
            s_add_u32 s{RT}, s{RT}, s56
            s_bfe_u32 s56, s3, 0x10001
            s_mul_i32 s57, s56, 49152
            s_add_u32 s{ABS}, s{ABS}, s57
            s_lshl_b32 s{HEAD}, s{HP}, 1
            s_add_u32 s{HEAD}, s{HEAD}, s56
            s_add_u32 s56, s{HEAD}, {2*GROT}
            s_and_b32 s56, s56, 7
            s_and_b32 s57, s{HEAD}, 24
            s_or_b32 s{HEADB}, s56, s57
            s_lshl_b32 s{W4K}, s3, 12
            s_lshl_b32 s{W1K}, s3, 10
            s_sub_i32 s{I0}, 8, s{RT}
            s_cmp_gt_i32 s{I0}, 0
            s_cselect_b32 s{MUS}, 0, 1.0
            s_cmp_gt_i32 s{I0}, 1
            s_cselect_b32 s{CMS}, {NEG}, 0
            s_lshr_b32 s57, s{HEADB}, 1
            s_lshl_b32 s57, s57, 19
            s_and_b32 s27, s3, 3
            s_lshl_b32 s56, s27, 10
            s_add_u32 s57, s57, s56
            s_add_u32 s57, s57, {KVB_OFF}
            s_lshl_b32 s56, s{CSRC}, 12
            s_add_u32 s56, s56, s57
            s_sub_u32 s56, s56, 0x8000""")
        for i in range(6):
            A.e(f"s_max_u32 s{WS6+i}, s56, s57")
            if i < 5: A.e("s_addk_i32 s56, 0x2000")
        A.e(f"""s_lshl_b32 s56, s{RB2}, 2
            s_add_u32 s56, s56, s27
            s_lshl_b32 s{OUTS}, s56, 1
            s_add_u32 s{OUTS}, s{OUTS}, s{KH10}
            s_lshl_b32 s{OUTS}, s{OUTS}, 15
            s_lshl_b32 s57, s{CBK}, 7
            s_add_u32 s{OUTS}, s{OUTS}, s57
            s_lshl_b32 s{UO}, s3, 16
            s_add_u32 s{UO}, s{UO}, s57
            s_add_u32 s{WOS}, s{WOS}, s{UO}
            s_add_u32 s{UO+1}, s{UO}, 0x80000
            s_add_u32 s{UO+2}, s{UO}, 0x100000
            s_add_u32 s{UO+3}, s{UO}, 0x180000
            s_lshl_b32 s56, s56, 17
            s_lshl_b32 s57, s{KH10}, 11
            s_add_u32 s56, s56, s57
            s_add_u32 s{OQ}, s56, {O_OFF + 65536}
            s_movk_i32 s57, 0x2000""")
        if ROT:
            A.e(f"""s_mov_b32 s56, s{OQ}
                s_lshl_b32 s27, s{CBK}, 13""")
            for h in range(8):
                A.e(f"""s_and_b32 s27, s27, 0xffff
                    s_add_u32 s{OQ+h}, s56, s27
                    s_add_u32 s27, s27, s57""")
            A.e(f"s_lshl_b32 s27, s{CBK}, 18")
            for q in range(4):
                A.e(f"""s_add_u32 s{UO+q}, s{UO+q}, s27
                    s_and_b32 s{UO+q}, s{UO+q}, 0x1fffff""")
        else:
            for h in range(1, 8): A.e(f"s_add_u32 s{OQ+h}, s{OQ+h-1}, s57")
        A.e(f"""s_lshl_b32 s{GSRC}, s{RT}, 7
            s_add_u32 s{GSRC}, s{GSRC}, {G_OFF}
            s_lshl_b32 s56, s{RT}, 17
            s_add_u32 s56, s56, {O_OFF}
            s_lshl_b32 s{OSTA}, s{HEAD}, 11
            s_add_u32 s{OSTA}, s{OSTA}, s56
            s_lshl_b32 s{OSTB}, s{HEADB}, 11
            s_add_u32 s{OSTB}, s{OSTB}, s56
            s_add_u32 s{OSTB}, s{OSTB}, 0x10000
            s_lshl_b32 s{KH10}, s{KH10}, 10""")
    def pack(dst, blk, scale):
        for x in pack_list(dst, blk, scale): A.e(x)
    def zero(base, n):
        for i in range(n): A.e(f"v_mov_b32 v{base+i}, 0")
    def signal(phase, t1):
        A.e(f"""s_mov_b64 exec, 1
            v_mov_b32 v{T0}, s{NON}
            v_mov_b32 v{t1}, 0
            s_lshl_b32 s56, s{RB}, 4
            s_add_u32 s56, s56, s{HP}
            s_lshl_b32 s56, s56, {FS}
            s_add_u32 s56, s56, {FL_OFF + (256<<FS)*phase}
            buffer_store_dword v{T0}, v{t1}, {sr(WS)}, s56 offen sc1
            s_mov_b64 exec, -1""")
    def poll_issue(voff, phase, t1=None):
        A.e(f"""s_mov_b32 s62, {FL_OFF + (256<<FS)*phase}
            buffer_load_dword v{T0}, v{voff}, {sr(WS)}, s62 offen sc1""")
        if t1:
            for i in range(3): A.e(f"buffer_load_dword v{t1+i}, v{voff}, {sr(WS)}, s62 offen offset:{(i+1)<<FS} sc1")
    def poll(tag, voff, phase, first_issued, t1=None, slp=SLP):
        A.e(f"s_mov_b32 s57, {1 if ((XP & 32 and tag in '0a') or (XP & 64 and tag in '123')) else SPIN}")
        if first_issued: A.e(f"s_branch {P}pc{tag}")
        A.lab(f"{P}pl{tag}")
        poll_issue(voff, phase, t1)
        A.e("s_waitcnt vmcnt(0)")
        A.lab(f"{P}pc{tag}")
        A.e(f"v_cmp_eq_u32 vcc, s{NON}, v{T0}")
        if t1:
            for i in range(3):
                A.e(f"""s_mov_b64 s[62:63], vcc
                    v_cmp_eq_u32 vcc, s{NON}, v{t1+i}
                    s_and_b64 vcc, vcc, s[62:63]""")
        A.e(f"""s_cmp_eq_u64 vcc, -1
            s_cbranch_scc1 {P}pd{tag}
            s_sleep {slp}
            s_sub_u32 s57, s57, 1
            s_cmp_lg_u32 s57, 0
            s_cbranch_scc1 {P}pl{tag}""")
        A.lab(f"{P}pd{tag}")
    def tag_issue(d, z):
        A.e(f"""v_mov_b32 v{z}, 0
            buffer_load_dword v{d}, v{z}, {sr(DBG)}, 0 offen sc1""")
    def tag_get(lbl, d, z):
        A.e(f"s_mov_b32 s57, {SPIN}")
        A.lab(f"{P}tl{lbl}")
        A.e(f"""v_readfirstlane_b32 s{NON}, v{d}
            s_cmp_lg_u32 s{NON}, 0
            s_cbranch_scc1 {P}td{lbl}
            s_sleep 8
            buffer_load_dword v{d}, v{z}, {sr(DBG)}, 0 offen sc1
            s_waitcnt vmcnt(0)
            s_sub_u32 s57, s57, 1
            s_cmp_lg_u32 s57, 0
            s_cbranch_scc1 {P}tl{lbl}""")
        A.lab(f"{P}td{lbl}")
    gslot = lambda t: ((15 - t) % 3) * ST

    VX, VW, VS, AXS, AWS = 128, 130, 132, 136, 133
    SXF, SWF, SA = 144, 176, 208
    LW, KIND, PHI = 14, 15, 92
    XB, WB, WSTEP, KT, L4K, L8K, PSRC = 93, 94, 96, 98, 99, 100, 101
    L8X, WST2 = 2, 53
    A.e(f"""s_setprio {LPRIO}
        s_sub_u32 s{LW}, s3, 4
        v_lshrrev_b32 v9, 3, v0
        v_and_b32 v16, 7, v0
        v_lshrrev_b32 v17, 4, v0
        v_xor_b32 v17, v17, v16
        v_lshlrev_b32 v17, 4, v17
        v_lshl_add_u32 v{VX}, v9, 11, v17
        v_xor_b32 v{VX+1}, 64, v{VX}
        s_cmp_eq_u32 s{LW}, 0
        s_mov_b32 s57, 6144
        s_cselect_b32 s57, 2048, s57
        v_bfe_u32 v17, v0, 4, 1
        v_lshlrev_b32 v17, 1, v17
        v_xor_b32 v17, v17, v16
        v_lshlrev_b32 v17, 4, v17
        v_mul_u32_u24 v18, s57, v9
        v_add_u32 v{VW}, v18, v17
        v_xor_b32 v{VW+1}, 64, v{VW}
        s_lshl_b32 s{WSTEP}, s57, 3
        s_lshl_b32 s{XB}, s{RB}, 18
        s_lshl_b32 s56, s{LW}, 16
        s_add_u32 s{XB}, s{XB}, s56
        s_max_u32 s56, s{LW}, 1
        s_sub_u32 s56, s56, 1
        s_lshl_b32 s56, s56, 11
        s_mul_i32 s57, s{LW}, {GROT}
        s_add_u32 s57, s57, s{HP}
        s_and_b32 s57, s57, 3
        s_and_b32 s{WB}, s{HP}, 12
        s_or_b32 s57, s57, s{WB}
        s_lshl_b32 s57, s57, 7
        s_add_u32 s{WB}, s56, s57
        s_add_u32 s{PHI}, s{RB}, s{HP}
        s_and_b32 s{PHI}, s{PHI}, 3
        s_and_b32 s56, s{HP}, {12 if ORD == 3 else 4}
        s_or_b32 s{KT}, s{PHI}, s56
        s_lshl_b32 s{KT}, s{KT}, {0 if ORD == 3 else 1}
        s_lshl_b32 s{L4K}, s{LW}, 12
        s_lshl_b32 s{L8K}, s{LW}, 13
        s_add_u32 s{L8X}, s{L8K}, {XSZ}
        s_sub_u32 s{WST2}, s{WSTEP}, 0x400
        s_cmp_eq_u32 s{LW}, 0
        s_waitcnt lgkmcnt(0)
        s_cselect_b32 s{SW_}, s6, s16
        s_cselect_b32 s{SW_+1}, s7, s17
        s_mov_b32 s{SW_+2}, {6*MB}
        s_cselect_b32 s{SW_+2}, {2*MB}, s{SW_+2}
        s_mov_b32 s{SW_+3}, 0x20000""")
    srd(A, SX_, "s4", "s5", 4 * MB)
    gv = VM()
    def issue(t, lo=0, hi=12):
        if SUBR:
            assert (lo, hi) == (0, 12)
            gv.add(f"T{t}", 12)
            if t > 0:
                A.e(f"s_mov_b32 s59, {gslot(t)}")
                if (t & 3) == 0: A.e(f"s_add_u32 s{KT}, s{KT}, 4\ns_and_b32 s{KT}, s{KT}, 15")
                A.e(f"s_call_b64 s[0:1], {P}isub")
                return
            A.e(f"""s_mov_b32 s59, {gslot(0)}
                s_getpc_b64 s[0:1]""")
            A.lab(f"{P}ipc")
            A.e(f"""s_add_u32 s0, s0, {P}iret-{P}ipc
                s_addc_u32 s1, s1, 0""")
            A.lab(f"{P}isub")
            A.e(f"""s_add_u32 m0, s{L4K}, s59
                s_lshl_b32 s56, s{KT}, 7
                s_add_u32 s56, s56, s{XB}""")
            for i in range(4):
                A.e(f"buffer_load_dwordx4 v{VX+(i&1)}, {sr(SX_)}, s56 offen offset:{1024*i} lds")
                if i < 3: A.e(f"s_addk_i32 s56, {16384-1024}")
            A.e(f"""s_add_u32 m0, s{L8X}, s59
                s_mul_i32 s56, s{KT}, s{WSTEP}
                s_lshl_b32 s56, s56, 3
                s_add_u32 s56, s56, s{WB}""")
            for i in range(8):
                A.e(f"buffer_load_dwordx4 v{VW+(i&1)}, {sr(SW_)}, s56 offen offset:{1024*(i&3)} lds")
                if i == 3: A.e(f"s_addk_i32 m0, 0x1000\ns_addk_i32 s56, 0x1000")
                if i < 7: A.e(f"s_add_u32 s56, s56, s{WST2}")
            A.e(f"""s_add_u32 s56, s{KT}, 1
                s_and_b32 s56, s56, 3
                s_and_b32 s{KT}, s{KT}, 12
                s_or_b32 s{KT}, s{KT}, s56
                s_setpc_b64 s[0:1]""")
            A.lab(f"{P}iret")
            return
        for i in range(lo, hi):
            if i < 4:
                if i == lo:
                    A.e(f"""s_add_u32 m0, s{L4K}, {gslot(t) + 1024*i}
                        s_lshl_b32 s56, s{KT}, 7
                        s_add_u32 s56, s56, s{XB}""")
                    if i: A.e(f"s_add_u32 s56, s56, {16384*i}")
                else: A.e("s_add_u32 m0, m0, 1024\ns_add_u32 s56, s56, 16384")
                A.e(f"buffer_load_dwordx4 v{VX+(i&1)}, {sr(SX_)}, s56 offen lds")
            else:
                if i == lo or i == 4:
                    A.e(f"""s_add_u32 m0, s{L8K}, {gslot(t) + XSZ + 1024*(i-4)}
                        s_lshl_b32 s56, s{KT}, 3""")
                    if i > 4: A.e(f"s_add_u32 s56, s56, {i-4}")
                    A.e(f"""s_mul_i32 s56, s56, s{WSTEP}
                        s_add_u32 s56, s56, s{WB}""")
                else: A.e(f"s_add_u32 m0, m0, 1024\ns_add_u32 s56, s56, s{WSTEP}")
                A.e(f"buffer_load_dwordx4 v{VW+(i&1)}, {sr(SW_)}, s56 offen lds")
            gv.add(f"T{t}")
        if hi == 12 and t < 15:
            pm = 3 if ORD == 3 else 7
            A.e(f"""s_add_u32 s56, s{KT}, 1
                s_and_b32 s56, s56, {pm}""")
            if (t & pm) == pm: A.e(f"s_add_u32 s{KT}, s{KT}, {pm+1}")
            A.e(f"""s_and_b32 s{KT}, s{KT}, {15 - pm}
                s_or_b32 s{KT}, s{KT}, s56""")
    DEF = {int(x.split(":")[0]): int(x.split(":")[1]) for x in os.environ.get("DEF", DEFD).split(",") if x}
    marks = {}
    A.e(f"s_mov_b32 s95, s{KT}")
    issue(0)
    SG, GA, AGS, PI = 32, 64, 134, 97
    A.e(f"s_and_b32 s{KIND}, s{PHI}, 1" if ORD == 3 else f"s_lshr_b32 s{KIND}, s{HP}, 3")
    A.e(f"""s_cmp_eq_u32 s{KIND}, 0
        s_cselect_b32 s{SS_}, s8, s10
        s_cselect_b32 s{SS_+1}, s9, s11
        s_mov_b32 s{SS_+2}, 65536
        s_mov_b32 s{SS_+3}, 0x20000
        s_cmp_lt_u32 s{LW}, 2
        s_cselect_b32 s56, s95, s{KT}
        s_lshl_b32 s56, s56, 12
        s_and_b32 s57, s{LW}, 1
        s_lshl_b32 s57, s57, 11
        s_add_u32 s56, s56, s57
        s_lshl_b32 s57, s{LW}, 11
        s_add_u32 m0, s57, {MISC}
        v_mov_b32 v17, s95
        buffer_load_dwordx4 v{VL16}, {sr(SS_)}, s56 offen lds
        buffer_load_dwordx4 v{VL16}, {sr(SS_)}, s56 offen offset:1024 lds
        v_mov_b32 v18, s{KT}
        v_cmp_gt_u32 vcc, 8, v0
        v_lshlrev_b32 v19, 4, v16
        v_lshrrev_b32 v20, 4, v0
        v_cndmask_b32 v17, v18, v17, vcc
        v_lshl_add_u32 v19, v17, 7, v19
        v_lshl_add_u32 v19, v20, 16, v19
        s_lshl_b32 s57, s{LW}, 10
        s_add_u32 s57, s57, {MISC + 8192}
        s_mov_b32 m0, s57""")
    srd(A, 60, "s20", "s21", 2048)
    A.e(f"""buffer_load_dwordx4 v19, s[60:63], 0 offen lds
        v_lshrrev_b32 v17, 5, v0
        v_lshl_add_u32 v{AGS}, v17, 4, s57""")
    srds()
    A.e(f"""v_and_b32 v16, 31, v0
        v_lshrrev_b32 v17, 5, v0
        v_bfe_u32 v18, v0, 1, 3
        v_xor_b32 v19, v17, v18
        v_lshlrev_b32 v19, 4, v19
        v_lshl_add_u32 v19, v16, 7, v19
        v_add_u32 v{AXS}, s{L4K}, v19
        v_xor_b32 v{AXS+1}, 32, v{AXS}
        v_xor_b32 v{AXS+2}, 64, v{AXS}
        v_xor_b32 v{AXS+3}, 0x60, v{AXS}
        v_bfe_u32 v18, v0, 2, 2
        v_lshl_add_u32 v19, v17, 3, v18
        v_lshlrev_b32 v19, 6, v19
        v_bfe_u32 v18, v0, 4, 1
        v_lshl_add_u32 v19, v18, 5, v19
        v_and_b32 v18, 3, v0
        v_bfe_u32 v20, v0, 1, 1
        v_and_b32 v21, 1, v0
        v_lshl_or_b32 v20, v21, 1, v20
        s_cmp_eq_u32 s{KIND}, 0
        s_cselect_b64 vcc, -1, 0
        v_cndmask_b32 v18, v18, v20, vcc
        v_lshl_add_u32 v19, v18, 3, v19
        v_add_u32 v{AWS}, {MISC}, v19
        v_lshlrev_b32 v{VS}, 2, v0
        v_mov_b32 v{GA}, 0
        v_mov_b32 v{GA+1}, 0
        s_lshr_b32 s{PI}, s95, 1
        s_lshl_b32 s{PSRC}, s{RB}, 1
        s_add_u32 s{PSRC}, s{PSRC}, s{KIND}
        s_lshl_b32 s{PSRC}, s{PSRC}, 17
        s_add_u32 s{PSRC}, s{PSRC}, {PART_OFF}""")
    st(A, "setup")
    issue(1)
    A.e(f"s_waitcnt vmcnt({12 if SPLIT else 15})")
    st(A, "g0")
    RL = SXF
    def lsignal(t, ph):
        A.e(f"""s_cmp_lg_u32 s{LW}, 0
            s_cbranch_scc1 {P}ls{t}""")
        signal(ph, 17)
        A.lab(f"{P}ls{t}")
    def side_compute(ks):
        tg = ks[0]
        A.e(f"""s_cmp_eq_u32 s{KIND}, 1
            s_cbranch_scc1 {P}lv{tg}""")
        for k in ks: A.e(f"ds_read_b128 {v(SG+4*k,4)}, v{AGS} offset:{32*k}")
        A.e(f"s_waitcnt lgkmcnt({len(ks)})")
        for k in ks: A.e(mfma32(SA, SWF + 4*k, SXF + 4*k, "0" if k == 0 else SA))
        A.e("s_waitcnt lgkmcnt(0)")
        for k in range(4*ks[0], 4*ks[-1]+4): A.e(f"v_dot2_f32_bf16 v{GA+(k&1)}, v{SXF+k}, v{SG+k}, v{GA+(k&1)}")
        A.e(f"s_branch {P}lw{tg}")
        A.lab(f"{P}lv{tg}")
        A.e("s_waitcnt lgkmcnt(0)")
        for k in ks: A.e(mfma32(SA, SXF + 4*k, SWF + 4*k, "0" if k == 0 else SA))
        A.lab(f"{P}lw{tg}")
    def reduce_store():
        A.e(f"""s_lshl_b32 s56, s{RB}, 2
            s_lshr_b32 s57, s{PI}, 1
            s_add_u32 s56, s56, s57
            s_cmp_lg_u32 s{LW}, 0
            s_cbranch_scc1 {P}lgate""")
        if PBF:
            A.e("v_mov_b32 v20, 0x3f80\nv_mov_b32 v21, 1.0")
            for q in range(8):
                for i in range(8): A.e(f"v_dot2_f32_bf16 v{RL+i}, v{RL+8+4*q+(i>>1)}, v{20+(i&1)}, " + ("0" if q == 0 else f"v{RL+i}"))
            A.e("s_nop 0")
        else:
            for st_ in (32, 16, 8):
                for i in range(0, st_, 2): A.e(f"v_pk_add_f32 {v(RL+i,2)}, {v(RL+i,2)}, {v(RL+st_+i,2)}")
        A.e(f"""s_cmp_eq_u32 s{KIND}, 0
            s_cselect_b32 s57, {f2u(CSCALE)}, 1.0""")
        for i in range(8): A.e(f"v_mul_f32 v{RL+i}, s57, v{RL+i}")
        for i in range(4): A.e(f"v_cvt_pk_bf16_f32 v{SA+i}, v{RL+2*i}, v{RL+2*i+1}")
        A.e(f"""s_lshl_b32 s56, s56, 12
            s_lshl_b32 s57, s{KIND}, 11
            s_add_u32 s56, s56, s57
            s_and_b32 s57, s{PI}, 1
            s_lshl_b32 s57, s57, 10
            s_add_u32 s56, s56, s57
            s_add_u32 s56, s56, {KVA_OFF}
            buffer_store_dwordx4 {v(SA,4)}, v{VL16}, {sr(WS)}, s56 offen sc1
            s_branch {P}lsd""")
        A.lab(f"{P}lgate")
        A.e(f"""s_cmp_lg_u32 s58, 1
            s_cbranch_scc1 {P}lsd""")
        for i in range(1, 8): A.e(f"v_add_f32 v{RL}, v{RL}, v{RL+i}")
        A.e(f"""v_mov_b32 v{RL+1}, v{RL}
            s_lshl_b32 s56, s56, 7
            s_add_u32 s56, s56, {G_OFF}
            v_permlane32_swap_b32 v{RL}, v{RL+1}
            v_and_b32 v16, 31, v0
            v_add_f32 v{RL}, v{RL}, v{RL+1}
            v_mul_f32 v{RL}, {f2u(-LOG2E)}, v{RL}
            v_exp_f32 v{RL}, v{RL}
            v_lshlrev_b32 v16, 2, v16
            v_add_f32 v{RL}, 1.0, v{RL}
            v_rcp_f32 v{RL}, v{RL}
            s_nop 0
            buffer_store_dword v{RL}, v16, {sr(WS)}, s56 offen sc1""")
        A.lab(f"{P}lsd")
    for t in range(16):
        A.e("s_barrier")
        trace(A, t)
        if t < 2:
            for k in range(4): A.e(f"ds_read_b128 {v(SXF+16*t+4*k,4)}, v{AXS+k}")
        if t == 0:
            for k in range(4): A.e(f"v_add_u32 v{AXS+k}, {gslot(1) - gslot(0)}, v{AXS+k}")
        ks = ([list(range(4)), list(range(4, 8))] if SPLIT else [[], list(range(8))])[t] if t < 2 else []
        for k in ks:
            A.e(f"""ds_read_b64_tr_b16 {v(SWF+4*k,2)}, v{AWS} offset:{1024*k}
                ds_read_b64_tr_b16 {v(SWF+4*k+2,2)}, v{AWS} offset:{1024*k+256}""")
            if k in (3, 7): A.e("s_waitcnt lgkmcnt(4)")
        if t == 1:
            tag_issue(18, 17); marks.setdefault(2, []).append(len(gv.q))
        if ks and SFIRST and not NS_ & 1: side_compute(ks)
        if t == TSA: lsignal(t, 0)
        if t == TRED + 1 + RAFT: lsignal(t, 1)
        if t == TPA:
            A.e(f"""s_and_b32 s58, s{PI}, 1
                s_add_u32 s58, s58, s{KIND}
                s_add_u32 s58, s58, s{LW}
                s_cmp_eq_u32 s{LW}, 0
                s_cselect_b32 s58, 0, s58
                v_and_b32 v16, 7, v0
                v_lshlrev_b32 v16, {FS+1 if ORD == 3 else FS}, v16
                s_and_b32 s57, s{HP}, {1 if ORD == 3 else 8}
                s_lshl_b32 s56, s{RB}, 4
                s_add_u32 s56, s56, s57
                s_lshl_b32 s56, s56, {FS}
                v_add_u32 v16, s56, v16
                s_cmp_ge_u32 s58, 2
                s_cbranch_scc1 {P}lta""")
            poll_issue(16, 0)
            A.lab(f"{P}lta")
            marks.setdefault(t, []).append(len(gv.q))
        if t == TPOLL:
            A.e(f"""v_lshlrev_b32 v16, {FS+2}, v0
                s_cmp_lg_u32 s{LW}, 0
                s_cbranch_scc1 {P}lt0""")
            poll_issue(16, 1, 17)
            A.lab(f"{P}lt0")
            marks.setdefault(t, []).append(len(gv.q))
        if t == TRED and not RAFT:
            reduce_store(); marks.setdefault(t, []).append(len(gv.q))
        if DEF.get(t - 1): issue(t + 1, 12 - DEF[t - 1], 12)
        if t + 2 < 16: issue(t + 2, 0, 12 - DEF.get(t, 0))
        if t == 0: A.e("s_waitcnt lgkmcnt(0)")
        if ks and not SFIRST:
            side_compute(ks)
            A.e("s_nop 7")
        if t == TST and not NS_ & 2:
            A.e(f"""s_lshl_b32 s56, s{LW}, 3
                s_add_u32 s56, s56, s{PI}
                s_lshl_b32 s57, s56, 12
                s_add_u32 s57, s57, s{PSRC}
                v_add_f32 v{GA}, v{GA}, v{GA+1}""")
            if PBF:
                for i in range(8): A.e(f"v_cvt_pk_bf16_f32 v{SA+16+i}, v{SA+2*i}, v{SA+2*i+1}")
                for q in range(2): A.e(f"buffer_store_dwordx4 {v(SA+16+4*q,4)}, v{VL16}, {sr(WS)}, s57 offen offset:{2048*q} sc1")
            else:
                for q in range(4): A.e(f"buffer_store_dwordx4 {v(SA+4*q,4)}, v{VL16}, {sr(WS)}, s57 offen offset:{1024*q} sc1")
            A.e(f"""s_cmp_eq_u32 s{KIND}, 1
                s_cbranch_scc1 {P}lp1
                s_lshl_b32 s57, s{RB}, 5
                s_add_u32 s56, s56, s57
                s_lshl_b32 s56, s56, 8
                s_add_u32 s56, s56, {GP_OFF}
                buffer_store_dword v{GA}, v{VS}, {sr(WS)}, s56 offen sc1""")
            A.lab(f"{P}lp1")
            gv.add("S", 2 if PBF else 4); marks.setdefault(TSA - 1, []).append(len(gv.q))
        if t == TRED and RAFT and not NS_ & 8:
            reduce_store(); marks.setdefault(t + 1, []).append(len(gv.q))
        ncs = 0
        if t > TPOLL and (t == TPOLL + 1 or t == 15):
            cs = []
            if t == TPOLL + 1: cs.append((0, 3))
            if t == 15: cs.append((1, 2))
            for c, slot in cs:
                for hf in range(2):
                    A.e(f"""s_add_u32 m0, s{L8K}, {slot*32768 + hf*4096}
                        s_add_u32 s56, s{L8K}, {KVA_OFF + c*32768 + hf*4096}""")
                    for i in range(4): A.e(f"buffer_load_dwordx4 v{VL16}, {sr(WS)}, s56 offen offset:{1024*i} sc1 lds")
                gv.add('C', 8)
        for nm, tt in (("s", TS), ("v", TV)):
            if t == tt:
                A.e(f"s_branch {P}set{nm}")
                A.lab(f"{P}set{nm}_r")
        if t < 15: A.e(f"s_waitcnt vmcnt({min([gv.after(f'T{t+1}')] + [len(gv.q) - m for m in marks.get(t, [])])})")
        if t == 2: tag_get("l", 18, 17)
        if t == TPA and not NS_ & 4:
            A.e(f"""s_cmp_ge_u32 s58, 2
                s_cbranch_scc1 {P}lp2""")
            poll("a", 16, 0, True)
            st(A, "pla")
            A.e(f"""s_lshr_b32 s56, s{PI}, 1
                s_cmp_eq_u32 s58, 1
                s_cbranch_scc1 {P}lp3
                s_lshl_b32 s56, s56, 15
                s_and_b32 s57, s{PI}, 1
                s_lshl_b32 s57, s57, 11
                s_add_u32 s56, s56, s57
                s_add_u32 s56, s56, s{PSRC}""")
            for q in range(8):
                if PBF: A.e(f"buffer_load_dwordx4 {v(RL+8+4*q,4)}, v{VL16}, {sr(WS)}, s56 offen sc1")
                else: A.e(f"""buffer_load_dwordx4 {v(RL+8*q,4)}, v{VL16}, {sr(WS)}, s56 offen sc1
                    buffer_load_dwordx4 {v(RL+8*q+4,4)}, v{VL16}, {sr(WS)}, s56 offen offset:1024 sc1""")
                if q < 7: A.e("s_add_u32 s56, s56, 4096")
            A.e(f"s_branch {P}lp2")
            A.lab(f"{P}lp3")
            A.e(f"""s_lshl_b32 s57, s{RB}, 2
                s_add_u32 s56, s56, s57
                s_lshl_b32 s56, s56, 11
                s_add_u32 s56, s56, {GP_OFF}""")
            for q in range(8): A.e(f"buffer_load_dword v{RL+q}, v{VS}, {sr(WS)}, s56 offen offset:{256*q} sc1")
            A.lab(f"{P}lp2")
            marks.setdefault(TRED - 1, []).append(len(gv.q))
        if t == TPOLL:
            A.e(f"""s_cmp_lg_u32 s{LW}, 0
                s_cbranch_scc1 {P}pd0""")
            poll("0", 16, 1, True, t1=17)
            st(A, "pl0")
    A.e(f"""s_add_u32 s56, s{L4K}, {MISC}
        v_add_u32 v16, s56, v{VL16}
        s_setprio 0
        s_waitcnt vmcnt(0)
        s_barrier""")
    st(A, "gend")
    A.e(f"""ds_read_b128 {v(QA,4)}, v16
        ds_read_b128 {v(QA+4,4)}, v16 offset:1024
        ds_read_b128 {v(QB+4,4)}, v16 offset:3072
        ds_read_b128 {v(QB,4)}, v16 offset:2048""")

    A.lab(f"{P}attn")
    if E('STOPG', 0): A.e(f"s_branch {P}end")
    st(A, "attn")
    VOO, VXW, VXO = ML, ML + 12, ML + 14
    VWO = [ML + 4, ML + 1, ML + 2, ML + 3]
    VO4 = [ML + 5, ML + 6, ML + 7, ML + 15]
    VW2, VH1 = 192, 191
    def la(off): return ([VL16, AC, AN][off >> 16], off & 0xffff)
    def rdK(addr, off): return [f"ds_read_b128 {v(KF+4*i,4)}, v{addr} offset:{off+1024*i}" for i in range(2)]
    def rdV(addr, off): return [f"ds_read_b128 {v(VF+4*i,4)}, v{addr} offset:{off+2048+1024*i}" for i in range(2)]
    cslot = lambda c: {0: 3, 1: 2, 2: 4}.get(c, c % 5)
    seq = [("A", j) for j in range(NB0)] + [("B", i) for i in range(9)] + [("A", j) for j in range(NB0, 64)]
    seq += [("A", 63), ("A", 63)]
    def taddr(n):
        k, j = seq[n]
        return la(cslot(j >> 3) * 32768 + (j & 7) * 4096) if k == "A" else (AB, j * 4096)
    def tq(n): return QA if seq[n][0] == "A" else QB
    def tc(n):
        k, j = seq[n]
        return "0" if k == "A" else (MU if j == 0 else ML if j == 8 else CM)
    def to(n): return (O, L) if seq[n][0] == "A" else (O2, L2)
    for x in rdK(*taddr(0)): A.e(x)
    srd(A, SW_, "s18", "s19", 2 * MB)
    A.e("s_waitcnt lgkmcnt(0)")
    A.e(mfma32(SB[0], KF, QA, "0"))
    A.e(mfma32(SB[0], KF + 4, QA + 4, SB[0]))
    for x in rdK(*taddr(1)): A.e(x)
    srd(A, SX_, "s12", "s13", 2 * MB)
    A.e(f"""v_mov_b32 v{TZ}, {NEG}
        v_mov_b32 v{TZ+1}, 0
        v_add_u32 v{AB}, s{ABS}, v{VL16}
        v_add_u32 v{VH1}, {64*4096}, v{VL16}
        s_waitcnt lgkmcnt(0)""")
    vm = VM()
    def cpiece(c, i):
        o = [f"s_add_u32 m0, s{W4K}, {cslot(c)*32768}", f"s_add_u32 s{CSRC}, s{W4K}, {KVA_OFF + c*32768}"] if i == 0 else []
        return (f"C{c}", o + [f"buffer_load_dwordx4 v{VL16}, {sr(WS)}, s{CSRC} offen offset:{i*1024} sc1 lds"])
    def wpiece(i):
        return ("W", [f"s_add_u32 m0, s{W1K}, {i*8192}", f"buffer_load_dwordx4 v{VH1 if i >= 6 else VL16}, {sr(WS)}, s{WS6+i%6} offen sc1 lds"])
    def upiece(u, k):
        o = [f"s_add_u32 m0, s{W4K}, {(u%5)*32768}"] if k == 0 else []
        return (f"U{u}", o + [f"buffer_load_dwordx4 v{VWO[k]}, {sr(SW_ if u < 12 else SX_)}, s{UO+(u&3)} offen offset:{k*1024} lds"])
    def warm(i):
        return ("Z", [f"buffer_load_dwordx4 v[252:255], v{VW2+(i&3)}, {sr(SW_ if i < 4 else SX_)}, s{WOS} offen offset:{(i&3)*1024}"])
    def oload(n, half):
        return ("O", [f"buffer_load_dwordx4 {v(OFR+4*n,4)}, v{VO4[n&3]}, {sr(WS)}, s{OQ+(n>>2)} offen sc1"])
    bg = {n: [] for n in range(73)}
    bv = {n: [] for n in range(73)}
    for i in range(4): bg[i].append(cpiece(2, i))
    for i in range(4): bg[E1N + i // 2].append(cpiece(3, i))
    for i in range(12): bg[N2 + i // 2].append(wpiece(i))
    bv[N2 + 5] += [f"v_and_b32 v{TZ}, 31, v0", f"v_lshlrev_b32 v{TZ}, 2, v{TZ}"]
    bg[N2 + 6].append(("G", [f"buffer_load_dword v{VG}, v{TZ}, {sr(WS)}, s{GSRC} offen sc1"]))
    for i in range(4): bg[26 + i // 2].append(cpiece(4, i))
    if WARM:
        for i in range(8): bg[28 + i].append(warm(i))
    for i in range(12): bg[39 + i // CPS].append(cpiece(5 + i // 4, i & 3))
    for i in range(4): bg[N5 + i].append(upiece(8, i))
    for i in range(4): bg[N6 + 3 + i].append(upiece(9, i))
    for i in range(8): bg[65 + i].append(upiece(10 + i // 4, i & 3))
    for i in range(32): bg[N6 + ((71 - N6) * i) // 31].append(oload(i, 1))
    for i in range(4):
        bv[4 + i] += [f"v_fma_f32 v{MU+r}, -v{ML+r}, s{MUS}, v{TZ}" for r in range(4*i, 4*i+4)]
        bv[12 + i] += [f"v_mov_b32 v{CM+r}, s{CMS}" for r in range(4*i, 4*i+4)] + [f"v_mov_b32 v{L2+i}, 0"]
    bv[24] += [f"v_lshrrev_b32 v{VW2}, 3, v0", f"v_bfe_u32 v{TB}, v0, 4, 2", f"v_lshlrev_b32 v{TB}, 1, v{TB}", f"v_and_b32 v{TB+1}, 7, v0",
               f"v_xor_b32 v{TB}, v{TB}, v{TB+1}", f"v_lshlrev_b32 v{TB}, 4, v{TB}", f"v_lshl_add_u32 v{VW2}, v{VW2}, 11, v{TB}"]
    bv[25] += [f"v_add_u32 v{VW2+k}, {k*15360}, v{VW2}" for k in range(1, 4)]
    bv[NB0 + 8] += [f"v_and_b32 v{VOO}, 15, v0", f"v_bfe_u32 v{VOO+1}, v0, 4, 1", f"v_lshrrev_b32 v{VOO+2}, 5, v0",
                    f"v_lshlrev_b32 v{VXO}, 11, v{VOO}", f"v_lshl_add_u32 v{VXO}, v{VOO+1}, 5, v{VXO}", f"v_lshl_add_u32 v{VXO}, v{VOO+2}, 4, v{VXO}",
                    f"v_lshlrev_b32 v{VOO}, 4, v{VOO}", f"v_lshl_add_u32 v{VOO}, v{VOO+1}, 10, v{VOO}", f"v_lshl_add_u32 v{VOO}, v{VOO+2}, 8, v{VOO}"]
    bv[NB0 + 9] += [f"v_mov_b32 v{VWO[k]}, v{VW2+k}" for k in range(4)]
    bv[44] += [f"v_add_u32 v{VO4[0]}, s{KH10}, v{VL16}", f"v_xor_b32 v{VO4[1]}, 0x400, v{VO4[0]}", f"v_add_u32 v{VO4[2]}, 0x1000, v{VO4[0]}", f"v_add_u32 v{VO4[3]}, 0x1000, v{VO4[1]}",
               f"v_add_u32 v{VXW}, s{W4K}, v{VL16}", f"v_xor_b32 v{VXW+1}, 0x4000, v{VXW}"]
    ntr = [0]
    def bar(wait=None, pre=None, post=None):
        if pre:
            A.e(f"s_cmp_eq_u32 s3, 4\ns_cbranch_scc1 {P}{pre}")
            A.lab(f"{P}{pre}_r")
        if wait is not None: A.e(f"s_waitcnt vmcnt({wait})")
        A.e("s_barrier")
        if post:
            A.e(f"s_cmp_eq_u32 s3, 4\ns_cbranch_scc1 {P}{post}")
            A.lab(f"{P}{post}_r")
        trace(A, 34 + ntr[0]); ntr[0] += 1
    tops = {
        E1N: lambda: bar(0, post="sig1"),
        N2: lambda: bar(vm.after("C3"), pre="poll1"),
        26: lambda: bar(vm.after("W")),
        39: lambda: bar(vm.after("C4")),
        N5: lambda: bar(0, post="sig2"),
        N6: lambda: bar(None, pre="poll2"),
        65: lambda: bar(vm.after("U8")),
    }
    bnd = [0] + sorted(tops) + [73]
    lvl = {}
    for a_, b_ in zip(bnd, bnd[1:]):
        for n in range(a_, b_): lvl[n] = 3 - (PRL * (n - a_)) // (b_ - a_)
    pw = {}
    def step(n):
        par = n & 1
        S, Sn, Pc, Pp = SB[par], SB[1-par], PB[par], PB[1-par]
        q = []
        for tag, lines in bg[n]:
            if tag[0] in os.environ.get("DROP", "") or XP & 1: continue
            q += [(tag if x.startswith("buffer") else None, x) for x in lines]
        nfront = max(0, min(4, len(q) - 1))
        def B(slot):
            k = (1 if slot >= 4 - nfront else 0) if slot < 4 else len(q)
            for _ in range(k):
                tag, x = q.pop(0)
                if " lds" in x and A.l[-1].strip().startswith("s_add_u32 m0"): A.e("s_nop 0")
                A.e(x)
                if tag: vm.add(tag)
        oprev, lprev = to(max(n - 1, 0))
        for k_, n_ in ((1, N2), (2, N6)):
            if n == n_ - PRE:
                A.e(f"s_cmp_eq_u32 s3, 4\ns_cbranch_scc1 {P}pre{k_}")
                A.lab(f"{P}pre{k_}_r")
                pw[k_] = len(vm.q)
            if n == n_: pw[k_] = len(vm.q) - pw[k_]
        if n in tops and not (XP & 4): tops[n]()
        if PRL and (n == 0 or lvl[n] != lvl[n - 1]): A.e(f"s_setprio {lvl[n]}")
        k, j = seq[n + 1]
        if k == "B" and 2 <= j <= 7:
            A.e(f"s_cmp_eq_u32 s{I0}, {j}\ns_cbranch_scc1 {P}cm{j}")
            A.lab(f"{P}cm{j}_r")
        A.e(mfma32(Sn, KF, tq(n + 1), tc(n + 1)))
        A.e(rdK(*taddr(n + 2))[0]); B(0)
        for j in (0, 1, 2, 3): A.e(ex(S, j))
        if n > 0: A.e(mfma32(oprev, VF, Pp, "0" if n - 1 in (0, NB0) else oprev))
        A.e(rdV(*taddr(n))[0]); B(1)
        A.e(cv(Pc, S, 0)); A.e(cv(Pc, S, 1))
        for j in (4, 5, 6): A.e(ex(S, j))
        A.e(mfma32(Sn, KF + 4, tq(n + 1) + 4, Sn))
        A.e(rdK(*taddr(n + 2))[1]); B(2)
        A.e(ex(S, 7)); A.e(cv(Pc, S, 2)); A.e(ex(S, 8)); A.e(cv(Pc, S, 3))
        if n > 0: A.e(mfma32(oprev, VF + 4, Pp + 4, oprev))
        A.e(rdV(*taddr(n))[1]); B(3)
        A.e(ex(S, 9)); A.e(ex(S, 10)); A.e(cv(Pc, S, 4))
        if not XP & 2:
            for x in bv[n]: A.e(x)
        A.e(ex(S, 11)); A.e(ex(S, 12)); A.e(cv(Pc, S, 5)); A.e(ex(S, 13)); A.e(ex(S, 14)); A.e(ex(S, 15))
        if n > 0: A.e(smf(lprev, Pp))
        B(4)
        A.e("s_waitcnt lgkmcnt(0)")
        A.e(cv(Pc, S, 6)); A.e(cv(Pc, S, 7))
    def finalize(tag, which, o, l, tmp):
        A.e(f"s_mov_b32 s63, 0")
        A.lab(f"{P}norm{tag}")
        A.e(f"""v_add_f32 v{T0}, v{l}, v{l+1}
            v_rcp_f32 v{tmp}, v{T0}""")
        if which == 0:
            A.e(f"""s_waitcnt vmcnt({vm.after('G')})
                v_sub_f32 v{tmp+1}, 1.0, v{VG}
                v_mul_f32 v{tmp}, v{tmp}, v{tmp+1}""")
        else:
            A.e(f"s_nop 0\nv_mul_f32 v{tmp}, v{tmp}, v{VG}")
        for i in range(8): A.e(f"v_pk_mul_f32 {v(o+2*i,2)}, {v(o+2*i,2)}, {v(tmp,2)} op_sel_hi:[1,0]")
        A.e(f"v_pk_add_f32 {v(tmp+2,2)}, {v(o,2)}, {v(o+2,2)}")
        for i in range(2, 8): A.e(f"v_pk_add_f32 {v(tmp+2,2)}, {v(tmp+2,2)}, {v(o+2*i,2)}")
        A.e(f"""v_sub_f32 v{tmp+2}, v{tmp+2}, v{tmp+2}
            v_fma_f32 v{tmp+2}, v{tmp+3}, v{tmp+2}, v{T0}
            v_cmp_le_f32 vcc, {f2u(2.0**-64)}, v{tmp+2}
            s_mov_b64 s[56:57], vcc
            v_cmp_ge_f32 vcc, {f2u(2.0**64)}, v{tmp+2}""")
        for i in range(8): A.e(f"v_cvt_pk_bf16_f32 v{tmp+i}, v{o+2*i}, v{o+2*i+1}")
        A.e(f"""s_and_b64 vcc, vcc, s[56:57]
            s_cmp_eq_u64 vcc, -1
            s_cselect_b32 s62, 1, s63
            s_cmp_eq_u32 s62, 0
            {"s_nop 0" if XP else f"s_cbranch_scc1 {P}slow{tag}"}
            buffer_store_dwordx4 {v(tmp,4)}, v{VOO}, {sr(WS)}, s{OSTB if which == 0 else OSTA} offen sc1
            buffer_store_dwordx4 {v(tmp+4,4)}, v{VOO}, {sr(WS)}, s{OSTB if which == 0 else OSTA} offen offset:512 sc1""")
        vm.add("S" + tag, 2)
    for n in range(73):
        step(n)
        if n == NB0 + 10 and not (XP & 8): finalize("B", 0, O2, L2, TB)
    A.e(mfma32(O, VF, PB[0], O))
    A.e("s_nop 0")
    A.e(mfma32(O, VF + 4, PB[0] + 4, O))
    A.e(smf(L, PB[0]))
    for h in range(8): A.e(f"s_sub_u32 s{OQ+h}, s{OQ+h}, 0x10000")
    A.e("s_setprio 0")
    st(A, "aend")
    if XP & 31: A.e(f"s_branch {P}end")
    AWO, OAC = 16, 64
    WFO = [32, 48]
    TA = SB[0]
    A.e(f"""v_lshrrev_b32 v20, 4, v0
        v_bfe_u32 v21, v0, 2, 2
        v_and_b32 v22, 1, v20
        v_lshl_add_u32 v22, v22, 2, v21
        v_lshrrev_b32 v23, 1, v20
        v_lshl_add_u32 v23, v23, 4, v22
        v_lshlrev_b32 v23, 7, v23
        v_and_b32 v20, 3, v0
        v_lshl_add_u32 v23, v20, 3, v23
        s_lshr_b32 s56, s3, 2
        s_lshl_b32 s56, s56, 12
        s_add_u32 s56, s56, {3*32768}
        v_add_u32 v23, s56, v23
        v_lshrrev_b32 v22, 1, v22""")
    for nb in range(4):
        A.e(f"v_xor_b32 v20, {nb}, v22\nv_lshl_add_u32 v{AWO+nb}, v20, 5, v23")
    finalize("A", 1, O, L, TA)
    st(A, "afin")

    def oreads(buf, i):
        return [f"ds_read_b64_tr_b16 {v(WFO[buf]+4*nb+2*jh,2)}, v{AWO+nb} offset:{i*8192+jh*1024}" for nb in range(4) for jh in range(2)]
    for r in oreads(0, 0): A.e(r)
    oidx = [i for i, t in enumerate(vm.q) if t == "O"] or [0] * 32
    def emit(x):
        for l_ in x[1]:
            if " lds" in l_ and A.l[-1].strip().startswith("s_add_u32 m0"): A.e("s_nop 0")
            A.e(l_)
        vm.add(x[0])
    def y1():
        st(A, "y1a")
        A.e("s_waitcnt vmcnt(0)\ns_barrier")
        st(A, "y1")
        A.e(f"""s_cmp_lg_u32 s3, 4
            s_cbranch_scc1 {P}y1""")
        signal(4, AN)
        A.lab(f"{P}y1")
    def ypre():
        A.e(f"""s_cmp_lg_u32 s3, 4
            s_cbranch_scc1 {P}yp
            v_and_b32 v20, 15, v0
            v_lshlrev_b32 v20, {FS}, v20
            s_lshl_b32 s56, s{RB2}, {FS+4}
            v_add_u32 v20, s56, v20""")
        poll_issue(20, 4)
        A.lab(f"{P}yp")
        pw[3] = len(vm.q)
    def ypoll():
        st(A, "y3a")
        A.e(f"""s_cmp_lg_u32 s3, 4
            s_cbranch_scc1 {P}pd3
            s_waitcnt vmcnt({len(vm.q) - pw[3]})""")
        poll("3", 20, 4, True, slp=SLP3)
    def ybar(*tags):
        if tags: A.e(f"s_waitcnt vmcnt({vm.after(*tags)})")
        A.e("s_barrier")
    pre = {j: [] for j in range(32)}
    obg = {j: [] for j in range(32)}
    pre[3].append(y1)
    pre[JP].append(ypoll)
    for j in sorted({7, 11, JP}):
        pre[j].append((lambda: ybar("U12", "U13")) if j == 11 else ybar)
    if DIAG: pre[JP].append(lambda: st(A, "y3"))
    pre[JV].append(lambda: ybar("U14", "U15"))
    if os.environ.get("DIAG") == "1": pre[16].append(lambda: st(A, "y4"))
    for k in range(8): obg[3 + k // 2].append(upiece(12 + k // 4, k & 3))
    nl = 0
    for j in range(JP, 32):
        c = 0
        while not (XP & 128) and nl < 32 and c < (LPS if j < 16 else 2) and nl // 2 < j:
            obg[j].append((f"OA{nl}", oload(nl, 0)[1])); nl += 1; c += 1
    for k in range(4): obg[7 + k].append(upiece(14, k))
    for k in range(4): obg[JU + k].append(upiece(15, k))
    for j in range(32):
        u, i = 8 + j // 4, j & 3
        q, buf = u & 3, i & 1
        order = [(nb, f if nb % 2 == 0 else 1 - f) for nb in range(4) for f in range(2)]
        if j == 31: order = [(nb, 1) for nb in range(4)] + [(3 - nb, 0) for nb in range(4)]
        ms = [mfma16(OAC + 4*(f*4+nb), WFO[buf]+4*nb, OFR+32*q+8*i+4*f, "0" if j == 0 else OAC + 4*(f*4+nb)) for nb, f in order]
        w = min(60, len(vm.q) - 1 - oidx[7]) if j == 0 else vm.after(f"OA{2*(j-16)+1}") if j >= 16 else None
        lg = 0 if (pre[j] or j == 31) else 4
        A.e(f"s_waitcnt lgkmcnt({lg})" if w is None else f"s_waitcnt lgkmcnt({lg}) vmcnt({w})")
        if i == 3 and u < 15:
            dl = ((u+1) % 5 - u % 5) * 32768
            for nb in range(4): A.e(f"v_add_u32 v{AWO+nb}, {dl & 0xffffffff}, v{AWO+nb}")
        if j == JP - PRE: ypre()
        for f in pre[j]: f()
        rd = oreads(1 - buf, (i + 1) & 3) if j < 31 else []
        b = list(obg[j])
        for k in range(8):
            if k == 4 and lg: A.e("s_waitcnt lgkmcnt(4)")
            A.e(ms[k])
            if rd: A.e(rd[k])
            if k % 2 == 1 and b: emit(b.pop(0))
        while b: emit(b.pop(0))
    st(A, "oend")
    if XP & 256: A.e(f"s_branch {P}end")
    srd(A, SX_, "s22", "s23", 4 * MB)
    for nb in range(4): A.e(f"ds_write_b128 v{VXW}, {v(OAC+16+4*nb,4)} offset:{32768+1024*nb}")
    A.e("s_waitcnt lgkmcnt(0)\ns_barrier")
    for nb in range(4): A.e(f"ds_read_b128 {v(32+4*nb,4)}, v{VXW+1} offset:{32768+1024*nb}")
    for a in range(2):
        A.e(f"s_waitcnt lgkmcnt({2 - 2*a})")
        for i in range(4): A.e(f"v_pk_add_f32 {v(OAC+8*a+2*i,2)}, {v(OAC+8*a+2*i,2)}, {v(32+8*a+2*i,2)}")
        for i in range(4): A.e(f"v_cvt_pk_bf16_f32 v{48+4*a+i}, v{OAC+8*a+2*i}, v{OAC+8*a+2*i+1}")
        A.e(f"""s_nop 0
            v_permlane16_swap_b32 v{48+4*a}, v{48+4*a+2}
            v_permlane16_swap_b32 v{48+4*a+1}, v{48+4*a+3}
            buffer_store_dwordx4 {v(48+4*a,4)}, v{VXO}, {sr(SX_)}, s{OUTS} offen offset:{64*a} {OFL}""")
    A.lab(f"{P}end")
    if E('HT', 0):
        A.e(f"""s_waitcnt vmcnt(0)
            s_memrealtime s[72:73]
            s_memtime s[76:77]
            s_waitcnt lgkmcnt(0)
            s_cmp_lg_u32 s3, 4
            s_cbranch_scc1 {P}end2
            s_mov_b64 exec, 1
            v_mov_b32 v0, 0
            s_not_b32 s56, s70
            v_mov_b32 v1, s56
            v_mov_b32 v2, s70
            v_mov_b32 v3, s72
            s_sub_u32 s76, s76, s74
            v_mov_b32 v4, s76
            buffer_atomic_umax v1, v0, {sr(DBG)}, 0 offen offset:8 sc1
            buffer_atomic_umax v2, v0, {sr(DBG)}, 0 offen offset:12 sc1
            buffer_atomic_umax v3, v0, {sr(DBG)}, 0 offen offset:16 sc1
            buffer_atomic_umax v4, v0, {sr(DBG)}, 0 offen offset:20 sc1""")
    stamp_flush(A, 0)
    trace_flush(A)
    A.lab(f"{P}end2")
    A.e("s_endpgm")

    AX, AW, VKO = 16, 18, 20
    XF, WF = [32, 48], 64
    ACC = 128
    A.lab(f"{P}compute")
    A.e(f"""v_and_b32 v8, 15, v0
        v_lshrrev_b32 v9, 4, v0
        v_bfe_u32 v10, v0, 1, 3
        s_and_b32 s56, s3, 1
        s_lshl_b32 s56, s56, 13
        v_xor_b32 v11, v9, v10
        v_lshlrev_b32 v11, 4, v11
        v_lshl_add_u32 v11, v8, 7, v11
        v_add_u32 v{AX}, s56, v11
        v_xor_b32 v{AX+1}, 64, v{AX}
        v_bfe_u32 v12, v0, 2, 2
        v_and_b32 v13, 3, v0
        v_lshl_add_u32 v14, v9, 3, v12
        v_lshlrev_b32 v14, 7, v14
        v_lshl_add_u32 v14, v13, 3, v14
        v_bfe_u32 v15, v0, 3, 2
        s_and_b32 s56, s3, 2
        v_xor_b32 v15, s56, v15
        v_lshl_add_u32 v14, v15, 5, v14
        v_add_u32 v{AW}, {XSZ}, v14
        v_xor_b32 v{AW+1}, 32, v{AW}
        v_and_b32 v8, 0x33, v0
        v_bfe_u32 v9, v0, 2, 1
        v_bfe_u32 v10, v0, 3, 1
        v_lshl_or_b32 v8, v9, 3, v8
        v_lshl_or_b32 v8, v10, 2, v8
        v_lshlrev_b32 v{VKO}, 4, v8
        s_waitcnt lgkmcnt(0)""")
    srds()
    A.e(f"""v_mov_b32 v21, 0
        s_or_b32 s56, s2, s3
        s_cmp_lg_u32 s56, 0
        s_cbranch_scc1 {P}ntag
        s_memrealtime s[56:57]
        s_waitcnt lgkmcnt(0)
        s_mul_i32 s57, s57, 0x9e3779b1
        s_xor_b32 s56, s56, s57
        s_or_b32 s56, s56, 1
        v_mov_b32 v22, s56
        buffer_store_dword v22, v21, {sr(DBG)}, 0 offen sc1""")
    A.lab(f"{P}ntag")
    zero(24, 4)
    for nm, fn in (("s", setup_s), ("v", setup_v)):
        A.lab(f"{P}set{nm}")
        fn()
        A.e(f"""s_cmp_ge_u32 s3, 4
            s_cbranch_scc1 {P}set{nm}_r""")
        if nm == "s":
            for i in range(8): A.e(mfma32(ACC + 16*i, 24, 24, "0"))
    A.e(f"""s_mov_b32 s58, 0
        s_mov_b32 s59, 0
        s_mov_b32 s60, {(-ST) & 0xffffffff}
        s_mov_b32 s61, {2*ST}
        s_mov_b32 s63, {f2u(CSCALE)}
        s_and_b32 s57, s{HEAD}, 24
        s_add_u32 s92, s{HEAD}, {4*GROT}
        s_and_b32 s92, s92, 7
        s_or_b32 s92, s92, s57
        s_lshl_b32 s92, s92, 6
        s_add_u32 s92, s92, s{RT}
        s_lshl_b32 s92, s92, 12
        s_add_u32 s92, s92, {KVB_OFF}
        s_add_u32 s93, s92, 4096
        s_add_u32 s96, s{HEAD}, {6*GROT}
        s_and_b32 s96, s96, 7
        s_or_b32 s96, s96, s57
        s_lshl_b32 s96, s96, 6
        s_add_u32 s96, s96, s{RT}
        s_lshl_b32 s96, s96, 12
        s_add_u32 s96, s96, {KVB_OFF}
        s_add_u32 s97, s96, 4096
        s_nop 0""")
    def rx(buf, ks, mb): return f"ds_read_b128 {v(XF[buf]+4*mb,4)}, v{AX+ks} offset:{mb*2048}"
    def rw(nb, ks, jh): return f"ds_read_b64_tr_b16 {v(WF+4*nb+2*jh,2)}, v{AW+(nb&1)} offset:{(nb>>1)*8192+ks*4096+jh*512}"
    st(A, "setup")
    A.e("s_barrier")
    st(A, "g0")
    for mb in range(4): A.e(rx(0, 0, mb))
    for nb in range(7):
        for jh in range(2): A.e(rw(nb, 0, jh))
        if nb == 4: A.e("s_waitcnt lgkmcnt(4)")
    A.e(f"s_waitcnt lgkmcnt(2)\ns_branch {P}g1m")
    A.raw(".p2align 6")
    A.lab(f"{P}g1")
    acc = lambda mb, nb: ACC + 4 * (nb * 4 + mb)
    for ks in (1, 0):
        if ks == 0: A.lab(f"{P}g1m")
        post = {k: [] for k in range(32)}
        post[0].append(rw(7, ks, 0)); post[1].append(rw(7, ks, 1))
        if ks == 0:
            for nb in range(1, 8):
                for jh in range(2): post[4*nb + jh].append(rw(nb - 1, 1, jh))
            for m in range(4): post[4*(m+1) + 2].append(rx(1, 1, m))
            post[19].append("s_waitcnt lgkmcnt(8)")
            post[27].append("s_cmp_lg_u32 s59, 15")
        else:
            post[2].append("s_cmp_eq_u32 s58, 0"); post[2].append("s_cselect_b32 s62, s61, s60")
            post[3] += [f"v_add_u32 v{AX}, s62, v{AX}", f"v_add_u32 v{AX+1}, s62, v{AX+1}"]
            post[4] += [f"v_add_u32 v{AW}, s62, v{AW}", f"v_add_u32 v{AW+1}, s62, v{AW+1}"]
            post[5] += ["s_add_u32 s58, s58, s62", "s_add_u32 s59, s59, 1"]
            post[GB] += ["s_waitcnt lgkmcnt(0)", "s_barrier"]
            seq_ = [rw(0, 0, 0), rw(0, 0, 1), rx(0, 0, 0)]
            k = GB + 1
            rest = []
            for nb in range(1, 7): rest += [(4*(nb+1), rw(nb, 0, 0)), (4*(nb+1), rw(nb, 0, 1))]
            xs = [rx(0, 0, m) for m in range(1, 4)]
            for x in seq_: post[k].append(x); k += 1
            while rest or xs:
                if rest and rest[0][0] <= k: post[k].append(rest.pop(0)[1])
                elif xs: post[k].append(xs.pop(0))
                k += 1
            assert k <= 31
        post[30].append("s_waitcnt lgkmcnt(2)")
        for nb in range(8):
            for mb in range(4):
                m2 = mb if nb % 2 == 0 else 3 - mb
                d = acc(m2, nb)
                x, w = XF[ks] + 4 * m2, WF + 4 * nb
                A.e(mfma16(d, x, w, d) if nb >= 6 else mfma16(d, w, x, d))
                for x_ in post[4*nb + mb]: A.e(x_)
    A.e(f"s_cbranch_scc1 {P}g1")
    A.lab(f"{P}glast")
    T = 21
    order = [(m, n) for g in ((2, 0), (2, 2), (0, 0), (0, 2)) for (m, n) in ((g[0], g[1]), (g[0]+1, g[1]), (g[0]+1, g[1]+1), (g[0], g[1]+1))]
    order += [(mb if nb % 2 == 0 else 3 - mb, nb) for nb in range(4, 8) for mb in range(4)]
    fill = pack_list(32, [[acc(2+rbk, db) for rbk in range(2)] for db in range(2)], False)
    fill += [f"ds_write_b128 v{AX}, {v(32,4)}", f"ds_write_b128 v{AX}, {v(36,4)} offset:1024"]
    fill += pack_list(40, [[acc(2+rbk, 2+db) for rbk in range(2)] for db in range(2)], False)
    fill += [f"ds_write_b128 v{AX}, {v(40,4)} offset:2048", f"ds_write_b128 v{AX}, {v(44,4)} offset:3072"]
    qa0 = pack_list(QA, [[acc(rbk, db) for rbk in range(2)] for db in range(2)], False)
    fill += qa0[:6] + ["s_waitcnt lgkmcnt(0)\ns_barrier"] + qa0[6:]
    for k, (mb, nb) in enumerate(order):
        d = acc(mb, nb)
        x, w = XF[1] + 4 * mb, WF + 4 * nb
        A.e(mfma16(d, x, w, d) if nb >= 6 else mfma16(d, w, x, d))
        if k < 2: A.e(rw(7, 1, k))
        if k == 2: A.e(f"s_add_u32 s56, s{W4K}, {MISC}\ns_mov_b32 s62, s63")
        if k == 3: A.e(f"v_add_u32 v{AX}, s56, v{VL16}")
        if k == 8: A.e("s_waitcnt lgkmcnt(0)")
        if k >= 10:
            for _ in range(2):
                if fill: A.e(fill.pop(0))
    st(A, "gend")
    while fill: A.e(fill.pop(0))
    for rtl in range(2):
        tk, tv = 80 + 8 * rtl, ACC + 8 * rtl
        so = "s92" if rtl == 0 else "s93"
        pack(tk, [[acc(2*rtl+rbk, 4+db) for rbk in range(2)] for db in range(2)], True)
        A.e(f"""buffer_store_dwordx4 {v(tk,4)}, v{VKO}, {sr(WS)}, {so} offen sc1
            buffer_store_dwordx4 {v(tk+4,4)}, v{VKO}, {sr(WS)}, {so} offen offset:1024 sc1""")
        pack(tv, [[acc(2*rtl+kb, 6+db) for db in range(2)] for kb in range(2)], False)
        so = "s96" if rtl == 0 else "s97"
        A.e(f"""buffer_store_dwordx4 {v(tv,4)}, v{VL16}, {sr(WS)}, {so} offen offset:2048 sc1
            buffer_store_dwordx4 {v(tv+4,4)}, v{VL16}, {sr(WS)}, {so} offen offset:3072 sc1""")
    pack(QB, [[acc(rbk, 2+db) for rbk in range(2)] for db in range(2)], False)
    A.e(f"s_branch {P}attn")

    if XP & 4:
        for l in ("sig1", "sig2", "poll1", "poll2"): A.lab(f"{P}{l}_r")
    if XP & 8: A.lab(f"{P}normB")
    for ph in (1, 2):
        A.lab(f"{P}sig{ph}")
        signal(ph + 1, TZ + 1)
        A.e(f"s_branch {P}sig{ph}_r")
    A.lab(f"{P}pre1")
    A.e(f"""v_lshrrev_b32 v{TZ+1}, 4, v0
        v_min_u32 v{TZ+1}, 2, v{TZ+1}
        v_sub_u32 v{TZ+1}, s{RB}, v{TZ+1}
        v_max_i32 v{TZ+1}, 0, v{TZ+1}
        v_lshlrev_b32 v{TZ+1}, 4, v{TZ+1}
        v_and_or_b32 v{TZ+1}, v0, 15, v{TZ+1}
        v_lshlrev_b32 v{TZ+1}, {FS}, v{TZ+1}""")
    poll_issue(TZ + 1, 2)
    A.e(f"s_branch {P}pre1_r")
    A.lab(f"{P}poll1")
    A.e(f"s_waitcnt vmcnt({pw[1]})")
    poll("1", TZ + 1, 2, True)
    A.e(f"s_branch {P}poll1_r")
    A.lab(f"{P}pre2")
    A.e(f"""v_and_b32 v{TZ+1}, 15, v0
        v_lshlrev_b32 v{TZ+1}, {FS}, v{TZ+1}
        s_lshl_b32 s56, s{RB2}, {FS+4}
        v_add_u32 v{TZ+1}, s56, v{TZ+1}""")
    poll_issue(TZ + 1, 3)
    A.e(f"s_branch {P}pre2_r")
    A.lab(f"{P}poll2")
    A.e(f"s_waitcnt vmcnt({pw[2]})")
    poll("2", TZ + 1, 3, True)
    A.e(f"s_branch {P}poll2_r")
    for j in range(2, 8):
        A.lab(f"{P}cm{j}")
        zero(CM, 16)
        A.e(f"s_nop 0\ns_branch {P}cm{j}_r")

    def slow(tag, q, o, l, kf, vf, S, C, Pp, M, setup):
        A.lab(f"{P}slow{tag}")
        A.e("s_waitcnt vmcnt(0)")
        A.e(setup)
        zero(o, 16); zero(l, 4)
        A.e(f"""v_mov_b32 v{M}, {NEG}
            s_mov_b32 s99, 0""")
        A.lab(f"{P}spass{tag}")
        A.e("s_mov_b32 s100, s98")
        A.lab(f"{P}stile{tag}")
        A.e(f"""s_lshl_b32 s56, s100, 12
            s_add_u32 s56, s56, s101
            buffer_load_dwordx4 {v(kf,4)}, v{VL16}, {sr(WS)}, s56 offen sc1
            buffer_load_dwordx4 {v(kf+4,4)}, v{VL16}, {sr(WS)}, s56 offen offset:1024 sc1
            buffer_load_dwordx4 {v(vf,4)}, v{VL16}, {sr(WS)}, s56 offen offset:2048 sc1
            buffer_load_dwordx4 {v(vf+4,4)}, v{VL16}, {sr(WS)}, s56 offen offset:3072 sc1
            s_cmp_eq_u32 s100, s96
            s_cselect_b32 s56, {NEG}, 0
            s_cmp_eq_u32 s100, s97
            s_cselect_b32 s57, {NEG}, 0
            v_mov_b32 v{M+2}, s56
            v_mov_b32 v{M+3}, s57""")
        for r in range(16):
            A.e(f"""v_cmp_le_i32 vcc, {keyl(r)}, v{VD}
                s_nop 1
                v_cndmask_b32 v{C+r}, v{M+2}, v{M+3}, vcc""")
        A.e("s_waitcnt vmcnt(0)\ns_nop 0")
        A.e(mfma32(S, kf, q, C))
        A.e(mfma32(S, kf + 4, q + 4, S))
        A.e(f"""s_nop 7
            s_nop 7
            s_cmp_eq_u32 s99, 0
            s_cbranch_scc0 {P}sp2{tag}""")
        for r in range(16): A.e(f"v_max_f32 v{M}, v{M}, v{S+r}")
        A.e(f"s_branch {P}snext{tag}")
        A.lab(f"{P}sp2{tag}")
        for r in range(16): A.e(f"v_sub_f32 v{S+r}, v{S+r}, v{M}")
        for r in range(16): A.e(ex(S, r))
        A.e("s_nop 0")
        for i in range(8): A.e(cv(Pp, S, i))
        A.e("s_nop 1")
        A.e(mfma32(o, vf, Pp, o))
        A.e(mfma32(o, vf + 4, Pp + 4, o))
        A.e(smf(l, Pp))
        A.e("s_nop 7\ns_nop 7")
        A.lab(f"{P}snext{tag}")
        A.e(f"""s_add_u32 s100, s100, 1
            s_cmp_le_u32 s100, s95
            s_cbranch_scc1 {P}stile{tag}
            s_cmp_eq_u32 s99, 0
            s_cbranch_scc0 {P}sdone{tag}
            v_mov_b32 v{M+1}, v{M}
            s_nop 1
            v_permlane32_swap_b32 v{M}, v{M+1}
            s_nop 1
            v_max_f32 v{M}, v{M}, v{M+1}
            s_mov_b32 s99, 1
            s_branch {P}spass{tag}""")
        A.lab(f"{P}sdone{tag}")
        A.e(f"""s_mov_b32 s63, 1
            s_branch {P}norm{tag}""")
    slow("B", QB, O2, L2, 196, 204, 212, 228, 244, 148,
         f"""s_lshl_b32 s101, s{HEADB}, 18
            s_add_u32 s101, s101, {KVB_OFF}
            s_sub_i32 s97, s{RT}, 8
            s_max_i32 s98, s97, 0
            s_mov_b32 s95, s{RT}
            s_mov_b32 s96, s{RT}""")
    slow("A", QA, O, L, KF, VF, SB[0], SB[1], PB[0], ML + 8,
         f"""s_mov_b32 s101, {KVA_OFF}
            s_mov_b32 s98, 0
            s_mov_b32 s95, 63
            s_mov_b32 s96, -1
            s_mov_b32 s97, -1""")
    A.raw(".p2align 4")
    A.lab(f"{P}last")
    A.e("s_endpgm")
    return kernel_desc(name, 256, 102)

if __name__ == "__main__":
    ref = open(f"cdna_kernels/{NAME}.s.ref").read().split("\n")
    hdr = [l for l in ref if l.startswith(";") and "@launch" not in l]
    A = Asm()
    d = gen(A, NAME + "_kernel")
    out = "\n".join(hdr) + "\n" + f"; @launch grid=(256,1,1) block=(512,1,1) lds={LDS}\n"
    out += '.amdgcn_target "amdgcn-amd-amdhsa--gfx950"\n.text\n' + A.text() + '.section .rodata,"a"\n' + d
    path = sys.argv[1] if len(sys.argv) > 1 else f"cdna_kernels/{NAME}.s"
    open(path, "w").write(out)
    print("wrote", path, len(out))
```

```python
from common import *
import sys
E = lambda k, d: int(os.environ.get(k, d))
STAG = 4
PART_OFF = 0
TPA = E('TPA', 8)
WARM = E('WARM', 1)
E1N = E('E1N', 12)
TPOLL = E('TPOLL', 14)
LPRIO = E('LPRIO', 3)
LPS = E('LPS', 2)
ROT = E('ROT', 0)
SLP = E('SLP', 12)
PFC = E('PFC', 0)
TOUCH = E('TOUCH', 0)
ZIG = E('ZIG', 3)
SFIRST = E('SFIRST', 0)
OFL = os.environ.get('OFL', '')
XP = E('XP', 0)
JP = E('JP', 11)
JU = E('JU', 13)
JV = E('JV', 21)
SLP3 = E('SLP3', 4)
PRL = E('PRL', 2)
ORD = E('ORD', 3)
SPRO = E('SPRO', 1)
TRED = E('TRED', 9)
TTAG = E('TTAG', 2)
RAFT = E('RAFT', 2)
TST = E('TST', 3)
TSA = E('TSA', TST + 2)
PRE = E('PRE', 2)
FS = E('FS', 4)
SPLIT = E('SPLIT', 1)
TS = E('TS', 14)
TV = E('TV', 15)
DEFD = ''
NS_ = E('NS', 0)
SUBR = E('SUBR', 1)
N5 = E('N5', 47)
N6 = E('N6', 53)
N2 = E('N2', 18)
CPS = E('CPS', 3)
PBF = E('PBF', 1)
GB = E('GB', 8)
WNT = os.environ.get('WNT', '')
XNT = os.environ.get('XNT', '')
ZNT = os.environ.get('ZNT', '')
NTT = os.environ.get('NTT', '').split(',')
O5 = 1
O5N = E('O5N', 4)
P1 = E('P1', 13)
NB0 = 28

XSZ = 16384
ST = 49152
MISC = 3 * ST
LDS = 163840
NEG = f2u(-1e30)
SPIN = 50000

VL16, AC, AN, VG, IDX, VD, T0 = 1, 2, 3, 4, 5, 6, 7
ONES, L = 8, 12
QB, QA = 16, 24
KF, VF = 32, 40
PB = [48, 56]
SB = [64, 80]
O = 96
ML = 112
OFR = 128
O2, L2, MU, CM, TB, AB, TZ = 128, 144, 148, 164, 180, 188, 189
WS, DBG, SX_, SW_, SS_ = 28, 32, 36, 40, 44
RB, HP, XCD, IDXS, RT, HEAD, RB2, CBK = 48, 49, 50, 51, 52, 53, 54, 55
HEADB = 65
W4K, W1K, I0, WOS, GSRC, ABS = 74, 75, 76, 77, 78, 79
WS6 = 80
MUS, CMS, OUTS, OSTA = 16, 17, 20, 21
OSTB, KH10, CSRC = 24, 25, 26
UO, OQ = 44, 4
NON = 64
FL_OFF = 4 * MB
GP_OFF = 5 * MB
GROT = E('GROT', 1)

def sr(b): return f"s[{b}:{b+3}]"
def mfma16(d, a, b, c):
    cs = c if isinstance(c, str) else v(c, 4)
    return f"v_mfma_f32_16x16x32_bf16 {v(d,4)}, {v(a,4)}, {v(b,4)}, {cs}"
def smf(l, p): return f"v_smfmac_f32_16x16x64_bf16 {v(l,4)}, {v(ONES,4)}, {v(p,8)}, v{IDX}"
def ex(S, i): return f"v_exp_f32 v{S+i}, v{S+i}"
def cv(Pp, S, i): return f"v_cvt_pk_bf16_f32 v{Pp+i}, v{S+2*i}, v{S+2*i+1}"
def keyl(r): return 16 * (r >> 3) + 4 * ((r >> 2) & 1) + (r & 3)

TRN = "setup,g0,pla,pl0,gend,attn,aend,afin,y1a,y1,y3a,y3,y4,oend".split(",")
TRL = {n: 44 + i for i, n in enumerate(TRN)}
def st(A, nm):
    if DIAG: trace(A, TRL[nm])

class VM:
    def __init__(self): self.q = []
    def add(self, tag, n=1): self.q += [tag] * n
    def after(self, *tags):
        if not any(t in tags for t in self.q): return 0
        last = max(i for i, t in enumerate(self.q) if t in tags)
        return len(self.q) - 1 - last

def pack_list(dst, blk, scale):
    o = []
    for a in range(2):
        for b in range(2):
            d = blk[a][b]
            if scale:
                for i in range(2): o.append(f"v_pk_mul_f32 {v(d+2*i,2)}, {v(d+2*i,2)}, s[62:63]")
            for i in range(2): o.append(f"v_cvt_pk_bf16_f32 v{dst+a*4+b*2+i}, v{d+2*i}, v{d+2*i+1}")
    for a in range(2):
        for i in range(2): o.append(f"v_permlane16_swap_b32 v{dst+a*4+i}, v{dst+a*4+2+i}")
    return o

def gen(A, name):
    P = "f_"
    kernel_head(A, name)
    A.e(f"""s_cmp_ge_u32 s2, 256
        s_cbranch_scc1 {P}end2""")
    stamp_init(A)
    if E('HT', 0): A.e("s_memrealtime s[70:71]\ns_memtime s[74:75]")
    if E('SCR', 0):
        A.e("""s_lshr_b32 s56, s2, 3
            s_lshr_b32 s57, s2, 5
            s_xor_b32 s56, s56, s57
            s_and_b32 s56, s56, 7
            s_xor_b32 s2, s2, s56""")
    A.e(f"""s_load_dwordx8 s[4:11], s[0:1], 0
        s_load_dwordx8 s[16:23], s[0:1], 48
        s_load_dwordx4 s[24:27], s[0:1], 80
        s_load_dwordx2 s[12:13], s[0:1], 32
        v_lshrrev_b32 v1, 6, v0
        v_and_b32 v0, 63, v0
        v_readfirstlane_b32 s3, v1
        s_and_b32 s{XCD}, s2, 7
        s_lshr_b32 s{IDXS}, s2, 3
        s_and_b32 s{RB}, s{XCD}, 1
        s_lshl_b32 s{RB}, s{RB}, 3
        s_and_b32 s56, s{IDXS}, 7
        s_add_u32 s{RB}, s{RB}, s56
        s_lshr_b32 s{HP}, s{XCD}, 1
        s_lshl_b32 s{HP}, s{HP}, 2
        s_lshr_b32 s56, s{IDXS}, 3
        s_add_u32 s{HP}, s{HP}, s56
        v_lshlrev_b32 v{VL16}, 4, v0
        s_cmp_lt_u32 s3, 4
        s_cbranch_scc1 {P}compute""")

    def srds():
        srd(A, WS, "s26", "s27", WS_USED)
        srd(A, DBG, "s24", "s25", 256)
        if DIAG: A.e(f"v_mov_b32 v{VD}, 0")
    def setup_v():
        vd = AN if DIAG else VD
        A.e(f"""v_and_b32 v{T0}, 31, v0
            v_lshrrev_b32 v{VG}, 5, v0
            v_lshlrev_b32 v{VG}, 3, v{VG}
            v_sub_u32 v{vd}, v{T0}, v{VG}
            v_mov_b32 v{VG}, {NEG}""")
        for r in range(16): A.e(f"v_subrev_u32 v{ML+r}, {keyl(r)}, v{vd}")
        for r in range(16): A.e(f"v_ashrrev_i32 v{ML+r}, 31, v{ML+r}")
        for r in range(16): A.e(f"v_and_b32 v{ML+r}, v{VG}, v{ML+r}")
        A.e(f"""v_bfe_i32 v{T0}, v0, 2, 1
            v_mov_b32 v{VG}, 0x3f803f80
            v_and_b32 v{ONES+2}, v{VG}, v{T0}
            v_xor_b32 v{ONES}, v{VG}, v{ONES+2}
            v_mov_b32 v{ONES+1}, v{ONES}
            v_mov_b32 v{ONES+3}, v{ONES+2}
            v_bfe_i32 v{T0}, v0, 0, 1
            v_and_b32 v{T0}, 0xaaaa, v{T0}
            v_or_b32 v{IDX}, 0x4444, v{T0}
            v_add_u32 v{AC}, 0x10000, v{VL16}
            v_add_u32 v{AN}, 0x20000, v{VL16}""")
        for i in range(4): A.e(f"v_mov_b32 v{L+i}, 0")
    def setup_s():
        A.e(f"""s_and_b32 s{RB2}, s{XCD}, 3
            s_lshl_b32 s{RB2}, s{RB2}, 2
            s_and_b32 s56, s{IDXS}, 3
            s_add_u32 s{RB2}, s{RB2}, s56
            s_lshl_b32 s{WOS}, s56, 19
            s_lshr_b32 s{CBK}, s{XCD}, 2
            s_lshl_b32 s{CBK}, s{CBK}, 3
            s_lshr_b32 s56, s{IDXS}, 2
            s_add_u32 s{CBK}, s{CBK}, s56
            s_and_b32 s56, s3, 1
            s_lshl_b32 s56, s56, 1
            s_lshr_b32 s{KH10}, s3, 2
            s_add_u32 s56, s56, s{KH10}
            s_lshl_b32 s{ABS}, s56, 12
            s_lshl_b32 s{RT}, s{RB}, 2
            s_add_u32 s{CSRC}, s{RT}, s{KH10}
            s_add_u32 s{RT}, s{RT}, s56
            s_bfe_u32 s56, s3, 0x10001
            s_mul_i32 s57, s56, 49152
            s_add_u32 s{ABS}, s{ABS}, s57
            s_lshl_b32 s{HEAD}, s{HP}, 1
            s_add_u32 s{HEAD}, s{HEAD}, s56
            s_add_u32 s56, s{HEAD}, {2*GROT}
            s_and_b32 s56, s56, 7
            s_and_b32 s57, s{HEAD}, 24
            s_or_b32 s{HEADB}, s56, s57
            s_lshl_b32 s{W4K}, s3, 12
            s_lshl_b32 s{W1K}, s3, 10
            s_sub_i32 s{I0}, 8, s{RT}
            s_cmp_gt_i32 s{I0}, 0
            s_cselect_b32 s{MUS}, 0, 1.0
            s_cmp_gt_i32 s{I0}, 1
            s_cselect_b32 s{CMS}, {NEG}, 0
            s_lshr_b32 s57, s{HEADB}, 1
            s_lshl_b32 s57, s57, 19
            s_and_b32 s27, s3, 3
            s_lshl_b32 s56, s27, 10
            s_add_u32 s57, s57, s56
            s_add_u32 s57, s57, {KVB_OFF}
            s_lshl_b32 s56, s{CSRC}, 12
            s_add_u32 s56, s56, s57
            s_sub_u32 s56, s56, 0x8000""")
        for i in range(6):
            A.e(f"s_max_u32 s{WS6+i}, s56, s57")
            if i < 5: A.e("s_addk_i32 s56, 0x2000")
        A.e(f"""s_lshl_b32 s56, s{RB2}, 2
            s_add_u32 s56, s56, s27
            s_lshl_b32 s{OUTS}, s56, 1
            s_add_u32 s{OUTS}, s{OUTS}, s{KH10}
            s_lshl_b32 s{OUTS}, s{OUTS}, 15
            s_lshl_b32 s57, s{CBK}, 7
            s_add_u32 s{OUTS}, s{OUTS}, s57
            s_lshl_b32 s{UO}, s3, 16
            s_add_u32 s{UO}, s{UO}, s57
            s_add_u32 s{WOS}, s{WOS}, s{UO}
            s_add_u32 s{UO+1}, s{UO}, 0x80000
            s_add_u32 s{UO+2}, s{UO}, 0x100000
            s_add_u32 s{UO+3}, s{UO}, 0x180000
            s_lshl_b32 s56, s56, 17
            s_lshl_b32 s57, s{KH10}, 11
            s_add_u32 s56, s56, s57
            s_add_u32 s{OQ}, s56, {O_OFF + 65536}
            s_movk_i32 s57, 0x2000""")
        if ROT:
            A.e(f"""s_mov_b32 s56, s{OQ}
                s_lshl_b32 s27, s{CBK}, 13""")
            for h in range(8):
                A.e(f"""s_and_b32 s27, s27, 0xffff
                    s_add_u32 s{OQ+h}, s56, s27
                    s_add_u32 s27, s27, s57""")
            A.e(f"s_lshl_b32 s27, s{CBK}, 18")
            for q in range(4):
                A.e(f"""s_add_u32 s{UO+q}, s{UO+q}, s27
                    s_and_b32 s{UO+q}, s{UO+q}, 0x1fffff""")
        else:
            for h in range(1, 8): A.e(f"s_add_u32 s{OQ+h}, s{OQ+h-1}, s57")
        A.e(f"""s_lshl_b32 s{GSRC}, s{RT}, 7
            s_add_u32 s{GSRC}, s{GSRC}, {G_OFF}
            s_lshl_b32 s56, s{RT}, 17
            s_add_u32 s56, s56, {O_OFF}
            s_lshl_b32 s{OSTA}, s{HEAD}, 11
            s_add_u32 s{OSTA}, s{OSTA}, s56
            s_lshl_b32 s{OSTB}, s{HEADB}, 11
            s_add_u32 s{OSTB}, s{OSTB}, s56
            s_add_u32 s{OSTB}, s{OSTB}, 0x10000
            s_lshl_b32 s{KH10}, s{KH10}, 10""")
    def pack(dst, blk, scale):
        for x in pack_list(dst, blk, scale): A.e(x)
    def zero(base, n):
        for i in range(n): A.e(f"v_mov_b32 v{base+i}, 0")
    def signal(phase, t1):
        A.e(f"""s_mov_b64 exec, 1
            v_mov_b32 v{T0}, s{NON}
            v_mov_b32 v{t1}, 0
            s_lshl_b32 s56, s{RB}, 4
            s_add_u32 s56, s56, s{HP}
            s_lshl_b32 s56, s56, {FS}
            s_add_u32 s56, s56, {FL_OFF + (256<<FS)*phase}
            buffer_store_dword v{T0}, v{t1}, {sr(WS)}, s56 offen sc1
            s_mov_b64 exec, -1""")
    def poll_issue(voff, phase, t1=None):
        A.e(f"""s_mov_b32 s62, {FL_OFF + (256<<FS)*phase}
            buffer_load_dword v{T0}, v{voff}, {sr(WS)}, s62 offen sc1""")
        if t1:
            for i in range(3): A.e(f"buffer_load_dword v{t1+i}, v{voff}, {sr(WS)}, s62 offen offset:{(i+1)<<FS} sc1")
    def poll(tag, voff, phase, first_issued, t1=None, slp=SLP):
        A.e(f"s_mov_b32 s57, {1 if ((XP & 32 and tag in '0a') or (XP & 64 and tag in '123')) else SPIN}")
        if first_issued: A.e(f"s_branch {P}pc{tag}")
        A.lab(f"{P}pl{tag}")
        poll_issue(voff, phase, t1)
        A.e("s_waitcnt vmcnt(0)")
        A.lab(f"{P}pc{tag}")
        A.e(f"v_cmp_eq_u32 vcc, s{NON}, v{T0}")
        if t1:
            for i in range(3):
                A.e(f"""s_mov_b64 s[62:63], vcc
                    v_cmp_eq_u32 vcc, s{NON}, v{t1+i}
                    s_and_b64 vcc, vcc, s[62:63]""")
        A.e(f"""s_cmp_eq_u64 vcc, -1
            s_cbranch_scc1 {P}pd{tag}
            s_sleep {slp}
            s_sub_u32 s57, s57, 1
            s_cmp_lg_u32 s57, 0
            s_cbranch_scc1 {P}pl{tag}""")
        A.lab(f"{P}pd{tag}")
    def tag_issue(d, z):
        A.e(f"""v_mov_b32 v{z}, 0
            buffer_load_dword v{d}, v{z}, {sr(DBG)}, 0 offen sc1""")
    def tag_get(lbl, d, z):
        A.e(f"s_mov_b32 s57, {SPIN}")
        A.lab(f"{P}tl{lbl}")
        A.e(f"""v_readfirstlane_b32 s{NON}, v{d}
            s_cmp_lg_u32 s{NON}, 0
            s_cbranch_scc1 {P}td{lbl}
            s_sleep 8
            buffer_load_dword v{d}, v{z}, {sr(DBG)}, 0 offen sc1
            s_waitcnt vmcnt(0)
            s_sub_u32 s57, s57, 1
            s_cmp_lg_u32 s57, 0
            s_cbranch_scc1 {P}tl{lbl}""")
        A.lab(f"{P}td{lbl}")
    gslot = lambda t: ((15 - t) % 3) * ST

    VX, VW, VS, AXS, AWS = 128, 130, 132, 136, 133
    SXF, SWF, SA = 144, 176, 208
    LW, KIND, PHI = 14, 15, 92
    XB, WB, WSTEP, KT, L4K, L8K, PSRC = 93, 94, 96, 98, 99, 100, 101
    L8X, WST2 = 2, 53
    A.e(f"""s_setprio {LPRIO}
        s_sub_u32 s{LW}, s3, 4
        v_lshrrev_b32 v9, 3, v0
        v_and_b32 v16, 7, v0
        v_lshrrev_b32 v17, 4, v0
        v_xor_b32 v17, v17, v16
        v_lshlrev_b32 v17, 4, v17
        v_lshl_add_u32 v{VX}, v9, 11, v17
        v_xor_b32 v{VX+1}, 64, v{VX}
        s_cmp_eq_u32 s{LW}, 0
        s_mov_b32 s57, 6144
        s_cselect_b32 s57, 2048, s57
        v_bfe_u32 v17, v0, 4, 1
        v_lshlrev_b32 v17, 1, v17
        v_xor_b32 v17, v17, v16
        v_lshlrev_b32 v17, 4, v17
        v_mul_u32_u24 v18, s57, v9
        v_add_u32 v{VW}, v18, v17
        v_xor_b32 v{VW+1}, 64, v{VW}
        s_lshl_b32 s{WSTEP}, s57, 3
        s_lshl_b32 s{XB}, s{RB}, 18
        s_lshl_b32 s56, s{LW}, 16
        s_add_u32 s{XB}, s{XB}, s56
        s_max_u32 s56, s{LW}, 1
        s_sub_u32 s56, s56, 1
        s_lshl_b32 s56, s56, 11
        s_mul_i32 s57, s{LW}, {GROT}
        s_add_u32 s57, s57, s{HP}
        s_and_b32 s57, s57, 3
        s_and_b32 s{WB}, s{HP}, 12
        s_or_b32 s57, s57, s{WB}
        s_lshl_b32 s57, s57, 7
        s_add_u32 s{WB}, s56, s57
        s_add_u32 s{PHI}, s{RB}, s{HP}
        s_and_b32 s{PHI}, s{PHI}, 3
        s_and_b32 s56, s{HP}, {12 if ORD == 3 else 4}
        s_or_b32 s{KT}, s{PHI}, s56
        s_lshl_b32 s{KT}, s{KT}, {0 if ORD == 3 else 1}
        s_lshl_b32 s{L4K}, s{LW}, 12
        s_lshl_b32 s{L8K}, s{LW}, 13
        s_add_u32 s{L8X}, s{L8K}, {XSZ}
        s_sub_u32 s{WST2}, s{WSTEP}, 0x400
        s_cmp_eq_u32 s{LW}, 0
        s_waitcnt lgkmcnt(0)
        s_cselect_b32 s{SW_}, s6, s16
        s_cselect_b32 s{SW_+1}, s7, s17
        s_mov_b32 s{SW_+2}, {6*MB}
        s_cselect_b32 s{SW_+2}, {2*MB}, s{SW_+2}
        s_mov_b32 s{SW_+3}, 0x20000""")
    srd(A, SX_, "s4", "s5", 4 * MB)
    gv = VM()
    def issue(t, lo=0, hi=12):
        if SUBR:
            assert (lo, hi) == (0, 12)
            gv.add(f"T{t}", 12)
            if t > 0:
                A.e(f"s_mov_b32 s59, {gslot(t)}")
                if t < O5N:
                    A.e(f"s_xor_b32 s{KT}, s95, {t & 3}")
                    if t >= 4: A.e(f"s_add_u32 s{KT}, s{KT}, {t & 12}\ns_and_b32 s{KT}, s{KT}, 15")
                else:
                    if t == O5N: A.e(f"s_and_b32 s{KT}, s{KT}, 12\ns_or_b32 s{KT}, s{KT}, s{PHI}")
                    if (t & 3) == 0: A.e(f"s_add_u32 s{KT}, s{KT}, 4\ns_and_b32 s{KT}, s{KT}, 15")
                A.e(f"s_call_b64 s[0:1], {P}isub")
                return
            A.e(f"""s_mov_b32 s59, {gslot(0)}
                s_getpc_b64 s[0:1]""")
            A.lab(f"{P}ipc")
            A.e(f"""s_add_u32 s0, s0, {P}iret-{P}ipc
                s_addc_u32 s1, s1, 0""")
            A.lab(f"{P}isub")
            A.e(f"""s_add_u32 m0, s{L4K}, s59
                s_lshl_b32 s56, s{KT}, 7
                s_add_u32 s56, s56, s{XB}""")
            for i in range(4):
                A.e(f"buffer_load_dwordx4 v{VX+(i&1)}, {sr(SX_)}, s56 offen offset:{1024*i} {XNT} lds")
                if i < 3: A.e(f"s_addk_i32 s56, {16384-1024}")
            A.e(f"""s_add_u32 m0, s{L8X}, s59
                s_mul_i32 s56, s{KT}, s{WSTEP}
                s_lshl_b32 s56, s56, 3
                s_add_u32 s56, s56, s{WB}""")
            for i in range(8):
                A.e(f"buffer_load_dwordx4 v{VW+(i&1)}, {sr(SW_)}, s56 offen offset:{1024*(i&3)} {WNT} lds")
                if i == 3: A.e(f"s_addk_i32 m0, 0x1000\ns_addk_i32 s56, 0x1000")
                if i < 7: A.e(f"s_add_u32 s56, s56, s{WST2}")
            A.e(f"""s_add_u32 s56, s{KT}, 1
                s_and_b32 s56, s56, 3
                s_and_b32 s{KT}, s{KT}, 12
                s_or_b32 s{KT}, s{KT}, s56
                s_setpc_b64 s[0:1]""")
            A.lab(f"{P}iret")
            return
        for i in range(lo, hi):
            if i < 4:
                if i == lo:
                    A.e(f"""s_add_u32 m0, s{L4K}, {gslot(t) + 1024*i}
                        s_lshl_b32 s56, s{KT}, 7
                        s_add_u32 s56, s56, s{XB}""")
                    if i: A.e(f"s_add_u32 s56, s56, {16384*i}")
                else: A.e("s_add_u32 m0, m0, 1024\ns_add_u32 s56, s56, 16384")
                A.e(f"buffer_load_dwordx4 v{VX+(i&1)}, {sr(SX_)}, s56 offen {XNT if str(t) in NTT else ''} lds")
            else:
                if i == lo or i == 4:
                    A.e(f"""s_add_u32 m0, s{L8K}, {gslot(t) + XSZ + 1024*(i-4)}
                        s_lshl_b32 s56, s{KT}, 3""")
                    if i > 4: A.e(f"s_add_u32 s56, s56, {i-4}")
                    A.e(f"""s_mul_i32 s56, s56, s{WSTEP}
                        s_add_u32 s56, s56, s{WB}""")
                else: A.e(f"s_add_u32 m0, m0, 1024\ns_add_u32 s56, s56, s{WSTEP}")
                A.e(f"buffer_load_dwordx4 v{VW+(i&1)}, {sr(SW_)}, s56 offen {WNT if str(t) in NTT else ''} lds")
            gv.add(f"T{t}")
        if hi == 12 and t < 15:
            pm = 3 if ORD == 3 else 7
            A.e(f"""s_add_u32 s56, s{KT}, 1
                s_and_b32 s56, s56, {pm}""")
            if (t & pm) == pm: A.e(f"s_add_u32 s{KT}, s{KT}, {pm+1}")
            A.e(f"""s_and_b32 s{KT}, s{KT}, {15 - pm}
                s_or_b32 s{KT}, s{KT}, s56""")
    DEF = {int(x.split(":")[0]): int(x.split(":")[1]) for x in os.environ.get("DEF", DEFD).split(",") if x}
    marks = {}
    if O5: A.e(f"s_and_b32 s{KT}, s{KT}, {P1}")
    A.e(f"s_mov_b32 s95, s{KT}")
    issue(0)
    SG, GA, AGS, PI = 32, 64, 134, 97
    A.e(f"s_and_b32 s{KIND}, s{PHI}, 1" if ORD == 3 else f"s_lshr_b32 s{KIND}, s{HP}, 3")
    A.e(f"""s_cmp_eq_u32 s{KIND}, 0
        s_cselect_b32 s{SS_}, s8, s10
        s_cselect_b32 s{SS_+1}, s9, s11
        s_mov_b32 s{SS_+2}, 65536
        s_mov_b32 s{SS_+3}, 0x20000
        s_and_b32 s58, s{PHI}, 2
        s_xor_b32 s58, s58, s95
        s_xor_b32 s60, s58, 1
        s_cmp_lt_u32 s{LW}, 2
        s_cselect_b32 s56, s58, s60
        s_lshl_b32 s56, s56, 12
        s_and_b32 s57, s{LW}, 1
        s_lshl_b32 s57, s57, 11
        s_add_u32 s56, s56, s57
        s_lshl_b32 s57, s{LW}, 11
        s_add_u32 m0, s57, {MISC}
        v_mov_b32 v17, s58
        buffer_load_dwordx4 v{VL16}, {sr(SS_)}, s56 offen lds
        buffer_load_dwordx4 v{VL16}, {sr(SS_)}, s56 offen offset:1024 lds
        v_mov_b32 v18, s60
        v_cmp_gt_u32 vcc, 8, v0
        v_lshlrev_b32 v19, 4, v16
        v_lshrrev_b32 v20, 4, v0
        v_cndmask_b32 v17, v18, v17, vcc
        v_lshl_add_u32 v19, v17, 7, v19
        v_lshl_add_u32 v19, v20, 16, v19
        s_lshl_b32 s57, s{LW}, 10
        s_add_u32 s57, s57, {MISC + 8192}
        s_mov_b32 m0, s57""")
    srd(A, 60, "s20", "s21", 2048)
    A.e(f"""buffer_load_dwordx4 v19, s[60:63], 0 offen lds
        v_lshrrev_b32 v17, 5, v0
        v_lshl_add_u32 v{AGS}, v17, 4, s57""")
    srds()
    A.e(f"""v_and_b32 v16, 31, v0
        v_lshrrev_b32 v17, 5, v0
        v_bfe_u32 v18, v0, 1, 3
        v_xor_b32 v19, v17, v18
        v_lshlrev_b32 v19, 4, v19
        v_lshl_add_u32 v19, v16, 7, v19
        v_add_u32 v{AXS}, s{L4K}, v19
        v_xor_b32 v{AXS+1}, 32, v{AXS}
        v_xor_b32 v{AXS+2}, 64, v{AXS}
        v_xor_b32 v{AXS+3}, 0x60, v{AXS}
        v_bfe_u32 v18, v0, 2, 2
        v_lshl_add_u32 v19, v17, 3, v18
        v_lshlrev_b32 v19, 6, v19
        v_bfe_u32 v18, v0, 4, 1
        v_lshl_add_u32 v19, v18, 5, v19
        v_and_b32 v18, 3, v0
        v_bfe_u32 v20, v0, 1, 1
        v_and_b32 v21, 1, v0
        v_lshl_or_b32 v20, v21, 1, v20
        s_cmp_eq_u32 s{KIND}, 0
        s_cselect_b64 vcc, -1, 0
        v_cndmask_b32 v18, v18, v20, vcc
        v_lshl_add_u32 v19, v18, 3, v19
        v_add_u32 v{AWS}, {MISC}, v19
        v_lshlrev_b32 v{VS}, 2, v0
        v_mov_b32 v{GA}, 0
        v_mov_b32 v{GA+1}, 0
        s_lshr_b32 s{PI}, s58, 1
        s_lshl_b32 s{PSRC}, s{RB}, 1
        s_add_u32 s{PSRC}, s{PSRC}, s{KIND}
        s_lshl_b32 s{PSRC}, s{PSRC}, 17
        s_add_u32 s{PSRC}, s{PSRC}, {PART_OFF}""")
    st(A, "setup")
    issue(1)
    A.e("s_waitcnt vmcnt(12)")
    st(A, "g0")
    RL = SXF
    def lsignal(t, ph):
        A.e(f"""s_cmp_lg_u32 s{LW}, 0
            s_cbranch_scc1 {P}ls{t}""")
        signal(ph, 17)
        A.lab(f"{P}ls{t}")
    def side_compute(ks, tg):
        A.e(f"""s_cmp_eq_u32 s{KIND}, 1
            s_cbranch_scc1 {P}lv{tg}""")
        for k in ks: A.e(f"ds_read_b128 {v(SG+4*k,4)}, v{AGS} offset:{32*k}")
        A.e(f"s_waitcnt lgkmcnt({len(ks)})")
        for k in ks: A.e(mfma32(SA, SWF + 4*k, SXF + 4*k, "0" if k == 0 else SA))
        A.e("s_waitcnt lgkmcnt(0)")
        for k in range(4*ks[0], 4*ks[-1]+4): A.e(f"v_dot2_f32_bf16 v{GA+(k&1)}, v{SXF+k}, v{SG+k}, v{GA+(k&1)}")
        A.e(f"s_branch {P}lw{tg}")
        A.lab(f"{P}lv{tg}")
        A.e("s_waitcnt lgkmcnt(0)")
        for k in ks: A.e(mfma32(SA, SXF + 4*k, SWF + 4*k, "0" if k == 0 else SA))
        A.lab(f"{P}lw{tg}")
    def reduce_store():
        A.e(f"""s_lshl_b32 s56, s{RB}, 2
            s_lshr_b32 s57, s{PI}, 1
            s_add_u32 s56, s56, s57
            s_cmp_lg_u32 s{LW}, 0
            s_cbranch_scc1 {P}lgate""")
        if PBF:
            A.e("v_mov_b32 v20, 0x3f80\nv_mov_b32 v21, 1.0")
            for q in range(8):
                for i in range(8): A.e(f"v_dot2_f32_bf16 v{RL+i}, v{RL+8+4*q+(i>>1)}, v{20+(i&1)}, " + ("0" if q == 0 else f"v{RL+i}"))
            A.e("s_nop 0")
        else:
            for st_ in (32, 16, 8):
                for i in range(0, st_, 2): A.e(f"v_pk_add_f32 {v(RL+i,2)}, {v(RL+i,2)}, {v(RL+st_+i,2)}")
        A.e(f"""s_cmp_eq_u32 s{KIND}, 0
            s_cselect_b32 s57, {f2u(CSCALE)}, 1.0""")
        for i in range(8): A.e(f"v_mul_f32 v{RL+i}, s57, v{RL+i}")
        for i in range(4): A.e(f"v_cvt_pk_bf16_f32 v{SA+i}, v{RL+2*i}, v{RL+2*i+1}")
        A.e(f"""s_lshl_b32 s56, s56, 12
            s_lshl_b32 s57, s{KIND}, 11
            s_add_u32 s56, s56, s57
            s_and_b32 s57, s{PI}, 1
            s_lshl_b32 s57, s57, 10
            s_add_u32 s56, s56, s57
            s_add_u32 s56, s56, {KVA_OFF}
            buffer_store_dwordx4 {v(SA,4)}, v{VL16}, {sr(WS)}, s56 offen sc1
            s_branch {P}lsd""")
        A.lab(f"{P}lgate")
        A.e(f"""s_cmp_lg_u32 s58, 1
            s_cbranch_scc1 {P}lsd""")
        for i in range(1, 8): A.e(f"v_add_f32 v{RL}, v{RL}, v{RL+i}")
        A.e(f"""v_mov_b32 v{RL+1}, v{RL}
            s_lshl_b32 s56, s56, 7
            s_add_u32 s56, s56, {G_OFF}
            v_permlane32_swap_b32 v{RL}, v{RL+1}
            v_and_b32 v16, 31, v0
            v_add_f32 v{RL}, v{RL}, v{RL+1}
            v_mul_f32 v{RL}, {f2u(-LOG2E)}, v{RL}
            v_exp_f32 v{RL}, v{RL}
            v_lshlrev_b32 v16, 2, v16
            v_add_f32 v{RL}, 1.0, v{RL}
            v_rcp_f32 v{RL}, v{RL}
            s_nop 0
            buffer_store_dword v{RL}, v16, {sr(WS)}, s56 offen sc1""")
        A.lab(f"{P}lsd")
    for t in range(16):
        A.e("s_barrier")
        trace(A, t)
        ks = list(range(4*(t&1), 4*(t&1)+4)) if t < 4 else []
        if ks:
            A.e(f"""s_bitcmp{1 - (t>>1)}_b32 s{PHI}, 1
                s_cbranch_scc1 {P}lx{t}""")
            for k in ks: A.e(f"ds_read_b128 {v(SXF+4*k,4)}, v{AXS+(k&3)}")
            for k in ks:
                A.e(f"""ds_read_b64_tr_b16 {v(SWF+4*k,2)}, v{AWS} offset:{1024*k}
                    ds_read_b64_tr_b16 {v(SWF+4*k+2,2)}, v{AWS} offset:{1024*k+256}""")
            A.lab(f"{P}lx{t}")
            if t < 3:
                for k in range(4): A.e(f"v_add_u32 v{AXS+k}, {(gslot(t+1) - gslot(t)) & 0xffffffff}, v{AXS+k}")
        if t == 1:
            tag_issue(18, 17); marks.setdefault(2, []).append(len(gv.q))
        if t == TSA: lsignal(t, 0)
        if t == TRED + 1 + min(RAFT, 1): lsignal(t, 1)
        if t == TPA:
            A.e(f"""s_and_b32 s58, s{PI}, 1
                s_add_u32 s58, s58, s{KIND}
                s_add_u32 s58, s58, s{LW}
                s_cmp_eq_u32 s{LW}, 0
                s_cselect_b32 s58, 0, s58
                v_and_b32 v16, 7, v0
                v_lshlrev_b32 v16, {FS+1 if ORD == 3 else FS}, v16
                s_and_b32 s57, s{HP}, {1 if ORD == 3 else 8}
                s_lshl_b32 s56, s{RB}, 4
                s_add_u32 s56, s56, s57
                s_lshl_b32 s56, s56, {FS}
                v_add_u32 v16, s56, v16
                s_cmp_ge_u32 s58, 2
                s_cbranch_scc1 {P}lta""")
            poll_issue(16, 0)
            A.lab(f"{P}lta")
            marks.setdefault(t, []).append(len(gv.q))
        if t == TPOLL:
            A.e(f"""v_lshlrev_b32 v16, {FS+2}, v0
                s_cmp_lg_u32 s{LW}, 0
                s_cbranch_scc1 {P}lt0""")
            poll_issue(16, 1, 17)
            A.lab(f"{P}lt0")
            marks.setdefault(t, []).append(len(gv.q))
        if t == TRED and not RAFT:
            reduce_store(); marks.setdefault(t, []).append(len(gv.q))
        if DEF.get(t - 1): issue(t + 1, 12 - DEF[t - 1], 12)
        if t + 2 < 16: issue(t + 2, 0, 12 - DEF.get(t, 0))
        if ks:
            A.e(f"""s_bitcmp{1 - (t>>1)}_b32 s{PHI}, 1
                s_cbranch_scc1 {P}lw{t}
                s_waitcnt lgkmcnt(4)""")
            side_compute(ks, t)
            if t == TST: A.e("s_nop 7")
        if t == TST and not NS_ & 2:
            A.e(f"""s_lshl_b32 s56, s{LW}, 3
                s_add_u32 s56, s56, s{PI}
                s_lshl_b32 s57, s56, 12
                s_add_u32 s57, s57, s{PSRC}
                v_add_f32 v{GA}, v{GA}, v{GA+1}""")
            if PBF:
                for i in range(8): A.e(f"v_cvt_pk_bf16_f32 v{SA+16+i}, v{SA+2*i}, v{SA+2*i+1}")
                for q in range(2): A.e(f"buffer_store_dwordx4 {v(SA+16+4*q,4)}, v{VL16}, {sr(WS)}, s57 offen offset:{2048*q} sc1")
            else:
                for q in range(4): A.e(f"buffer_store_dwordx4 {v(SA+4*q,4)}, v{VL16}, {sr(WS)}, s57 offen offset:{1024*q} sc1")
            A.e(f"""s_cmp_eq_u32 s{KIND}, 1
                s_cbranch_scc1 {P}lp1
                s_lshl_b32 s57, s{RB}, 5
                s_add_u32 s56, s56, s57
                s_lshl_b32 s56, s56, 8
                s_add_u32 s56, s56, {GP_OFF}
                buffer_store_dword v{GA}, v{VS}, {sr(WS)}, s56 offen sc1""")
            A.lab(f"{P}lp1")
            gv.add("S", 2 if PBF else 4); marks.setdefault(TSA - 1, []).append(len(gv.q))
        if t == TRED and RAFT == 1:
            reduce_store(); marks.setdefault(t + 1, []).append(len(gv.q))
        ncs = 0
        if t > TPOLL and (t == TPOLL + 1 or t == 15):
            cs = []
            if t == TPOLL + 1: cs.append((0, 3))
            if t == 15: cs.append((1, 2))
            for c, slot in cs:
                for hf in range(2):
                    A.e(f"""s_add_u32 m0, s{L8K}, {slot*32768 + hf*4096}
                        s_add_u32 s56, s{L8K}, {KVA_OFF + c*32768 + hf*4096}""")
                    for i in range(4): A.e(f"buffer_load_dwordx4 v{VL16}, {sr(WS)}, s56 offen offset:{1024*i} sc1 lds")
                gv.add('C', 8)
        for nm, tt in (("s", TS), ("v", TV)):
            if t == tt:
                A.e(f"s_branch {P}set{nm}")
                A.lab(f"{P}set{nm}_r")
        if t < 15: A.e(f"s_waitcnt vmcnt({min([gv.after(f'T{t+1}')] + [len(gv.q) - m for m in marks.get(t, [])])})")
        if t == TRED and RAFT == 2:
            reduce_store(); marks.setdefault(t + 1, []).append(len(gv.q))
        if t == 2: tag_get("l", 18, 17)
        if t == TPA and not NS_ & 4:
            A.e(f"""s_cmp_ge_u32 s58, 2
                s_cbranch_scc1 {P}lp2""")
            poll("a", 16, 0, True)
            st(A, "pla")
            A.e(f"""s_lshr_b32 s56, s{PI}, 1
                s_cmp_eq_u32 s58, 1
                s_cbranch_scc1 {P}lp3
                s_lshl_b32 s56, s56, 15
                s_and_b32 s57, s{PI}, 1
                s_lshl_b32 s57, s57, 11
                s_add_u32 s56, s56, s57
                s_add_u32 s56, s56, s{PSRC}""")
            for q in range(8):
                if PBF: A.e(f"buffer_load_dwordx4 {v(RL+8+4*q,4)}, v{VL16}, {sr(WS)}, s56 offen sc1")
                else: A.e(f"""buffer_load_dwordx4 {v(RL+8*q,4)}, v{VL16}, {sr(WS)}, s56 offen sc1
                    buffer_load_dwordx4 {v(RL+8*q+4,4)}, v{VL16}, {sr(WS)}, s56 offen offset:1024 sc1""")
                if q < 7: A.e("s_add_u32 s56, s56, 4096")
            A.e(f"s_branch {P}lp2")
            A.lab(f"{P}lp3")
            A.e(f"""s_lshl_b32 s57, s{RB}, 2
                s_add_u32 s56, s56, s57
                s_lshl_b32 s56, s56, 11
                s_add_u32 s56, s56, {GP_OFF}""")
            for q in range(8): A.e(f"buffer_load_dword v{RL+q}, v{VS}, {sr(WS)}, s56 offen offset:{256*q} sc1")
            A.lab(f"{P}lp2")
            marks.setdefault(TRED - (RAFT < 2), []).append(len(gv.q))
        if t == TPOLL:
            A.e(f"""s_cmp_lg_u32 s{LW}, 0
                s_cbranch_scc1 {P}pd0""")
            poll("0", 16, 1, True, t1=17)
            st(A, "pl0")
    A.e(f"""s_add_u32 s56, s{L4K}, {MISC}
        v_add_u32 v16, s56, v{VL16}
        s_setprio 0
        s_waitcnt vmcnt(0)
        s_barrier""")
    st(A, "gend")
    A.e(f"""ds_read_b128 {v(QA,4)}, v16
        ds_read_b128 {v(QA+4,4)}, v16 offset:1024
        ds_read_b128 {v(QB+4,4)}, v16 offset:3072
        ds_read_b128 {v(QB,4)}, v16 offset:2048""")

    A.lab(f"{P}attn")
    if E('STOPG', 0): A.e(f"s_branch {P}end")
    st(A, "attn")
    VOO, VXW, VXO = ML, ML + 12, ML + 14
    VWO = [ML + 4, ML + 1, ML + 2, ML + 3]
    VO4 = [ML + 5, ML + 6, ML + 7, ML + 15]
    VW2, VH1 = 192, 191
    def la(off): return ([VL16, AC, AN][off >> 16], off & 0xffff)
    def rdK(addr, off): return [f"ds_read_b128 {v(KF+4*i,4)}, v{addr} offset:{off+1024*i}" for i in range(2)]
    def rdV(addr, off): return [f"ds_read_b128 {v(VF+4*i,4)}, v{addr} offset:{off+2048+1024*i}" for i in range(2)]
    cslot = lambda c: {0: 3, 1: 2, 2: 4}.get(c, c % 5)
    seq = [("A", j) for j in range(NB0)] + [("B", i) for i in range(9)] + [("A", j) for j in range(NB0, 64)]
    seq += [("A", 63), ("A", 63)]
    def taddr(n):
        k, j = seq[n]
        return la(cslot(j >> 3) * 32768 + (j & 7) * 4096) if k == "A" else (AB, j * 4096)
    def tq(n): return QA if seq[n][0] == "A" else QB
    def tc(n):
        k, j = seq[n]
        return "0" if k == "A" else (MU if j == 0 else ML if j == 8 else CM)
    def to(n): return (O, L) if seq[n][0] == "A" else (O2, L2)
    for x in rdK(*taddr(0)): A.e(x)
    srd(A, SW_, "s18", "s19", 2 * MB)
    A.e("s_waitcnt lgkmcnt(0)")
    A.e(mfma32(SB[0], KF, QA, "0"))
    A.e(mfma32(SB[0], KF + 4, QA + 4, SB[0]))
    for x in rdK(*taddr(1)): A.e(x)
    srd(A, SX_, "s12", "s13", 2 * MB)
    A.e(f"""v_mov_b32 v{TZ}, {NEG}
        v_mov_b32 v{TZ+1}, 0
        v_add_u32 v{AB}, s{ABS}, v{VL16}
        v_add_u32 v{VH1}, {64*4096}, v{VL16}
        s_waitcnt lgkmcnt(0)""")
    vm = VM()
    def cpiece(c, i):
        o = [f"s_add_u32 m0, s{W4K}, {cslot(c)*32768}", f"s_add_u32 s{CSRC}, s{W4K}, {KVA_OFF + c*32768}"] if i == 0 else []
        return (f"C{c}", o + [f"buffer_load_dwordx4 v{VL16}, {sr(WS)}, s{CSRC} offen offset:{i*1024} sc1 lds"])
    def wpiece(i):
        return ("W", [f"s_add_u32 m0, s{W1K}, {i*8192}", f"buffer_load_dwordx4 v{VH1 if i >= 6 else VL16}, {sr(WS)}, s{WS6+i%6} offen sc1 lds"])
    def upiece(u, k):
        o = [f"s_add_u32 m0, s{W4K}, {(u%5)*32768}"] if k == 0 else []
        return (f"U{u}", o + [f"buffer_load_dwordx4 v{VWO[k]}, {sr(SW_ if u < 12 else SX_)}, s{UO+(u&3)} offen offset:{k*1024} lds"])
    def warm(i):
        return ("Z", [f"buffer_load_dwordx4 v[252:255], v{VW2+(i&3)}, {sr(SW_ if i < 4 else SX_)}, s{WOS} offen offset:{(i&3)*1024} {ZNT}"])
    def oload(n, half):
        return ("O", [f"buffer_load_dwordx4 {v(OFR+4*n,4)}, v{VO4[n&3]}, {sr(WS)}, s{OQ+(n>>2)} offen sc1"])
    bg = {n: [] for n in range(73)}
    bv = {n: [] for n in range(73)}
    for i in range(4): bg[i].append(cpiece(2, i))
    for i in range(4): bg[E1N + i // 2].append(cpiece(3, i))
    for i in range(12): bg[N2 + i // 2].append(wpiece(i))
    bv[N2 + 5] += [f"v_and_b32 v{TZ}, 31, v0", f"v_lshlrev_b32 v{TZ}, 2, v{TZ}"]
    bg[N2 + 6].append(("G", [f"buffer_load_dword v{VG}, v{TZ}, {sr(WS)}, s{GSRC} offen sc1"]))
    for i in range(4): bg[26 + i // 2].append(cpiece(4, i))
    if WARM:
        for i in range(8): bg[28 + i].append(warm(i))
    for i in range(12): bg[39 + i // CPS].append(cpiece(5 + i // 4, i & 3))
    for i in range(4): bg[N5 + i].append(upiece(8, i))
    for i in range(4): bg[N6 + 3 + i].append(upiece(9, i))
    for i in range(8): bg[65 + i].append(upiece(10 + i // 4, i & 3))
    for i in range(32): bg[N6 + ((71 - N6) * i) // 31].append(oload(i, 1))
    for i in range(4):
        bv[4 + i] += [f"v_fma_f32 v{MU+r}, -v{ML+r}, s{MUS}, v{TZ}" for r in range(4*i, 4*i+4)]
        bv[12 + i] += [f"v_mov_b32 v{CM+r}, s{CMS}" for r in range(4*i, 4*i+4)] + [f"v_mov_b32 v{L2+i}, 0"]
    bv[24] += [f"v_lshrrev_b32 v{VW2}, 3, v0", f"v_bfe_u32 v{TB}, v0, 4, 2", f"v_lshlrev_b32 v{TB}, 1, v{TB}", f"v_and_b32 v{TB+1}, 7, v0",
               f"v_xor_b32 v{TB}, v{TB}, v{TB+1}", f"v_lshlrev_b32 v{TB}, 4, v{TB}", f"v_lshl_add_u32 v{VW2}, v{VW2}, 11, v{TB}"]
    bv[25] += [f"v_add_u32 v{VW2+k}, {k*15360}, v{VW2}" for k in range(1, 4)]
    bv[NB0 + 8] += [f"v_and_b32 v{VOO}, 15, v0", f"v_bfe_u32 v{VOO+1}, v0, 4, 1", f"v_lshrrev_b32 v{VOO+2}, 5, v0",
                    f"v_lshlrev_b32 v{VXO}, 11, v{VOO}", f"v_lshl_add_u32 v{VXO}, v{VOO+1}, 5, v{VXO}", f"v_lshl_add_u32 v{VXO}, v{VOO+2}, 4, v{VXO}",
                    f"v_lshlrev_b32 v{VOO}, 4, v{VOO}", f"v_lshl_add_u32 v{VOO}, v{VOO+1}, 10, v{VOO}", f"v_lshl_add_u32 v{VOO}, v{VOO+2}, 8, v{VOO}"]
    bv[NB0 + 9] += [f"v_mov_b32 v{VWO[k]}, v{VW2+k}" for k in range(4)]
    bv[44] += [f"v_add_u32 v{VO4[0]}, s{KH10}, v{VL16}", f"v_xor_b32 v{VO4[1]}, 0x400, v{VO4[0]}", f"v_add_u32 v{VO4[2]}, 0x1000, v{VO4[0]}", f"v_add_u32 v{VO4[3]}, 0x1000, v{VO4[1]}",
               f"v_add_u32 v{VXW}, s{W4K}, v{VL16}", f"v_xor_b32 v{VXW+1}, 0x4000, v{VXW}"]
    ntr = [0]
    def bar(wait=None, pre=None, post=None):
        if pre:
            A.e(f"s_cmp_eq_u32 s3, 4\ns_cbranch_scc1 {P}{pre}")
            A.lab(f"{P}{pre}_r")
        if wait is not None: A.e(f"s_waitcnt vmcnt({wait})")
        A.e("s_barrier")
        if post:
            A.e(f"s_cmp_eq_u32 s3, 4\ns_cbranch_scc1 {P}{post}")
            A.lab(f"{P}{post}_r")
        trace(A, 34 + ntr[0]); ntr[0] += 1
    tops = {
        E1N: lambda: bar(0, post="sig1"),
        N2: lambda: bar(vm.after("C3"), pre="poll1"),
        26: lambda: bar(vm.after("W")),
        39: lambda: bar(vm.after("C4")),
        N5: lambda: bar(0, post="sig2"),
        N6: lambda: bar(None, pre="poll2"),
        65: lambda: bar(vm.after("U8")),
    }
    bnd = [0] + sorted(tops) + [73]
    lvl = {}
    for a_, b_ in zip(bnd, bnd[1:]):
        for n in range(a_, b_): lvl[n] = 3 - (PRL * (n - a_)) // (b_ - a_)
    pw = {}
    def step(n):
        par = n & 1
        S, Sn, Pc, Pp = SB[par], SB[1-par], PB[par], PB[1-par]
        q = []
        for tag, lines in bg[n]:
            if tag[0] in os.environ.get("DROP", "") or XP & 1: continue
            q += [(tag if x.startswith("buffer") else None, x) for x in lines]
        nfront = max(0, min(4, len(q) - 1))
        def B(slot):
            k = (1 if slot >= 4 - nfront else 0) if slot < 4 else len(q)
            for _ in range(k):
                tag, x = q.pop(0)
                if " lds" in x and A.l[-1].strip().startswith("s_add_u32 m0"): A.e("s_nop 0")
                A.e(x)
                if tag: vm.add(tag)
        oprev, lprev = to(max(n - 1, 0))
        for k_, n_ in ((1, N2), (2, N6)):
            if n == n_ - PRE:
                A.e(f"s_cmp_eq_u32 s3, 4\ns_cbranch_scc1 {P}pre{k_}")
                A.lab(f"{P}pre{k_}_r")
                pw[k_] = len(vm.q)
            if n == n_: pw[k_] = len(vm.q) - pw[k_]
        if n in tops and not (XP & 4): tops[n]()
        if PRL and (n == 0 or lvl[n] != lvl[n - 1]): A.e(f"s_setprio {lvl[n]}")
        k, j = seq[n + 1]
        if k == "B" and 2 <= j <= 7:
            A.e(f"s_cmp_eq_u32 s{I0}, {j}\ns_cbranch_scc1 {P}cm{j}")
            A.lab(f"{P}cm{j}_r")
        A.e(mfma32(Sn, KF, tq(n + 1), tc(n + 1)))
        A.e(rdK(*taddr(n + 2))[0]); B(0)
        for j in (0, 1, 2, 3): A.e(ex(S, j))
        if n > 0: A.e(mfma32(oprev, VF, Pp, "0" if n - 1 in (0, NB0) else oprev))
        A.e(rdV(*taddr(n))[0]); B(1)
        A.e(cv(Pc, S, 0)); A.e(cv(Pc, S, 1))
        for j in (4, 5, 6): A.e(ex(S, j))
        A.e(mfma32(Sn, KF + 4, tq(n + 1) + 4, Sn))
        A.e(rdK(*taddr(n + 2))[1]); B(2)
        A.e(ex(S, 7)); A.e(cv(Pc, S, 2)); A.e(ex(S, 8)); A.e(cv(Pc, S, 3))
        if n > 0: A.e(mfma32(oprev, VF + 4, Pp + 4, oprev))
        A.e(rdV(*taddr(n))[1]); B(3)
        A.e(ex(S, 9)); A.e(ex(S, 10)); A.e(cv(Pc, S, 4))
        if not XP & 2:
            for x in bv[n]: A.e(x)
        A.e(ex(S, 11)); A.e(ex(S, 12)); A.e(cv(Pc, S, 5)); A.e(ex(S, 13)); A.e(ex(S, 14)); A.e(ex(S, 15))
        if n > 0: A.e(smf(lprev, Pp))
        B(4)
        A.e("s_waitcnt lgkmcnt(0)")
        A.e(cv(Pc, S, 6)); A.e(cv(Pc, S, 7))
    def finalize(tag, which, o, l, tmp):
        A.e(f"s_mov_b32 s63, 0")
        A.lab(f"{P}norm{tag}")
        A.e(f"""v_add_f32 v{T0}, v{l}, v{l+1}
            v_rcp_f32 v{tmp}, v{T0}""")
        if which == 0:
            A.e(f"""s_waitcnt vmcnt({vm.after('G')})
                v_sub_f32 v{tmp+1}, 1.0, v{VG}
                v_mul_f32 v{tmp}, v{tmp}, v{tmp+1}""")
        else:
            A.e(f"s_nop 0\nv_mul_f32 v{tmp}, v{tmp}, v{VG}")
        for i in range(8): A.e(f"v_pk_mul_f32 {v(o+2*i,2)}, {v(o+2*i,2)}, {v(tmp,2)} op_sel_hi:[1,0]")
        A.e(f"v_pk_add_f32 {v(tmp+2,2)}, {v(o,2)}, {v(o+2,2)}")
        for i in range(2, 8): A.e(f"v_pk_add_f32 {v(tmp+2,2)}, {v(tmp+2,2)}, {v(o+2*i,2)}")
        A.e(f"""v_sub_f32 v{tmp+2}, v{tmp+2}, v{tmp+2}
            v_fma_f32 v{tmp+2}, v{tmp+3}, v{tmp+2}, v{T0}
            v_cmp_le_f32 vcc, {f2u(2.0**-64)}, v{tmp+2}
            s_mov_b64 s[56:57], vcc
            v_cmp_ge_f32 vcc, {f2u(2.0**64)}, v{tmp+2}""")
        for i in range(8): A.e(f"v_cvt_pk_bf16_f32 v{tmp+i}, v{o+2*i}, v{o+2*i+1}")
        A.e(f"""s_and_b64 vcc, vcc, s[56:57]
            s_cmp_eq_u64 vcc, -1
            s_cselect_b32 s62, 1, s63
            s_cmp_eq_u32 s62, 0
            {"s_nop 0" if XP else f"s_cbranch_scc1 {P}slow{tag}"}
            buffer_store_dwordx4 {v(tmp,4)}, v{VOO}, {sr(WS)}, s{OSTB if which == 0 else OSTA} offen sc1
            buffer_store_dwordx4 {v(tmp+4,4)}, v{VOO}, {sr(WS)}, s{OSTB if which == 0 else OSTA} offen offset:512 sc1""")
        vm.add("S" + tag, 2)
    for n in range(73):
        step(n)
        if n == NB0 + 10 and not (XP & 8): finalize("B", 0, O2, L2, TB)
    A.e(mfma32(O, VF, PB[0], O))
    A.e("s_nop 0")
    A.e(mfma32(O, VF + 4, PB[0] + 4, O))
    A.e(smf(L, PB[0]))
    for h in range(8): A.e(f"s_sub_u32 s{OQ+h}, s{OQ+h}, 0x10000")
    A.e("s_setprio 0")
    st(A, "aend")
    if XP & 31: A.e(f"s_branch {P}end")
    AWO, OAC = 16, 64
    WFO = [32, 48]
    TA = SB[0]
    A.e(f"""v_lshrrev_b32 v20, 4, v0
        v_bfe_u32 v21, v0, 2, 2
        v_and_b32 v22, 1, v20
        v_lshl_add_u32 v22, v22, 2, v21
        v_lshrrev_b32 v23, 1, v20
        v_lshl_add_u32 v23, v23, 4, v22
        v_lshlrev_b32 v23, 7, v23
        v_and_b32 v20, 3, v0
        v_lshl_add_u32 v23, v20, 3, v23
        s_lshr_b32 s56, s3, 2
        s_lshl_b32 s56, s56, 12
        s_add_u32 s56, s56, {3*32768}
        v_add_u32 v23, s56, v23
        v_lshrrev_b32 v22, 1, v22""")
    for nb in range(4):
        A.e(f"v_xor_b32 v20, {nb}, v22\nv_lshl_add_u32 v{AWO+nb}, v20, 5, v23")
    finalize("A", 1, O, L, TA)
    st(A, "afin")

    def oreads(buf, i):
        return [f"ds_read_b64_tr_b16 {v(WFO[buf]+4*nb+2*jh,2)}, v{AWO+nb} offset:{i*8192+jh*1024}" for nb in range(4) for jh in range(2)]
    for r in oreads(0, 0): A.e(r)
    oidx = [i for i, t in enumerate(vm.q) if t == "O"] or [0] * 32
    def emit(x):
        for l_ in x[1]:
            if " lds" in l_ and A.l[-1].strip().startswith("s_add_u32 m0"): A.e("s_nop 0")
            A.e(l_)
        vm.add(x[0])
    def y1():
        st(A, "y1a")
        A.e("s_waitcnt vmcnt(0)\ns_barrier")
        st(A, "y1")
        A.e(f"""s_cmp_lg_u32 s3, 4
            s_cbranch_scc1 {P}y1""")
        signal(4, AN)
        A.lab(f"{P}y1")
    def ypre():
        A.e(f"""s_cmp_lg_u32 s3, 4
            s_cbranch_scc1 {P}yp
            v_and_b32 v20, 15, v0
            v_lshlrev_b32 v20, {FS}, v20
            s_lshl_b32 s56, s{RB2}, {FS+4}
            v_add_u32 v20, s56, v20""")
        poll_issue(20, 4)
        A.lab(f"{P}yp")
        pw[3] = len(vm.q)
    def ypoll():
        st(A, "y3a")
        A.e(f"""s_cmp_lg_u32 s3, 4
            s_cbranch_scc1 {P}pd3
            s_waitcnt vmcnt({len(vm.q) - pw[3]})""")
        poll("3", 20, 4, True, slp=SLP3)
    def ybar(*tags):
        if tags: A.e(f"s_waitcnt vmcnt({vm.after(*tags)})")
        A.e("s_barrier")
    pre = {j: [] for j in range(32)}
    obg = {j: [] for j in range(32)}
    pre[3].append(y1)
    pre[JP].append(ypoll)
    for j in sorted({7, 11, JP}):
        pre[j].append((lambda: ybar("U12", "U13")) if j == 11 else ybar)
    if DIAG: pre[JP].append(lambda: st(A, "y3"))
    pre[JV].append(lambda: ybar("U14", "U15"))
    if os.environ.get("DIAG") == "1": pre[16].append(lambda: st(A, "y4"))
    for k in range(8): obg[3 + k // 2].append(upiece(12 + k // 4, k & 3))
    nl = 0
    for j in range(JP, 32):
        c = 0
        while not (XP & 128) and nl < 32 and c < (LPS if j < 16 else 2) and nl // 2 < j:
            obg[j].append((f"OA{nl}", oload(nl, 0)[1])); nl += 1; c += 1
    for k in range(4): obg[7 + k].append(upiece(14, k))
    for k in range(4): obg[JU + k].append(upiece(15, k))
    for j in range(32):
        u, i = 8 + j // 4, j & 3
        q, buf = u & 3, i & 1
        order = [(nb, f if nb % 2 == 0 else 1 - f) for nb in range(4) for f in range(2)]
        if j == 31: order = [(nb, 1) for nb in range(4)] + [(3 - nb, 0) for nb in range(4)]
        ms = [mfma16(OAC + 4*(f*4+nb), WFO[buf]+4*nb, OFR+32*q+8*i+4*f, "0" if j == 0 else OAC + 4*(f*4+nb)) for nb, f in order]
        w = min(60, len(vm.q) - 1 - oidx[7]) if j == 0 else vm.after(f"OA{2*(j-16)+1}") if j >= 16 else None
        lg = 0 if (pre[j] or j == 31) else 4
        A.e(f"s_waitcnt lgkmcnt({lg})" if w is None else f"s_waitcnt lgkmcnt({lg}) vmcnt({w})")
        if i == 3 and u < 15:
            dl = ((u+1) % 5 - u % 5) * 32768
            for nb in range(4): A.e(f"v_add_u32 v{AWO+nb}, {dl & 0xffffffff}, v{AWO+nb}")
        if j == JP - PRE: ypre()
        for f in pre[j]: f()
        rd = oreads(1 - buf, (i + 1) & 3) if j < 31 else []
        b = list(obg[j])
        for k in range(8):
            if k == 4 and lg: A.e("s_waitcnt lgkmcnt(4)")
            A.e(ms[k])
            if rd: A.e(rd[k])
            if k % 2 == 1 and b: emit(b.pop(0))
        while b: emit(b.pop(0))
    st(A, "oend")
    if XP & 256: A.e(f"s_branch {P}end")
    srd(A, SX_, "s22", "s23", 4 * MB)
    for nb in range(4): A.e(f"ds_write_b128 v{VXW}, {v(OAC+16+4*nb,4)} offset:{32768+1024*nb}")
    A.e("s_waitcnt lgkmcnt(0)\ns_barrier")
    for nb in range(4): A.e(f"ds_read_b128 {v(32+4*nb,4)}, v{VXW+1} offset:{32768+1024*nb}")
    for a in range(2):
        A.e(f"s_waitcnt lgkmcnt({2 - 2*a})")
        for i in range(4): A.e(f"v_pk_add_f32 {v(OAC+8*a+2*i,2)}, {v(OAC+8*a+2*i,2)}, {v(32+8*a+2*i,2)}")
        for i in range(4): A.e(f"v_cvt_pk_bf16_f32 v{48+4*a+i}, v{OAC+8*a+2*i}, v{OAC+8*a+2*i+1}")
        A.e(f"""s_nop 0
            v_permlane16_swap_b32 v{48+4*a}, v{48+4*a+2}
            v_permlane16_swap_b32 v{48+4*a+1}, v{48+4*a+3}
            buffer_store_dwordx4 {v(48+4*a,4)}, v{VXO}, {sr(SX_)}, s{OUTS} offen offset:{64*a} {OFL}""")
    A.lab(f"{P}end")
    if E('HT', 0):
        A.e(f"""s_waitcnt vmcnt(0)
            s_memrealtime s[72:73]
            s_memtime s[76:77]
            s_waitcnt lgkmcnt(0)
            s_cmp_lg_u32 s3, 4
            s_cbranch_scc1 {P}end2
            s_mov_b64 exec, 1
            v_mov_b32 v0, 0
            s_not_b32 s56, s70
            v_mov_b32 v1, s56
            v_mov_b32 v2, s70
            v_mov_b32 v3, s72
            s_sub_u32 s76, s76, s74
            v_mov_b32 v4, s76
            buffer_atomic_umax v1, v0, {sr(DBG)}, 0 offen offset:8 sc1
            buffer_atomic_umax v2, v0, {sr(DBG)}, 0 offen offset:12 sc1
            buffer_atomic_umax v3, v0, {sr(DBG)}, 0 offen offset:16 sc1
            buffer_atomic_umax v4, v0, {sr(DBG)}, 0 offen offset:20 sc1""")
    stamp_flush(A, 0)
    trace_flush(A)
    A.lab(f"{P}end2")
    A.e("s_endpgm")

    AX, AW, VKO = 16, 18, 20
    XF, WF = [32, 48], 64
    ACC = 128
    A.lab(f"{P}compute")
    A.e(f"""v_and_b32 v8, 15, v0
        v_lshrrev_b32 v9, 4, v0
        v_bfe_u32 v10, v0, 1, 3
        s_and_b32 s56, s3, 1
        s_lshl_b32 s56, s56, 13
        v_xor_b32 v11, v9, v10
        v_lshlrev_b32 v11, 4, v11
        v_lshl_add_u32 v11, v8, 7, v11
        v_add_u32 v{AX}, s56, v11
        v_xor_b32 v{AX+1}, 64, v{AX}
        v_bfe_u32 v12, v0, 2, 2
        v_and_b32 v13, 3, v0
        v_lshl_add_u32 v14, v9, 3, v12
        v_lshlrev_b32 v14, 7, v14
        v_lshl_add_u32 v14, v13, 3, v14
        v_bfe_u32 v15, v0, 3, 2
        s_and_b32 s56, s3, 2
        v_xor_b32 v15, s56, v15
        v_lshl_add_u32 v14, v15, 5, v14
        v_add_u32 v{AW}, {XSZ}, v14
        v_xor_b32 v{AW+1}, 32, v{AW}
        v_and_b32 v8, 0x33, v0
        v_bfe_u32 v9, v0, 2, 1
        v_bfe_u32 v10, v0, 3, 1
        v_lshl_or_b32 v8, v9, 3, v8
        v_lshl_or_b32 v8, v10, 2, v8
        v_lshlrev_b32 v{VKO}, 4, v8
        s_waitcnt lgkmcnt(0)""")
    srds()
    A.e(f"""v_mov_b32 v21, 0
        s_or_b32 s56, s2, s3
        s_cmp_lg_u32 s56, 0
        s_cbranch_scc1 {P}ntag
        s_memrealtime s[56:57]
        s_waitcnt lgkmcnt(0)
        s_mul_i32 s57, s57, 0x9e3779b1
        s_xor_b32 s56, s56, s57
        s_or_b32 s56, s56, 1
        v_mov_b32 v22, s56
        buffer_store_dword v22, v21, {sr(DBG)}, 0 offen sc1""")
    A.lab(f"{P}ntag")
    zero(24, 4)
    for nm, fn in (("s", setup_s), ("v", setup_v)):
        A.lab(f"{P}set{nm}")
        fn()
        A.e(f"""s_cmp_ge_u32 s3, 4
            s_cbranch_scc1 {P}set{nm}_r""")
        if nm == "s":
            for i in range(8): A.e(mfma32(ACC + 16*i, 24, 24, "0"))
    A.e(f"""s_mov_b32 s58, 0
        s_mov_b32 s59, 0
        s_mov_b32 s60, {(-ST) & 0xffffffff}
        s_mov_b32 s61, {2*ST}
        s_mov_b32 s63, {f2u(CSCALE)}
        s_and_b32 s57, s{HEAD}, 24
        s_add_u32 s92, s{HEAD}, {4*GROT}
        s_and_b32 s92, s92, 7
        s_or_b32 s92, s92, s57
        s_lshl_b32 s92, s92, 6
        s_add_u32 s92, s92, s{RT}
        s_lshl_b32 s92, s92, 12
        s_add_u32 s92, s92, {KVB_OFF}
        s_add_u32 s93, s92, 4096
        s_add_u32 s96, s{HEAD}, {6*GROT}
        s_and_b32 s96, s96, 7
        s_or_b32 s96, s96, s57
        s_lshl_b32 s96, s96, 6
        s_add_u32 s96, s96, s{RT}
        s_lshl_b32 s96, s96, 12
        s_add_u32 s96, s96, {KVB_OFF}
        s_add_u32 s97, s96, 4096
        s_nop 0""")
    def rx(buf, ks, mb): return f"ds_read_b128 {v(XF[buf]+4*mb,4)}, v{AX+ks} offset:{mb*2048}"
    def rw(nb, ks, jh): return f"ds_read_b64_tr_b16 {v(WF+4*nb+2*jh,2)}, v{AW+(nb&1)} offset:{(nb>>1)*8192+ks*4096+jh*512}"
    st(A, "setup")
    A.e("s_barrier")
    st(A, "g0")
    for mb in range(4): A.e(rx(0, 0, mb))
    for nb in range(7):
        for jh in range(2): A.e(rw(nb, 0, jh))
        if nb == 4: A.e("s_waitcnt lgkmcnt(4)")
    A.e(f"s_waitcnt lgkmcnt(2)\ns_branch {P}g1m")
    A.raw(".p2align 6")
    A.lab(f"{P}g1")
    acc = lambda mb, nb: ACC + 4 * (nb * 4 + mb)
    for ks in (1, 0):
        if ks == 0: A.lab(f"{P}g1m")
        post = {k: [] for k in range(32)}
        post[0].append(rw(7, ks, 0)); post[1].append(rw(7, ks, 1))
        if ks == 0:
            for nb in range(1, 8):
                for jh in range(2): post[4*nb + jh].append(rw(nb - 1, 1, jh))
            for m in range(4): post[4*(m+1) + 2].append(rx(1, 1, m))
            post[19].append("s_waitcnt lgkmcnt(8)")
            post[27].append("s_cmp_lg_u32 s59, 15")
        else:
            post[2].append("s_cmp_eq_u32 s58, 0"); post[2].append("s_cselect_b32 s62, s61, s60")
            post[3] += [f"v_add_u32 v{AX}, s62, v{AX}", f"v_add_u32 v{AX+1}, s62, v{AX+1}"]
            post[4] += [f"v_add_u32 v{AW}, s62, v{AW}", f"v_add_u32 v{AW+1}, s62, v{AW+1}"]
            post[5] += ["s_add_u32 s58, s58, s62", "s_add_u32 s59, s59, 1"]
            post[GB] += ["s_waitcnt lgkmcnt(0)", "s_barrier"]
            seq_ = [rw(0, 0, 0), rw(0, 0, 1), rx(0, 0, 0)]
            k = GB + 1
            rest = []
            for nb in range(1, 7): rest += [(4*(nb+1), rw(nb, 0, 0)), (4*(nb+1), rw(nb, 0, 1))]
            xs = [rx(0, 0, m) for m in range(1, 4)]
            for x in seq_: post[k].append(x); k += 1
            while rest or xs:
                if rest and rest[0][0] <= k: post[k].append(rest.pop(0)[1])
                elif xs: post[k].append(xs.pop(0))
                k += 1
            assert k <= 31
        post[30].append("s_waitcnt lgkmcnt(2)")
        for nb in range(8):
            for mb in range(4):
                m2 = mb if nb % 2 == 0 else 3 - mb
                d = acc(m2, nb)
                x, w = XF[ks] + 4 * m2, WF + 4 * nb
                A.e(mfma16(d, x, w, d) if nb >= 6 else mfma16(d, w, x, d))
                for x_ in post[4*nb + mb]: A.e(x_)
    A.e(f"s_cbranch_scc1 {P}g1")
    A.lab(f"{P}glast")
    T = 21
    order = [(m, n) for g in ((2, 0), (2, 2), (0, 0), (0, 2)) for (m, n) in ((g[0], g[1]), (g[0]+1, g[1]), (g[0]+1, g[1]+1), (g[0], g[1]+1))]
    order += [(mb if nb % 2 == 0 else 3 - mb, nb) for nb in range(4, 8) for mb in range(4)]
    fill = pack_list(32, [[acc(2+rbk, db) for rbk in range(2)] for db in range(2)], False)
    fill += [f"ds_write_b128 v{AX}, {v(32,4)}", f"ds_write_b128 v{AX}, {v(36,4)} offset:1024"]
    fill += pack_list(40, [[acc(2+rbk, 2+db) for rbk in range(2)] for db in range(2)], False)
    fill += [f"ds_write_b128 v{AX}, {v(40,4)} offset:2048", f"ds_write_b128 v{AX}, {v(44,4)} offset:3072"]
    qa0 = pack_list(QA, [[acc(rbk, db) for rbk in range(2)] for db in range(2)], False)
    fill += qa0[:6] + ["s_waitcnt lgkmcnt(0)\ns_barrier"] + qa0[6:]
    for k, (mb, nb) in enumerate(order):
        d = acc(mb, nb)
        x, w = XF[1] + 4 * mb, WF + 4 * nb
        A.e(mfma16(d, x, w, d) if nb >= 6 else mfma16(d, w, x, d))
        if k < 2: A.e(rw(7, 1, k))
        if k == 2: A.e(f"s_add_u32 s56, s{W4K}, {MISC}\ns_mov_b32 s62, s63")
        if k == 3: A.e(f"v_add_u32 v{AX}, s56, v{VL16}")
        if k == 8: A.e("s_waitcnt lgkmcnt(0)")
        if k >= 10:
            for _ in range(2):
                if fill: A.e(fill.pop(0))
    st(A, "gend")
    while fill: A.e(fill.pop(0))
    for rtl in range(2):
        tk, tv = 80 + 8 * rtl, ACC + 8 * rtl
        so = "s92" if rtl == 0 else "s93"
        pack(tk, [[acc(2*rtl+rbk, 4+db) for rbk in range(2)] for db in range(2)], True)
        A.e(f"""buffer_store_dwordx4 {v(tk,4)}, v{VKO}, {sr(WS)}, {so} offen sc1
            buffer_store_dwordx4 {v(tk+4,4)}, v{VKO}, {sr(WS)}, {so} offen offset:1024 sc1""")
        pack(tv, [[acc(2*rtl+kb, 6+db) for db in range(2)] for kb in range(2)], False)
        so = "s96" if rtl == 0 else "s97"
        A.e(f"""buffer_store_dwordx4 {v(tv,4)}, v{VL16}, {sr(WS)}, {so} offen offset:2048 sc1
            buffer_store_dwordx4 {v(tv+4,4)}, v{VL16}, {sr(WS)}, {so} offen offset:3072 sc1""")
    pack(QB, [[acc(rbk, 2+db) for rbk in range(2)] for db in range(2)], False)
    A.e(f"s_branch {P}attn")

    if XP & 4:
        for l in ("sig1", "sig2", "poll1", "poll2"): A.lab(f"{P}{l}_r")
    if XP & 8: A.lab(f"{P}normB")
    for ph in (1, 2):
        A.lab(f"{P}sig{ph}")
        signal(ph + 1, TZ + 1)
        A.e(f"s_branch {P}sig{ph}_r")
    A.lab(f"{P}pre1")
    A.e(f"""v_lshrrev_b32 v{TZ+1}, 4, v0
        v_min_u32 v{TZ+1}, 2, v{TZ+1}
        v_sub_u32 v{TZ+1}, s{RB}, v{TZ+1}
        v_max_i32 v{TZ+1}, 0, v{TZ+1}
        v_lshlrev_b32 v{TZ+1}, 4, v{TZ+1}
        v_and_or_b32 v{TZ+1}, v0, 15, v{TZ+1}
        v_lshlrev_b32 v{TZ+1}, {FS}, v{TZ+1}""")
    poll_issue(TZ + 1, 2)
    A.e(f"s_branch {P}pre1_r")
    A.lab(f"{P}poll1")
    A.e(f"s_waitcnt vmcnt({pw[1]})")
    poll("1", TZ + 1, 2, True)
    A.e(f"s_branch {P}poll1_r")
    A.lab(f"{P}pre2")
    A.e(f"""v_and_b32 v{TZ+1}, 15, v0
        v_lshlrev_b32 v{TZ+1}, {FS}, v{TZ+1}
        s_lshl_b32 s56, s{RB2}, {FS+4}
        v_add_u32 v{TZ+1}, s56, v{TZ+1}""")
    poll_issue(TZ + 1, 3)
    A.e(f"s_branch {P}pre2_r")
    A.lab(f"{P}poll2")
    A.e(f"s_waitcnt vmcnt({pw[2]})")
    poll("2", TZ + 1, 3, True)
    A.e(f"s_branch {P}poll2_r")
    for j in range(2, 8):
        A.lab(f"{P}cm{j}")
        zero(CM, 16)
        A.e(f"s_nop 0\ns_branch {P}cm{j}_r")

    def slow(tag, q, o, l, kf, vf, S, C, Pp, M, setup):
        A.lab(f"{P}slow{tag}")
        A.e("s_waitcnt vmcnt(0)")
        A.e(setup)
        zero(o, 16); zero(l, 4)
        A.e(f"""v_mov_b32 v{M}, {NEG}
            s_mov_b32 s99, 0""")
        A.lab(f"{P}spass{tag}")
        A.e("s_mov_b32 s100, s98")
        A.lab(f"{P}stile{tag}")
        A.e(f"""s_lshl_b32 s56, s100, 12
            s_add_u32 s56, s56, s101
            buffer_load_dwordx4 {v(kf,4)}, v{VL16}, {sr(WS)}, s56 offen sc1
            buffer_load_dwordx4 {v(kf+4,4)}, v{VL16}, {sr(WS)}, s56 offen offset:1024 sc1
            buffer_load_dwordx4 {v(vf,4)}, v{VL16}, {sr(WS)}, s56 offen offset:2048 sc1
            buffer_load_dwordx4 {v(vf+4,4)}, v{VL16}, {sr(WS)}, s56 offen offset:3072 sc1
            s_cmp_eq_u32 s100, s96
            s_cselect_b32 s56, {NEG}, 0
            s_cmp_eq_u32 s100, s97
            s_cselect_b32 s57, {NEG}, 0
            v_mov_b32 v{M+2}, s56
            v_mov_b32 v{M+3}, s57""")
        for r in range(16):
            A.e(f"""v_cmp_le_i32 vcc, {keyl(r)}, v{VD}
                s_nop 1
                v_cndmask_b32 v{C+r}, v{M+2}, v{M+3}, vcc""")
        A.e("s_waitcnt vmcnt(0)\ns_nop 0")
        A.e(mfma32(S, kf, q, C))
        A.e(mfma32(S, kf + 4, q + 4, S))
        A.e(f"""s_nop 7
            s_nop 7
            s_cmp_eq_u32 s99, 0
            s_cbranch_scc0 {P}sp2{tag}""")
        for r in range(16): A.e(f"v_max_f32 v{M}, v{M}, v{S+r}")
        A.e(f"s_branch {P}snext{tag}")
        A.lab(f"{P}sp2{tag}")
        for r in range(16): A.e(f"v_sub_f32 v{S+r}, v{S+r}, v{M}")
        for r in range(16): A.e(ex(S, r))
        A.e("s_nop 0")
        for i in range(8): A.e(cv(Pp, S, i))
        A.e("s_nop 1")
        A.e(mfma32(o, vf, Pp, o))
        A.e(mfma32(o, vf + 4, Pp + 4, o))
        A.e(smf(l, Pp))
        A.e("s_nop 7\ns_nop 7")
        A.lab(f"{P}snext{tag}")
        A.e(f"""s_add_u32 s100, s100, 1
            s_cmp_le_u32 s100, s95
            s_cbranch_scc1 {P}stile{tag}
            s_cmp_eq_u32 s99, 0
            s_cbranch_scc0 {P}sdone{tag}
            v_mov_b32 v{M+1}, v{M}
            s_nop 1
            v_permlane32_swap_b32 v{M}, v{M+1}
            s_nop 1
            v_max_f32 v{M}, v{M}, v{M+1}
            s_mov_b32 s99, 1
            s_branch {P}spass{tag}""")
        A.lab(f"{P}sdone{tag}")
        A.e(f"""s_mov_b32 s63, 1
            s_branch {P}norm{tag}""")
    slow("B", QB, O2, L2, 196, 204, 212, 228, 244, 148,
         f"""s_lshl_b32 s101, s{HEADB}, 18
            s_add_u32 s101, s101, {KVB_OFF}
            s_sub_i32 s97, s{RT}, 8
            s_max_i32 s98, s97, 0
            s_mov_b32 s95, s{RT}
            s_mov_b32 s96, s{RT}""")
    slow("A", QA, O, L, KF, VF, SB[0], SB[1], PB[0], ML + 8,
         f"""s_mov_b32 s101, {KVA_OFF}
            s_mov_b32 s98, 0
            s_mov_b32 s95, 63
            s_mov_b32 s96, -1
            s_mov_b32 s97, -1""")
    A.raw(".p2align 4")
    A.lab(f"{P}last")
    A.e("s_endpgm")
    return kernel_desc(name, 256, 102)

if __name__ == "__main__":
    ref = open(f"cdna_kernels/{NAME}.s.ref").read().split("\n")
    hdr = [l for l in ref if l.startswith(";") and "@launch" not in l]
    A = Asm()
    d = gen(A, NAME + "_kernel")
    out = "\n".join(hdr) + "\n" + f"; @launch grid=(256,1,1) block=(512,1,1) lds={LDS}\n"
    out += '.amdgcn_target "amdgcn-amd-amdhsa--gfx950"\n.text\n' + A.text() + '.section .rodata,"a"\n' + d
    path = sys.argv[1] if len(sys.argv) > 1 else f"cdna_kernels/{NAME}.s"
    open(path, "w").write(out)
    print("wrote", path, len(out))
```

```python
from common import *
import sys
E = lambda k, d: int(os.environ.get(k, d))
STAG = 4
PART_OFF = 0
TPA = E('TPA', 8)
WARM = E('WARM', 1)
E1N = E('E1N', 12)
TPOLL = E('TPOLL', 14)
LPRIO = E('LPRIO', 3)
LPS = E('LPS', 2)
ROT = E('ROT', 0)
SLP = E('SLP', 12)
PFC = E('PFC', 0)
TOUCH = E('TOUCH', 0)
ZIG = E('ZIG', 3)
SFIRST = E('SFIRST', 0)
OFL = os.environ.get('OFL', '')
XP = E('XP', 0)
JP = E('JP', 11)
JU = E('JU', 13)
JV = E('JV', 21)
SLP3 = E('SLP3', 4)
PRL = E('PRL', 2)
ORD = E('ORD', 3)
SPRO = E('SPRO', 1)
TRED = E('TRED', 9)
TTAG = E('TTAG', 4)
RAFT = E('RAFT', 2)
TST = E('TST', 3)
TSA = E('TSA', TST + 2)
PRE = E('PRE', 2)
FS = E('FS', 4)
SPLIT = E('SPLIT', 1)
TS = E('TS', 14)
TV = E('TV', 15)
DEFD = ''
NS_ = E('NS', 0)
SUBR = E('SUBR', 1)
N5 = E('N5', 47)
N6 = E('N6', 53)
N2 = E('N2', 18)
CPS = E('CPS', 3)
PBF = E('PBF', 1)
GB = E('GB', 8)
WNT = os.environ.get('WNT', '')
XNT = os.environ.get('XNT', '')
ZNT = os.environ.get('ZNT', '')
NTT = os.environ.get('NTT', '').split(',')
O5 = 1
O5N = E('O5N', 4)
P1 = E('P1', 13)
MID = E('MID', 1)
WPS = E('WPS', 1)
NB0 = 28

XSZ = 16384
ST = 49152
MISC = 3 * ST
LDS = 163840
NEG = f2u(-1e30)
SPIN = 50000

VL16, AC, AN, VG, IDX, VD, T0 = 1, 2, 3, 4, 5, 6, 7
ONES, L = 8, 12
QB, QA = 16, 24
KF, VF = 32, 40
PB = [48, 56]
SB = [64, 80]
O = 96
ML = 112
OFR = 128
O2, L2, MU, CM, TB, AB, TZ = 128, 144, 148, 164, 180, 188, 189
WS, DBG, SX_, SW_, SS_ = 28, 32, 36, 40, 44
RB, HP, XCD, IDXS, RT, HEAD, RB2, CBK = 48, 49, 50, 51, 52, 53, 54, 55
HEADB = 65
W4K, W1K, I0, WOS, GSRC, ABS = 74, 75, 76, 77, 78, 79
WS6 = 80
MUS, CMS, OUTS, OSTA = 16, 17, 20, 21
OSTB, KH10, CSRC = 24, 25, 26
UO, OQ = 44, 4
NON = 64
FL_OFF = 4 * MB
GP_OFF = 5 * MB
GROT = E('GROT', 1)

def sr(b): return f"s[{b}:{b+3}]"
def mfma16(d, a, b, c):
    cs = c if isinstance(c, str) else v(c, 4)
    return f"v_mfma_f32_16x16x32_bf16 {v(d,4)}, {v(a,4)}, {v(b,4)}, {cs}"
def smf(l, p): return f"v_smfmac_f32_16x16x64_bf16 {v(l,4)}, {v(ONES,4)}, {v(p,8)}, v{IDX}"
def ex(S, i): return f"v_exp_f32 v{S+i}, v{S+i}"
def cv(Pp, S, i): return f"v_cvt_pk_bf16_f32 v{Pp+i}, v{S+2*i}, v{S+2*i+1}"
def keyl(r): return 16 * (r >> 3) + 4 * ((r >> 2) & 1) + (r & 3)

TRN = "setup,g0,pla,pl0,gend,attn,aend,afin,y1a,y1,y3a,y3,y4,oend".split(",")
TRL = {n: 44 + i for i, n in enumerate(TRN)}
def st(A, nm):
    if DIAG: trace(A, TRL[nm])

class VM:
    def __init__(self): self.q = []
    def add(self, tag, n=1): self.q += [tag] * n
    def after(self, *tags):
        if not any(t in tags for t in self.q): return 0
        last = max(i for i, t in enumerate(self.q) if t in tags)
        return len(self.q) - 1 - last

def pack_list(dst, blk, scale):
    o = []
    for a in range(2):
        for b in range(2):
            d = blk[a][b]
            if scale:
                for i in range(2): o.append(f"v_pk_mul_f32 {v(d+2*i,2)}, {v(d+2*i,2)}, s[62:63]")
            for i in range(2): o.append(f"v_cvt_pk_bf16_f32 v{dst+a*4+b*2+i}, v{d+2*i}, v{d+2*i+1}")
    for a in range(2):
        for i in range(2): o.append(f"v_permlane16_swap_b32 v{dst+a*4+i}, v{dst+a*4+2+i}")
    return o

def gen(A, name):
    P = "f_"
    kernel_head(A, name)
    A.e(f"""s_cmp_ge_u32 s2, 256
        s_cbranch_scc1 {P}end2""")
    stamp_init(A)
    if E('HT', 0): A.e("s_memrealtime s[70:71]\ns_memtime s[74:75]")
    if E('SCR', 0):
        A.e("""s_lshr_b32 s56, s2, 3
            s_lshr_b32 s57, s2, 5
            s_xor_b32 s56, s56, s57
            s_and_b32 s56, s56, 7
            s_xor_b32 s2, s2, s56""")
    A.e(f"""s_load_dwordx8 s[4:11], s[0:1], 0
        s_load_dwordx8 s[16:23], s[0:1], 48
        s_load_dwordx4 s[24:27], s[0:1], 80
        s_load_dwordx2 s[12:13], s[0:1], 32
        v_lshrrev_b32 v1, 6, v0
        v_and_b32 v0, 63, v0
        v_readfirstlane_b32 s3, v1
        s_and_b32 s{XCD}, s2, 7
        s_lshr_b32 s{IDXS}, s2, 3
        s_and_b32 s{RB}, s{XCD}, 1
        s_lshl_b32 s{RB}, s{RB}, 3
        s_and_b32 s56, s{IDXS}, 7
        s_add_u32 s{RB}, s{RB}, s56
        s_lshr_b32 s{HP}, s{XCD}, 1
        s_lshl_b32 s{HP}, s{HP}, 2
        s_lshr_b32 s56, s{IDXS}, 3
        s_add_u32 s{HP}, s{HP}, s56
        v_lshlrev_b32 v{VL16}, 4, v0
        s_cmp_lt_u32 s3, 4
        s_cbranch_scc1 {P}compute""")

    def srds():
        srd(A, WS, "s26", "s27", WS_USED)
        srd(A, DBG, "s24", "s25", 256)
        if DIAG: A.e(f"v_mov_b32 v{VD}, 0")
    def setup_v():
        vd = AN if DIAG else VD
        A.e(f"""v_and_b32 v{T0}, 31, v0
            v_lshrrev_b32 v{VG}, 5, v0
            v_lshlrev_b32 v{VG}, 3, v{VG}
            v_sub_u32 v{vd}, v{T0}, v{VG}
            v_mov_b32 v{VG}, {NEG}""")
        for r in range(16): A.e(f"v_subrev_u32 v{ML+r}, {keyl(r)}, v{vd}")
        for r in range(16): A.e(f"v_ashrrev_i32 v{ML+r}, 31, v{ML+r}")
        for r in range(16): A.e(f"v_and_b32 v{ML+r}, v{VG}, v{ML+r}")
        A.e(f"""v_bfe_i32 v{T0}, v0, 2, 1
            v_mov_b32 v{VG}, 0x3f803f80
            v_and_b32 v{ONES+2}, v{VG}, v{T0}
            v_xor_b32 v{ONES}, v{VG}, v{ONES+2}
            v_mov_b32 v{ONES+1}, v{ONES}
            v_mov_b32 v{ONES+3}, v{ONES+2}
            v_bfe_i32 v{T0}, v0, 0, 1
            v_and_b32 v{T0}, 0xaaaa, v{T0}
            v_or_b32 v{IDX}, 0x4444, v{T0}
            v_add_u32 v{AC}, 0x10000, v{VL16}
            v_add_u32 v{AN}, 0x20000, v{VL16}""")
        for i in range(4): A.e(f"v_mov_b32 v{L+i}, 0")
    def setup_s():
        A.e(f"""s_and_b32 s{RB2}, s{XCD}, 3
            s_lshl_b32 s{RB2}, s{RB2}, 2
            s_and_b32 s56, s{IDXS}, 3
            s_add_u32 s{RB2}, s{RB2}, s56
            s_lshl_b32 s{WOS}, s56, 19
            s_lshr_b32 s{CBK}, s{XCD}, 2
            s_lshl_b32 s{CBK}, s{CBK}, 3
            s_lshr_b32 s56, s{IDXS}, 2
            s_add_u32 s{CBK}, s{CBK}, s56
            s_and_b32 s56, s3, 1
            s_lshl_b32 s56, s56, 1
            s_lshr_b32 s{KH10}, s3, 2
            s_add_u32 s56, s56, s{KH10}
            s_lshl_b32 s{ABS}, s56, 12
            s_lshl_b32 s{RT}, s{RB}, 2
            s_add_u32 s{CSRC}, s{RT}, s{KH10}
            s_add_u32 s{RT}, s{RT}, s56
            s_bfe_u32 s56, s3, 0x10001
            s_mul_i32 s57, s56, 49152
            s_add_u32 s{ABS}, s{ABS}, s57
            s_lshl_b32 s{HEAD}, s{HP}, 1
            s_add_u32 s{HEAD}, s{HEAD}, s56
            s_add_u32 s56, s{HEAD}, {2*GROT}
            s_and_b32 s56, s56, 7
            s_and_b32 s57, s{HEAD}, 24
            s_or_b32 s{HEADB}, s56, s57
            s_lshl_b32 s{W4K}, s3, 12
            s_lshl_b32 s{W1K}, s3, 10
            s_sub_i32 s{I0}, 8, s{RT}
            s_cmp_gt_i32 s{I0}, 0
            s_cselect_b32 s{MUS}, 0, 1.0
            s_cmp_gt_i32 s{I0}, 1
            s_cselect_b32 s{CMS}, {NEG}, 0
            s_lshr_b32 s57, s{HEADB}, 1
            s_lshl_b32 s57, s57, 19
            s_and_b32 s27, s3, 3
            s_lshl_b32 s56, s27, 10
            s_add_u32 s57, s57, s56
            s_add_u32 s57, s57, {KVB_OFF}
            s_lshl_b32 s56, s{CSRC}, 12
            s_add_u32 s56, s56, s57
            s_sub_u32 s56, s56, 0x8000""")
        for i in range(6):
            A.e(f"s_max_u32 s{WS6+i}, s56, s57")
            if i < 5: A.e("s_addk_i32 s56, 0x2000")
        A.e(f"""s_lshl_b32 s56, s{RB2}, 2
            s_add_u32 s56, s56, s27
            s_lshl_b32 s{OUTS}, s56, 1
            s_add_u32 s{OUTS}, s{OUTS}, s{KH10}
            s_lshl_b32 s{OUTS}, s{OUTS}, 15
            s_lshl_b32 s57, s{CBK}, 7
            s_add_u32 s{OUTS}, s{OUTS}, s57
            s_lshl_b32 s{UO}, s3, 16
            s_add_u32 s{UO}, s{UO}, s57
            s_add_u32 s{WOS}, s{WOS}, s{UO}
            s_add_u32 s{UO+1}, s{UO}, 0x80000
            s_add_u32 s{UO+2}, s{UO}, 0x100000
            s_add_u32 s{UO+3}, s{UO}, 0x180000
            s_lshl_b32 s56, s56, 17
            s_lshl_b32 s57, s{KH10}, 11
            s_add_u32 s56, s56, s57
            s_add_u32 s{OQ}, s56, {O_OFF + 65536}
            s_movk_i32 s57, 0x2000""")
        if ROT:
            A.e(f"""s_mov_b32 s56, s{OQ}
                s_lshl_b32 s27, s{CBK}, 13""")
            for h in range(8):
                A.e(f"""s_and_b32 s27, s27, 0xffff
                    s_add_u32 s{OQ+h}, s56, s27
                    s_add_u32 s27, s27, s57""")
            A.e(f"s_lshl_b32 s27, s{CBK}, 18")
            for q in range(4):
                A.e(f"""s_add_u32 s{UO+q}, s{UO+q}, s27
                    s_and_b32 s{UO+q}, s{UO+q}, 0x1fffff""")
        else:
            for h in range(1, 8): A.e(f"s_add_u32 s{OQ+h}, s{OQ+h-1}, s57")
        A.e(f"""s_lshl_b32 s{GSRC}, s{RT}, 7
            s_add_u32 s{GSRC}, s{GSRC}, {G_OFF}
            s_lshl_b32 s56, s{RT}, 17
            s_add_u32 s56, s56, {O_OFF}
            s_lshl_b32 s{OSTA}, s{HEAD}, 11
            s_add_u32 s{OSTA}, s{OSTA}, s56
            s_lshl_b32 s{OSTB}, s{HEADB}, 11
            s_add_u32 s{OSTB}, s{OSTB}, s56
            s_add_u32 s{OSTB}, s{OSTB}, 0x10000
            s_lshl_b32 s{KH10}, s{KH10}, 10""")
    def pack(dst, blk, scale):
        for x in pack_list(dst, blk, scale): A.e(x)
    def zero(base, n):
        for i in range(n): A.e(f"v_mov_b32 v{base+i}, 0")
    def signal(phase, t1):
        A.e(f"""s_mov_b64 exec, 1
            v_mov_b32 v{T0}, s{NON}
            v_mov_b32 v{t1}, 0
            s_lshl_b32 s56, s{RB}, 4
            s_add_u32 s56, s56, s{HP}
            s_lshl_b32 s56, s56, {FS}
            s_add_u32 s56, s56, {FL_OFF + (256<<FS)*phase}
            buffer_store_dword v{T0}, v{t1}, {sr(WS)}, s56 offen sc1
            s_mov_b64 exec, -1""")
    def poll_issue(voff, phase, t1=None):
        A.e(f"""s_mov_b32 s62, {FL_OFF + (256<<FS)*phase}
            buffer_load_dword v{T0}, v{voff}, {sr(WS)}, s62 offen sc1""")
        if t1:
            for i in range(3): A.e(f"buffer_load_dword v{t1+i}, v{voff}, {sr(WS)}, s62 offen offset:{(i+1)<<FS} sc1")
    def poll(tag, voff, phase, first_issued, t1=None, slp=SLP):
        A.e(f"s_mov_b32 s57, {1 if ((XP & 32 and tag in '0a') or (XP & 64 and tag in '123')) else SPIN}")
        if first_issued: A.e(f"s_branch {P}pc{tag}")
        A.lab(f"{P}pl{tag}")
        poll_issue(voff, phase, t1)
        A.e("s_waitcnt vmcnt(0)")
        A.lab(f"{P}pc{tag}")
        A.e(f"v_cmp_eq_u32 vcc, s{NON}, v{T0}")
        if t1:
            for i in range(3):
                A.e(f"""s_mov_b64 s[62:63], vcc
                    v_cmp_eq_u32 vcc, s{NON}, v{t1+i}
                    s_and_b64 vcc, vcc, s[62:63]""")
        A.e(f"""s_cmp_eq_u64 vcc, -1
            s_cbranch_scc1 {P}pd{tag}
            s_sleep {slp}
            s_sub_u32 s57, s57, 1
            s_cmp_lg_u32 s57, 0
            s_cbranch_scc1 {P}pl{tag}""")
        A.lab(f"{P}pd{tag}")
    def tag_issue(d, z):
        A.e(f"""v_mov_b32 v{z}, 0
            buffer_load_dword v{d}, v{z}, {sr(DBG)}, 0 offen sc1""")
    def tag_get(lbl, d, z):
        A.e(f"s_mov_b32 s57, {SPIN}")
        A.lab(f"{P}tl{lbl}")
        A.e(f"""v_readfirstlane_b32 s{NON}, v{d}
            s_cmp_lg_u32 s{NON}, 0
            s_cbranch_scc1 {P}td{lbl}
            s_sleep 8
            buffer_load_dword v{d}, v{z}, {sr(DBG)}, 0 offen sc1
            s_waitcnt vmcnt(0)
            s_sub_u32 s57, s57, 1
            s_cmp_lg_u32 s57, 0
            s_cbranch_scc1 {P}tl{lbl}""")
        A.lab(f"{P}td{lbl}")
    gslot = lambda t: ((15 - t) % 3) * ST

    VX, VW, VS, AXS, AWS = 128, 130, 132, 136, 133
    SXF, SWF, SA = 144, 176, 208
    LW, KIND, PHI = 14, 15, 92
    XB, WB, WSTEP, KT, L4K, L8K, PSRC = 93, 94, 96, 98, 99, 100, 101
    L8X, WST2 = 2, 53
    A.e(f"""s_setprio {LPRIO}
        s_sub_u32 s{LW}, s3, 4
        v_lshrrev_b32 v9, 3, v0
        v_and_b32 v16, 7, v0
        v_lshrrev_b32 v17, 4, v0
        v_xor_b32 v17, v17, v16
        v_lshlrev_b32 v17, 4, v17
        v_lshl_add_u32 v{VX}, v9, 11, v17
        v_xor_b32 v{VX+1}, 64, v{VX}
        s_cmp_eq_u32 s{LW}, 0
        s_mov_b32 s57, 6144
        s_cselect_b32 s57, 2048, s57
        v_bfe_u32 v17, v0, 4, 1
        v_lshlrev_b32 v17, 1, v17
        v_xor_b32 v17, v17, v16
        v_lshlrev_b32 v17, 4, v17
        v_mul_u32_u24 v18, s57, v9
        v_add_u32 v{VW}, v18, v17
        v_xor_b32 v{VW+1}, 64, v{VW}
        s_lshl_b32 s{WSTEP}, s57, 3
        s_lshl_b32 s{XB}, s{RB}, 18
        s_lshl_b32 s56, s{LW}, 16
        s_add_u32 s{XB}, s{XB}, s56
        s_max_u32 s56, s{LW}, 1
        s_sub_u32 s56, s56, 1
        s_lshl_b32 s56, s56, 11
        s_mul_i32 s57, s{LW}, {GROT}
        s_add_u32 s57, s57, s{HP}
        s_and_b32 s57, s57, 3
        s_and_b32 s{WB}, s{HP}, 12
        s_or_b32 s57, s57, s{WB}
        s_lshl_b32 s57, s57, 7
        s_add_u32 s{WB}, s56, s57
        s_add_u32 s{PHI}, s{RB}, s{HP}
        s_and_b32 s{PHI}, s{PHI}, 3
        s_and_b32 s56, s{HP}, {12 if ORD == 3 else 4}
        s_or_b32 s{KT}, s{PHI}, s56
        s_lshl_b32 s{KT}, s{KT}, {0 if ORD == 3 else 1}
        s_lshl_b32 s{L4K}, s{LW}, 12
        s_lshl_b32 s{L8K}, s{LW}, 13
        s_add_u32 s{L8X}, s{L8K}, {XSZ}
        s_sub_u32 s{WST2}, s{WSTEP}, 0x400
        s_cmp_eq_u32 s{LW}, 0
        s_waitcnt lgkmcnt(0)
        s_cselect_b32 s{SW_}, s6, s16
        s_cselect_b32 s{SW_+1}, s7, s17
        s_mov_b32 s{SW_+2}, {6*MB}
        s_cselect_b32 s{SW_+2}, {2*MB}, s{SW_+2}
        s_mov_b32 s{SW_+3}, 0x20000""")
    srd(A, SX_, "s4", "s5", 4 * MB)
    gv = VM()
    def issue(t, lo=0, hi=12):
        if SUBR:
            assert (lo, hi) == (0, 12)
            gv.add(f"T{t}", 12)
            if t > 0:
                A.e(f"s_mov_b32 s59, {gslot(t)}")
                if t < O5N:
                    A.e(f"s_xor_b32 s{KT}, s95, {t & 3}")
                    if t >= 4: A.e(f"s_add_u32 s{KT}, s{KT}, {t & 12}\ns_and_b32 s{KT}, s{KT}, 15")
                else:
                    if t == O5N: A.e(f"s_and_b32 s{KT}, s{KT}, 12\ns_or_b32 s{KT}, s{KT}, s{PHI}")
                    if (t & 3) == 0: A.e(f"s_add_u32 s{KT}, s{KT}, 4\ns_and_b32 s{KT}, s{KT}, 15")
                A.e(f"s_call_b64 s[0:1], {P}isub")
                return
            A.e(f"""s_mov_b32 s59, {gslot(0)}
                s_getpc_b64 s[0:1]""")
            A.lab(f"{P}ipc")
            A.e(f"""s_add_u32 s0, s0, {P}iret-{P}ipc
                s_addc_u32 s1, s1, 0""")
            A.lab(f"{P}isub")
            A.e(f"""s_add_u32 m0, s{L4K}, s59
                s_lshl_b32 s56, s{KT}, 7
                s_add_u32 s56, s56, s{XB}""")
            for i in range(4):
                A.e(f"buffer_load_dwordx4 v{VX+(i&1)}, {sr(SX_)}, s56 offen offset:{1024*i} {XNT} lds")
                if i < 3: A.e(f"s_addk_i32 s56, {16384-1024}")
            A.e(f"""s_add_u32 m0, s{L8X}, s59
                s_mul_i32 s56, s{KT}, s{WSTEP}
                s_lshl_b32 s56, s56, 3
                s_add_u32 s56, s56, s{WB}""")
            for i in range(8):
                A.e(f"buffer_load_dwordx4 v{VW+(i&1)}, {sr(SW_)}, s56 offen offset:{1024*(i&3)} {WNT} lds")
                if i == 3: A.e(f"s_addk_i32 m0, 0x1000\ns_addk_i32 s56, 0x1000")
                if i < 7: A.e(f"s_add_u32 s56, s56, s{WST2}")
            A.e(f"""s_add_u32 s56, s{KT}, 1
                s_and_b32 s56, s56, 3
                s_and_b32 s{KT}, s{KT}, 12
                s_or_b32 s{KT}, s{KT}, s56
                s_setpc_b64 s[0:1]""")
            A.lab(f"{P}iret")
            return
        for i in range(lo, hi):
            if i < 4:
                if i == lo:
                    A.e(f"""s_add_u32 m0, s{L4K}, {gslot(t) + 1024*i}
                        s_lshl_b32 s56, s{KT}, 7
                        s_add_u32 s56, s56, s{XB}""")
                    if i: A.e(f"s_add_u32 s56, s56, {16384*i}")
                else: A.e("s_add_u32 m0, m0, 1024\ns_add_u32 s56, s56, 16384")
                A.e(f"buffer_load_dwordx4 v{VX+(i&1)}, {sr(SX_)}, s56 offen {XNT if str(t) in NTT else ''} lds")
            else:
                if i == lo or i == 4:
                    A.e(f"""s_add_u32 m0, s{L8K}, {gslot(t) + XSZ + 1024*(i-4)}
                        s_lshl_b32 s56, s{KT}, 3""")
                    if i > 4: A.e(f"s_add_u32 s56, s56, {i-4}")
                    A.e(f"""s_mul_i32 s56, s56, s{WSTEP}
                        s_add_u32 s56, s56, s{WB}""")
                else: A.e(f"s_add_u32 m0, m0, 1024\ns_add_u32 s56, s56, s{WSTEP}")
                A.e(f"buffer_load_dwordx4 v{VW+(i&1)}, {sr(SW_)}, s56 offen {WNT if str(t) in NTT else ''} lds")
            gv.add(f"T{t}")
        if hi == 12 and t < 15:
            pm = 3 if ORD == 3 else 7
            A.e(f"""s_add_u32 s56, s{KT}, 1
                s_and_b32 s56, s56, {pm}""")
            if (t & pm) == pm: A.e(f"s_add_u32 s{KT}, s{KT}, {pm+1}")
            A.e(f"""s_and_b32 s{KT}, s{KT}, {15 - pm}
                s_or_b32 s{KT}, s{KT}, s56""")
    DEF = {int(x.split(":")[0]): int(x.split(":")[1]) for x in os.environ.get("DEF", DEFD).split(",") if x}
    marks = {}
    if O5: A.e(f"s_and_b32 s{KT}, s{KT}, {P1}")
    A.e(f"s_mov_b32 s95, s{KT}")
    issue(0)
    SG, GA, AGS, PI = 32, 64, 134, 97
    A.e(f"s_and_b32 s{KIND}, s{PHI}, 1" if ORD == 3 else f"s_lshr_b32 s{KIND}, s{HP}, 3")
    A.e(f"""s_cmp_eq_u32 s{KIND}, 0
        s_cselect_b32 s{SS_}, s8, s10
        s_cselect_b32 s{SS_+1}, s9, s11
        s_mov_b32 s{SS_+2}, 65536
        s_mov_b32 s{SS_+3}, 0x20000
        s_and_b32 s58, s{PHI}, 2
        s_xor_b32 s58, s58, s95
        s_xor_b32 s60, s58, 1
        s_cmp_lt_u32 s{LW}, 2
        s_cselect_b32 s56, s58, s60
        s_lshl_b32 s56, s56, 12
        s_and_b32 s57, s{LW}, 1
        s_lshl_b32 s57, s57, 11
        s_add_u32 s56, s56, s57
        s_lshl_b32 s57, s{LW}, 11
        s_add_u32 m0, s57, {MISC}
        v_mov_b32 v17, s58
        buffer_load_dwordx4 v{VL16}, {sr(SS_)}, s56 offen lds
        buffer_load_dwordx4 v{VL16}, {sr(SS_)}, s56 offen offset:1024 lds
        v_mov_b32 v18, s60
        v_cmp_gt_u32 vcc, 8, v0
        v_lshlrev_b32 v19, 4, v16
        v_lshrrev_b32 v20, 4, v0
        v_cndmask_b32 v17, v18, v17, vcc
        v_lshl_add_u32 v19, v17, 7, v19
        v_lshl_add_u32 v19, v20, 16, v19
        s_lshl_b32 s57, s{LW}, 10
        s_add_u32 s57, s57, {MISC + 8192}
        s_mov_b32 m0, s57""")
    srd(A, 60, "s20", "s21", 2048)
    A.e(f"""buffer_load_dwordx4 v19, s[60:63], 0 offen lds
        v_lshrrev_b32 v17, 5, v0
        v_lshl_add_u32 v{AGS}, v17, 4, s57""")
    srds()
    A.e(f"""v_and_b32 v16, 31, v0
        v_lshrrev_b32 v17, 5, v0
        v_bfe_u32 v18, v0, 1, 3
        v_xor_b32 v19, v17, v18
        v_lshlrev_b32 v19, 4, v19
        v_lshl_add_u32 v19, v16, 7, v19
        v_add_u32 v{AXS}, s{L4K}, v19
        v_xor_b32 v{AXS+1}, 32, v{AXS}
        v_xor_b32 v{AXS+2}, 64, v{AXS}
        v_xor_b32 v{AXS+3}, 0x60, v{AXS}
        v_bfe_u32 v18, v0, 2, 2
        v_lshl_add_u32 v19, v17, 3, v18
        v_lshlrev_b32 v19, 6, v19
        v_bfe_u32 v18, v0, 4, 1
        v_lshl_add_u32 v19, v18, 5, v19
        v_and_b32 v18, 3, v0
        v_bfe_u32 v20, v0, 1, 1
        v_and_b32 v21, 1, v0
        v_lshl_or_b32 v20, v21, 1, v20
        s_cmp_eq_u32 s{KIND}, 0
        s_cselect_b64 vcc, -1, 0
        v_cndmask_b32 v18, v18, v20, vcc
        v_lshl_add_u32 v19, v18, 3, v19
        v_add_u32 v{AWS}, {MISC}, v19
        v_lshlrev_b32 v{VS}, 2, v0
        v_mov_b32 v{GA}, 0
        v_mov_b32 v{GA+1}, 0
        s_lshr_b32 s{PI}, s58, 1
        s_lshl_b32 s{PSRC}, s{RB}, 1
        s_add_u32 s{PSRC}, s{PSRC}, s{KIND}
        s_lshl_b32 s{PSRC}, s{PSRC}, 17
        s_add_u32 s{PSRC}, s{PSRC}, {PART_OFF}""")
    st(A, "setup")
    issue(1)
    A.e("s_waitcnt vmcnt(12)")
    st(A, "g0")
    RL = SXF
    def lsignal(t, ph):
        A.e(f"""s_cmp_lg_u32 s{LW}, 0
            s_cbranch_scc1 {P}ls{t}""")
        signal(ph, 17)
        A.lab(f"{P}ls{t}")
    def side_compute(ks, tg):
        A.e(f"""s_cmp_eq_u32 s{KIND}, 1
            s_cbranch_scc1 {P}lv{tg}""")
        for k in ks: A.e(f"ds_read_b128 {v(SG+4*k,4)}, v{AGS} offset:{32*k}")
        A.e(f"s_waitcnt lgkmcnt({len(ks)})")
        for k in ks: A.e(mfma32(SA, SWF + 4*k, SXF + 4*k, "0" if k == 0 else SA))
        A.e("s_waitcnt lgkmcnt(0)")
        for k in range(4*ks[0], 4*ks[-1]+4): A.e(f"v_dot2_f32_bf16 v{GA+(k&1)}, v{SXF+k}, v{SG+k}, v{GA+(k&1)}")
        A.e(f"s_branch {P}lw{tg}")
        A.lab(f"{P}lv{tg}")
        A.e("s_waitcnt lgkmcnt(0)")
        for k in ks: A.e(mfma32(SA, SXF + 4*k, SWF + 4*k, "0" if k == 0 else SA))
        A.lab(f"{P}lw{tg}")
    def reduce_store():
        A.e(f"""s_lshl_b32 s56, s{RB}, 2
            s_lshr_b32 s57, s{PI}, 1
            s_add_u32 s56, s56, s57
            s_cmp_lg_u32 s{LW}, 0
            s_cbranch_scc1 {P}lgate""")
        if PBF:
            A.e("v_mov_b32 v20, 0x3f80\nv_mov_b32 v21, 1.0")
            for q in range(8):
                for i in range(8): A.e(f"v_dot2_f32_bf16 v{RL+i}, v{RL+8+4*q+(i>>1)}, v{20+(i&1)}, " + ("0" if q == 0 else f"v{RL+i}"))
            A.e("s_nop 0")
        else:
            for st_ in (32, 16, 8):
                for i in range(0, st_, 2): A.e(f"v_pk_add_f32 {v(RL+i,2)}, {v(RL+i,2)}, {v(RL+st_+i,2)}")
        A.e(f"""s_cmp_eq_u32 s{KIND}, 0
            s_cselect_b32 s57, {f2u(CSCALE)}, 1.0""")
        for i in range(8): A.e(f"v_mul_f32 v{RL+i}, s57, v{RL+i}")
        for i in range(4): A.e(f"v_cvt_pk_bf16_f32 v{SA+i}, v{RL+2*i}, v{RL+2*i+1}")
        A.e(f"""s_lshl_b32 s56, s56, 12
            s_lshl_b32 s57, s{KIND}, 11
            s_add_u32 s56, s56, s57
            s_and_b32 s57, s{PI}, 1
            s_lshl_b32 s57, s57, 10
            s_add_u32 s56, s56, s57
            s_add_u32 s56, s56, {KVA_OFF}
            buffer_store_dwordx4 {v(SA,4)}, v{VL16}, {sr(WS)}, s56 offen sc1
            s_branch {P}lsd""")
        A.lab(f"{P}lgate")
        A.e(f"""s_cmp_lg_u32 s58, 1
            s_cbranch_scc1 {P}lsd""")
        for i in range(1, 8): A.e(f"v_add_f32 v{RL}, v{RL}, v{RL+i}")
        A.e(f"""v_mov_b32 v{RL+1}, v{RL}
            s_lshl_b32 s56, s56, 7
            s_add_u32 s56, s56, {G_OFF}
            v_permlane32_swap_b32 v{RL}, v{RL+1}
            v_and_b32 v16, 31, v0
            v_add_f32 v{RL}, v{RL}, v{RL+1}
            v_mul_f32 v{RL}, {f2u(-LOG2E)}, v{RL}
            v_exp_f32 v{RL}, v{RL}
            v_lshlrev_b32 v16, 2, v16
            v_add_f32 v{RL}, 1.0, v{RL}
            v_rcp_f32 v{RL}, v{RL}
            s_nop 0
            buffer_store_dword v{RL}, v16, {sr(WS)}, s56 offen sc1""")
        A.lab(f"{P}lsd")
    for t in range(16):
        A.e("s_barrier")
        trace(A, t)
        ks = list(range(4*(t&1), 4*(t&1)+4)) if t < 4 else []
        if ks:
            A.e(f"""s_bitcmp{1 - (t>>1)}_b32 s{PHI}, 1
                s_cbranch_scc1 {P}lx{t}""")
            for k in ks: A.e(f"ds_read_b128 {v(SXF+4*k,4)}, v{AXS+(k&3)}")
            for k in ks:
                A.e(f"""ds_read_b64_tr_b16 {v(SWF+4*k,2)}, v{AWS} offset:{1024*k}
                    ds_read_b64_tr_b16 {v(SWF+4*k+2,2)}, v{AWS} offset:{1024*k+256}""")
            A.lab(f"{P}lx{t}")
            if t < 3:
                for k in range(4): A.e(f"v_add_u32 v{AXS+k}, {(gslot(t+1) - gslot(t)) & 0xffffffff}, v{AXS+k}")
        if t == TTAG:
            tag_issue(18, 17); marks.setdefault(TSA - 1, []).append(len(gv.q))
        if t == TSA: lsignal(t, 0)
        if t == TRED + 1 + min(RAFT, 1): lsignal(t, 1)
        if t == TPA:
            A.e(f"""s_and_b32 s58, s{PI}, 1
                s_add_u32 s58, s58, s{KIND}
                s_add_u32 s58, s58, s{LW}
                s_cmp_eq_u32 s{LW}, 0
                s_cselect_b32 s58, 0, s58
                v_and_b32 v16, 7, v0
                v_lshlrev_b32 v16, {FS+1 if ORD == 3 else FS}, v16
                s_and_b32 s57, s{HP}, {1 if ORD == 3 else 8}
                s_lshl_b32 s56, s{RB}, 4
                s_add_u32 s56, s56, s57
                s_lshl_b32 s56, s56, {FS}
                v_add_u32 v16, s56, v16
                s_cmp_ge_u32 s58, 2
                s_cbranch_scc1 {P}lta""")
            poll_issue(16, 0)
            A.lab(f"{P}lta")
            marks.setdefault(t, []).append(len(gv.q))
        if t == TPOLL:
            A.e(f"""v_lshlrev_b32 v16, {FS+2}, v0
                s_cmp_lg_u32 s{LW}, 0
                s_cbranch_scc1 {P}lt0""")
            poll_issue(16, 1, 17)
            A.lab(f"{P}lt0")
            marks.setdefault(t, []).append(len(gv.q))
        if t == TRED and not RAFT:
            reduce_store(); marks.setdefault(t, []).append(len(gv.q))
        if DEF.get(t - 1): issue(t + 1, 12 - DEF[t - 1], 12)
        if t + 2 < 16: issue(t + 2, 0, 12 - DEF.get(t, 0))
        if ks:
            A.e(f"""s_bitcmp{1 - (t>>1)}_b32 s{PHI}, 1
                s_cbranch_scc1 {P}lw{t}
                s_waitcnt lgkmcnt(4)""")
            side_compute(ks, t)
            if t == TST: A.e("s_nop 7")
        if t == TST and not NS_ & 2:
            A.e(f"""s_lshl_b32 s56, s{LW}, 3
                s_add_u32 s56, s56, s{PI}
                s_lshl_b32 s57, s56, 12
                s_add_u32 s57, s57, s{PSRC}
                v_add_f32 v{GA}, v{GA}, v{GA+1}""")
            if PBF:
                for i in range(8): A.e(f"v_cvt_pk_bf16_f32 v{SA+16+i}, v{SA+2*i}, v{SA+2*i+1}")
                for q in range(2): A.e(f"buffer_store_dwordx4 {v(SA+16+4*q,4)}, v{VL16}, {sr(WS)}, s57 offen offset:{2048*q} sc1")
            else:
                for q in range(4): A.e(f"buffer_store_dwordx4 {v(SA+4*q,4)}, v{VL16}, {sr(WS)}, s57 offen offset:{1024*q} sc1")
            A.e(f"""s_cmp_eq_u32 s{KIND}, 1
                s_cbranch_scc1 {P}lp1
                s_lshl_b32 s57, s{RB}, 5
                s_add_u32 s56, s56, s57
                s_lshl_b32 s56, s56, 8
                s_add_u32 s56, s56, {GP_OFF}
                buffer_store_dword v{GA}, v{VS}, {sr(WS)}, s56 offen sc1""")
            A.lab(f"{P}lp1")
            gv.add("S", 2 if PBF else 4); marks.setdefault(TSA - 1, []).append(len(gv.q))
        if t == TRED and RAFT == 1:
            reduce_store(); marks.setdefault(t + 1, []).append(len(gv.q))
        ncs = 0
        if t > TPOLL and (t == TPOLL + 1 or t == 15):
            cs = []
            if t == TPOLL + 1: cs.append((0, 3))
            if t == 15: cs.append((1, 2))
            for c, slot in cs:
                for hf in range(2):
                    A.e(f"""s_add_u32 m0, s{L8K}, {slot*32768 + hf*4096}
                        s_add_u32 s56, s{L8K}, {KVA_OFF + c*32768 + hf*4096}""")
                    for i in range(4): A.e(f"buffer_load_dwordx4 v{VL16}, {sr(WS)}, s56 offen offset:{1024*i} sc1 lds")
                gv.add('C', 8)
        for nm, tt in (("s", TS), ("v", TV)):
            if t == tt:
                A.e(f"s_branch {P}set{nm}")
                A.lab(f"{P}set{nm}_r")
        if t < 15: A.e(f"s_waitcnt vmcnt({min([gv.after(f'T{t+1}')] + [len(gv.q) - m for m in marks.get(t, [])])})")
        if t == TRED and RAFT == 2:
            reduce_store(); marks.setdefault(t + 1, []).append(len(gv.q))
        if t == TSA - 1: tag_get("l", 18, 17)
        if t == TPA and not NS_ & 4:
            A.e(f"""s_cmp_ge_u32 s58, 2
                s_cbranch_scc1 {P}lp2""")
            poll("a", 16, 0, True)
            st(A, "pla")
            A.e(f"""s_lshr_b32 s56, s{PI}, 1
                s_cmp_eq_u32 s58, 1
                s_cbranch_scc1 {P}lp3
                s_lshl_b32 s56, s56, 15
                s_and_b32 s57, s{PI}, 1
                s_lshl_b32 s57, s57, 11
                s_add_u32 s56, s56, s57
                s_add_u32 s56, s56, s{PSRC}""")
            for q in range(8):
                if PBF: A.e(f"buffer_load_dwordx4 {v(RL+8+4*q,4)}, v{VL16}, {sr(WS)}, s56 offen sc1")
                else: A.e(f"""buffer_load_dwordx4 {v(RL+8*q,4)}, v{VL16}, {sr(WS)}, s56 offen sc1
                    buffer_load_dwordx4 {v(RL+8*q+4,4)}, v{VL16}, {sr(WS)}, s56 offen offset:1024 sc1""")
                if q < 7: A.e("s_add_u32 s56, s56, 4096")
            A.e(f"s_branch {P}lp2")
            A.lab(f"{P}lp3")
            A.e(f"""s_lshl_b32 s57, s{RB}, 2
                s_add_u32 s56, s56, s57
                s_lshl_b32 s56, s56, 11
                s_add_u32 s56, s56, {GP_OFF}""")
            for q in range(8): A.e(f"buffer_load_dword v{RL+q}, v{VS}, {sr(WS)}, s56 offen offset:{256*q} sc1")
            A.lab(f"{P}lp2")
            marks.setdefault(TRED - (RAFT < 2), []).append(len(gv.q))
        if t == TPOLL:
            A.e(f"""s_cmp_lg_u32 s{LW}, 0
                s_cbranch_scc1 {P}pd0""")
            poll("0", 16, 1, True, t1=17)
            st(A, "pl0")
    A.e(f"""s_add_u32 s56, s{L4K}, {MISC}
        v_add_u32 v16, s56, v{VL16}
        s_setprio 0
        s_waitcnt vmcnt(0)
        s_barrier""")
    st(A, "gend")
    A.e(f"""ds_read_b128 {v(QA,4)}, v16
        ds_read_b128 {v(QA+4,4)}, v16 offset:1024
        ds_read_b128 {v(QB+4,4)}, v16 offset:3072
        ds_read_b128 {v(QB,4)}, v16 offset:2048""")

    A.lab(f"{P}attn")
    if E('STOPG', 0): A.e(f"s_branch {P}end")
    st(A, "attn")
    VOO, VXW, VXO = ML, ML + 12, ML + 14
    VWO = [ML + 4, ML + 1, ML + 2, ML + 3]
    VO4 = [ML + 5, ML + 6, ML + 7, ML + 15]
    VW2, VH1 = 192, 191
    def la(off): return ([VL16, AC, AN][off >> 16], off & 0xffff)
    def rdK(addr, off): return [f"ds_read_b128 {v(KF+4*i,4)}, v{addr} offset:{off+1024*i}" for i in range(2)]
    def rdV(addr, off): return [f"ds_read_b128 {v(VF+4*i,4)}, v{addr} offset:{off+2048+1024*i}" for i in range(2)]
    cslot = lambda c: {0: 3, 1: 2, 2: 4}.get(c, c % 5)
    seq = [("A", j) for j in range(NB0)] + [("B", i) for i in range(9)] + [("A", j) for j in range(NB0, 64)]
    seq += [("A", 63), ("A", 63)]
    def taddr(n):
        k, j = seq[n]
        return la(cslot(j >> 3) * 32768 + (j & 7) * 4096) if k == "A" else (AB, j * 4096)
    def tq(n): return QA if seq[n][0] == "A" else QB
    def tc(n):
        k, j = seq[n]
        return "0" if k == "A" else (MU if j == 0 else ML if j == 8 else CM)
    def to(n): return (O, L) if seq[n][0] == "A" else (O2, L2)
    for x in rdK(*taddr(0)): A.e(x)
    srd(A, SW_, "s18", "s19", 2 * MB)
    A.e("s_waitcnt lgkmcnt(0)")
    A.e(mfma32(SB[0], KF, QA, "0"))
    A.e(mfma32(SB[0], KF + 4, QA + 4, SB[0]))
    for x in rdK(*taddr(1)): A.e(x)
    srd(A, SX_, "s12", "s13", 2 * MB)
    A.e(f"""v_mov_b32 v{TZ}, {NEG}
        v_mov_b32 v{TZ+1}, 0
        v_add_u32 v{AB}, s{ABS}, v{VL16}
        v_add_u32 v{VH1}, {64*4096}, v{VL16}
        s_waitcnt lgkmcnt(0)""")
    vm = VM()
    def cpiece(c, i):
        o = [f"s_add_u32 m0, s{W4K}, {cslot(c)*32768}", f"s_add_u32 s{CSRC}, s{W4K}, {KVA_OFF + c*32768}"] if i == 0 else []
        return (f"C{c}", o + [f"buffer_load_dwordx4 v{VL16}, {sr(WS)}, s{CSRC} offen offset:{i*1024} sc1 lds"])
    def wpiece(i):
        return ("W", [f"s_add_u32 m0, s{W1K}, {i*8192}", f"buffer_load_dwordx4 v{VH1 if i >= 6 else VL16}, {sr(WS)}, s{WS6+i%6} offen sc1 lds"])
    def upiece(u, k):
        o = [f"s_add_u32 m0, s{W4K}, {(u%5)*32768}"] if k == 0 else []
        return (f"U{u}", o + [f"buffer_load_dwordx4 v{VWO[k]}, {sr(SW_ if u < 12 else SX_)}, s{UO+(u&3)} offen offset:{k*1024} lds"])
    def warm(i):
        return ("Z", [f"buffer_load_dwordx4 v[252:255], v{VW2+(i&3)}, {sr(SW_ if i < 4 else SX_)}, s{WOS} offen offset:{(i&3)*1024} {ZNT}"])
    def oload(n, half):
        return ("O", [f"buffer_load_dwordx4 {v(OFR+4*n,4)}, v{VO4[n&3]}, {sr(WS)}, s{OQ+(n>>2)} offen sc1"])
    bg = {n: [] for n in range(73)}
    bv = {n: [] for n in range(73)}
    for i in range(4): bg[i].append(cpiece(2, i))
    for i in range(4): bg[E1N + i // 2].append(cpiece(3, i))
    for i in range(12): bg[N2 + i // 2].append(wpiece(i))
    bv[N2 + 5] += [f"v_and_b32 v{TZ}, 31, v0", f"v_lshlrev_b32 v{TZ}, 2, v{TZ}"]
    bg[N2 + 6].append(("G", [f"buffer_load_dword v{VG}, v{TZ}, {sr(WS)}, s{GSRC} offen sc1"]))
    for i in range(4): bg[26 + i // 2].append(cpiece(4, i))
    if WARM:
        for i in range(8): bg[28 + i // WPS].append(warm(i))
    for i in range(12): bg[39 + i // CPS].append(cpiece(5 + i // 4, i & 3))
    for i in range(4): bg[N5 + i].append(upiece(8, i))
    for i in range(4): bg[N6 + 3 + i].append(upiece(9, i))
    for i in range(8): bg[65 + i].append(upiece(10 + i // 4, i & 3))
    for i in range(32): bg[N6 + ((71 - N6) * i) // 31].append(oload(i, 1))
    for i in range(4):
        bv[4 + i] += [f"v_fma_f32 v{MU+r}, -v{ML+r}, s{MUS}, v{TZ}" for r in range(4*i, 4*i+4)]
        bv[12 + i] += [f"v_mov_b32 v{CM+r}, s{CMS}" for r in range(4*i, 4*i+4)] + [f"v_mov_b32 v{L2+i}, 0"]
    bv[24] += [f"v_lshrrev_b32 v{VW2}, 3, v0", f"v_bfe_u32 v{TB}, v0, 4, 2", f"v_lshlrev_b32 v{TB}, 1, v{TB}", f"v_and_b32 v{TB+1}, 7, v0",
               f"v_xor_b32 v{TB}, v{TB}, v{TB+1}", f"v_lshlrev_b32 v{TB}, 4, v{TB}", f"v_lshl_add_u32 v{VW2}, v{VW2}, 11, v{TB}"]
    bv[25] += [f"v_add_u32 v{VW2+k}, {k*15360}, v{VW2}" for k in range(1, 4)]
    bv[NB0 + 8] += [f"v_and_b32 v{VOO}, 15, v0", f"v_bfe_u32 v{VOO+1}, v0, 4, 1", f"v_lshrrev_b32 v{VOO+2}, 5, v0",
                    f"v_lshlrev_b32 v{VXO}, 11, v{VOO}", f"v_lshl_add_u32 v{VXO}, v{VOO+1}, 5, v{VXO}", f"v_lshl_add_u32 v{VXO}, v{VOO+2}, 4, v{VXO}",
                    f"v_lshlrev_b32 v{VOO}, 4, v{VOO}", f"v_lshl_add_u32 v{VOO}, v{VOO+1}, 10, v{VOO}", f"v_lshl_add_u32 v{VOO}, v{VOO+2}, 8, v{VOO}"]
    bv[NB0 + 9] += [f"v_mov_b32 v{VWO[k]}, v{VW2+k}" for k in range(4)]
    bv[44] += [f"v_add_u32 v{VO4[0]}, s{KH10}, v{VL16}", f"v_xor_b32 v{VO4[1]}, 0x400, v{VO4[0]}", f"v_add_u32 v{VO4[2]}, 0x1000, v{VO4[0]}", f"v_add_u32 v{VO4[3]}, 0x1000, v{VO4[1]}",
               f"v_add_u32 v{VXW}, s{W4K}, v{VL16}", f"v_xor_b32 v{VXW+1}, 0x4000, v{VXW}"]
    ntr = [0]
    def bar(wait=None, pre=None, post=None):
        if pre:
            A.e(f"s_cmp_eq_u32 s3, 4\ns_cbranch_scc1 {P}{pre}")
            A.lab(f"{P}{pre}_r")
        if wait is not None: A.e(f"s_waitcnt vmcnt({wait})")
        A.e("s_barrier")
        if post:
            A.e(f"s_cmp_eq_u32 s3, 4\ns_cbranch_scc1 {P}{post}")
            A.lab(f"{P}{post}_r")
        trace(A, 34 + ntr[0]); ntr[0] += 1
    tops = {
        E1N: lambda: bar(0, post="sig1"),
        N2: lambda: bar(vm.after("C3"), pre="poll1"),
        26: lambda: bar(vm.after("W")),
        39: lambda: bar(vm.after("C4")),
        N5: lambda: bar(0, post="sig2"),
        N6: lambda: bar(None, pre="poll2"),
        65: lambda: bar(vm.after("U8", "U9")),
    }
    bnd = [0] + sorted(tops) + [73]
    lvl = {}
    for a_, b_ in zip(bnd, bnd[1:]):
        for n in range(a_, b_): lvl[n] = 3 - (PRL * (n - a_)) // (b_ - a_)
    pw = {}
    def step(n):
        par = n & 1
        S, Sn, Pc, Pp = SB[par], SB[1-par], PB[par], PB[1-par]
        q = []
        for tag, lines in bg[n]:
            if tag[0] in os.environ.get("DROP", "") or XP & 1: continue
            q += [(tag if x.startswith("buffer") else None, x) for x in lines]
        nfront = max(0, min(4, len(q) - 1))
        def B(slot):
            k = (1 if slot >= 4 - nfront else 0) if slot < 4 else len(q)
            for _ in range(k):
                tag, x = q.pop(0)
                if " lds" in x and A.l[-1].strip().startswith("s_add_u32 m0"): A.e("s_nop 0")
                A.e(x)
                if tag: vm.add(tag)
        oprev, lprev = to(max(n - 1, 0))
        for k_, n_ in ((1, N2), (2, N6)):
            if n == n_ - PRE:
                A.e(f"s_cmp_eq_u32 s3, 4\ns_cbranch_scc1 {P}pre{k_}")
                A.lab(f"{P}pre{k_}_r")
                pw[k_] = len(vm.q)
            if n == n_: pw[k_] = len(vm.q) - pw[k_]
        if n in tops and not (XP & 4): tops[n]()
        if PRL and (n == 0 or lvl[n] != lvl[n - 1]): A.e(f"s_setprio {lvl[n]}")
        k, j = seq[n + 1]
        if k == "B" and 2 <= j <= 7:
            A.e(f"s_cmp_eq_u32 s{I0}, {j}\ns_cbranch_scc1 {P}cm{j}")
            A.lab(f"{P}cm{j}_r")
        A.e(mfma32(Sn, KF, tq(n + 1), tc(n + 1)))
        A.e(rdK(*taddr(n + 2))[0]); B(0)
        for j in (0, 1, 2, 3): A.e(ex(S, j))
        if n > 0: A.e(mfma32(oprev, VF, Pp, "0" if n - 1 in (0, NB0) else oprev))
        A.e(rdV(*taddr(n))[0]); B(1)
        A.e(cv(Pc, S, 0)); A.e(cv(Pc, S, 1))
        for j in (4, 5, 6): A.e(ex(S, j))
        A.e(mfma32(Sn, KF + 4, tq(n + 1) + 4, Sn))
        A.e(rdK(*taddr(n + 2))[1]); B(2)
        A.e(ex(S, 7)); A.e(cv(Pc, S, 2)); A.e(ex(S, 8)); A.e(cv(Pc, S, 3))
        if n > 0: A.e(mfma32(oprev, VF + 4, Pp + 4, oprev))
        A.e(rdV(*taddr(n))[1]); B(3)
        A.e(ex(S, 9)); A.e(ex(S, 10)); A.e(cv(Pc, S, 4))
        if not XP & 2:
            for x in bv[n]: A.e(x)
        A.e(ex(S, 11)); A.e(ex(S, 12)); A.e(cv(Pc, S, 5)); A.e(ex(S, 13)); A.e(ex(S, 14)); A.e(ex(S, 15))
        if n > 0: A.e(smf(lprev, Pp))
        B(4)
        A.e("s_waitcnt lgkmcnt(0)")
        A.e(cv(Pc, S, 6)); A.e(cv(Pc, S, 7))
    def finalize(tag, which, o, l, tmp):
        A.e(f"s_mov_b32 s63, 0")
        A.lab(f"{P}norm{tag}")
        A.e(f"""v_add_f32 v{T0}, v{l}, v{l+1}
            v_rcp_f32 v{tmp}, v{T0}""")
        if which == 0:
            A.e(f"""s_waitcnt vmcnt({vm.after('G')})
                v_sub_f32 v{tmp+1}, 1.0, v{VG}
                v_mul_f32 v{tmp}, v{tmp}, v{tmp+1}""")
        else:
            A.e(f"s_nop 0\nv_mul_f32 v{tmp}, v{tmp}, v{VG}")
        for i in range(8): A.e(f"v_pk_mul_f32 {v(o+2*i,2)}, {v(o+2*i,2)}, {v(tmp,2)} op_sel_hi:[1,0]")
        A.e(f"v_pk_add_f32 {v(tmp+2,2)}, {v(o,2)}, {v(o+2,2)}")
        for i in range(2, 8): A.e(f"v_pk_add_f32 {v(tmp+2,2)}, {v(tmp+2,2)}, {v(o+2*i,2)}")
        A.e(f"""v_sub_f32 v{tmp+2}, v{tmp+2}, v{tmp+2}
            v_fma_f32 v{tmp+2}, v{tmp+3}, v{tmp+2}, v{T0}
            v_cmp_le_f32 vcc, {f2u(2.0**-64)}, v{tmp+2}
            s_mov_b64 s[56:57], vcc
            v_cmp_ge_f32 vcc, {f2u(2.0**64)}, v{tmp+2}""")
        for i in range(8): A.e(f"v_cvt_pk_bf16_f32 v{tmp+i}, v{o+2*i}, v{o+2*i+1}")
        A.e(f"""s_and_b64 vcc, vcc, s[56:57]
            s_cmp_eq_u64 vcc, -1
            s_cselect_b32 s62, 1, s63
            s_cmp_eq_u32 s62, 0
            {"s_nop 0" if XP else f"s_cbranch_scc1 {P}slow{tag}"}
            buffer_store_dwordx4 {v(tmp,4)}, v{VOO}, {sr(WS)}, s{OSTB if which == 0 else OSTA} offen sc1
            buffer_store_dwordx4 {v(tmp+4,4)}, v{VOO}, {sr(WS)}, s{OSTB if which == 0 else OSTA} offen offset:512 sc1""")
        vm.add("S" + tag, 2)
    for n in range(73):
        step(n)
        if n == NB0 + 10 and not (XP & 8): finalize("B", 0, O2, L2, TB)
    A.e(mfma32(O, VF, PB[0], O))
    A.e("s_nop 0")
    A.e(mfma32(O, VF + 4, PB[0] + 4, O))
    A.e(smf(L, PB[0]))
    for h in range(8): A.e(f"s_sub_u32 s{OQ+h}, s{OQ+h}, 0x10000")
    A.e("s_setprio 0")
    st(A, "aend")
    if XP & 31: A.e(f"s_branch {P}end")
    AWO, OAC = 16, 64
    WFO = [32, 48]
    TA = SB[0]
    A.e(f"""v_lshrrev_b32 v20, 4, v0
        v_bfe_u32 v21, v0, 2, 2
        v_and_b32 v22, 1, v20
        v_lshl_add_u32 v22, v22, 2, v21
        v_lshrrev_b32 v23, 1, v20
        v_lshl_add_u32 v23, v23, 4, v22
        v_lshlrev_b32 v23, 7, v23
        v_and_b32 v20, 3, v0
        v_lshl_add_u32 v23, v20, 3, v23
        s_lshr_b32 s56, s3, 2
        s_lshl_b32 s56, s56, 12
        s_add_u32 s56, s56, {3*32768}
        v_add_u32 v23, s56, v23
        v_lshrrev_b32 v22, 1, v22""")
    for nb in range(4):
        A.e(f"v_xor_b32 v20, {nb}, v22\nv_lshl_add_u32 v{AWO+nb}, v20, 5, v23")
    finalize("A", 1, O, L, TA)
    st(A, "afin")

    def oreads(buf, i):
        return [f"ds_read_b64_tr_b16 {v(WFO[buf]+4*nb+2*jh,2)}, v{AWO+nb} offset:{i*8192+jh*1024}" for nb in range(4) for jh in range(2)]
    for r in oreads(0, 0): A.e(r)
    oidx = [i for i, t in enumerate(vm.q) if t == "O"] or [0] * 32
    def emit(x):
        for l_ in x[1]:
            if " lds" in l_ and A.l[-1].strip().startswith("s_add_u32 m0"): A.e("s_nop 0")
            A.e(l_)
        vm.add(x[0])
    def y1():
        st(A, "y1a")
        A.e("s_waitcnt vmcnt(0)\ns_barrier")
        st(A, "y1")
        A.e(f"""s_cmp_lg_u32 s3, 4
            s_cbranch_scc1 {P}y1""")
        signal(4, AN)
        A.lab(f"{P}y1")
    def ypre():
        A.e(f"""s_cmp_lg_u32 s3, 4
            s_cbranch_scc1 {P}yp
            v_and_b32 v20, 15, v0
            v_lshlrev_b32 v20, {FS}, v20
            s_lshl_b32 s56, s{RB2}, {FS+4}
            v_add_u32 v20, s56, v20""")
        poll_issue(20, 4)
        A.lab(f"{P}yp")
        pw[3] = len(vm.q)
    def ypoll():
        st(A, "y3a")
        A.e(f"""s_cmp_lg_u32 s3, 4
            s_cbranch_scc1 {P}pd3
            s_waitcnt vmcnt({len(vm.q) - pw[3]})""")
        poll("3", 20, 4, True, slp=SLP3)
    def ybar(*tags):
        if tags: A.e(f"s_waitcnt vmcnt({vm.after(*tags)})")
        A.e("s_barrier")
    pre = {j: [] for j in range(32)}
    obg = {j: [] for j in range(32)}
    pre[3].append(y1)
    pre[JP].append(ypoll)
    for j in sorted({7, 11, JP}):
        pre[j].append((lambda: ybar("U12", "U13")) if j == 11 else ybar)
    if DIAG: pre[JP].append(lambda: st(A, "y3"))
    pre[JV].append(lambda: ybar("U14", "U15"))
    if os.environ.get("DIAG") == "1": pre[16].append(lambda: st(A, "y4"))
    for k in range(8): obg[3 + k // 2].append(upiece(12 + k // 4, k & 3))
    nl = 0
    for j in range(JP, 32):
        c = 0
        while not (XP & 128) and nl < 32 and c < (LPS if j < 16 else 2) and nl // 2 < j:
            obg[j].append((f"OA{nl}", oload(nl, 0)[1])); nl += 1; c += 1
    for k in range(4): obg[7 + k].append(upiece(14, k))
    for k in range(4): obg[JU + k].append(upiece(15, k))
    for j in range(32):
        u, i = 8 + j // 4, j & 3
        q, buf = u & 3, i & 1
        order = [(nb, f if nb % 2 == 0 else 1 - f) for nb in range(4) for f in range(2)]
        if j == 31: order = [(nb, 1) for nb in range(4)] + [(3 - nb, 0) for nb in range(4)]
        ms = [mfma16(OAC + 4*(f*4+nb), WFO[buf]+4*nb, OFR+32*q+8*i+4*f, "0" if j == 0 else OAC + 4*(f*4+nb)) for nb, f in order]
        w = min(60, len(vm.q) - 1 - oidx[7]) if j == 0 else vm.after(f"OA{2*(j-16)+1}") if j >= 16 else None
        lg = 0 if ((pre[j] and not MID) or j == 31) else 4
        A.e(f"s_waitcnt lgkmcnt({lg})" if w is None else f"s_waitcnt lgkmcnt({lg}) vmcnt({w})")
        if i == 3 and u < 15:
            dl = ((u+1) % 5 - u % 5) * 32768
            for nb in range(4): A.e(f"v_add_u32 v{AWO+nb}, {dl & 0xffffffff}, v{AWO+nb}")
        if j == JP - PRE: ypre()
        if not MID:
            for f in pre[j]: f()
        rd = oreads(1 - buf, (i + 1) & 3) if j < 31 else []
        b = list(obg[j])
        for k in range(8):
            if k == 4 and lg: A.e("s_waitcnt lgkmcnt(4)")
            A.e(ms[k])
            if k == 4 and MID:
                for f in pre[j]: f()
            if rd: A.e(rd[k])
            if k % 2 == 1 and b and (k > 4 or not pre[j] or not MID): emit(b.pop(0))
        while b: emit(b.pop(0))
    st(A, "oend")
    if XP & 256: A.e(f"s_branch {P}end")
    srd(A, SX_, "s22", "s23", 4 * MB)
    for nb in range(4): A.e(f"ds_write_b128 v{VXW}, {v(OAC+16+4*nb,4)} offset:{32768+1024*nb}")
    A.e("s_waitcnt lgkmcnt(0)\ns_barrier")
    for nb in range(4): A.e(f"ds_read_b128 {v(32+4*nb,4)}, v{VXW+1} offset:{32768+1024*nb}")
    for a in range(2):
        A.e(f"s_waitcnt lgkmcnt({2 - 2*a})")
        for i in range(4): A.e(f"v_pk_add_f32 {v(OAC+8*a+2*i,2)}, {v(OAC+8*a+2*i,2)}, {v(32+8*a+2*i,2)}")
        for i in range(4): A.e(f"v_cvt_pk_bf16_f32 v{48+4*a+i}, v{OAC+8*a+2*i}, v{OAC+8*a+2*i+1}")
        A.e(f"""s_nop 0
            v_permlane16_swap_b32 v{48+4*a}, v{48+4*a+2}
            v_permlane16_swap_b32 v{48+4*a+1}, v{48+4*a+3}
            buffer_store_dwordx4 {v(48+4*a,4)}, v{VXO}, {sr(SX_)}, s{OUTS} offen offset:{64*a} {OFL}""")
    A.lab(f"{P}end")
    if E('HT', 0):
        A.e(f"""s_waitcnt vmcnt(0)
            s_memrealtime s[72:73]
            s_memtime s[76:77]
            s_waitcnt lgkmcnt(0)
            s_cmp_lg_u32 s3, 4
            s_cbranch_scc1 {P}end2
            s_mov_b64 exec, 1
            v_mov_b32 v0, 0
            s_not_b32 s56, s70
            v_mov_b32 v1, s56
            v_mov_b32 v2, s70
            v_mov_b32 v3, s72
            s_sub_u32 s76, s76, s74
            v_mov_b32 v4, s76
            buffer_atomic_umax v1, v0, {sr(DBG)}, 0 offen offset:8 sc1
            buffer_atomic_umax v2, v0, {sr(DBG)}, 0 offen offset:12 sc1
            buffer_atomic_umax v3, v0, {sr(DBG)}, 0 offen offset:16 sc1
            buffer_atomic_umax v4, v0, {sr(DBG)}, 0 offen offset:20 sc1""")
    stamp_flush(A, 0)
    trace_flush(A)
    A.lab(f"{P}end2")
    A.e("s_endpgm")

    AX, AW, VKO = 16, 18, 20
    XF, WF = [32, 48], 64
    ACC = 128
    A.lab(f"{P}compute")
    A.e(f"""v_and_b32 v8, 15, v0
        v_lshrrev_b32 v9, 4, v0
        v_bfe_u32 v10, v0, 1, 3
        s_and_b32 s56, s3, 1
        s_lshl_b32 s56, s56, 13
        v_xor_b32 v11, v9, v10
        v_lshlrev_b32 v11, 4, v11
        v_lshl_add_u32 v11, v8, 7, v11
        v_add_u32 v{AX}, s56, v11
        v_xor_b32 v{AX+1}, 64, v{AX}
        v_bfe_u32 v12, v0, 2, 2
        v_and_b32 v13, 3, v0
        v_lshl_add_u32 v14, v9, 3, v12
        v_lshlrev_b32 v14, 7, v14
        v_lshl_add_u32 v14, v13, 3, v14
        v_bfe_u32 v15, v0, 3, 2
        s_and_b32 s56, s3, 2
        v_xor_b32 v15, s56, v15
        v_lshl_add_u32 v14, v15, 5, v14
        v_add_u32 v{AW}, {XSZ}, v14
        v_xor_b32 v{AW+1}, 32, v{AW}
        v_and_b32 v8, 0x33, v0
        v_bfe_u32 v9, v0, 2, 1
        v_bfe_u32 v10, v0, 3, 1
        v_lshl_or_b32 v8, v9, 3, v8
        v_lshl_or_b32 v8, v10, 2, v8
        v_lshlrev_b32 v{VKO}, 4, v8
        s_waitcnt lgkmcnt(0)""")
    srds()
    A.e(f"""v_mov_b32 v21, 0
        s_or_b32 s56, s2, s3
        s_cmp_lg_u32 s56, 0
        s_cbranch_scc1 {P}ntag
        s_memrealtime s[56:57]
        s_waitcnt lgkmcnt(0)
        s_mul_i32 s57, s57, 0x9e3779b1
        s_xor_b32 s56, s56, s57
        s_or_b32 s56, s56, 1
        v_mov_b32 v22, s56
        buffer_store_dword v22, v21, {sr(DBG)}, 0 offen sc1""")
    A.lab(f"{P}ntag")
    zero(24, 4)
    for nm, fn in (("s", setup_s), ("v", setup_v)):
        A.lab(f"{P}set{nm}")
        fn()
        A.e(f"""s_cmp_ge_u32 s3, 4
            s_cbranch_scc1 {P}set{nm}_r""")
        if nm == "s":
            for i in range(8): A.e(mfma32(ACC + 16*i, 24, 24, "0"))
    A.e(f"""s_mov_b32 s58, 0
        s_mov_b32 s59, 0
        s_mov_b32 s60, {(-ST) & 0xffffffff}
        s_mov_b32 s61, {2*ST}
        s_mov_b32 s63, {f2u(CSCALE)}
        s_and_b32 s57, s{HEAD}, 24
        s_add_u32 s92, s{HEAD}, {4*GROT}
        s_and_b32 s92, s92, 7
        s_or_b32 s92, s92, s57
        s_lshl_b32 s92, s92, 6
        s_add_u32 s92, s92, s{RT}
        s_lshl_b32 s92, s92, 12
        s_add_u32 s92, s92, {KVB_OFF}
        s_add_u32 s93, s92, 4096
        s_add_u32 s96, s{HEAD}, {6*GROT}
        s_and_b32 s96, s96, 7
        s_or_b32 s96, s96, s57
        s_lshl_b32 s96, s96, 6
        s_add_u32 s96, s96, s{RT}
        s_lshl_b32 s96, s96, 12
        s_add_u32 s96, s96, {KVB_OFF}
        s_add_u32 s97, s96, 4096
        s_nop 0""")
    def rx(buf, ks, mb): return f"ds_read_b128 {v(XF[buf]+4*mb,4)}, v{AX+ks} offset:{mb*2048}"
    def rw(nb, ks, jh): return f"ds_read_b64_tr_b16 {v(WF+4*nb+2*jh,2)}, v{AW+(nb&1)} offset:{(nb>>1)*8192+ks*4096+jh*512}"
    st(A, "setup")
    A.e("s_barrier")
    st(A, "g0")
    for mb in range(4): A.e(rx(0, 0, mb))
    for nb in range(7):
        for jh in range(2): A.e(rw(nb, 0, jh))
        if nb == 4: A.e("s_waitcnt lgkmcnt(4)")
    A.e(f"s_waitcnt lgkmcnt(2)\ns_branch {P}g1m")
    A.raw(".p2align 6")
    A.lab(f"{P}g1")
    acc = lambda mb, nb: ACC + 4 * (nb * 4 + mb)
    for ks in (1, 0):
        if ks == 0: A.lab(f"{P}g1m")
        post = {k: [] for k in range(32)}
        post[0].append(rw(7, ks, 0)); post[1].append(rw(7, ks, 1))
        if ks == 0:
            for nb in range(1, 8):
                for jh in range(2): post[4*nb + jh].append(rw(nb - 1, 1, jh))
            for m in range(4): post[4*(m+1) + 2].append(rx(1, 1, m))
            post[19].append("s_waitcnt lgkmcnt(8)")
            post[27].append("s_cmp_lg_u32 s59, 15")
        else:
            post[2].append("s_cmp_eq_u32 s58, 0"); post[2].append("s_cselect_b32 s62, s61, s60")
            post[3] += [f"v_add_u32 v{AX}, s62, v{AX}", f"v_add_u32 v{AX+1}, s62, v{AX+1}"]
            post[4] += [f"v_add_u32 v{AW}, s62, v{AW}", f"v_add_u32 v{AW+1}, s62, v{AW+1}"]
            post[5] += ["s_add_u32 s58, s58, s62", "s_add_u32 s59, s59, 1"]
            post[GB] += ["s_waitcnt lgkmcnt(0)", "s_barrier"]
            seq_ = [rw(0, 0, 0), rw(0, 0, 1), rx(0, 0, 0)]
            k = GB + 1
            rest = []
            for nb in range(1, 7): rest += [(4*(nb+1), rw(nb, 0, 0)), (4*(nb+1), rw(nb, 0, 1))]
            xs = [rx(0, 0, m) for m in range(1, 4)]
            for x in seq_: post[k].append(x); k += 1
            while rest or xs:
                if rest and rest[0][0] <= k: post[k].append(rest.pop(0)[1])
                elif xs: post[k].append(xs.pop(0))
                k += 1
            assert k <= 31
        post[30].append("s_waitcnt lgkmcnt(2)")
        for nb in range(8):
            for mb in range(4):
                m2 = mb if nb % 2 == 0 else 3 - mb
                d = acc(m2, nb)
                x, w = XF[ks] + 4 * m2, WF + 4 * nb
                A.e(mfma16(d, x, w, d) if nb >= 6 else mfma16(d, w, x, d))
                for x_ in post[4*nb + mb]: A.e(x_)
    A.e(f"s_cbranch_scc1 {P}g1")
    A.lab(f"{P}glast")
    T = 21
    order = [(m, n) for g in ((2, 0), (2, 2), (0, 0), (0, 2)) for (m, n) in ((g[0], g[1]), (g[0]+1, g[1]), (g[0]+1, g[1]+1), (g[0], g[1]+1))]
    order += [(mb if nb % 2 == 0 else 3 - mb, nb) for nb in range(4, 8) for mb in range(4)]
    fill = pack_list(32, [[acc(2+rbk, db) for rbk in range(2)] for db in range(2)], False)
    fill += [f"ds_write_b128 v{AX}, {v(32,4)}", f"ds_write_b128 v{AX}, {v(36,4)} offset:1024"]
    fill += pack_list(40, [[acc(2+rbk, 2+db) for rbk in range(2)] for db in range(2)], False)
    fill += [f"ds_write_b128 v{AX}, {v(40,4)} offset:2048", f"ds_write_b128 v{AX}, {v(44,4)} offset:3072"]
    qa0 = pack_list(QA, [[acc(rbk, db) for rbk in range(2)] for db in range(2)], False)
    fill += qa0[:6] + ["s_waitcnt lgkmcnt(0)\ns_barrier"] + qa0[6:]
    for k, (mb, nb) in enumerate(order):
        d = acc(mb, nb)
        x, w = XF[1] + 4 * mb, WF + 4 * nb
        A.e(mfma16(d, x, w, d) if nb >= 6 else mfma16(d, w, x, d))
        if k < 2: A.e(rw(7, 1, k))
        if k == 2: A.e(f"s_add_u32 s56, s{W4K}, {MISC}\ns_mov_b32 s62, s63")
        if k == 3: A.e(f"v_add_u32 v{AX}, s56, v{VL16}")
        if k == 8: A.e("s_waitcnt lgkmcnt(0)")
        if k >= 10:
            for _ in range(2):
                if fill: A.e(fill.pop(0))
    st(A, "gend")
    while fill: A.e(fill.pop(0))
    for rtl in range(2):
        tk, tv = 80 + 8 * rtl, ACC + 8 * rtl
        so = "s92" if rtl == 0 else "s93"
        pack(tk, [[acc(2*rtl+rbk, 4+db) for rbk in range(2)] for db in range(2)], True)
        A.e(f"""buffer_store_dwordx4 {v(tk,4)}, v{VKO}, {sr(WS)}, {so} offen sc1
            buffer_store_dwordx4 {v(tk+4,4)}, v{VKO}, {sr(WS)}, {so} offen offset:1024 sc1""")
        pack(tv, [[acc(2*rtl+kb, 6+db) for db in range(2)] for kb in range(2)], False)
        so = "s96" if rtl == 0 else "s97"
        A.e(f"""buffer_store_dwordx4 {v(tv,4)}, v{VL16}, {sr(WS)}, {so} offen offset:2048 sc1
            buffer_store_dwordx4 {v(tv+4,4)}, v{VL16}, {sr(WS)}, {so} offen offset:3072 sc1""")
    pack(QB, [[acc(rbk, 2+db) for rbk in range(2)] for db in range(2)], False)
    A.e(f"s_branch {P}attn")

    if XP & 4:
        for l in ("sig1", "sig2", "poll1", "poll2"): A.lab(f"{P}{l}_r")
    if XP & 8: A.lab(f"{P}normB")
    for ph in (1, 2):
        A.lab(f"{P}sig{ph}")
        signal(ph + 1, TZ + 1)
        A.e(f"s_branch {P}sig{ph}_r")
    A.lab(f"{P}pre1")
    A.e(f"""v_lshrrev_b32 v{TZ+1}, 4, v0
        v_min_u32 v{TZ+1}, 2, v{TZ+1}
        v_sub_u32 v{TZ+1}, s{RB}, v{TZ+1}
        v_max_i32 v{TZ+1}, 0, v{TZ+1}
        v_lshlrev_b32 v{TZ+1}, 4, v{TZ+1}
        v_and_or_b32 v{TZ+1}, v0, 15, v{TZ+1}
        v_lshlrev_b32 v{TZ+1}, {FS}, v{TZ+1}""")
    poll_issue(TZ + 1, 2)
    A.e(f"s_branch {P}pre1_r")
    A.lab(f"{P}poll1")
    A.e(f"s_waitcnt vmcnt({pw[1]})")
    poll("1", TZ + 1, 2, True)
    A.e(f"s_branch {P}poll1_r")
    A.lab(f"{P}pre2")
    A.e(f"""v_and_b32 v{TZ+1}, 15, v0
        v_lshlrev_b32 v{TZ+1}, {FS}, v{TZ+1}
        s_lshl_b32 s56, s{RB2}, {FS+4}
        v_add_u32 v{TZ+1}, s56, v{TZ+1}""")
    poll_issue(TZ + 1, 3)
    A.e(f"s_branch {P}pre2_r")
    A.lab(f"{P}poll2")
    A.e(f"s_waitcnt vmcnt({pw[2]})")
    poll("2", TZ + 1, 3, True)
    A.e(f"s_branch {P}poll2_r")
    for j in range(2, 8):
        A.lab(f"{P}cm{j}")
        zero(CM, 16)
        A.e(f"s_nop 0\ns_branch {P}cm{j}_r")

    def slow(tag, q, o, l, kf, vf, S, C, Pp, M, setup):
        A.lab(f"{P}slow{tag}")
        A.e("s_waitcnt vmcnt(0)")
        A.e(setup)
        zero(o, 16); zero(l, 4)
        A.e(f"""v_mov_b32 v{M}, {NEG}
            s_mov_b32 s99, 0""")
        A.lab(f"{P}spass{tag}")
        A.e("s_mov_b32 s100, s98")
        A.lab(f"{P}stile{tag}")
        A.e(f"""s_lshl_b32 s56, s100, 12
            s_add_u32 s56, s56, s101
            buffer_load_dwordx4 {v(kf,4)}, v{VL16}, {sr(WS)}, s56 offen sc1
            buffer_load_dwordx4 {v(kf+4,4)}, v{VL16}, {sr(WS)}, s56 offen offset:1024 sc1
            buffer_load_dwordx4 {v(vf,4)}, v{VL16}, {sr(WS)}, s56 offen offset:2048 sc1
            buffer_load_dwordx4 {v(vf+4,4)}, v{VL16}, {sr(WS)}, s56 offen offset:3072 sc1
            s_cmp_eq_u32 s100, s96
            s_cselect_b32 s56, {NEG}, 0
            s_cmp_eq_u32 s100, s97
            s_cselect_b32 s57, {NEG}, 0
            v_mov_b32 v{M+2}, s56
            v_mov_b32 v{M+3}, s57""")
        for r in range(16):
            A.e(f"""v_cmp_le_i32 vcc, {keyl(r)}, v{VD}
                s_nop 1
                v_cndmask_b32 v{C+r}, v{M+2}, v{M+3}, vcc""")
        A.e("s_waitcnt vmcnt(0)\ns_nop 0")
        A.e(mfma32(S, kf, q, C))
        A.e(mfma32(S, kf + 4, q + 4, S))
        A.e(f"""s_nop 7
            s_nop 7
            s_cmp_eq_u32 s99, 0
            s_cbranch_scc0 {P}sp2{tag}""")
        for r in range(16): A.e(f"v_max_f32 v{M}, v{M}, v{S+r}")
        A.e(f"s_branch {P}snext{tag}")
        A.lab(f"{P}sp2{tag}")
        for r in range(16): A.e(f"v_sub_f32 v{S+r}, v{S+r}, v{M}")
        for r in range(16): A.e(ex(S, r))
        A.e("s_nop 0")
        for i in range(8): A.e(cv(Pp, S, i))
        A.e("s_nop 1")
        A.e(mfma32(o, vf, Pp, o))
        A.e(mfma32(o, vf + 4, Pp + 4, o))
        A.e(smf(l, Pp))
        A.e("s_nop 7\ns_nop 7")
        A.lab(f"{P}snext{tag}")
        A.e(f"""s_add_u32 s100, s100, 1
            s_cmp_le_u32 s100, s95
            s_cbranch_scc1 {P}stile{tag}
            s_cmp_eq_u32 s99, 0
            s_cbranch_scc0 {P}sdone{tag}
            v_mov_b32 v{M+1}, v{M}
            s_nop 1
            v_permlane32_swap_b32 v{M}, v{M+1}
            s_nop 1
            v_max_f32 v{M}, v{M}, v{M+1}
            s_mov_b32 s99, 1
            s_branch {P}spass{tag}""")
        A.lab(f"{P}sdone{tag}")
        A.e(f"""s_mov_b32 s63, 1
            s_branch {P}norm{tag}""")
    slow("B", QB, O2, L2, 196, 204, 212, 228, 244, 148,
         f"""s_lshl_b32 s101, s{HEADB}, 18
            s_add_u32 s101, s101, {KVB_OFF}
            s_sub_i32 s97, s{RT}, 8
            s_max_i32 s98, s97, 0
            s_mov_b32 s95, s{RT}
            s_mov_b32 s96, s{RT}""")
    slow("A", QA, O, L, KF, VF, SB[0], SB[1], PB[0], ML + 8,
         f"""s_mov_b32 s101, {KVA_OFF}
            s_mov_b32 s98, 0
            s_mov_b32 s95, 63
            s_mov_b32 s96, -1
            s_mov_b32 s97, -1""")
    A.raw(".p2align 4")
    A.lab(f"{P}last")
    A.e("s_endpgm")
    return kernel_desc(name, 256, 102)

DOC = """;
"""
if __name__ == "__main__":
    ref = open(f"cdna_kernels/{NAME}.s.ref").read().split("\n")
    hdr = [l for l in ref if l.startswith(";") and "@launch" not in l]
    A = Asm()
    d = gen(A, NAME + "_kernel")
    out = "\n".join(hdr) + "\n" + f"; @launch grid=(256,1,1) block=(512,1,1) lds={LDS}\n"
    out += DOC
    out += '.amdgcn_target "amdgcn-amd-amdhsa--gfx950"\n.text\n' + A.text() + '.section .rodata,"a"\n' + d
    path = sys.argv[1] if len(sys.argv) > 1 else f"cdna_kernels/{NAME}.s"
    open(path, "w").write(out)
    print("wrote", path, len(out))
```

```python
from common import *
import sys
E = lambda k, d: int(os.environ.get(k, d))
STAG = 4
PART_OFF = 0
TPA = E('TPA', 8)
WARM = E('WARM', 1)
E1N = E('E1N', 12)
TPOLL = E('TPOLL', 14)
LPRIO = E('LPRIO', 3)
LPS = E('LPS', 2)
ROT = E('ROT', 0)
SLP = E('SLP', 12)
PFC = E('PFC', 0)
TOUCH = E('TOUCH', 0)
ZIG = E('ZIG', 3)
SFIRST = E('SFIRST', 0)
OFL = os.environ.get('OFL', '')
XP = E('XP', 0)
JP = E('JP', 11)
JU = E('JU', 13)
JV = E('JV', 21)
SLP3 = E('SLP3', 4)
PRL = E('PRL', 2)
ORD = E('ORD', 3)
SPRO = E('SPRO', 1)
TRED = E('TRED', 9)
TTAG = E('TTAG', 4)
RAFT = E('RAFT', 2)
TST = E('TST', 3)
TSA = E('TSA', TST + 2)
PRE = E('PRE', 2)
FS = E('FS', 4)
SPLIT = E('SPLIT', 1)
TS = E('TS', 15)
TV = E('TV', 14)
DEFD = ''
NS_ = E('NS', 0)
SUBR = E('SUBR', 1)
N5 = E('N5', 47)
N6 = E('N6', 53)
N2 = E('N2', 18)
CPS = E('CPS', 3)
PBF = E('PBF', 1)
GB = E('GB', 8)
WNT = os.environ.get('WNT', '')
XNT = os.environ.get('XNT', '')
ZNT = os.environ.get('ZNT', '')
NTT = os.environ.get('NTT', '').split(',')
O5 = 1
O5N = E('O5N', 4)
P1 = E('P1', 13)
MID = E('MID', 1)
WPS = E('WPS', 1)
CHO = E('CHO', 1)
GB2 = E('GB2', 13)
HB = E('HB', 63)
C1L = E('C1L', 0)
LCH = E('LCH', 0)
PKM = E('PKM', 0)
NB0 = 28

XSZ = 16384
ST = 49152
MISC = 3 * ST
LDS = 163840
NEG = f2u(-1e30)
SPIN = 50000

VL16, AC, AN, VG, IDX, VD, T0 = 1, 2, 3, 4, 5, 6, 7
ONES, L = 8, 12
QB, QA = 16, 24
KF, VF = 32, 40
PB = [48, 56]
SB = [64, 80]
O = 96
ML = 112
OFR = 128
O2, L2, MU, CM, TB, AB, TZ = 128, 144, 148, 164, 180, 188, 189
WS, DBG, SX_, SW_, SS_ = 28, 32, 36, 40, 44
RB, HP, XCD, IDXS, RT, HEAD, RB2, CBK = 48, 49, 50, 51, 52, 53, 54, 55
HEADB = 65
W4K, W1K, I0, WOS, GSRC, ABS = 74, 75, 76, 77, 78, 79
WS6 = 80
MUS, CMS, OUTS, OSTA = 16, 17, 20, 21
OSTB, KH10, CSRC = 24, 25, 26
UO, OQ = 44, 4
NON = 64
FL_OFF = 4 * MB
GP_OFF = 5 * MB
GROT = E('GROT', 1)

def sr(b): return f"s[{b}:{b+3}]"
def mfma16(d, a, b, c):
    cs = c if isinstance(c, str) else v(c, 4)
    return f"v_mfma_f32_16x16x32_bf16 {v(d,4)}, {v(a,4)}, {v(b,4)}, {cs}"
def smf(l, p): return f"v_smfmac_f32_16x16x64_bf16 {v(l,4)}, {v(ONES,4)}, {v(p,8)}, v{IDX}"
def ex(S, i): return f"v_exp_f32 v{S+i}, v{S+i}"
def cv(Pp, S, i): return f"v_cvt_pk_bf16_f32 v{Pp+i}, v{S+2*i}, v{S+2*i+1}"
def keyl(r): return 16 * (r >> 3) + 4 * ((r >> 2) & 1) + (r & 3)

TRN = "setup,g0,pla,pl0,gend,attn,aend,afin,y1a,y1,y3a,y3,y4,oend,x1,x2,x3,x4".split(",")
TRL = {n: 44 + i for i, n in enumerate(TRN)}
def st(A, nm):
    if DIAG: trace(A, TRL[nm])

class VM:
    def __init__(self): self.q = []
    def add(self, tag, n=1): self.q += [tag] * n
    def after(self, *tags):
        if not any(t in tags for t in self.q): return 0
        last = max(i for i, t in enumerate(self.q) if t in tags)
        return len(self.q) - 1 - last

def pack_list(dst, blk, scale):
    o = []
    for a in range(2):
        for b in range(2):
            d = blk[a][b]
            if scale:
                if scale == 2:
                    for i in range(4): o.append(f"v_mul_f32 v{d+i}, s63, v{d+i}")
                else:
                    for i in range(2): o.append(f"v_pk_mul_f32 {v(d+2*i,2)}, {v(d+2*i,2)}, s[62:63]")
            for i in range(2): o.append(f"v_cvt_pk_bf16_f32 v{dst+a*4+b*2+i}, v{d+2*i}, v{d+2*i+1}")
    for a in range(2):
        for i in range(2): o.append(f"v_permlane16_swap_b32 v{dst+a*4+i}, v{dst+a*4+2+i}")
    return o

def gen(A, name):
    P = "f_"
    kernel_head(A, name)
    A.e(f"""s_cmp_ge_u32 s2, 256
        s_cbranch_scc1 {P}end2""")
    stamp_init(A)
    if E('HT', 0): A.e("s_memrealtime s[70:71]\ns_memtime s[74:75]")
    if E('SCR', 0):
        A.e("""s_lshr_b32 s56, s2, 3
            s_lshr_b32 s57, s2, 5
            s_xor_b32 s56, s56, s57
            s_and_b32 s56, s56, 7
            s_xor_b32 s2, s2, s56""")
    A.e(f"""s_load_dwordx8 s[4:11], s[0:1], 0
        s_load_dwordx8 s[16:23], s[0:1], 48
        s_load_dwordx4 s[24:27], s[0:1], 80
        s_load_dwordx2 s[12:13], s[0:1], 32
        v_lshrrev_b32 v1, 6, v0
        v_and_b32 v0, 63, v0
        v_readfirstlane_b32 s3, v1
        s_and_b32 s{XCD}, s2, 7
        s_lshr_b32 s{IDXS}, s2, 3
        s_and_b32 s{RB}, s{XCD}, 1
        s_lshl_b32 s{RB}, s{RB}, 3
        s_and_b32 s56, s{IDXS}, 7
        s_add_u32 s{RB}, s{RB}, s56
        s_lshr_b32 s{HP}, s{XCD}, 1
        s_lshl_b32 s{HP}, s{HP}, 2
        s_lshr_b32 s56, s{IDXS}, 3
        s_add_u32 s{HP}, s{HP}, s56
        v_lshlrev_b32 v{VL16}, 4, v0
        s_cmp_lt_u32 s3, 4
        s_cbranch_scc1 {P}compute""")

    def srds():
        srd(A, WS, "s26", "s27", WS_USED)
        srd(A, DBG, "s24", "s25", 256)
        if DIAG: A.e(f"v_mov_b32 v{VD}, 0")
    def setup_v():
        vd = AN if DIAG else VD
        A.e(f"""v_and_b32 v{L}, 31, v0
            v_lshrrev_b32 v{VG}, 5, v0
            v_lshlrev_b32 v{VG}, 3, v{VG}
            v_sub_u32 v{vd}, v{L}, v{VG}
            v_mov_b32 v{VG}, {NEG}""")
        for r in range(16): A.e(f"v_subrev_u32 v{ML+r}, {keyl(r)}, v{vd}")
        for r in range(16): A.e(f"v_ashrrev_i32 v{ML+r}, 31, v{ML+r}")
        for r in range(16): A.e(f"v_and_b32 v{ML+r}, v{VG}, v{ML+r}")
        A.e(f"""v_bfe_i32 v{L}, v0, 2, 1
            v_mov_b32 v{VG}, 0x3f803f80
            v_and_b32 v{ONES+2}, v{VG}, v{L}
            v_xor_b32 v{ONES}, v{VG}, v{ONES+2}
            v_mov_b32 v{ONES+1}, v{ONES}
            v_mov_b32 v{ONES+3}, v{ONES+2}
            v_bfe_i32 v{L}, v0, 0, 1
            v_and_b32 v{L}, 0xaaaa, v{L}
            v_or_b32 v{IDX}, 0x4444, v{L}
            v_add_u32 v{AC}, 0x10000, v{VL16}
            v_add_u32 v{AN}, 0x20000, v{VL16}""")
        for i in range(4): A.e(f"v_mov_b32 v{L+i}, 0")
    def setup_s():
        A.e(f"""s_and_b32 s{RB2}, s{XCD}, 3
            s_lshl_b32 s{RB2}, s{RB2}, 2
            s_and_b32 s56, s{IDXS}, 3
            s_add_u32 s{RB2}, s{RB2}, s56
            s_lshl_b32 s{WOS}, s56, 19
            s_lshr_b32 s{CBK}, s{XCD}, 2
            s_lshl_b32 s{CBK}, s{CBK}, 3
            s_lshr_b32 s56, s{IDXS}, 2
            s_add_u32 s{CBK}, s{CBK}, s56
            s_and_b32 s56, s3, 1
            s_lshl_b32 s56, s56, 1
            s_lshr_b32 s{KH10}, s3, 2
            s_add_u32 s56, s56, s{KH10}
            s_lshl_b32 s{ABS}, s56, 12
            s_lshl_b32 s{RT}, s{RB}, 2
            s_add_u32 s{CSRC}, s{RT}, s{KH10}
            s_add_u32 s{RT}, s{RT}, s56
            s_bfe_u32 s56, s3, 0x10001
            s_mul_i32 s57, s56, 49152
            s_add_u32 s{ABS}, s{ABS}, s57
            s_lshl_b32 s{HEAD}, s{HP}, 1
            s_add_u32 s{HEAD}, s{HEAD}, s56
            s_add_u32 s56, s{HEAD}, {2*GROT}
            s_and_b32 s56, s56, 7
            s_and_b32 s57, s{HEAD}, 24
            s_or_b32 s{HEADB}, s56, s57
            s_lshl_b32 s{W4K}, s3, 12
            s_lshl_b32 s{W1K}, s3, 10
            s_sub_i32 s{I0}, 8, s{RT}
            s_cmp_gt_i32 s{I0}, 0
            s_cselect_b32 s{MUS}, 0, 1.0
            s_cmp_gt_i32 s{I0}, 1
            s_cselect_b32 s{CMS}, {NEG}, 0
            s_lshr_b32 s57, s{HEADB}, 1
            s_lshl_b32 s57, s57, 19
            s_and_b32 s27, s3, 3
            s_lshl_b32 s56, s27, 10
            s_add_u32 s57, s57, s56
            s_add_u32 s57, s57, {KVB_OFF}
            s_lshl_b32 s56, s{CSRC}, 12
            s_add_u32 s56, s56, s57
            s_sub_u32 s56, s56, 0x8000""")
        for i in range(6):
            A.e(f"s_max_u32 s{WS6+i}, s56, s57")
            if i < 5: A.e("s_addk_i32 s56, 0x2000")
        A.e(f"""s_lshl_b32 s56, s{RB2}, 2
            s_add_u32 s56, s56, s27
            s_lshl_b32 s{OUTS}, s56, 1
            s_add_u32 s{OUTS}, s{OUTS}, s{KH10}
            s_lshl_b32 s{OUTS}, s{OUTS}, 15
            s_lshl_b32 s57, s{CBK}, 7
            s_add_u32 s{OUTS}, s{OUTS}, s57
            s_lshl_b32 s{UO}, s3, 16
            s_add_u32 s{UO}, s{UO}, s57
            s_add_u32 s{WOS}, s{WOS}, s{UO}
            s_add_u32 s{UO+1}, s{UO}, 0x80000
            s_add_u32 s{UO+2}, s{UO}, 0x100000
            s_add_u32 s{UO+3}, s{UO}, 0x180000
            s_lshl_b32 s56, s56, 17
            s_lshl_b32 s57, s{KH10}, 11
            s_add_u32 s56, s56, s57
            s_add_u32 s{OQ}, s56, {O_OFF + 65536}
            s_movk_i32 s57, 0x2000""")
        if ROT:
            A.e(f"""s_mov_b32 s56, s{OQ}
                s_lshl_b32 s27, s{CBK}, 13""")
            for h in range(8):
                A.e(f"""s_and_b32 s27, s27, 0xffff
                    s_add_u32 s{OQ+h}, s56, s27
                    s_add_u32 s27, s27, s57""")
            A.e(f"s_lshl_b32 s27, s{CBK}, 18")
            for q in range(4):
                A.e(f"""s_add_u32 s{UO+q}, s{UO+q}, s27
                    s_and_b32 s{UO+q}, s{UO+q}, 0x1fffff""")
        else:
            for h in range(1, 8): A.e(f"s_add_u32 s{OQ+h}, s{OQ+h-1}, s57")
        A.e(f"""s_lshl_b32 s{GSRC}, s{RT}, 7
            s_add_u32 s{GSRC}, s{GSRC}, {G_OFF}
            s_lshl_b32 s56, s{RT}, 17
            s_add_u32 s56, s56, {O_OFF}
            s_lshl_b32 s{OSTA}, s{HEAD}, 11
            s_add_u32 s{OSTA}, s{OSTA}, s56
            s_lshl_b32 s{OSTB}, s{HEADB}, 11
            s_add_u32 s{OSTB}, s{OSTB}, s56
            s_add_u32 s{OSTB}, s{OSTB}, 0x10000
            s_lshl_b32 s{KH10}, s{KH10}, 10""")
    def pack(dst, blk, scale):
        for x in pack_list(dst, blk, scale): A.e(x)
    def zero(base, n):
        for i in range(n): A.e(f"v_mov_b32 v{base+i}, 0")
    def signal(phase, t1):
        A.e(f"""s_mov_b64 exec, 1
            v_mov_b32 v{T0}, s{NON}
            v_mov_b32 v{t1}, 0
            s_lshl_b32 s56, s{RB}, 4
            s_add_u32 s56, s56, s{HP}
            s_lshl_b32 s56, s56, {FS}
            s_add_u32 s56, s56, {FL_OFF + (256<<FS)*phase}
            buffer_store_dword v{T0}, v{t1}, {sr(WS)}, s56 offen sc1
            s_mov_b64 exec, -1""")
    def poll_issue(voff, phase, t1=None):
        A.e(f"""s_mov_b32 s62, {FL_OFF + (256<<FS)*phase}
            buffer_load_dword v{T0}, v{voff}, {sr(WS)}, s62 offen sc1""")
        if t1:
            for i in range(3): A.e(f"buffer_load_dword v{t1+i}, v{voff}, {sr(WS)}, s62 offen offset:{(i+1)<<FS} sc1")
    def poll(tag, voff, phase, first_issued, t1=None, slp=SLP):
        A.e(f"s_mov_b32 s57, {1 if ((XP & 32 and tag in '0a') or (XP & 64 and tag in '123')) else SPIN}")
        if first_issued: A.e(f"s_branch {P}pc{tag}")
        A.lab(f"{P}pl{tag}")
        poll_issue(voff, phase, t1)
        A.e("s_waitcnt vmcnt(0)")
        A.lab(f"{P}pc{tag}")
        A.e(f"v_cmp_eq_u32 vcc, s{NON}, v{T0}")
        if t1:
            for i in range(3):
                A.e(f"""s_mov_b64 s[62:63], vcc
                    v_cmp_eq_u32 vcc, s{NON}, v{t1+i}
                    s_and_b64 vcc, vcc, s[62:63]""")
        A.e(f"""s_cmp_eq_u64 vcc, -1
            s_cbranch_scc1 {P}pd{tag}
            s_sleep {slp}
            s_sub_u32 s57, s57, 1
            s_cmp_lg_u32 s57, 0
            s_cbranch_scc1 {P}pl{tag}""")
        A.lab(f"{P}pd{tag}")
    def tag_issue(d, z):
        A.e(f"""v_mov_b32 v{z}, 0
            buffer_load_dword v{d}, v{z}, {sr(DBG)}, 0 offen sc1""")
    def tag_get(lbl, d, z):
        A.e(f"s_mov_b32 s57, {SPIN}")
        A.lab(f"{P}tl{lbl}")
        A.e(f"""v_readfirstlane_b32 s{NON}, v{d}
            s_cmp_lg_u32 s{NON}, 0
            s_cbranch_scc1 {P}td{lbl}
            s_sleep 8
            buffer_load_dword v{d}, v{z}, {sr(DBG)}, 0 offen sc1
            s_waitcnt vmcnt(0)
            s_sub_u32 s57, s57, 1
            s_cmp_lg_u32 s57, 0
            s_cbranch_scc1 {P}tl{lbl}""")
        A.lab(f"{P}td{lbl}")
    gslot = lambda t: ((15 - t) % 3) * ST

    VX, VW, VS, AXS, AWS = 128, 130, 132, 136, 133
    SXF, SWF, SA = 144, 176, 208
    LW, KIND, PHI = 14, 15, 92
    XB, WB, WSTEP, KT, L4K, L8K, PSRC = 93, 94, 96, 98, 99, 100, 101
    L8X, WST2 = 2, 53
    A.e(f"""s_setprio {LPRIO}
        s_sub_u32 s{LW}, s3, 4
        v_lshrrev_b32 v9, 3, v0
        v_and_b32 v16, 7, v0
        v_lshrrev_b32 v17, 4, v0
        v_xor_b32 v17, v17, v16
        v_lshlrev_b32 v17, 4, v17
        v_lshl_add_u32 v{VX}, v9, 11, v17
        v_xor_b32 v{VX+1}, 64, v{VX}
        s_cmp_eq_u32 s{LW}, 0
        s_mov_b32 s57, 6144
        s_cselect_b32 s57, 2048, s57
        v_bfe_u32 v17, v0, 4, 1
        v_lshlrev_b32 v17, 1, v17
        v_xor_b32 v17, v17, v16
        v_lshlrev_b32 v17, 4, v17
        v_mul_u32_u24 v18, s57, v9
        v_add_u32 v{VW}, v18, v17
        v_xor_b32 v{VW+1}, 64, v{VW}
        s_lshl_b32 s{WSTEP}, s57, 3
        s_lshl_b32 s{XB}, s{RB}, 18
        s_lshl_b32 s56, s{LW}, 16
        s_add_u32 s{XB}, s{XB}, s56
        s_max_u32 s56, s{LW}, 1
        s_sub_u32 s56, s56, 1
        s_lshl_b32 s56, s56, 11
        s_mul_i32 s57, s{LW}, {GROT}
        s_add_u32 s57, s57, s{HP}
        s_and_b32 s57, s57, 3
        s_and_b32 s{WB}, s{HP}, 12
        s_or_b32 s57, s57, s{WB}
        s_lshl_b32 s57, s57, 7
        s_add_u32 s{WB}, s56, s57
        s_add_u32 s{PHI}, s{RB}, s{HP}
        s_and_b32 s{PHI}, s{PHI}, 3
        s_and_b32 s56, s{HP}, {12 if ORD == 3 else 4}
        s_or_b32 s{KT}, s{PHI}, s56
        s_lshl_b32 s{KT}, s{KT}, {0 if ORD == 3 else 1}
        s_lshl_b32 s{L4K}, s{LW}, 12
        s_lshl_b32 s{L8K}, s{LW}, 13
        s_add_u32 s{L8X}, s{L8K}, {XSZ}
        s_sub_u32 s{WST2}, s{WSTEP}, 0x400
        s_cmp_eq_u32 s{LW}, 0
        s_waitcnt lgkmcnt(0)
        s_cselect_b32 s{SW_}, s6, s16
        s_cselect_b32 s{SW_+1}, s7, s17
        s_mov_b32 s{SW_+2}, {6*MB}
        s_cselect_b32 s{SW_+2}, {2*MB}, s{SW_+2}
        s_mov_b32 s{SW_+3}, 0x20000""")
    srd(A, SX_, "s4", "s5", 4 * MB)
    gv = VM()
    def issue(t, lo=0, hi=12):
        if SUBR:
            assert (lo, hi) == (0, 12)
            gv.add(f"T{t}", 12)
            if t > 0:
                A.e(f"s_mov_b32 s59, {gslot(t)}")
                if t < O5N:
                    A.e(f"s_xor_b32 s{KT}, s95, {t & 3}")
                    if t >= 4: A.e(f"s_add_u32 s{KT}, s{KT}, {t & 12}\ns_and_b32 s{KT}, s{KT}, 15")
                else:
                    if t == O5N: A.e(f"s_and_b32 s{KT}, s{KT}, 12\ns_or_b32 s{KT}, s{KT}, s{PHI}")
                    if (t & 3) == 0: A.e(f"s_add_u32 s{KT}, s{KT}, 4\ns_and_b32 s{KT}, s{KT}, 15")
                A.e(f"s_call_b64 s[0:1], {P}isub")
                return
            A.e(f"""s_mov_b32 s59, {gslot(0)}
                s_getpc_b64 s[0:1]""")
            A.lab(f"{P}ipc")
            A.e(f"""s_add_u32 s0, s0, {P}iret-{P}ipc
                s_addc_u32 s1, s1, 0""")
            A.lab(f"{P}isub")
            A.e(f"""s_add_u32 m0, s{L4K}, s59
                s_lshl_b32 s56, s{KT}, 7
                s_add_u32 s56, s56, s{XB}""")
            for i in range(4):
                A.e(f"buffer_load_dwordx4 v{VX+(i&1)}, {sr(SX_)}, s56 offen offset:{1024*i} {XNT} lds")
                if i < 3: A.e(f"s_addk_i32 s56, {16384-1024}")
            A.e(f"""s_add_u32 m0, s{L8X}, s59
                s_mul_i32 s56, s{KT}, s{WSTEP}
                s_lshl_b32 s56, s56, 3
                s_add_u32 s56, s56, s{WB}""")
            for i in range(8):
                A.e(f"buffer_load_dwordx4 v{VW+(i&1)}, {sr(SW_)}, s56 offen offset:{1024*(i&3)} {WNT} lds")
                if i == 3: A.e(f"s_addk_i32 m0, 0x1000\ns_addk_i32 s56, 0x1000")
                if i < 7: A.e(f"s_add_u32 s56, s56, s{WST2}")
            A.e(f"""s_add_u32 s56, s{KT}, 1
                s_and_b32 s56, s56, 3
                s_and_b32 s{KT}, s{KT}, 12
                s_or_b32 s{KT}, s{KT}, s56
                s_setpc_b64 s[0:1]""")
            A.lab(f"{P}iret")
            return
        for i in range(lo, hi):
            if i < 4:
                if i == lo:
                    A.e(f"""s_add_u32 m0, s{L4K}, {gslot(t) + 1024*i}
                        s_lshl_b32 s56, s{KT}, 7
                        s_add_u32 s56, s56, s{XB}""")
                    if i: A.e(f"s_add_u32 s56, s56, {16384*i}")
                else: A.e("s_add_u32 m0, m0, 1024\ns_add_u32 s56, s56, 16384")
                A.e(f"buffer_load_dwordx4 v{VX+(i&1)}, {sr(SX_)}, s56 offen {XNT if str(t) in NTT else ''} lds")
            else:
                if i == lo or i == 4:
                    A.e(f"""s_add_u32 m0, s{L8K}, {gslot(t) + XSZ + 1024*(i-4)}
                        s_lshl_b32 s56, s{KT}, 3""")
                    if i > 4: A.e(f"s_add_u32 s56, s56, {i-4}")
                    A.e(f"""s_mul_i32 s56, s56, s{WSTEP}
                        s_add_u32 s56, s56, s{WB}""")
                else: A.e(f"s_add_u32 m0, m0, 1024\ns_add_u32 s56, s56, s{WSTEP}")
                A.e(f"buffer_load_dwordx4 v{VW+(i&1)}, {sr(SW_)}, s56 offen {WNT if str(t) in NTT else ''} lds")
            gv.add(f"T{t}")
        if hi == 12 and t < 15:
            pm = 3 if ORD == 3 else 7
            A.e(f"""s_add_u32 s56, s{KT}, 1
                s_and_b32 s56, s56, {pm}""")
            if (t & pm) == pm: A.e(f"s_add_u32 s{KT}, s{KT}, {pm+1}")
            A.e(f"""s_and_b32 s{KT}, s{KT}, {15 - pm}
                s_or_b32 s{KT}, s{KT}, s56""")
    DEF = {int(x.split(":")[0]): int(x.split(":")[1]) for x in os.environ.get("DEF", DEFD).split(",") if x}
    marks = {}
    if O5: A.e(f"s_and_b32 s{KT}, s{KT}, {P1}")
    A.e(f"s_mov_b32 s95, s{KT}")
    issue(0)
    SG, GA, AGS, PI = 32, 64, 134, 97
    A.e(f"s_and_b32 s{KIND}, s{PHI}, 1" if ORD == 3 else f"s_lshr_b32 s{KIND}, s{HP}, 3")
    A.e(f"""s_cmp_eq_u32 s{KIND}, 0
        s_cselect_b32 s{SS_}, s8, s10
        s_cselect_b32 s{SS_+1}, s9, s11
        s_mov_b32 s{SS_+2}, 65536
        s_mov_b32 s{SS_+3}, 0x20000
        s_and_b32 s58, s{PHI}, 2
        s_xor_b32 s58, s58, s95
        s_xor_b32 s60, s58, 1
        s_cmp_lt_u32 s{LW}, 2
        s_cselect_b32 s56, s58, s60
        s_lshl_b32 s56, s56, 12
        s_and_b32 s57, s{LW}, 1
        s_lshl_b32 s57, s57, 11
        s_add_u32 s56, s56, s57
        s_lshl_b32 s57, s{LW}, 11
        s_add_u32 m0, s57, {MISC}
        v_mov_b32 v17, s58
        buffer_load_dwordx4 v{VL16}, {sr(SS_)}, s56 offen lds
        buffer_load_dwordx4 v{VL16}, {sr(SS_)}, s56 offen offset:1024 lds
        v_mov_b32 v18, s60
        v_cmp_gt_u32 vcc, 8, v0
        v_lshlrev_b32 v19, 4, v16
        v_lshrrev_b32 v20, 4, v0
        v_cndmask_b32 v17, v18, v17, vcc
        v_lshl_add_u32 v19, v17, 7, v19
        v_lshl_add_u32 v19, v20, 16, v19
        s_lshl_b32 s57, s{LW}, 10
        s_add_u32 s57, s57, {MISC + 8192}
        s_mov_b32 m0, s57""")
    srd(A, 60, "s20", "s21", 2048)
    A.e(f"""buffer_load_dwordx4 v19, s[60:63], 0 offen lds
        v_lshrrev_b32 v17, 5, v0
        v_lshl_add_u32 v{AGS}, v17, 4, s57""")
    srds()
    A.e(f"""v_and_b32 v16, 31, v0
        v_lshrrev_b32 v17, 5, v0
        v_bfe_u32 v18, v0, 1, 3
        v_xor_b32 v19, v17, v18
        v_lshlrev_b32 v19, 4, v19
        v_lshl_add_u32 v19, v16, 7, v19
        v_add_u32 v{AXS}, s{L4K}, v19
        v_xor_b32 v{AXS+1}, 32, v{AXS}
        v_xor_b32 v{AXS+2}, 64, v{AXS}
        v_xor_b32 v{AXS+3}, 0x60, v{AXS}
        v_bfe_u32 v18, v0, 2, 2
        v_lshl_add_u32 v19, v17, 3, v18
        v_lshlrev_b32 v19, 6, v19
        v_bfe_u32 v18, v0, 4, 1
        v_lshl_add_u32 v19, v18, 5, v19
        v_and_b32 v18, 3, v0
        v_bfe_u32 v20, v0, 1, 1
        v_and_b32 v21, 1, v0
        v_lshl_or_b32 v20, v21, 1, v20
        s_cmp_eq_u32 s{KIND}, 0
        s_cselect_b64 vcc, -1, 0
        v_cndmask_b32 v18, v18, v20, vcc
        v_lshl_add_u32 v19, v18, 3, v19
        v_add_u32 v{AWS}, {MISC}, v19
        v_lshlrev_b32 v{VS}, 2, v0
        v_mov_b32 v{GA}, 0
        v_mov_b32 v{GA+1}, 0
        s_lshr_b32 s{PI}, s58, 1
        s_lshl_b32 s{PSRC}, s{RB}, 1
        s_add_u32 s{PSRC}, s{PSRC}, s{KIND}
        s_lshl_b32 s{PSRC}, s{PSRC}, 17
        s_add_u32 s{PSRC}, s{PSRC}, {PART_OFF}""")
    st(A, "setup")
    issue(1)
    A.e("s_waitcnt vmcnt(12)")
    st(A, "g0")
    RL = SXF
    def lsignal(t, ph):
        A.e(f"""s_cmp_lg_u32 s{LW}, 0
            s_cbranch_scc1 {P}ls{t}""")
        signal(ph, 17)
        A.lab(f"{P}ls{t}")
    def side_compute(ks, tg):
        A.e(f"""s_cmp_eq_u32 s{KIND}, 1
            s_cbranch_scc1 {P}lv{tg}""")
        for k in ks: A.e(f"ds_read_b128 {v(SG+4*k,4)}, v{AGS} offset:{32*k}")
        A.e(f"s_waitcnt lgkmcnt({len(ks)})")
        for k in ks: A.e(mfma32(SA, SWF + 4*k, SXF + 4*k, "0" if k == 0 else SA))
        A.e("s_waitcnt lgkmcnt(0)")
        for k in range(4*ks[0], 4*ks[-1]+4): A.e(f"v_dot2_f32_bf16 v{GA+(k&1)}, v{SXF+k}, v{SG+k}, v{GA+(k&1)}")
        A.e(f"s_branch {P}lw{tg}")
        A.lab(f"{P}lv{tg}")
        A.e("s_waitcnt lgkmcnt(0)")
        for k in ks: A.e(mfma32(SA, SXF + 4*k, SWF + 4*k, "0" if k == 0 else SA))
        A.lab(f"{P}lw{tg}")
    def reduce_store():
        A.e(f"""s_lshl_b32 s56, s{RB}, 2
            s_lshr_b32 s57, s{PI}, 1
            s_add_u32 s56, s56, s57
            s_cmp_lg_u32 s{LW}, 0
            s_cbranch_scc1 {P}lgate""")
        if PBF:
            A.e("v_mov_b32 v20, 0x3f80\nv_mov_b32 v21, 1.0")
            for q in range(8):
                for i in range(8): A.e(f"v_dot2_f32_bf16 v{RL+i}, v{RL+8+4*q+(i>>1)}, v{20+(i&1)}, " + ("0" if q == 0 else f"v{RL+i}"))
            A.e("s_nop 0")
        else:
            for st_ in (32, 16, 8):
                for i in range(0, st_, 2): A.e(f"v_pk_add_f32 {v(RL+i,2)}, {v(RL+i,2)}, {v(RL+st_+i,2)}")
        A.e(f"""s_cmp_eq_u32 s{KIND}, 0
            s_cselect_b32 s57, {f2u(CSCALE)}, 1.0""")
        for i in range(8): A.e(f"v_mul_f32 v{RL+i}, s57, v{RL+i}")
        for i in range(4): A.e(f"v_cvt_pk_bf16_f32 v{SA+i}, v{RL+2*i}, v{RL+2*i+1}")
        A.e(f"""s_lshl_b32 s56, s56, 12
            s_lshl_b32 s57, s{KIND}, 11
            s_add_u32 s56, s56, s57
            s_and_b32 s57, s{PI}, 1
            s_lshl_b32 s57, s57, 10
            s_add_u32 s56, s56, s57
            s_add_u32 s56, s56, {KVA_OFF}
            buffer_store_dwordx4 {v(SA,4)}, v{VL16}, {sr(WS)}, s56 offen sc1
            s_branch {P}lsd""")
        A.lab(f"{P}lgate")
        A.e(f"""s_cmp_lg_u32 s58, 1
            s_cbranch_scc1 {P}lsd""")
        for i in range(1, 8): A.e(f"v_add_f32 v{RL}, v{RL}, v{RL+i}")
        A.e(f"""v_mov_b32 v{RL+1}, v{RL}
            s_lshl_b32 s56, s56, 7
            s_add_u32 s56, s56, {G_OFF}
            v_permlane32_swap_b32 v{RL}, v{RL+1}
            v_and_b32 v16, 31, v0
            v_add_f32 v{RL}, v{RL}, v{RL+1}
            v_mul_f32 v{RL}, {f2u(-LOG2E)}, v{RL}
            v_exp_f32 v{RL}, v{RL}
            v_lshlrev_b32 v16, 2, v16
            v_add_f32 v{RL}, 1.0, v{RL}
            v_rcp_f32 v{RL}, v{RL}
            s_nop 0
            buffer_store_dword v{RL}, v16, {sr(WS)}, s56 offen sc1""")
        A.lab(f"{P}lsd")
    for t in range(16):
        A.e("s_barrier")
        trace(A, t)
        ks = list(range(4*(t&1), 4*(t&1)+4)) if t < 4 else []
        if ks:
            A.e(f"""s_bitcmp{1 - (t>>1)}_b32 s{PHI}, 1
                s_cbranch_scc1 {P}lx{t}""")
            for k in ks: A.e(f"ds_read_b128 {v(SXF+4*k,4)}, v{AXS+(k&3)}")
            for k in ks:
                A.e(f"""ds_read_b64_tr_b16 {v(SWF+4*k,2)}, v{AWS} offset:{1024*k}
                    ds_read_b64_tr_b16 {v(SWF+4*k+2,2)}, v{AWS} offset:{1024*k+256}""")
            A.lab(f"{P}lx{t}")
            if t < 3:
                for k in range(4): A.e(f"v_add_u32 v{AXS+k}, {(gslot(t+1) - gslot(t)) & 0xffffffff}, v{AXS+k}")
        if t == TTAG:
            tag_issue(18, 17); marks.setdefault(TSA - 1, []).append(len(gv.q))
        if t == TSA: lsignal(t, 0)
        if t == TRED + 1 + min(RAFT, 1): lsignal(t, 1)
        if t == TPA:
            A.e(f"""s_and_b32 s58, s{PI}, 1
                s_add_u32 s58, s58, s{KIND}
                s_add_u32 s58, s58, s{LW}
                s_cmp_eq_u32 s{LW}, 0
                s_cselect_b32 s58, 0, s58
                v_and_b32 v16, 7, v0
                v_lshlrev_b32 v16, {FS+1 if ORD == 3 else FS}, v16
                s_and_b32 s57, s{HP}, {1 if ORD == 3 else 8}
                s_lshl_b32 s56, s{RB}, 4
                s_add_u32 s56, s56, s57
                s_lshl_b32 s56, s56, {FS}
                v_add_u32 v16, s56, v16
                s_cmp_ge_u32 s58, 2
                s_cbranch_scc1 {P}lta""")
            poll_issue(16, 0)
            A.lab(f"{P}lta")
            marks.setdefault(t, []).append(len(gv.q))
        if t == TPOLL:
            A.e(f"""v_lshlrev_b32 v16, {FS+2}, v0
                s_cmp_lg_u32 s{LW}, 0
                s_cbranch_scc1 {P}lt0""")
            poll_issue(16, 1, 17)
            A.lab(f"{P}lt0")
            marks.setdefault(t, []).append(len(gv.q))
        if t == TRED and not RAFT:
            reduce_store(); marks.setdefault(t, []).append(len(gv.q))
        if DEF.get(t - 1): issue(t + 1, 12 - DEF[t - 1], 12)
        if t + 2 < 16: issue(t + 2, 0, 12 - DEF.get(t, 0))
        if ks:
            A.e(f"""s_bitcmp{1 - (t>>1)}_b32 s{PHI}, 1
                s_cbranch_scc1 {P}lw{t}
                s_waitcnt lgkmcnt(4)""")
            side_compute(ks, t)
            if t == TST: A.e("s_nop 7")
        if t == TST and not NS_ & 2:
            A.e(f"""s_lshl_b32 s56, s{LW}, 3
                s_add_u32 s56, s56, s{PI}
                s_lshl_b32 s57, s56, 12
                s_add_u32 s57, s57, s{PSRC}
                v_add_f32 v{GA}, v{GA}, v{GA+1}""")
            if PBF:
                for i in range(8): A.e(f"v_cvt_pk_bf16_f32 v{SA+16+i}, v{SA+2*i}, v{SA+2*i+1}")
                for q in range(2): A.e(f"buffer_store_dwordx4 {v(SA+16+4*q,4)}, v{VL16}, {sr(WS)}, s57 offen offset:{2048*q} sc1")
            else:
                for q in range(4): A.e(f"buffer_store_dwordx4 {v(SA+4*q,4)}, v{VL16}, {sr(WS)}, s57 offen offset:{1024*q} sc1")
            A.e(f"""s_cmp_eq_u32 s{KIND}, 1
                s_cbranch_scc1 {P}lp1
                s_lshl_b32 s57, s{RB}, 5
                s_add_u32 s56, s56, s57
                s_lshl_b32 s56, s56, 8
                s_add_u32 s56, s56, {GP_OFF}
                buffer_store_dword v{GA}, v{VS}, {sr(WS)}, s56 offen sc1""")
            A.lab(f"{P}lp1")
            gv.add("S", 2 if PBF else 4); marks.setdefault(TSA - 1, []).append(len(gv.q))
        if t == TRED and RAFT == 1:
            reduce_store(); marks.setdefault(t + 1, []).append(len(gv.q))
        ncs = 0
        if t > TPOLL and (t == TPOLL + 1 or t == 15):
            cs = []
            if t == TPOLL + 1: cs.append((0, 3))
            if t == 15: cs.append((1, 2))
            for c, slot in cs:
                for hf in range(2):
                    A.e(f"""s_add_u32 m0, s{L8K}, {slot*32768 + hf*4096}
                        s_add_u32 s56, s{L8K}, {KVA_OFF + c*32768 + hf*4096}""")
                    for i in range(4): A.e(f"buffer_load_dwordx4 v{VL16}, {sr(WS)}, s56 offen offset:{1024*i} sc1 lds")
                gv.add('C', 8)
        if t == 15: st(A, "x1")
        for nm, tt in (("s", TS), ("v", TV)):
            if t == tt:
                A.e(f"s_branch {P}set{nm}")
                A.lab(f"{P}set{nm}_r")
        if t < 15: A.e(f"s_waitcnt vmcnt({min([gv.after(f'T{t+1}')] + [len(gv.q) - m for m in marks.get(t, [])])})")
        if t == TRED and RAFT == 2:
            reduce_store(); marks.setdefault(t + 1, []).append(len(gv.q))
        if t == TSA - 1: tag_get("l", 18, 17)
        if t == TPA and not NS_ & 4:
            A.e(f"""s_cmp_ge_u32 s58, 2
                s_cbranch_scc1 {P}lp2""")
            poll("a", 16, 0, True)
            st(A, "pla")
            A.e(f"""s_lshr_b32 s56, s{PI}, 1
                s_cmp_eq_u32 s58, 1
                s_cbranch_scc1 {P}lp3
                s_lshl_b32 s56, s56, 15
                s_and_b32 s57, s{PI}, 1
                s_lshl_b32 s57, s57, 11
                s_add_u32 s56, s56, s57
                s_add_u32 s56, s56, s{PSRC}""")
            for q in range(8):
                if PBF: A.e(f"buffer_load_dwordx4 {v(RL+8+4*q,4)}, v{VL16}, {sr(WS)}, s56 offen sc1")
                else: A.e(f"""buffer_load_dwordx4 {v(RL+8*q,4)}, v{VL16}, {sr(WS)}, s56 offen sc1
                    buffer_load_dwordx4 {v(RL+8*q+4,4)}, v{VL16}, {sr(WS)}, s56 offen offset:1024 sc1""")
                if q < 7: A.e("s_add_u32 s56, s56, 4096")
            A.e(f"s_branch {P}lp2")
            A.lab(f"{P}lp3")
            A.e(f"""s_lshl_b32 s57, s{RB}, 2
                s_add_u32 s56, s56, s57
                s_lshl_b32 s56, s56, 11
                s_add_u32 s56, s56, {GP_OFF}""")
            for q in range(8): A.e(f"buffer_load_dword v{RL+q}, v{VS}, {sr(WS)}, s56 offen offset:{256*q} sc1")
            A.lab(f"{P}lp2")
            marks.setdefault(TRED - (RAFT < 2), []).append(len(gv.q))
        if t == TPOLL:
            A.e(f"""s_cmp_lg_u32 s{LW}, 0
                s_cbranch_scc1 {P}pd0""")
            poll("0", 16, 1, True, t1=17)
            st(A, "pl0")
    st(A, "x2")
    A.e(f"""s_add_u32 s56, s{L4K}, {MISC}
        v_add_u32 v16, s56, v{VL16}
        s_setprio 0
        s_waitcnt vmcnt({8 if C1L else 0})""")
    st(A, "x3")
    A.e("s_barrier")
    st(A, "gend")
    A.e(f"""ds_read_b128 {v(QA,4)}, v16
        ds_read_b128 {v(QA+4,4)}, v16 offset:1024
        ds_read_b128 {v(QB+4,4)}, v16 offset:3072
        ds_read_b128 {v(QB,4)}, v16 offset:2048""")

    A.lab(f"{P}attn")
    if E('STOPG', 0): A.e(f"s_branch {P}end")
    st(A, "attn")
    VOO, VXW, VXO = ML, ML + 12, ML + 14
    VWO = [ML + 4, ML + 1, ML + 2, ML + 3]
    VO4 = [ML + 5, ML + 6, ML + 7, ML + 15]
    VW2, VH1 = 192, 191
    def la(off): return ([VL16, AC, AN][off >> 16], off & 0xffff)
    def rdK(addr, off): return [f"ds_read_b128 {v(KF+4*i,4)}, v{addr} offset:{off+1024*i}" for i in range(2)]
    def rdV(addr, off): return [f"ds_read_b128 {v(VF+4*i,4)}, v{addr} offset:{off+2048+1024*i}" for i in range(2)]
    cslot = lambda c: {0: 3, 1: 2, 2: 4}.get(c, c % 5)
    seq = [("A", j) for j in range(NB0)] + [("B", i) for i in range(9)] + [("A", j) for j in range(NB0, 64)]
    seq += [("A", 63), ("A", 63)]
    def taddr(n):
        k, j = seq[n]
        return la(cslot(j >> 3) * 32768 + (j & 7) * 4096) if k == "A" else (AB, j * 4096)
    def tq(n): return QA if seq[n][0] == "A" else QB
    def tc(n):
        k, j = seq[n]
        return "0" if k == "A" else (MU if j == 0 else ML if j == 8 else CM)
    def to(n): return (O, L) if seq[n][0] == "A" else (O2, L2)
    for x in rdK(*taddr(0)): A.e(x)
    srd(A, SW_, "s18", "s19", 2 * MB)
    A.e("s_waitcnt lgkmcnt(0)")
    A.e(mfma32(SB[0], KF, QA, "0"))
    A.e(mfma32(SB[0], KF + 4, QA + 4, SB[0]))
    for x in rdK(*taddr(1)): A.e(x)
    srd(A, SX_, "s12", "s13", 2 * MB)
    A.e(f"""v_mov_b32 v{TZ}, {NEG}
        v_mov_b32 v{TZ+1}, 0
        v_add_u32 v{AB}, s{ABS}, v{VL16}
        v_add_u32 v{VH1}, {64*4096}, v{VL16}
        s_waitcnt lgkmcnt(0)""")
    vm = VM()
    def cpiece(c, i):
        o = [f"s_add_u32 m0, s{W4K}, {cslot(c)*32768}", f"s_add_u32 s{CSRC}, s{W4K}, {KVA_OFF + c*32768}"] if i == 0 else []
        return (f"C{c}", o + [f"buffer_load_dwordx4 v{VL16}, {sr(WS)}, s{CSRC} offen offset:{i*1024} sc1 lds"])
    def wpiece(i):
        return ("W", [f"s_add_u32 m0, s{W1K}, {i*8192}", f"buffer_load_dwordx4 v{VH1 if i >= 6 else VL16}, {sr(WS)}, s{WS6+i%6} offen sc1 lds"])
    def upiece(u, k):
        o = [f"s_add_u32 m0, s{W4K}, {(u%5)*32768}"] if k == 0 else []
        return (f"U{u}", o + [f"buffer_load_dwordx4 v{VWO[k]}, {sr(SW_ if u < 12 else SX_)}, s{UO+(u&3)} offen offset:{k*1024} lds"])
    def warm(i):
        return ("Z", [f"buffer_load_dwordx4 v[252:255], v{VW2+(i&3)}, {sr(SW_ if i < 4 else SX_)}, s{WOS} offen offset:{(i&3)*1024} {ZNT}"])
    def oload(n, half):
        return ("O", [f"buffer_load_dwordx4 {v(OFR+4*n,4)}, v{VO4[n&3]}, {sr(WS)}, s{OQ+(n>>2)} offen sc1"])
    bg = {n: [] for n in range(73)}
    bv = {n: [] for n in range(73)}
    for i in range(4): bg[i].append(cpiece(2, i))
    for i in range(4): bg[E1N + i // 2].append(cpiece(3, i))
    for i in range(12): bg[N2 + i // 2].append(wpiece(i))
    bv[N2 + 5] += [f"v_and_b32 v{TZ}, 31, v0", f"v_lshlrev_b32 v{TZ}, 2, v{TZ}"]
    bg[N2 + 6].append(("G", [f"buffer_load_dword v{VG}, v{TZ}, {sr(WS)}, s{GSRC} offen sc1"]))
    for i in range(4): bg[26 + i // 2].append(cpiece(4, i))
    if WARM:
        for i in range(8): bg[28 + i // WPS].append(warm(i))
    for i in range(12): bg[39 + i // CPS].append(cpiece(5 + i // 4, i & 3))
    for i in range(4): bg[N5 + i].append(upiece(8, i))
    for i in range(4): bg[N6 + 3 + i].append(upiece(9, i))
    for i in range(8): bg[65 + i].append(upiece(10 + i // 4, i & 3))
    for i in range(32): bg[N6 + ((71 - N6) * i) // 31].append(oload(i, 1))
    for i in range(4):
        bv[4 + i] += [f"v_fma_f32 v{MU+r}, -v{ML+r}, s{MUS}, v{TZ}" for r in range(4*i, 4*i+4)]
        bv[12 + i] += [f"v_mov_b32 v{CM+r}, s{CMS}" for r in range(4*i, 4*i+4)] + [f"v_mov_b32 v{L2+i}, 0"]
    bv[24] += [f"v_lshrrev_b32 v{VW2}, 3, v0", f"v_bfe_u32 v{TB}, v0, 4, 2", f"v_lshlrev_b32 v{TB}, 1, v{TB}", f"v_and_b32 v{TB+1}, 7, v0",
               f"v_xor_b32 v{TB}, v{TB}, v{TB+1}", f"v_lshlrev_b32 v{TB}, 4, v{TB}", f"v_lshl_add_u32 v{VW2}, v{VW2}, 11, v{TB}"]
    bv[25] += [f"v_add_u32 v{VW2+k}, {k*15360}, v{VW2}" for k in range(1, 4)]
    bv[NB0 + 8] += [f"v_and_b32 v{VOO}, 15, v0", f"v_bfe_u32 v{VOO+1}, v0, 4, 1", f"v_lshrrev_b32 v{VOO+2}, 5, v0",
                    f"v_lshlrev_b32 v{VXO}, 11, v{VOO}", f"v_lshl_add_u32 v{VXO}, v{VOO+1}, 5, v{VXO}", f"v_lshl_add_u32 v{VXO}, v{VOO+2}, 4, v{VXO}",
                    f"v_lshlrev_b32 v{VOO}, 4, v{VOO}", f"v_lshl_add_u32 v{VOO}, v{VOO+1}, 10, v{VOO}", f"v_lshl_add_u32 v{VOO}, v{VOO+2}, 8, v{VOO}"]
    bv[NB0 + 9] += [f"v_mov_b32 v{VWO[k]}, v{VW2+k}" for k in range(4)]
    bv[44] += [f"v_add_u32 v{VO4[0]}, s{KH10}, v{VL16}", f"v_xor_b32 v{VO4[1]}, 0x400, v{VO4[0]}", f"v_add_u32 v{VO4[2]}, 0x1000, v{VO4[0]}", f"v_add_u32 v{VO4[3]}, 0x1000, v{VO4[1]}",
               f"v_add_u32 v{VXW}, s{W4K}, v{VL16}", f"v_xor_b32 v{VXW+1}, 0x4000, v{VXW}"]
    ntr = [0]
    def bar(wait=None, pre=None, post=None):
        if pre:
            A.e(f"s_cmp_eq_u32 s3, 4\ns_cbranch_scc1 {P}{pre}")
            A.lab(f"{P}{pre}_r")
        if wait is not None: A.e(f"s_waitcnt vmcnt({wait})")
        A.e("s_barrier")
        if post:
            A.e(f"s_cmp_eq_u32 s3, 4\ns_cbranch_scc1 {P}{post}")
            A.lab(f"{P}{post}_r")
        trace(A, 34 + ntr[0]); ntr[0] += 1
    tops = {
        E1N: lambda: bar(0, post="sig1"),
        N2: lambda: bar(vm.after("C3"), pre="poll1"),
        26: lambda: bar(vm.after("W")),
        39: lambda: bar(vm.after("C4")),
        N5: lambda: bar(0, post="sig2"),
        N6: lambda: bar(None, pre="poll2"),
        65: lambda: bar(vm.after("U8", "U9")),
    }
    def c1bar():
        A.e(f"""s_cmp_lt_u32 s3, 4
            s_cbranch_scc1 {P}c1
            s_waitcnt vmcnt({len(vm.q)})""")
        A.lab(f"{P}c1")
        A.e("s_barrier")
    if C1L: tops[6] = c1bar
    bnd = [0] + sorted(tops) + [73]
    lvl = {}
    for a_, b_ in zip(bnd, bnd[1:]):
        for n in range(a_, b_): lvl[n] = 3 - (PRL * (n - a_)) // (b_ - a_)
    pw = {}
    def step(n):
        par = n & 1
        S, Sn, Pc, Pp = SB[par], SB[1-par], PB[par], PB[1-par]
        q = []
        for tag, lines in bg[n]:
            if tag[0] in os.environ.get("DROP", "") or XP & 1: continue
            q += [(tag if x.startswith("buffer") else None, x) for x in lines]
        nfront = max(0, min(4, len(q) - 1))
        def B(slot):
            k = (1 if slot >= 4 - nfront else 0) if slot < 4 else len(q)
            for _ in range(k):
                tag, x = q.pop(0)
                if " lds" in x and A.l[-1].strip().startswith("s_add_u32 m0"): A.e("s_nop 0")
                A.e(x)
                if tag: vm.add(tag)
        oprev, lprev = to(max(n - 1, 0))
        for k_, n_ in ((1, N2), (2, N6)):
            if n == n_ - PRE:
                A.e(f"s_cmp_eq_u32 s3, 4\ns_cbranch_scc1 {P}pre{k_}")
                A.lab(f"{P}pre{k_}_r")
                pw[k_] = len(vm.q)
            if n == n_: pw[k_] = len(vm.q) - pw[k_]
        if n in tops and not (XP & 4): tops[n]()
        if PRL and (n == 0 or lvl[n] != lvl[n - 1]): A.e(f"s_setprio {lvl[n]}")
        k, j = seq[n + 1]
        if k == "B" and 2 <= j <= 7:
            A.e(f"s_cmp_eq_u32 s{I0}, {j}\ns_cbranch_scc1 {P}cm{j}")
            A.lab(f"{P}cm{j}_r")
        A.e(mfma32(Sn, KF, tq(n + 1), tc(n + 1)))
        A.e(rdK(*taddr(n + 2))[0]); B(0)
        for j in (0, 1, 2, 3): A.e(ex(S, j))
        if n > 0: A.e(mfma32(oprev, VF, Pp, "0" if n - 1 in (0, NB0) else oprev))
        A.e(rdV(*taddr(n))[0]); B(1)
        A.e(cv(Pc, S, 0)); A.e(cv(Pc, S, 1))
        for j in (4, 5, 6): A.e(ex(S, j))
        A.e(mfma32(Sn, KF + 4, tq(n + 1) + 4, Sn))
        A.e(rdK(*taddr(n + 2))[1]); B(2)
        A.e(ex(S, 7)); A.e(cv(Pc, S, 2)); A.e(ex(S, 8)); A.e(cv(Pc, S, 3))
        if n > 0: A.e(mfma32(oprev, VF + 4, Pp + 4, oprev))
        A.e(rdV(*taddr(n))[1]); B(3)
        A.e(ex(S, 9)); A.e(ex(S, 10)); A.e(cv(Pc, S, 4))
        if not XP & 2:
            for x in bv[n]: A.e(x)
        A.e(ex(S, 11)); A.e(ex(S, 12)); A.e(cv(Pc, S, 5)); A.e(ex(S, 13)); A.e(ex(S, 14)); A.e(ex(S, 15))
        if n > 0: A.e(smf(lprev, Pp))
        B(4)
        A.e("s_waitcnt lgkmcnt(0)")
        A.e(cv(Pc, S, 6)); A.e(cv(Pc, S, 7))
    def finalize(tag, which, o, l, tmp):
        A.e(f"s_mov_b32 s63, 0")
        A.lab(f"{P}norm{tag}")
        A.e(f"""v_add_f32 v{T0}, v{l}, v{l+1}
            v_rcp_f32 v{tmp}, v{T0}""")
        if which == 0:
            A.e(f"""s_waitcnt vmcnt({vm.after('G')})
                v_sub_f32 v{tmp+1}, 1.0, v{VG}
                v_mul_f32 v{tmp}, v{tmp}, v{tmp+1}""")
        else:
            A.e(f"s_nop 0\nv_mul_f32 v{tmp}, v{tmp}, v{VG}")
        for i in range(8): A.e(f"v_pk_mul_f32 {v(o+2*i,2)}, {v(o+2*i,2)}, {v(tmp,2)} op_sel_hi:[1,0]")
        A.e(f"v_pk_add_f32 {v(tmp+2,2)}, {v(o,2)}, {v(o+2,2)}")
        for i in range(2, 8): A.e(f"v_pk_add_f32 {v(tmp+2,2)}, {v(tmp+2,2)}, {v(o+2*i,2)}")
        A.e(f"""v_sub_f32 v{tmp+2}, v{tmp+2}, v{tmp+2}
            v_fma_f32 v{tmp+2}, v{tmp+3}, v{tmp+2}, v{T0}
            v_cmp_le_f32 vcc, {f2u(2.0**-64)}, v{tmp+2}
            s_mov_b64 s[56:57], vcc
            v_cmp_ge_f32 vcc, {f2u(2.0**64)}, v{tmp+2}""")
        for i in range(8): A.e(f"v_cvt_pk_bf16_f32 v{tmp+i}, v{o+2*i}, v{o+2*i+1}")
        A.e(f"""s_and_b64 vcc, vcc, s[56:57]
            s_cmp_eq_u64 vcc, -1
            s_cselect_b32 s62, 1, s63
            s_cmp_eq_u32 s62, 0
            {"s_nop 0" if XP else f"s_cbranch_scc1 {P}slow{tag}"}
            buffer_store_dwordx4 {v(tmp,4)}, v{VOO}, {sr(WS)}, s{OSTB if which == 0 else OSTA} offen sc1
            buffer_store_dwordx4 {v(tmp+4,4)}, v{VOO}, {sr(WS)}, s{OSTB if which == 0 else OSTA} offen offset:512 sc1""")
        vm.add("S" + tag, 2)
    for n in range(73):
        step(n)
        if n == NB0 + 10 and not (XP & 8): finalize("B", 0, O2, L2, TB)
    A.e(mfma32(O, VF, PB[0], O))
    A.e("s_nop 0")
    A.e(mfma32(O, VF + 4, PB[0] + 4, O))
    A.e(smf(L, PB[0]))
    for h in range(8): A.e(f"s_sub_u32 s{OQ+h}, s{OQ+h}, 0x10000")
    A.e("s_setprio 0")
    st(A, "aend")
    if XP & 31: A.e(f"s_branch {P}end")
    AWO, OAC = 16, 64
    WFO = [32, 48]
    TA = SB[0]
    A.e(f"""v_lshrrev_b32 v20, 4, v0
        v_bfe_u32 v21, v0, 2, 2
        v_and_b32 v22, 1, v20
        v_lshl_add_u32 v22, v22, 2, v21
        v_lshrrev_b32 v23, 1, v20
        v_lshl_add_u32 v23, v23, 4, v22
        v_lshlrev_b32 v23, 7, v23
        v_and_b32 v20, 3, v0
        v_lshl_add_u32 v23, v20, 3, v23
        s_lshr_b32 s56, s3, 2
        s_lshl_b32 s56, s56, 12
        s_add_u32 s56, s56, {3*32768}
        v_add_u32 v23, s56, v23
        v_lshrrev_b32 v22, 1, v22""")
    for nb in range(4):
        A.e(f"v_xor_b32 v20, {nb}, v22\nv_lshl_add_u32 v{AWO+nb}, v20, 5, v23")
    finalize("A", 1, O, L, TA)
    st(A, "afin")

    def oreads(buf, i):
        return [f"ds_read_b64_tr_b16 {v(WFO[buf]+4*nb+2*jh,2)}, v{AWO+nb} offset:{i*8192+jh*1024}" for nb in range(4) for jh in range(2)]
    if CHO:
        for nb in range(4):
            for s_ in range(2):
                for jh in range(2): A.e(f"ds_read_b64_tr_b16 {v(WFO[0]+8*nb+4*s_+2*jh,2)}, v{AWO+nb} offset:{s_*8192+jh*1024}")
            if nb == 2: A.e("s_waitcnt lgkmcnt(8)")
    else:
        for r in oreads(0, 0): A.e(r)
    oidx = [i for i, t in enumerate(vm.q) if t == "O"] or [0] * 32
    def emit(x):
        for l_ in x[1]:
            if " lds" in l_ and A.l[-1].strip().startswith("s_add_u32 m0"): A.e("s_nop 0")
            A.e(l_)
        vm.add(x[0])
    def y1():
        st(A, "y1a")
        A.e("s_waitcnt vmcnt(0)\ns_barrier")
        st(A, "y1")
        A.e(f"""s_cmp_lg_u32 s3, 4
            s_cbranch_scc1 {P}y1""")
        signal(4, AN)
        A.lab(f"{P}y1")
    def ypre():
        A.e(f"""s_cmp_lg_u32 s3, 4
            s_cbranch_scc1 {P}yp
            v_and_b32 v20, 15, v0
            v_lshlrev_b32 v20, {FS}, v20
            s_lshl_b32 s56, s{RB2}, {FS+4}
            v_add_u32 v20, s56, v20""")
        poll_issue(20, 4)
        A.lab(f"{P}yp")
        pw[3] = len(vm.q)
    def ypoll():
        st(A, "y3a")
        A.e(f"""s_cmp_lg_u32 s3, 4
            s_cbranch_scc1 {P}pd3
            s_waitcnt vmcnt({len(vm.q) - pw[3]})""")
        poll("3", 20, 4, True, slp=SLP3)
    def ybar(*tags):
        if tags: A.e(f"s_waitcnt vmcnt({vm.after(*tags)})")
        A.e("s_barrier")
    pre = {j: [] for j in range(32)}
    obg = {j: [] for j in range(32)}
    pre[3].append(y1)
    pre[JP].append(ypoll)
    for j in sorted({7, 11, JP}):
        pre[j].append((lambda: ybar("U12", "U13")) if j == 11 else ybar)
    if DIAG: pre[JP].append(lambda: st(A, "y3"))
    pre[JV].append(lambda: ybar("U14", "U15"))
    if os.environ.get("DIAG") == "1": pre[16].append(lambda: st(A, "y4"))
    for k in range(8): obg[3 + k // 2].append(upiece(12 + k // 4, k & 3))
    nl = 0
    for j in range(JP, 32):
        c = 0
        while not (XP & 128) and nl < 32 and c < (LPS if j < 16 else 2) and (nl // 4 < j // 2 if CHO else nl // 2 < j):
            obg[j].append((f"OA{nl}", oload(nl, 0)[1])); nl += 1; c += 1
    for k in range(4): obg[7 + k].append(upiece(14, k))
    for k in range(4): obg[JU + k].append(upiece(15, k))
    def wrd(J, nb):
        return [f"ds_read_b64_tr_b16 {v(WFO[0]+8*nb+4*s_+2*jh,2)}, v{AWO+nb} offset:{(2*(J&1)+s_)*8192+jh*1024}" for s_ in range(2) for jh in range(2)]
    def wadv(J, nb):
        u = 8 + J // 2
        return f"v_add_u32 v{AWO+nb}, {((u % 5 - (u-1) % 5) * 32768) & 0xffffffff}, v{AWO+nb}"
    if CHO:
      for J in range(16):
        groups = [0, 1, 2, 3]
        for g, nb in enumerate(groups):
            j = 2 * J + (g >> 1)
            if g == 0:
                w = min(60, len(vm.q) - 1 - oidx[7]) if J == 0 else vm.after(f"OA{4*(J-8)+3}") if J >= 8 else None
                A.e("s_waitcnt lgkmcnt(4)" + ("" if w is None else f" vmcnt({w})"))
            if g == 2: A.e("s_waitcnt lgkmcnt(4)" if J < 15 else "s_waitcnt lgkmcnt(0)")
            if g in (0, 2):
                if j == JP - PRE: ypre()
                b = list(obg[j])
            Jn, nn = (J, 3) if g == 0 else (J + 1, g - 1)
            rd = wrd(Jn, nn) if Jn < 16 and not (J == 0 and g == 0) else []
            if rd and Jn % 2 == 0: A.e(wadv(Jn, nn))
            fo = (0, 1) if nb % 2 == 0 else (1, 0)
            k = 0
            for f in fo:
                for s_ in ((0, 1) if k == 0 else (1, 0)):
                    d = OAC + 4 * (f * 4 + nb)
                    A.e(mfma16(d, WFO[0] + 8*nb + 4*s_, OFR + 16*(J & 7) + 8*s_ + 4*f, "0" if (J == 0 and k % 2 == 0) else d))
                    if k == 0 and g in (1, 3):
                        for fn in pre[j]: fn()
                    if rd: A.e(rd[k])
                    if k % 2 == 1 and b and (g in (1, 3) or not pre[j]): emit(b.pop(0))
                    k += 1
            if g in (1, 3):
                while b: emit(b.pop(0))
      A.e("s_nop 1")
    else:
      for j in range(32):
          u, i = 8 + j // 4, j & 3
          q, buf = u & 3, i & 1
          order = [(nb, f if nb % 2 == 0 else 1 - f) for nb in range(4) for f in range(2)]
          if j == 31: order = [(nb, 1) for nb in range(4)] + [(3 - nb, 0) for nb in range(4)]
          ms = [mfma16(OAC + 4*(f*4+nb), WFO[buf]+4*nb, OFR+32*q+8*i+4*f, "0" if j == 0 else OAC + 4*(f*4+nb)) for nb, f in order]
          w = min(60, len(vm.q) - 1 - oidx[7]) if j == 0 else vm.after(f"OA{2*(j-16)+1}") if j >= 16 else None
          lg = 0 if ((pre[j] and not MID) or j == 31) else 4
          A.e(f"s_waitcnt lgkmcnt({lg})" if w is None else f"s_waitcnt lgkmcnt({lg}) vmcnt({w})")
          if i == 3 and u < 15:
              dl = ((u+1) % 5 - u % 5) * 32768
              for nb in range(4): A.e(f"v_add_u32 v{AWO+nb}, {dl & 0xffffffff}, v{AWO+nb}")
          if j == JP - PRE: ypre()
          if not MID:
              for f in pre[j]: f()
          rd = oreads(1 - buf, (i + 1) & 3) if j < 31 else []
          b = list(obg[j])
          for k in range(8):
              if k == 4 and lg: A.e("s_waitcnt lgkmcnt(4)")
              A.e(ms[k])
              if k == 4 and MID:
                  for f in pre[j]: f()
              if rd: A.e(rd[k])
              if k % 2 == 1 and b and (k > 4 or not pre[j] or not MID): emit(b.pop(0))
          while b: emit(b.pop(0))
    st(A, "oend")
    if XP & 256: A.e(f"s_branch {P}end")
    srd(A, SX_, "s22", "s23", 4 * MB)
    for nb in range(4): A.e(f"ds_write_b128 v{VXW}, {v(OAC+16+4*nb,4)} offset:{32768+1024*nb}")
    A.e("s_waitcnt lgkmcnt(0)\ns_barrier")
    for nb in range(4): A.e(f"ds_read_b128 {v(32+4*nb,4)}, v{VXW+1} offset:{32768+1024*nb}")
    for a in range(2):
        A.e(f"s_waitcnt lgkmcnt({2 - 2*a})")
        for i in range(4): A.e(f"v_pk_add_f32 {v(OAC+8*a+2*i,2)}, {v(OAC+8*a+2*i,2)}, {v(32+8*a+2*i,2)}")
        for i in range(4): A.e(f"v_cvt_pk_bf16_f32 v{48+4*a+i}, v{OAC+8*a+2*i}, v{OAC+8*a+2*i+1}")
        A.e(f"""s_nop 0
            v_permlane16_swap_b32 v{48+4*a}, v{48+4*a+2}
            v_permlane16_swap_b32 v{48+4*a+1}, v{48+4*a+3}
            buffer_store_dwordx4 {v(48+4*a,4)}, v{VXO}, {sr(SX_)}, s{OUTS} offen offset:{64*a} {OFL}""")
    A.lab(f"{P}end")
    if E('HT', 0):
        A.e(f"""s_waitcnt vmcnt(0)
            s_memrealtime s[72:73]
            s_memtime s[76:77]
            s_waitcnt lgkmcnt(0)
            s_cmp_lg_u32 s3, 4
            s_cbranch_scc1 {P}end2
            s_mov_b64 exec, 1
            v_mov_b32 v0, 0
            s_not_b32 s56, s70
            v_mov_b32 v1, s56
            v_mov_b32 v2, s70
            v_mov_b32 v3, s72
            s_sub_u32 s76, s76, s74
            v_mov_b32 v4, s76
            buffer_atomic_umax v1, v0, {sr(DBG)}, 0 offen offset:8 sc1
            buffer_atomic_umax v2, v0, {sr(DBG)}, 0 offen offset:12 sc1
            buffer_atomic_umax v3, v0, {sr(DBG)}, 0 offen offset:16 sc1
            buffer_atomic_umax v4, v0, {sr(DBG)}, 0 offen offset:20 sc1""")
    stamp_flush(A, 0)
    trace_flush(A)
    A.lab(f"{P}end2")
    A.e("s_endpgm")

    AX, AW, VKO = 16, 18, VG
    XF, WF = [32, 48], 64
    ACC = 128
    A.lab(f"{P}compute")
    A.e(f"""v_and_b32 v8, 15, v0
        v_lshrrev_b32 v9, 4, v0
        v_bfe_u32 v10, v0, 1, 3
        s_and_b32 s56, s3, 1
        s_lshl_b32 s56, s56, 13
        v_xor_b32 v11, v9, v10
        v_lshlrev_b32 v11, 4, v11
        v_lshl_add_u32 v11, v8, 7, v11
        v_add_u32 v{AX}, s56, v11
        v_xor_b32 v{AX+1}, 64, v{AX}
        v_bfe_u32 v12, v0, 2, 2
        v_and_b32 v13, 3, v0
        v_lshl_add_u32 v14, v9, 3, v12
        v_lshlrev_b32 v14, 7, v14
        v_lshl_add_u32 v14, v13, 3, v14
        v_bfe_u32 v15, v0, 3, 2
        s_and_b32 s56, s3, 2
        v_xor_b32 v15, s56, v15
        v_lshl_add_u32 v14, v15, 5, v14
        v_add_u32 v{AW}, {XSZ}, v14
        v_xor_b32 v{AW+1}, 32, v{AW}
        v_and_b32 v8, 0x33, v0
        v_bfe_u32 v9, v0, 2, 1
        v_bfe_u32 v10, v0, 3, 1
        v_lshl_or_b32 v8, v9, 3, v8
        v_lshl_or_b32 v8, v10, 2, v8
        v_lshlrev_b32 v20, 4, v8
        s_waitcnt lgkmcnt(0)""")
    srds()
    A.e(f"""v_mov_b32 v21, 0
        s_or_b32 s56, s2, s3
        s_cmp_lg_u32 s56, 0
        s_cbranch_scc1 {P}ntag
        s_memrealtime s[56:57]
        s_waitcnt lgkmcnt(0)
        s_mul_i32 s57, s57, 0x9e3779b1
        s_xor_b32 s56, s56, s57
        s_or_b32 s56, s56, 1
        v_mov_b32 v22, s56
        buffer_store_dword v22, v21, {sr(DBG)}, 0 offen sc1""")
    A.lab(f"{P}ntag")
    if PFC:
        A.e("s_getpc_b64 s[58:59]")
        A.lab(f"{P}pcref")
        A.e(f"""s_sub_u32 s58, s58, {P}pcref-{name}
            s_subb_u32 s59, s59, 0
            s_lshl_b32 s56, s3, 5
            s_add_u32 s56, s56, s{IDXS}
            s_lshl_b32 s56, s56, 10
            v_add_u32 v28, s56, v{VL16}
            v_min_u32 v28, {P}last-{name}-16, v28
            s_cmp_ge_u32 s56, {P}last-{name}
            s_cbranch_scc1 {P}npc
            global_load_dwordx4 v[96:99], v28, s[58:59]""")
        A.lab(f"{P}npc")
    zero(24, 4)
    for nm, fn in (("s", setup_s), ("v", setup_v)):
        A.lab(f"{P}set{nm}")
        fn()
        A.e(f"""s_cmp_ge_u32 s3, 4
            s_cbranch_scc1 {P}set{nm}_r""")
        if nm == "s":
            for i in range(8): A.e(mfma32(ACC + 16*i, 24, 24, "0"))
    A.e(f"""v_mov_b32 v{VKO}, v20
        s_mov_b32 s58, 0
        s_mov_b32 s59, 0
        s_mov_b32 s60, {(-ST) & 0xffffffff}
        s_mov_b32 s61, {2*ST}
        s_mov_b32 s63, {f2u(CSCALE)}
        s_and_b32 s57, s{HEAD}, 24
        s_add_u32 s92, s{HEAD}, {4*GROT}
        s_and_b32 s92, s92, 7
        s_or_b32 s92, s92, s57
        s_lshl_b32 s92, s92, 6
        s_add_u32 s92, s92, s{RT}
        s_lshl_b32 s92, s92, 12
        s_add_u32 s92, s92, {KVB_OFF}
        s_add_u32 s93, s92, 4096
        s_add_u32 s96, s{HEAD}, {6*GROT}
        s_and_b32 s96, s96, 7
        s_or_b32 s96, s96, s57
        s_lshl_b32 s96, s96, 6
        s_add_u32 s96, s96, s{RT}
        s_lshl_b32 s96, s96, 12
        s_add_u32 s96, s96, {KVB_OFF}
        s_add_u32 s97, s96, 4096
        s_nop 0""")
    def rx(buf, ks, mb): return f"ds_read_b128 {v(XF[buf]+4*mb,4)}, v{AX+ks} offset:{mb*2048}"
    def rw(nb, ks, jh): return f"ds_read_b64_tr_b16 {v(WF+4*nb+2*jh,2)}, v{AW+(nb&1)} offset:{(nb>>1)*8192+ks*4096+jh*512}"
    st(A, "setup")
    A.e("s_barrier")
    st(A, "g0")
    XR, WR_ = 32, 64
    def gx(mb): return [f"ds_read_b128 {v(XR+8*mb+4*ks,4)}, v{AX+ks} offset:{mb*2048}" for ks in range(2)]
    def gw(D): return [f"ds_read_b64_tr_b16 {v(WR_+16*(D&1)+8*n2+4*ks+2*jh,2)}, v{AW+n2} offset:{D*8192+ks*4096+jh*512}" for n2 in range(2) for ks in range(2) for jh in range(2)]
    acc = lambda mb, nb: ACC + 4 * (nb * 4 + mb)
    def gm(D, chain=True):
        o = []
        for mb in range(4):
            for c in range(2):
                for e_ in range(2):
                    n2, ks = (c ^ (mb & 1), e_ ^ c) if chain else (e_, c)
                    d = acc(mb, 2*D + n2)
                    x, w = XR + 8*mb + 4*ks, WR_ + 16*(D&1) + 8*n2 + 4*ks
                    o.append(mfma16(d, x, w, d) if D == 3 else mfma16(d, w, x, d))
        return o
    def gtile(last, fill=None):
        for D in range(4):
            post = {k: [] for k in range(16)}
            rd = (gx(3) + gw(1)) if D == 0 else gw(D + 1) if D < 3 else [] if last else gw(0) + gx(0) + gx(1) + gx(2)
            for k, r in enumerate(rd): post[k].append(r)
            if D == 0:
                post[3].append("s_waitcnt lgkmcnt(4)"); post[11].append("s_waitcnt lgkmcnt(4)")
                if not last: post[12] += ["s_cmp_eq_u32 s58, 0", "s_cselect_b32 s62, s61, s60"]
            if D == 1 and not last:
                post[8] += [f"v_add_u32 v{AX}, s62, v{AX}", f"v_add_u32 v{AX+1}, s62, v{AX+1}"]
                post[9] += ["s_add_u32 s58, s58, s62", "s_add_u32 s59, s59, 1"]
                post[10].append("s_cmp_lg_u32 s59, 15")
            if D == 2 and not last:
                post[8] += [f"v_add_u32 v{AW}, s62, v{AW}", f"v_add_u32 v{AW+1}, s62, v{AW+1}"]
                post[GB2] += ["s_waitcnt lgkmcnt(0)", "s_barrier"]
            elif D < 3: post[14].append("s_waitcnt lgkmcnt(0)")
            elif not last: post[14].append("s_waitcnt lgkmcnt(4)")
            for k, m in enumerate(gm(D, not (last and D > 0 and LCH == 0))):
                A.e(m)
                for x_ in post[k]: A.e(x_)
                if last and 16 * D + k == 31: st(A, "x2")
                if last and 16 * D + k == HB:
                    st(A, "x3")
                    A.e("s_waitcnt lgkmcnt(0)\ns_barrier")
                if fill:
                    n_ = 2 - len(post[k])
                    while n_ > 0 and fill and fill[0][0] <= 16 * D + k:
                        x_ = fill.pop(0)[1]
                        A.e(x_); n_ -= 2 if ("permlane" in x_ or "ds_write" in x_) else 1
    for r in gw(0) + gx(0) + gx(1) + gx(2): A.e(r)
    A.e("s_waitcnt lgkmcnt(4)")
    A.raw(".p2align 6")
    A.lab(f"{P}g1")
    gtile(False)
    A.e(f"s_cbranch_scc1 {P}g1")
    st(A, "x1")
    T = 21
    def blk(rtl, g, tr=False):
        return [[acc(2*rtl+a, 2*g+b) for b in range(2)] for a in range(2)] if tr else [[acc(2*rtl+b, 2*g+a) for b in range(2)] for a in range(2)]
    fill = [(10, "s_waitcnt vmcnt(0)"), (12, f"s_add_u32 s56, s{W4K}, {MISC}"), (12, "s_mov_b32 s62, s63"), (13, f"v_add_u32 v{T0}, s56, v{VL16}")]
    fill += [(20, x) for x in pack_list(96, blk(1, 0), False) + [f"ds_write_b128 v{T0}, {v(96,4)}", f"ds_write_b128 v{T0}, {v(100,4)} offset:1024"]]
    fill += [(20, x) for x in pack_list(QA, blk(0, 0), False)]
    fill += [(36, x) for x in pack_list(104, blk(1, 1), False) + [f"ds_write_b128 v{T0}, {v(104,4)} offset:2048", f"ds_write_b128 v{T0}, {v(108,4)} offset:3072"]]
    qb0 = pack_list(QB, blk(0, 1), False)
    fill += [(40, x) for x in qb0]
    for rtl in range(2):
        tk = 64 + 8 * rtl
        so = "s92" if rtl == 0 else "s93"
        fill += [(52, x) for x in pack_list(tk, blk(rtl, 2), 2 if (rtl == 0 and not PKM) else 1) +
                 [f"buffer_store_dwordx4 {v(tk,4)}, v{VKO}, {sr(WS)}, {so} offen sc1", f"buffer_store_dwordx4 {v(tk+4,4)}, v{VKO}, {sr(WS)}, {so} offen offset:1024 sc1"]]
    gtile(True, fill)
    st(A, "gend")
    assert len(fill) >= 8
    while fill: A.e(fill.pop(0)[1])
    for rtl in range(2):
        tv = ACC + 8 * rtl
        pack(tv, blk(rtl, 3, True), False)
        so = "s96" if rtl == 0 else "s97"
        A.e(f"""buffer_store_dwordx4 {v(tv,4)}, v{VL16}, {sr(WS)}, {so} offen offset:2048 sc1
            buffer_store_dwordx4 {v(tv+4,4)}, v{VL16}, {sr(WS)}, {so} offen offset:3072 sc1""")
    A.e(f"s_branch {P}attn")

    if XP & 4:
        for l in ("sig1", "sig2", "poll1", "poll2"): A.lab(f"{P}{l}_r")
    if XP & 8: A.lab(f"{P}normB")
    for ph in (1, 2):
        A.lab(f"{P}sig{ph}")
        signal(ph + 1, TZ + 1)
        A.e(f"s_branch {P}sig{ph}_r")
    A.lab(f"{P}pre1")
    A.e(f"""v_lshrrev_b32 v{TZ+1}, 4, v0
        v_min_u32 v{TZ+1}, 2, v{TZ+1}
        v_sub_u32 v{TZ+1}, s{RB}, v{TZ+1}
        v_max_i32 v{TZ+1}, 0, v{TZ+1}
        v_lshlrev_b32 v{TZ+1}, 4, v{TZ+1}
        v_and_or_b32 v{TZ+1}, v0, 15, v{TZ+1}
        v_lshlrev_b32 v{TZ+1}, {FS}, v{TZ+1}""")
    poll_issue(TZ + 1, 2)
    A.e(f"s_branch {P}pre1_r")
    A.lab(f"{P}poll1")
    A.e(f"s_waitcnt vmcnt({pw[1]})")
    poll("1", TZ + 1, 2, True)
    A.e(f"s_branch {P}poll1_r")
    A.lab(f"{P}pre2")
    A.e(f"""v_and_b32 v{TZ+1}, 15, v0
        v_lshlrev_b32 v{TZ+1}, {FS}, v{TZ+1}
        s_lshl_b32 s56, s{RB2}, {FS+4}
        v_add_u32 v{TZ+1}, s56, v{TZ+1}""")
    poll_issue(TZ + 1, 3)
    A.e(f"s_branch {P}pre2_r")
    A.lab(f"{P}poll2")
    A.e(f"s_waitcnt vmcnt({pw[2]})")
    poll("2", TZ + 1, 3, True)
    A.e(f"s_branch {P}poll2_r")
    for j in range(2, 8):
        A.lab(f"{P}cm{j}")
        zero(CM, 16)
        A.e(f"s_nop 0\ns_branch {P}cm{j}_r")

    def slow(tag, q, o, l, kf, vf, S, C, Pp, M, setup):
        A.lab(f"{P}slow{tag}")
        A.e("s_waitcnt vmcnt(0)")
        A.e(setup)
        zero(o, 16); zero(l, 4)
        A.e(f"""v_mov_b32 v{M}, {NEG}
            s_mov_b32 s99, 0""")
        A.lab(f"{P}spass{tag}")
        A.e("s_mov_b32 s100, s98")
        A.lab(f"{P}stile{tag}")
        A.e(f"""s_lshl_b32 s56, s100, 12
            s_add_u32 s56, s56, s101
            buffer_load_dwordx4 {v(kf,4)}, v{VL16}, {sr(WS)}, s56 offen sc1
            buffer_load_dwordx4 {v(kf+4,4)}, v{VL16}, {sr(WS)}, s56 offen offset:1024 sc1
            buffer_load_dwordx4 {v(vf,4)}, v{VL16}, {sr(WS)}, s56 offen offset:2048 sc1
            buffer_load_dwordx4 {v(vf+4,4)}, v{VL16}, {sr(WS)}, s56 offen offset:3072 sc1
            s_cmp_eq_u32 s100, s96
            s_cselect_b32 s56, {NEG}, 0
            s_cmp_eq_u32 s100, s97
            s_cselect_b32 s57, {NEG}, 0
            v_mov_b32 v{M+2}, s56
            v_mov_b32 v{M+3}, s57""")
        for r in range(16):
            A.e(f"""v_cmp_le_i32 vcc, {keyl(r)}, v{VD}
                s_nop 1
                v_cndmask_b32 v{C+r}, v{M+2}, v{M+3}, vcc""")
        A.e("s_waitcnt vmcnt(0)\ns_nop 0")
        A.e(mfma32(S, kf, q, C))
        A.e(mfma32(S, kf + 4, q + 4, S))
        A.e(f"""s_nop 7
            s_nop 7
            s_cmp_eq_u32 s99, 0
            s_cbranch_scc0 {P}sp2{tag}""")
        for r in range(16): A.e(f"v_max_f32 v{M}, v{M}, v{S+r}")
        A.e(f"s_branch {P}snext{tag}")
        A.lab(f"{P}sp2{tag}")
        for r in range(16): A.e(f"v_sub_f32 v{S+r}, v{S+r}, v{M}")
        for r in range(16): A.e(ex(S, r))
        A.e("s_nop 0")
        for i in range(8): A.e(cv(Pp, S, i))
        A.e("s_nop 1")
        A.e(mfma32(o, vf, Pp, o))
        A.e(mfma32(o, vf + 4, Pp + 4, o))
        A.e(smf(l, Pp))
        A.e("s_nop 7\ns_nop 7")
        A.lab(f"{P}snext{tag}")
        A.e(f"""s_add_u32 s100, s100, 1
            s_cmp_le_u32 s100, s95
            s_cbranch_scc1 {P}stile{tag}
            s_cmp_eq_u32 s99, 0
            s_cbranch_scc0 {P}sdone{tag}
            v_mov_b32 v{M+1}, v{M}
            s_nop 1
            v_permlane32_swap_b32 v{M}, v{M+1}
            s_nop 1
            v_max_f32 v{M}, v{M}, v{M+1}
            s_mov_b32 s99, 1
            s_branch {P}spass{tag}""")
        A.lab(f"{P}sdone{tag}")
        A.e(f"""s_mov_b32 s63, 1
            s_branch {P}norm{tag}""")
    slow("B", QB, O2, L2, 196, 204, 212, 228, 244, 148,
         f"""s_lshl_b32 s101, s{HEADB}, 18
            s_add_u32 s101, s101, {KVB_OFF}
            s_sub_i32 s97, s{RT}, 8
            s_max_i32 s98, s97, 0
            s_mov_b32 s95, s{RT}
            s_mov_b32 s96, s{RT}""")
    slow("A", QA, O, L, KF, VF, SB[0], SB[1], PB[0], ML + 8,
         f"""s_mov_b32 s101, {KVA_OFF}
            s_mov_b32 s98, 0
            s_mov_b32 s95, 63
            s_mov_b32 s96, -1
            s_mov_b32 s97, -1""")
    A.raw(".p2align 4")
    A.lab(f"{P}last")
    A.e("s_endpgm")
    return kernel_desc(name, 256, 102)

DOC = """;
"""
if __name__ == "__main__":
    ref = open(f"cdna_kernels/{NAME}.s.ref").read().split("\n")
    hdr = [l for l in ref if l.startswith(";") and "@launch" not in l]
    A = Asm()
    d = gen(A, NAME + "_kernel")
    out = "\n".join(hdr) + "\n" + f"; @launch grid=(256,1,1) block=(512,1,1) lds={LDS}\n"
    out += DOC
    out += '.amdgcn_target "amdgcn-amd-amdhsa--gfx950"\n.text\n' + A.text() + '.section .rodata,"a"\n' + d
    path = sys.argv[1] if len(sys.argv) > 1 else f"cdna_kernels/{NAME}.s"
    open(path, "w").write(out)
    print("wrote", path, len(out))
```

```python
from common import *
import sys
E = lambda k, d: int(os.environ.get(k, d))
STAG = 4
PART_OFF = 0
TPA = E('TPA', 8)
WARM = E('WARM', 1)
E1N = E('E1N', 12)
TPOLL = E('TPOLL', 14)
LPRIO = E('LPRIO', 3)
LPS = E('LPS', 2)
ROT = E('ROT', 0)
SLP = E('SLP', 12)
PFC = E('PFC', 0)
TOUCH = E('TOUCH', 0)
ZIG = E('ZIG', 3)
SFIRST = E('SFIRST', 0)
OFL = os.environ.get('OFL', '')
XP = E('XP', 0)
JP = E('JP', 11)
JU = E('JU', 13)
JV = E('JV', 21)
SLP3 = E('SLP3', 4)
PRL = E('PRL', 2)
ORD = E('ORD', 3)
SPRO = E('SPRO', 1)
TRED = E('TRED', 9)
TTAG = E('TTAG', 4)
RAFT = E('RAFT', 2)
TST = E('TST', 3)
TSA = E('TSA', TST + 2)
PRE = E('PRE', 2)
FS = E('FS', 4)
SPLIT = E('SPLIT', 1)
TS = E('TS', 15)
TV = E('TV', 14)
DEFD = ''
NS_ = E('NS', 0)
SUBR = E('SUBR', 1)
N5 = E('N5', 47)
N6 = E('N6', 53)
N2 = E('N2', 18)
CPS = E('CPS', 3)
PBF = E('PBF', 1)
GB = E('GB', 8)
WNT = os.environ.get('WNT', '')
XNT = os.environ.get('XNT', '')
ZNT = os.environ.get('ZNT', '')
NTT = os.environ.get('NTT', '').split(',')
O5 = 1
O5N = E('O5N', 4)
P1 = E('P1', 13)
MID = E('MID', 1)
WPS = E('WPS', 1)
CHO = E('CHO', 1)
GB2 = E('GB2', 13)
HB = E('HB', 63)
C1L = E('C1L', 0)
LCH = E('LCH', 0)
PKM = E('PKM', 1)
PFW = {int(x.split(':')[0]): int(x.split(':')[1]) for x in os.environ.get('PFW', '').split(',') if x}
NB0 = 28

XSZ = 16384
ST = 49152
MISC = 3 * ST
LDS = 163840
NEG = f2u(-1e30)
SPIN = 50000

VL16, AC, AN, VG, IDX, VD, T0 = 1, 2, 3, 4, 5, 6, 7
ONES, L = 8, 12
QB, QA = 16, 24
KF, VF = 32, 40
PB = [48, 56]
SB = [64, 80]
O = 96
ML = 112
OFR = 128
O2, L2, MU, CM, TB, AB, TZ = 128, 144, 148, 164, 180, 188, 189
WS, DBG, SX_, SW_, SS_ = 28, 32, 36, 40, 44
RB, HP, XCD, IDXS, RT, HEAD, RB2, CBK = 48, 49, 50, 51, 52, 53, 54, 55
HEADB = 65
W4K, W1K, I0, WOS, GSRC, ABS = 74, 75, 76, 77, 78, 79
WS6 = 80
MUS, CMS, OUTS, OSTA = 16, 17, 20, 21
OSTB, KH10, CSRC = 24, 25, 26
UO, OQ = 44, 4
NON = 64
FL_OFF = 4 * MB
GP_OFF = 5 * MB
GROT = E('GROT', 1)

def sr(b): return f"s[{b}:{b+3}]"
def mfma16(d, a, b, c):
    cs = c if isinstance(c, str) else v(c, 4)
    return f"v_mfma_f32_16x16x32_bf16 {v(d,4)}, {v(a,4)}, {v(b,4)}, {cs}"
def smf(l, p): return f"v_smfmac_f32_16x16x64_bf16 {v(l,4)}, {v(ONES,4)}, {v(p,8)}, v{IDX}"
def ex(S, i): return f"v_exp_f32 v{S+i}, v{S+i}"
def cv(Pp, S, i): return f"v_cvt_pk_bf16_f32 v{Pp+i}, v{S+2*i}, v{S+2*i+1}"
def keyl(r): return 16 * (r >> 3) + 4 * ((r >> 2) & 1) + (r & 3)

TRN = "setup,g0,pla,pl0,gend,attn,aend,afin,y1a,y1,y3a,y3,y4,oend,x1,x2,x3,x4".split(",")
TRL = {n: 44 + i for i, n in enumerate(TRN)}
def st(A, nm):
    if DIAG: trace(A, TRL[nm])

class VM:
    def __init__(self): self.q = []
    def add(self, tag, n=1): self.q += [tag] * n
    def after(self, *tags):
        if not any(t in tags for t in self.q): return 0
        last = max(i for i, t in enumerate(self.q) if t in tags)
        return len(self.q) - 1 - last

def pack_list(dst, blk, scale):
    o = []
    for a in range(2):
        for b in range(2):
            d = blk[a][b]
            if scale:
                if scale == 2:
                    for i in range(4): o.append(f"v_mul_f32 v{d+i}, s63, v{d+i}")
                else:
                    for i in range(2): o.append(f"v_pk_mul_f32 {v(d+2*i,2)}, {v(d+2*i,2)}, s[62:63]")
            for i in range(2): o.append(f"v_cvt_pk_bf16_f32 v{dst+a*4+b*2+i}, v{d+2*i}, v{d+2*i+1}")
    for a in range(2):
        for i in range(2): o.append(f"v_permlane16_swap_b32 v{dst+a*4+i}, v{dst+a*4+2+i}")
    return o

def gen(A, name):
    P = "f_"
    kernel_head(A, name)
    A.e(f"""s_cmp_ge_u32 s2, 256
        s_cbranch_scc1 {P}end2""")
    stamp_init(A)
    if E('HT', 0): A.e("s_memrealtime s[70:71]\ns_memtime s[74:75]")
    if E('SCR', 0):
        A.e("""s_lshr_b32 s56, s2, 3
            s_lshr_b32 s57, s2, 5
            s_xor_b32 s56, s56, s57
            s_and_b32 s56, s56, 7
            s_xor_b32 s2, s2, s56""")
    A.e(f"""s_load_dwordx8 s[4:11], s[0:1], 0
        s_load_dwordx8 s[16:23], s[0:1], 48
        s_load_dwordx4 s[24:27], s[0:1], 80
        s_load_dwordx2 s[12:13], s[0:1], 32
        v_lshrrev_b32 v1, 6, v0
        v_and_b32 v0, 63, v0
        v_readfirstlane_b32 s3, v1
        s_and_b32 s{XCD}, s2, 7
        s_lshr_b32 s{IDXS}, s2, 3
        s_and_b32 s{RB}, s{XCD}, 1
        s_lshl_b32 s{RB}, s{RB}, 3
        s_and_b32 s56, s{IDXS}, 7
        s_add_u32 s{RB}, s{RB}, s56
        s_lshr_b32 s{HP}, s{XCD}, 1
        s_lshl_b32 s{HP}, s{HP}, 2
        s_lshr_b32 s56, s{IDXS}, 3
        s_add_u32 s{HP}, s{HP}, s56
        v_lshlrev_b32 v{VL16}, 4, v0
        s_cmp_lt_u32 s3, 4
        s_cbranch_scc1 {P}compute""")

    def srds():
        srd(A, WS, "s26", "s27", WS_USED)
        srd(A, DBG, "s24", "s25", 256)
        if DIAG: A.e(f"v_mov_b32 v{VD}, 0")
    def setup_v():
        vd = AN if DIAG else VD
        A.e(f"""v_and_b32 v{L}, 31, v0
            v_lshrrev_b32 v{VG}, 5, v0
            v_lshlrev_b32 v{VG}, 3, v{VG}
            v_sub_u32 v{vd}, v{L}, v{VG}
            v_mov_b32 v{VG}, {NEG}""")
        for r in range(16): A.e(f"v_subrev_u32 v{ML+r}, {keyl(r)}, v{vd}")
        for r in range(16): A.e(f"v_ashrrev_i32 v{ML+r}, 31, v{ML+r}")
        for r in range(16): A.e(f"v_and_b32 v{ML+r}, v{VG}, v{ML+r}")
        A.e(f"""v_bfe_i32 v{L}, v0, 2, 1
            v_mov_b32 v{VG}, 0x3f803f80
            v_and_b32 v{ONES+2}, v{VG}, v{L}
            v_xor_b32 v{ONES}, v{VG}, v{ONES+2}
            v_mov_b32 v{ONES+1}, v{ONES}
            v_mov_b32 v{ONES+3}, v{ONES+2}
            v_bfe_i32 v{L}, v0, 0, 1
            v_and_b32 v{L}, 0xaaaa, v{L}
            v_or_b32 v{IDX}, 0x4444, v{L}
            v_add_u32 v{AC}, 0x10000, v{VL16}
            v_add_u32 v{AN}, 0x20000, v{VL16}""")
        for i in range(4): A.e(f"v_mov_b32 v{L+i}, 0")
    def setup_s():
        A.e(f"""s_and_b32 s{RB2}, s{XCD}, 3
            s_lshl_b32 s{RB2}, s{RB2}, 2
            s_and_b32 s56, s{IDXS}, 3
            s_add_u32 s{RB2}, s{RB2}, s56
            s_lshl_b32 s{WOS}, s56, 19
            s_lshr_b32 s{CBK}, s{XCD}, 2
            s_lshl_b32 s{CBK}, s{CBK}, 3
            s_lshr_b32 s56, s{IDXS}, 2
            s_add_u32 s{CBK}, s{CBK}, s56
            s_and_b32 s56, s3, 1
            s_lshl_b32 s56, s56, 1
            s_lshr_b32 s{KH10}, s3, 2
            s_add_u32 s56, s56, s{KH10}
            s_lshl_b32 s{ABS}, s56, 12
            s_lshl_b32 s{RT}, s{RB}, 2
            s_add_u32 s{CSRC}, s{RT}, s{KH10}
            s_add_u32 s{RT}, s{RT}, s56
            s_bfe_u32 s56, s3, 0x10001
            s_mul_i32 s57, s56, 49152
            s_add_u32 s{ABS}, s{ABS}, s57
            s_lshl_b32 s{HEAD}, s{HP}, 1
            s_add_u32 s{HEAD}, s{HEAD}, s56
            s_add_u32 s56, s{HEAD}, {2*GROT}
            s_and_b32 s56, s56, 7
            s_and_b32 s57, s{HEAD}, 24
            s_or_b32 s{HEADB}, s56, s57
            s_lshl_b32 s{W4K}, s3, 12
            s_lshl_b32 s{W1K}, s3, 10
            s_sub_i32 s{I0}, 8, s{RT}
            s_cmp_gt_i32 s{I0}, 0
            s_cselect_b32 s{MUS}, 0, 1.0
            s_cmp_gt_i32 s{I0}, 1
            s_cselect_b32 s{CMS}, {NEG}, 0
            s_lshr_b32 s57, s{HEADB}, 1
            s_lshl_b32 s57, s57, 19
            s_and_b32 s27, s3, 3
            s_lshl_b32 s56, s27, 10
            s_add_u32 s57, s57, s56
            s_add_u32 s57, s57, {KVB_OFF}
            s_lshl_b32 s56, s{CSRC}, 12
            s_add_u32 s56, s56, s57
            s_sub_u32 s56, s56, 0x8000""")
        for i in range(6):
            A.e(f"s_max_u32 s{WS6+i}, s56, s57")
            if i < 5: A.e("s_addk_i32 s56, 0x2000")
        A.e(f"""s_lshl_b32 s56, s{RB2}, 2
            s_add_u32 s56, s56, s27
            s_lshl_b32 s{OUTS}, s56, 1
            s_add_u32 s{OUTS}, s{OUTS}, s{KH10}
            s_lshl_b32 s{OUTS}, s{OUTS}, 15
            s_lshl_b32 s57, s{CBK}, 7
            s_add_u32 s{OUTS}, s{OUTS}, s57
            s_lshl_b32 s{UO}, s3, 16
            s_add_u32 s{UO}, s{UO}, s57
            s_add_u32 s{WOS}, s{WOS}, s{UO}
            s_add_u32 s{UO+1}, s{UO}, 0x80000
            s_add_u32 s{UO+2}, s{UO}, 0x100000
            s_add_u32 s{UO+3}, s{UO}, 0x180000
            s_lshl_b32 s56, s56, 17
            s_lshl_b32 s57, s{KH10}, 11
            s_add_u32 s56, s56, s57
            s_add_u32 s{OQ}, s56, {O_OFF + 65536}
            s_movk_i32 s57, 0x2000""")
        if ROT:
            A.e(f"""s_mov_b32 s56, s{OQ}
                s_lshl_b32 s27, s{CBK}, 13""")
            for h in range(8):
                A.e(f"""s_and_b32 s27, s27, 0xffff
                    s_add_u32 s{OQ+h}, s56, s27
                    s_add_u32 s27, s27, s57""")
            A.e(f"s_lshl_b32 s27, s{CBK}, 18")
            for q in range(4):
                A.e(f"""s_add_u32 s{UO+q}, s{UO+q}, s27
                    s_and_b32 s{UO+q}, s{UO+q}, 0x1fffff""")
        else:
            for h in range(1, 8): A.e(f"s_add_u32 s{OQ+h}, s{OQ+h-1}, s57")
        A.e(f"""s_lshl_b32 s{GSRC}, s{RT}, 7
            s_add_u32 s{GSRC}, s{GSRC}, {G_OFF}
            s_lshl_b32 s56, s{RT}, 17
            s_add_u32 s56, s56, {O_OFF}
            s_lshl_b32 s{OSTA}, s{HEAD}, 11
            s_add_u32 s{OSTA}, s{OSTA}, s56
            s_lshl_b32 s{OSTB}, s{HEADB}, 11
            s_add_u32 s{OSTB}, s{OSTB}, s56
            s_add_u32 s{OSTB}, s{OSTB}, 0x10000
            s_lshl_b32 s{KH10}, s{KH10}, 10""")
    def pack(dst, blk, scale):
        for x in pack_list(dst, blk, scale): A.e(x)
    def zero(base, n):
        for i in range(n): A.e(f"v_mov_b32 v{base+i}, 0")
    def signal(phase, t1):
        A.e(f"""s_mov_b64 exec, 1
            v_mov_b32 v{T0}, s{NON}
            v_mov_b32 v{t1}, 0
            s_lshl_b32 s56, s{RB}, 4
            s_add_u32 s56, s56, s{HP}
            s_lshl_b32 s56, s56, {FS}
            s_add_u32 s56, s56, {FL_OFF + (256<<FS)*phase}
            buffer_store_dword v{T0}, v{t1}, {sr(WS)}, s56 offen sc1
            s_mov_b64 exec, -1""")
    def poll_issue(voff, phase, t1=None):
        A.e(f"""s_mov_b32 s62, {FL_OFF + (256<<FS)*phase}
            buffer_load_dword v{T0}, v{voff}, {sr(WS)}, s62 offen sc1""")
        if t1:
            for i in range(3): A.e(f"buffer_load_dword v{t1+i}, v{voff}, {sr(WS)}, s62 offen offset:{(i+1)<<FS} sc1")
    def poll(tag, voff, phase, first_issued, t1=None, slp=SLP):
        A.e(f"s_mov_b32 s57, {1 if ((XP & 32 and tag in '0a') or (XP & 64 and tag in '123')) else SPIN}")
        if first_issued: A.e(f"s_branch {P}pc{tag}")
        A.lab(f"{P}pl{tag}")
        poll_issue(voff, phase, t1)
        A.e("s_waitcnt vmcnt(0)")
        A.lab(f"{P}pc{tag}")
        A.e(f"v_cmp_eq_u32 vcc, s{NON}, v{T0}")
        if t1:
            for i in range(3):
                A.e(f"""s_mov_b64 s[62:63], vcc
                    v_cmp_eq_u32 vcc, s{NON}, v{t1+i}
                    s_and_b64 vcc, vcc, s[62:63]""")
        A.e(f"""s_cmp_eq_u64 vcc, -1
            s_cbranch_scc1 {P}pd{tag}
            s_sleep {slp}
            s_sub_u32 s57, s57, 1
            s_cmp_lg_u32 s57, 0
            s_cbranch_scc1 {P}pl{tag}""")
        A.lab(f"{P}pd{tag}")
    def tag_issue(d, z):
        A.e(f"""v_mov_b32 v{z}, 0
            buffer_load_dword v{d}, v{z}, {sr(DBG)}, 0 offen sc1""")
    def tag_get(lbl, d, z):
        A.e(f"s_mov_b32 s57, {SPIN}")
        A.lab(f"{P}tl{lbl}")
        A.e(f"""v_readfirstlane_b32 s{NON}, v{d}
            s_cmp_lg_u32 s{NON}, 0
            s_cbranch_scc1 {P}td{lbl}
            s_sleep 8
            buffer_load_dword v{d}, v{z}, {sr(DBG)}, 0 offen sc1
            s_waitcnt vmcnt(0)
            s_sub_u32 s57, s57, 1
            s_cmp_lg_u32 s57, 0
            s_cbranch_scc1 {P}tl{lbl}""")
        A.lab(f"{P}td{lbl}")
    gslot = lambda t: ((15 - t) % 3) * ST

    VX, VW, VS, AXS, AWS = 128, 130, 132, 136, 133
    SXF, SWF, SA = 144, 176, 208
    LW, KIND, PHI = 14, 15, 92
    XB, WB, WSTEP, KT, L4K, L8K, PSRC = 93, 94, 96, 98, 99, 100, 101
    L8X, WST2 = 2, 53
    A.e(f"""s_setprio {LPRIO}
        s_sub_u32 s{LW}, s3, 4
        v_lshrrev_b32 v9, 3, v0
        v_and_b32 v16, 7, v0
        v_lshrrev_b32 v17, 4, v0
        v_xor_b32 v17, v17, v16
        v_lshlrev_b32 v17, 4, v17
        v_lshl_add_u32 v{VX}, v9, 11, v17
        v_xor_b32 v{VX+1}, 64, v{VX}
        s_cmp_eq_u32 s{LW}, 0
        s_mov_b32 s57, 6144
        s_cselect_b32 s57, 2048, s57
        v_bfe_u32 v17, v0, 4, 1
        v_lshlrev_b32 v17, 1, v17
        v_xor_b32 v17, v17, v16
        v_lshlrev_b32 v17, 4, v17
        v_mul_u32_u24 v18, s57, v9
        v_add_u32 v{VW}, v18, v17
        v_xor_b32 v{VW+1}, 64, v{VW}
        s_lshl_b32 s{WSTEP}, s57, 3
        s_lshl_b32 s{XB}, s{RB}, 18
        s_lshl_b32 s56, s{LW}, 16
        s_add_u32 s{XB}, s{XB}, s56
        s_max_u32 s56, s{LW}, 1
        s_sub_u32 s56, s56, 1
        s_lshl_b32 s56, s56, 11
        s_mul_i32 s57, s{LW}, {GROT}
        s_add_u32 s57, s57, s{HP}
        s_and_b32 s57, s57, 3
        s_and_b32 s{WB}, s{HP}, 12
        s_or_b32 s57, s57, s{WB}
        s_lshl_b32 s57, s57, 7
        s_add_u32 s{WB}, s56, s57
        s_add_u32 s{PHI}, s{RB}, s{HP}
        s_and_b32 s{PHI}, s{PHI}, 3
        s_and_b32 s56, s{HP}, {12 if ORD == 3 else 4}
        s_or_b32 s{KT}, s{PHI}, s56
        s_lshl_b32 s{KT}, s{KT}, {0 if ORD == 3 else 1}
        s_lshl_b32 s{L4K}, s{LW}, 12
        s_lshl_b32 s{L8K}, s{LW}, 13
        s_add_u32 s{L8X}, s{L8K}, {XSZ}
        s_sub_u32 s{WST2}, s{WSTEP}, 0x400
        s_cmp_eq_u32 s{LW}, 0
        s_waitcnt lgkmcnt(0)
        s_cselect_b32 s{SW_}, s6, s16
        s_cselect_b32 s{SW_+1}, s7, s17
        s_mov_b32 s{SW_+2}, {6*MB}
        s_cselect_b32 s{SW_+2}, {2*MB}, s{SW_+2}
        s_mov_b32 s{SW_+3}, 0x20000""")
    srd(A, SX_, "s4", "s5", 4 * MB)
    gv = VM()
    def issue(t, lo=0, hi=12):
        if t > 0 and lo == 0:
            if t < O5N:
                A.e(f"s_xor_b32 s{KT}, s95, {t & 3}")
                if t >= 4: A.e(f"s_add_u32 s{KT}, s{KT}, {t & 12}\ns_and_b32 s{KT}, s{KT}, 15")
            else:
                if t == O5N: A.e(f"s_and_b32 s{KT}, s{KT}, 12\ns_or_b32 s{KT}, s{KT}, s{PHI}")
                if (t & 3) == 0: A.e(f"s_add_u32 s{KT}, s{KT}, 4\ns_and_b32 s{KT}, s{KT}, 15")
        if SUBR:
            assert (lo, hi) == (0, 12)
            gv.add(f"T{t}", 12)
            if t > 0:
                A.e(f"s_mov_b32 s59, {gslot(t)}")
                A.e(f"s_call_b64 s[0:1], {P}isub")
                return
            A.e(f"""s_mov_b32 s59, {gslot(0)}
                s_getpc_b64 s[0:1]""")
            A.lab(f"{P}ipc")
            A.e(f"""s_add_u32 s0, s0, {P}iret-{P}ipc
                s_addc_u32 s1, s1, 0""")
            A.lab(f"{P}isub")
            A.e(f"""s_add_u32 m0, s{L4K}, s59
                s_lshl_b32 s56, s{KT}, 7
                s_add_u32 s56, s56, s{XB}""")
            for i in range(4):
                A.e(f"buffer_load_dwordx4 v{VX+(i&1)}, {sr(SX_)}, s56 offen offset:{1024*i} {XNT} lds")
                if i < 3: A.e(f"s_addk_i32 s56, {16384-1024}")
            A.e(f"""s_add_u32 m0, s{L8X}, s59
                s_mul_i32 s56, s{KT}, s{WSTEP}
                s_lshl_b32 s56, s56, 3
                s_add_u32 s56, s56, s{WB}""")
            for i in range(8):
                A.e(f"buffer_load_dwordx4 v{VW+(i&1)}, {sr(SW_)}, s56 offen offset:{1024*(i&3)} {WNT} lds")
                if i == 3: A.e(f"s_addk_i32 m0, 0x1000\ns_addk_i32 s56, 0x1000")
                if i < 7: A.e(f"s_add_u32 s56, s56, s{WST2}")
            A.e(f"""s_add_u32 s56, s{KT}, 1
                s_and_b32 s56, s56, 3
                s_and_b32 s{KT}, s{KT}, 12
                s_or_b32 s{KT}, s{KT}, s56
                s_setpc_b64 s[0:1]""")
            A.lab(f"{P}iret")
            return
        for i in range(lo, hi):
            if i < 4:
                if i == lo:
                    A.e(f"""s_add_u32 m0, s{L4K}, {gslot(t) + 1024*i}
                        s_lshl_b32 s56, s{KT}, 7
                        s_add_u32 s56, s56, s{XB}""")
                    if i: A.e(f"s_add_u32 s56, s56, {16384*i}")
                else: A.e("s_add_u32 m0, m0, 1024\ns_add_u32 s56, s56, 16384")
                A.e(f"buffer_load_dwordx4 v{VX+(i&1)}, {sr(SX_)}, s56 offen {XNT if str(t) in NTT else ''} lds")
            else:
                if i == lo or i == 4:
                    A.e(f"""s_add_u32 m0, s{L8K}, {gslot(t) + XSZ + 1024*(i-4)}
                        s_lshl_b32 s56, s{KT}, 3""")
                    if i > 4: A.e(f"s_add_u32 s56, s56, {i-4}")
                    A.e(f"""s_mul_i32 s56, s56, s{WSTEP}
                        s_add_u32 s56, s56, s{WB}""")
                else: A.e(f"s_add_u32 m0, m0, 1024\ns_add_u32 s56, s56, s{WSTEP}")
                A.e(f"buffer_load_dwordx4 v{VW+(i&1)}, {sr(SW_)}, s56 offen {WNT if str(t) in NTT else ''} lds")
            gv.add(f"T{t}")
        if hi == 12 and t < 15:
            pm = 3 if ORD == 3 else 7
            A.e(f"""s_add_u32 s56, s{KT}, 1
                s_and_b32 s56, s56, {pm}""")
            A.e(f"""s_and_b32 s{KT}, s{KT}, {15 - pm}
                s_or_b32 s{KT}, s{KT}, s56""")
    DEF = {int(x.split(":")[0]): int(x.split(":")[1]) for x in os.environ.get("DEF", DEFD).split(",") if x}
    marks = {}
    if O5: A.e(f"s_and_b32 s{KT}, s{KT}, {P1}")
    A.e(f"s_mov_b32 s95, s{KT}")
    issue(0)
    SG, GA, AGS, PI = 32, 64, 134, 97
    A.e(f"s_and_b32 s{KIND}, s{PHI}, 1" if ORD == 3 else f"s_lshr_b32 s{KIND}, s{HP}, 3")
    A.e(f"""s_cmp_eq_u32 s{KIND}, 0
        s_cselect_b32 s{SS_}, s8, s10
        s_cselect_b32 s{SS_+1}, s9, s11
        s_mov_b32 s{SS_+2}, 65536
        s_mov_b32 s{SS_+3}, 0x20000
        s_and_b32 s58, s{PHI}, 2
        s_xor_b32 s58, s58, s95
        s_xor_b32 s60, s58, 1
        s_cmp_lt_u32 s{LW}, 2
        s_cselect_b32 s56, s58, s60
        s_lshl_b32 s56, s56, 12
        s_and_b32 s57, s{LW}, 1
        s_lshl_b32 s57, s57, 11
        s_add_u32 s56, s56, s57
        s_lshl_b32 s57, s{LW}, 11
        s_add_u32 m0, s57, {MISC}
        v_mov_b32 v17, s58
        buffer_load_dwordx4 v{VL16}, {sr(SS_)}, s56 offen lds
        buffer_load_dwordx4 v{VL16}, {sr(SS_)}, s56 offen offset:1024 lds
        v_mov_b32 v18, s60
        v_cmp_gt_u32 vcc, 8, v0
        v_lshlrev_b32 v19, 4, v16
        v_lshrrev_b32 v20, 4, v0
        v_cndmask_b32 v17, v18, v17, vcc
        v_lshl_add_u32 v19, v17, 7, v19
        v_lshl_add_u32 v19, v20, 16, v19
        s_lshl_b32 s57, s{LW}, 10
        s_add_u32 s57, s57, {MISC + 8192}
        s_mov_b32 m0, s57""")
    srd(A, 60, "s20", "s21", 2048)
    A.e(f"""buffer_load_dwordx4 v19, s[60:63], 0 offen lds
        v_lshrrev_b32 v17, 5, v0
        v_lshl_add_u32 v{AGS}, v17, 4, s57""")
    srds()
    A.e(f"""v_and_b32 v16, 31, v0
        v_lshrrev_b32 v17, 5, v0
        v_bfe_u32 v18, v0, 1, 3
        v_xor_b32 v19, v17, v18
        v_lshlrev_b32 v19, 4, v19
        v_lshl_add_u32 v19, v16, 7, v19
        v_add_u32 v{AXS}, s{L4K}, v19
        v_xor_b32 v{AXS+1}, 32, v{AXS}
        v_xor_b32 v{AXS+2}, 64, v{AXS}
        v_xor_b32 v{AXS+3}, 0x60, v{AXS}
        v_bfe_u32 v18, v0, 2, 2
        v_lshl_add_u32 v19, v17, 3, v18
        v_lshlrev_b32 v19, 6, v19
        v_bfe_u32 v18, v0, 4, 1
        v_lshl_add_u32 v19, v18, 5, v19
        v_and_b32 v18, 3, v0
        v_bfe_u32 v20, v0, 1, 1
        v_and_b32 v21, 1, v0
        v_lshl_or_b32 v20, v21, 1, v20
        s_cmp_eq_u32 s{KIND}, 0
        s_cselect_b64 vcc, -1, 0
        v_cndmask_b32 v18, v18, v20, vcc
        v_lshl_add_u32 v19, v18, 3, v19
        v_add_u32 v{AWS}, {MISC}, v19
        v_lshlrev_b32 v{VS}, 2, v0
        v_mov_b32 v{GA}, 0
        v_mov_b32 v{GA+1}, 0
        s_lshr_b32 s{PI}, s58, 1
        s_lshl_b32 s{PSRC}, s{RB}, 1
        s_add_u32 s{PSRC}, s{PSRC}, s{KIND}
        s_lshl_b32 s{PSRC}, s{PSRC}, 17
        s_add_u32 s{PSRC}, s{PSRC}, {PART_OFF}""")
    st(A, "setup")
    issue(1)
    A.e("s_waitcnt vmcnt(12)")
    st(A, "g0")
    RL = SXF
    def lsignal(t, ph):
        A.e(f"""s_cmp_lg_u32 s{LW}, 0
            s_cbranch_scc1 {P}ls{t}""")
        signal(ph, 17)
        A.lab(f"{P}ls{t}")
    def side_compute(ks, tg):
        A.e(f"""s_cmp_eq_u32 s{KIND}, 1
            s_cbranch_scc1 {P}lv{tg}""")
        for k in ks: A.e(f"ds_read_b128 {v(SG+4*k,4)}, v{AGS} offset:{32*k}")
        A.e(f"s_waitcnt lgkmcnt({len(ks)})")
        for k in ks: A.e(mfma32(SA, SWF + 4*k, SXF + 4*k, "0" if k == 0 else SA))
        A.e("s_waitcnt lgkmcnt(0)")
        for k in range(4*ks[0], 4*ks[-1]+4): A.e(f"v_dot2_f32_bf16 v{GA+(k&1)}, v{SXF+k}, v{SG+k}, v{GA+(k&1)}")
        A.e(f"s_branch {P}lw{tg}")
        A.lab(f"{P}lv{tg}")
        A.e("s_waitcnt lgkmcnt(0)")
        for k in ks: A.e(mfma32(SA, SXF + 4*k, SWF + 4*k, "0" if k == 0 else SA))
        A.lab(f"{P}lw{tg}")
    def reduce_store():
        A.e(f"""s_lshl_b32 s56, s{RB}, 2
            s_lshr_b32 s57, s{PI}, 1
            s_add_u32 s56, s56, s57
            s_cmp_lg_u32 s{LW}, 0
            s_cbranch_scc1 {P}lgate""")
        if PBF:
            A.e("v_mov_b32 v20, 0x3f80\nv_mov_b32 v21, 1.0")
            for q in range(8):
                for i in range(8): A.e(f"v_dot2_f32_bf16 v{RL+i}, v{RL+8+4*q+(i>>1)}, v{20+(i&1)}, " + ("0" if q == 0 else f"v{RL+i}"))
            A.e("s_nop 0")
        else:
            for st_ in (32, 16, 8):
                for i in range(0, st_, 2): A.e(f"v_pk_add_f32 {v(RL+i,2)}, {v(RL+i,2)}, {v(RL+st_+i,2)}")
        A.e(f"""s_cmp_eq_u32 s{KIND}, 0
            s_cselect_b32 s57, {f2u(CSCALE)}, 1.0""")
        for i in range(8): A.e(f"v_mul_f32 v{RL+i}, s57, v{RL+i}")
        for i in range(4): A.e(f"v_cvt_pk_bf16_f32 v{SA+i}, v{RL+2*i}, v{RL+2*i+1}")
        A.e(f"""s_lshl_b32 s56, s56, 12
            s_lshl_b32 s57, s{KIND}, 11
            s_add_u32 s56, s56, s57
            s_and_b32 s57, s{PI}, 1
            s_lshl_b32 s57, s57, 10
            s_add_u32 s56, s56, s57
            s_add_u32 s56, s56, {KVA_OFF}
            buffer_store_dwordx4 {v(SA,4)}, v{VL16}, {sr(WS)}, s56 offen sc1
            s_branch {P}lsd""")
        A.lab(f"{P}lgate")
        A.e(f"""s_cmp_lg_u32 s58, 1
            s_cbranch_scc1 {P}lsd""")
        for i in range(1, 8): A.e(f"v_add_f32 v{RL}, v{RL}, v{RL+i}")
        A.e(f"""v_mov_b32 v{RL+1}, v{RL}
            s_lshl_b32 s56, s56, 7
            s_add_u32 s56, s56, {G_OFF}
            v_permlane32_swap_b32 v{RL}, v{RL+1}
            v_and_b32 v16, 31, v0
            v_add_f32 v{RL}, v{RL}, v{RL+1}
            v_mul_f32 v{RL}, {f2u(-LOG2E)}, v{RL}
            v_exp_f32 v{RL}, v{RL}
            v_lshlrev_b32 v16, 2, v16
            v_add_f32 v{RL}, 1.0, v{RL}
            v_rcp_f32 v{RL}, v{RL}
            s_nop 0
            buffer_store_dword v{RL}, v16, {sr(WS)}, s56 offen sc1""")
        A.lab(f"{P}lsd")
    for t in range(16):
        A.e("s_barrier")
        trace(A, t)
        ks = list(range(4*(t&1), 4*(t&1)+4)) if t < 4 else []
        if ks:
            A.e(f"""s_bitcmp{1 - (t>>1)}_b32 s{PHI}, 1
                s_cbranch_scc1 {P}lx{t}""")
            for k in ks: A.e(f"ds_read_b128 {v(SXF+4*k,4)}, v{AXS+(k&3)}")
            for k in ks:
                A.e(f"""ds_read_b64_tr_b16 {v(SWF+4*k,2)}, v{AWS} offset:{1024*k}
                    ds_read_b64_tr_b16 {v(SWF+4*k+2,2)}, v{AWS} offset:{1024*k+256}""")
            A.lab(f"{P}lx{t}")
            if t < 3:
                for k in range(4): A.e(f"v_add_u32 v{AXS+k}, {(gslot(t+1) - gslot(t)) & 0xffffffff}, v{AXS+k}")
        if t == TTAG:
            tag_issue(18, 17); marks.setdefault(TSA - 1, []).append(len(gv.q))
        if t == TSA: lsignal(t, 0)
        if t == TRED + 1 + min(RAFT, 1): lsignal(t, 1)
        if t == TPA:
            A.e(f"""s_and_b32 s58, s{PI}, 1
                s_add_u32 s58, s58, s{KIND}
                s_add_u32 s58, s58, s{LW}
                s_cmp_eq_u32 s{LW}, 0
                s_cselect_b32 s58, 0, s58
                v_and_b32 v16, 7, v0
                v_lshlrev_b32 v16, {FS+1 if ORD == 3 else FS}, v16
                s_and_b32 s57, s{HP}, {1 if ORD == 3 else 8}
                s_lshl_b32 s56, s{RB}, 4
                s_add_u32 s56, s56, s57
                s_lshl_b32 s56, s56, {FS}
                v_add_u32 v16, s56, v16
                s_cmp_ge_u32 s58, 2
                s_cbranch_scc1 {P}lta""")
            poll_issue(16, 0)
            A.lab(f"{P}lta")
            marks.setdefault(t, []).append(len(gv.q))
        if t == TPOLL:
            A.e(f"""v_lshlrev_b32 v16, {FS+2}, v0
                s_cmp_lg_u32 s{LW}, 0
                s_cbranch_scc1 {P}lt0""")
            poll_issue(16, 1, 17)
            A.lab(f"{P}lt0")
            marks.setdefault(t, []).append(len(gv.q))
        if t == TRED and not RAFT:
            reduce_store(); marks.setdefault(t, []).append(len(gv.q))
        if DEF.get(t - 1): issue(t + 1, 12 - DEF[t - 1], 12)
        if t + 2 < 16: issue(t + 2, 0, 12 - DEF.get(t, 0))
        if ks:
            A.e(f"""s_bitcmp{1 - (t>>1)}_b32 s{PHI}, 1
                s_cbranch_scc1 {P}lw{t}
                s_waitcnt lgkmcnt(4)""")
            side_compute(ks, t)
            if t == TST: A.e("s_nop 7")
        if t == TST and not NS_ & 2:
            A.e(f"""s_lshl_b32 s56, s{LW}, 3
                s_add_u32 s56, s56, s{PI}
                s_lshl_b32 s57, s56, 12
                s_add_u32 s57, s57, s{PSRC}
                v_add_f32 v{GA}, v{GA}, v{GA+1}""")
            if PBF:
                for i in range(8): A.e(f"v_cvt_pk_bf16_f32 v{SA+16+i}, v{SA+2*i}, v{SA+2*i+1}")
                for q in range(2): A.e(f"buffer_store_dwordx4 {v(SA+16+4*q,4)}, v{VL16}, {sr(WS)}, s57 offen offset:{2048*q} sc1")
            else:
                for q in range(4): A.e(f"buffer_store_dwordx4 {v(SA+4*q,4)}, v{VL16}, {sr(WS)}, s57 offen offset:{1024*q} sc1")
            A.e(f"""s_cmp_eq_u32 s{KIND}, 1
                s_cbranch_scc1 {P}lp1
                s_lshl_b32 s57, s{RB}, 5
                s_add_u32 s56, s56, s57
                s_lshl_b32 s56, s56, 8
                s_add_u32 s56, s56, {GP_OFF}
                buffer_store_dword v{GA}, v{VS}, {sr(WS)}, s56 offen sc1""")
            A.lab(f"{P}lp1")
            gv.add("S", 2 if PBF else 4); marks.setdefault(TSA - 1, []).append(len(gv.q))
        if t == TRED and RAFT == 1:
            reduce_store(); marks.setdefault(t + 1, []).append(len(gv.q))
        ncs = 0
        if t > TPOLL and (t == TPOLL + 1 or t == 15):
            cs = []
            if t == TPOLL + 1: cs.append((0, 3))
            if t == 15: cs.append((1, 2))
            for c, slot in cs:
                for hf in range(2):
                    A.e(f"""s_add_u32 m0, s{L8K}, {slot*32768 + hf*4096}
                        s_add_u32 s56, s{L8K}, {KVA_OFF + c*32768 + hf*4096}""")
                    for i in range(4): A.e(f"buffer_load_dwordx4 v{VL16}, {sr(WS)}, s56 offen offset:{1024*i} sc1 lds")
                gv.add('C', 8)
        if t in PFW:
            tb = PFW[t]
            A.e(f"""s_add_u32 s56, s{HP}, {tb}
                s_and_b32 s56, s56, 12
                s_or_b32 s56, s56, s{PHI}
                s_lshl_b32 s56, s56, 3
                s_and_b32 s57, s{RB}, 4
                s_add_u32 s56, s56, s57
                s_mul_i32 s56, s56, s{WSTEP}
                s_add_u32 s56, s56, s{WB}""")
            for i in range(4):
                A.e(f"buffer_load_dwordx4 v[68:71], v{VW+(i&1)}, {sr(SW_)}, s56 offen")
                if i < 3: A.e(f"s_add_u32 s56, s56, s{WSTEP}")
            gv.add("Z", 4)
        if t == 15: st(A, "x1")
        for nm, tt in (("s", TS), ("v", TV)):
            if t == tt:
                A.e(f"s_branch {P}set{nm}")
                A.lab(f"{P}set{nm}_r")
        if t < 15: A.e(f"s_waitcnt vmcnt({min([gv.after(f'T{t+1}')] + [len(gv.q) - m for m in marks.get(t, [])])})")
        if t == TRED and RAFT == 2:
            reduce_store(); marks.setdefault(t + 1, []).append(len(gv.q))
        if t == TSA - 1: tag_get("l", 18, 17)
        if t == TPA and not NS_ & 4:
            A.e(f"""s_cmp_ge_u32 s58, 2
                s_cbranch_scc1 {P}lp2""")
            poll("a", 16, 0, True)
            st(A, "pla")
            A.e(f"""s_lshr_b32 s56, s{PI}, 1
                s_cmp_eq_u32 s58, 1
                s_cbranch_scc1 {P}lp3
                s_lshl_b32 s56, s56, 15
                s_and_b32 s57, s{PI}, 1
                s_lshl_b32 s57, s57, 11
                s_add_u32 s56, s56, s57
                s_add_u32 s56, s56, s{PSRC}""")
            for q in range(8):
                if PBF: A.e(f"buffer_load_dwordx4 {v(RL+8+4*q,4)}, v{VL16}, {sr(WS)}, s56 offen sc1")
                else: A.e(f"""buffer_load_dwordx4 {v(RL+8*q,4)}, v{VL16}, {sr(WS)}, s56 offen sc1
                    buffer_load_dwordx4 {v(RL+8*q+4,4)}, v{VL16}, {sr(WS)}, s56 offen offset:1024 sc1""")
                if q < 7: A.e("s_add_u32 s56, s56, 4096")
            A.e(f"s_branch {P}lp2")
            A.lab(f"{P}lp3")
            A.e(f"""s_lshl_b32 s57, s{RB}, 2
                s_add_u32 s56, s56, s57
                s_lshl_b32 s56, s56, 11
                s_add_u32 s56, s56, {GP_OFF}""")
            for q in range(8): A.e(f"buffer_load_dword v{RL+q}, v{VS}, {sr(WS)}, s56 offen offset:{256*q} sc1")
            A.lab(f"{P}lp2")
            marks.setdefault(TRED - (RAFT < 2), []).append(len(gv.q))
        if t == TPOLL:
            A.e(f"""s_cmp_lg_u32 s{LW}, 0
                s_cbranch_scc1 {P}pd0""")
            poll("0", 16, 1, True, t1=17)
            st(A, "pl0")
    st(A, "x2")
    A.e(f"""s_add_u32 s56, s{L4K}, {MISC}
        v_add_u32 v16, s56, v{VL16}
        s_setprio 0
        s_waitcnt vmcnt({8 if C1L else 0})""")
    st(A, "x3")
    A.e("s_barrier")
    st(A, "gend")
    A.e(f"""ds_read_b128 {v(QA,4)}, v16
        ds_read_b128 {v(QA+4,4)}, v16 offset:1024
        ds_read_b128 {v(QB+4,4)}, v16 offset:3072
        ds_read_b128 {v(QB,4)}, v16 offset:2048""")

    A.lab(f"{P}attn")
    if E('STOPG', 0): A.e(f"s_branch {P}end")
    st(A, "attn")
    VOO, VXW, VXO = ML, ML + 12, ML + 14
    VWO = [ML + 4, ML + 1, ML + 2, ML + 3]
    VO4 = [ML + 5, ML + 6, ML + 7, ML + 15]
    VW2, VH1 = 192, 191
    def la(off): return ([VL16, AC, AN][off >> 16], off & 0xffff)
    def rdK(addr, off): return [f"ds_read_b128 {v(KF+4*i,4)}, v{addr} offset:{off+1024*i}" for i in range(2)]
    def rdV(addr, off): return [f"ds_read_b128 {v(VF+4*i,4)}, v{addr} offset:{off+2048+1024*i}" for i in range(2)]
    cslot = lambda c: {0: 3, 1: 2, 2: 4}.get(c, c % 5)
    seq = [("A", j) for j in range(NB0)] + [("B", i) for i in range(9)] + [("A", j) for j in range(NB0, 64)]
    seq += [("A", 63), ("A", 63)]
    def taddr(n):
        k, j = seq[n]
        return la(cslot(j >> 3) * 32768 + (j & 7) * 4096) if k == "A" else (AB, j * 4096)
    def tq(n): return QA if seq[n][0] == "A" else QB
    def tc(n):
        k, j = seq[n]
        return "0" if k == "A" else (MU if j == 0 else ML if j == 8 else CM)
    def to(n): return (O, L) if seq[n][0] == "A" else (O2, L2)
    for x in rdK(*taddr(0)): A.e(x)
    srd(A, SW_, "s18", "s19", 2 * MB)
    A.e("s_waitcnt lgkmcnt(0)")
    A.e(mfma32(SB[0], KF, QA, "0"))
    A.e(mfma32(SB[0], KF + 4, QA + 4, SB[0]))
    for x in rdK(*taddr(1)): A.e(x)
    srd(A, SX_, "s12", "s13", 2 * MB)
    A.e(f"""v_mov_b32 v{TZ}, {NEG}
        v_mov_b32 v{TZ+1}, 0
        v_add_u32 v{AB}, s{ABS}, v{VL16}
        v_add_u32 v{VH1}, {64*4096}, v{VL16}
        s_waitcnt lgkmcnt(0)""")
    vm = VM()
    def cpiece(c, i):
        o = [f"s_add_u32 m0, s{W4K}, {cslot(c)*32768}", f"s_add_u32 s{CSRC}, s{W4K}, {KVA_OFF + c*32768}"] if i == 0 else []
        return (f"C{c}", o + [f"buffer_load_dwordx4 v{VL16}, {sr(WS)}, s{CSRC} offen offset:{i*1024} sc1 lds"])
    def wpiece(i):
        return ("W", [f"s_add_u32 m0, s{W1K}, {i*8192}", f"buffer_load_dwordx4 v{VH1 if i >= 6 else VL16}, {sr(WS)}, s{WS6+i%6} offen sc1 lds"])
    def upiece(u, k):
        o = [f"s_add_u32 m0, s{W4K}, {(u%5)*32768}"] if k == 0 else []
        return (f"U{u}", o + [f"buffer_load_dwordx4 v{VWO[k]}, {sr(SW_ if u < 12 else SX_)}, s{UO+(u&3)} offen offset:{k*1024} lds"])
    def warm(i):
        return ("Z", [f"buffer_load_dwordx4 v[252:255], v{VW2+(i&3)}, {sr(SW_ if i < 4 else SX_)}, s{WOS} offen offset:{(i&3)*1024} {ZNT}"])
    def oload(n, half):
        return ("O", [f"buffer_load_dwordx4 {v(OFR+4*n,4)}, v{VO4[n&3]}, {sr(WS)}, s{OQ+(n>>2)} offen sc1"])
    bg = {n: [] for n in range(73)}
    bv = {n: [] for n in range(73)}
    for i in range(4): bg[i].append(cpiece(2, i))
    for i in range(4): bg[E1N + i // 2].append(cpiece(3, i))
    for i in range(12): bg[N2 + i // 2].append(wpiece(i))
    bv[N2 + 5] += [f"v_and_b32 v{TZ}, 31, v0", f"v_lshlrev_b32 v{TZ}, 2, v{TZ}"]
    bg[N2 + 6].append(("G", [f"buffer_load_dword v{VG}, v{TZ}, {sr(WS)}, s{GSRC} offen sc1"]))
    for i in range(4): bg[26 + i // 2].append(cpiece(4, i))
    if WARM:
        for i in range(8): bg[28 + i // WPS].append(warm(i))
    for i in range(12): bg[39 + i // CPS].append(cpiece(5 + i // 4, i & 3))
    for i in range(4): bg[N5 + i].append(upiece(8, i))
    for i in range(4): bg[N6 + 3 + i].append(upiece(9, i))
    for i in range(8): bg[65 + i].append(upiece(10 + i // 4, i & 3))
    for i in range(32): bg[N6 + ((71 - N6) * i) // 31].append(oload(i, 1))
    for i in range(4):
        bv[4 + i] += [f"v_fma_f32 v{MU+r}, -v{ML+r}, s{MUS}, v{TZ}" for r in range(4*i, 4*i+4)]
        bv[12 + i] += [f"v_mov_b32 v{CM+r}, s{CMS}" for r in range(4*i, 4*i+4)] + [f"v_mov_b32 v{L2+i}, 0"]
    bv[24] += [f"v_lshrrev_b32 v{VW2}, 3, v0", f"v_bfe_u32 v{TB}, v0, 4, 2", f"v_lshlrev_b32 v{TB}, 1, v{TB}", f"v_and_b32 v{TB+1}, 7, v0",
               f"v_xor_b32 v{TB}, v{TB}, v{TB+1}", f"v_lshlrev_b32 v{TB}, 4, v{TB}", f"v_lshl_add_u32 v{VW2}, v{VW2}, 11, v{TB}"]
    bv[25] += [f"v_add_u32 v{VW2+k}, {k*15360}, v{VW2}" for k in range(1, 4)]
    bv[NB0 + 8] += [f"v_and_b32 v{VOO}, 15, v0", f"v_bfe_u32 v{VOO+1}, v0, 4, 1", f"v_lshrrev_b32 v{VOO+2}, 5, v0",
                    f"v_lshlrev_b32 v{VXO}, 11, v{VOO}", f"v_lshl_add_u32 v{VXO}, v{VOO+1}, 5, v{VXO}", f"v_lshl_add_u32 v{VXO}, v{VOO+2}, 4, v{VXO}",
                    f"v_lshlrev_b32 v{VOO}, 4, v{VOO}", f"v_lshl_add_u32 v{VOO}, v{VOO+1}, 10, v{VOO}", f"v_lshl_add_u32 v{VOO}, v{VOO+2}, 8, v{VOO}"]
    bv[NB0 + 9] += [f"v_mov_b32 v{VWO[k]}, v{VW2+k}" for k in range(4)]
    bv[44] += [f"v_add_u32 v{VO4[0]}, s{KH10}, v{VL16}", f"v_xor_b32 v{VO4[1]}, 0x400, v{VO4[0]}", f"v_add_u32 v{VO4[2]}, 0x1000, v{VO4[0]}", f"v_add_u32 v{VO4[3]}, 0x1000, v{VO4[1]}",
               f"v_add_u32 v{VXW}, s{W4K}, v{VL16}", f"v_xor_b32 v{VXW+1}, 0x4000, v{VXW}"]
    ntr = [0]
    def bar(wait=None, pre=None, post=None):
        if pre:
            A.e(f"s_cmp_eq_u32 s3, 4\ns_cbranch_scc1 {P}{pre}")
            A.lab(f"{P}{pre}_r")
        if wait is not None: A.e(f"s_waitcnt vmcnt({wait})")
        A.e("s_barrier")
        if post:
            A.e(f"s_cmp_eq_u32 s3, 4\ns_cbranch_scc1 {P}{post}")
            A.lab(f"{P}{post}_r")
        trace(A, 34 + ntr[0]); ntr[0] += 1
    tops = {
        E1N: lambda: bar(0, post="sig1"),
        N2: lambda: bar(vm.after("C3"), pre="poll1"),
        26: lambda: bar(vm.after("W")),
        39: lambda: bar(vm.after("C4")),
        N5: lambda: bar(0, post="sig2"),
        N6: lambda: bar(None, pre="poll2"),
        65: lambda: bar(vm.after("U8", "U9")),
    }
    def c1bar():
        A.e(f"""s_cmp_lt_u32 s3, 4
            s_cbranch_scc1 {P}c1
            s_waitcnt vmcnt({len(vm.q)})""")
        A.lab(f"{P}c1")
        A.e("s_barrier")
    if C1L: tops[6] = c1bar
    bnd = [0] + sorted(tops) + [73]
    lvl = {}
    for a_, b_ in zip(bnd, bnd[1:]):
        for n in range(a_, b_): lvl[n] = 3 - (PRL * (n - a_)) // (b_ - a_)
    pw = {}
    def step(n):
        par = n & 1
        S, Sn, Pc, Pp = SB[par], SB[1-par], PB[par], PB[1-par]
        q = []
        for tag, lines in bg[n]:
            if tag[0] in os.environ.get("DROP", "") or XP & 1: continue
            q += [(tag if x.startswith("buffer") else None, x) for x in lines]
        nfront = max(0, min(4, len(q) - 1))
        def B(slot):
            k = (1 if slot >= 4 - nfront else 0) if slot < 4 else len(q)
            for _ in range(k):
                tag, x = q.pop(0)
                if " lds" in x and A.l[-1].strip().startswith("s_add_u32 m0"): A.e("s_nop 0")
                A.e(x)
                if tag: vm.add(tag)
        oprev, lprev = to(max(n - 1, 0))
        for k_, n_ in ((1, N2), (2, N6)):
            if n == n_ - PRE:
                A.e(f"s_cmp_eq_u32 s3, 4\ns_cbranch_scc1 {P}pre{k_}")
                A.lab(f"{P}pre{k_}_r")
                pw[k_] = len(vm.q)
            if n == n_: pw[k_] = len(vm.q) - pw[k_]
        if n in tops and not (XP & 4): tops[n]()
        if PRL and (n == 0 or lvl[n] != lvl[n - 1]): A.e(f"s_setprio {lvl[n]}")
        k, j = seq[n + 1]
        if k == "B" and 2 <= j <= 7:
            A.e(f"s_cmp_eq_u32 s{I0}, {j}\ns_cbranch_scc1 {P}cm{j}")
            A.lab(f"{P}cm{j}_r")
        A.e(mfma32(Sn, KF, tq(n + 1), tc(n + 1)))
        A.e(rdK(*taddr(n + 2))[0]); B(0)
        for j in (0, 1, 2, 3): A.e(ex(S, j))
        if n > 0: A.e(mfma32(oprev, VF, Pp, "0" if n - 1 in (0, NB0) else oprev))
        A.e(rdV(*taddr(n))[0]); B(1)
        A.e(cv(Pc, S, 0)); A.e(cv(Pc, S, 1))
        for j in (4, 5, 6): A.e(ex(S, j))
        A.e(mfma32(Sn, KF + 4, tq(n + 1) + 4, Sn))
        A.e(rdK(*taddr(n + 2))[1]); B(2)
        A.e(ex(S, 7)); A.e(cv(Pc, S, 2)); A.e(ex(S, 8)); A.e(cv(Pc, S, 3))
        if n > 0: A.e(mfma32(oprev, VF + 4, Pp + 4, oprev))
        A.e(rdV(*taddr(n))[1]); B(3)
        A.e(ex(S, 9)); A.e(ex(S, 10)); A.e(cv(Pc, S, 4))
        if not XP & 2:
            for x in bv[n]: A.e(x)
        A.e(ex(S, 11)); A.e(ex(S, 12)); A.e(cv(Pc, S, 5)); A.e(ex(S, 13)); A.e(ex(S, 14)); A.e(ex(S, 15))
        if n > 0: A.e(smf(lprev, Pp))
        B(4)
        A.e("s_waitcnt lgkmcnt(0)")
        A.e(cv(Pc, S, 6)); A.e(cv(Pc, S, 7))
    def finalize(tag, which, o, l, tmp, early=()):
        A.e(f"s_mov_b32 s63, 0")
        A.lab(f"{P}norm{tag}")
        early = list(early)
        for x in early[:12]: A.e(x)
        A.e(f"""v_add_f32 v{T0}, v{l}, v{l+1}
            v_rcp_f32 v{tmp}, v{T0}""")
        if which == 0:
            A.e(f"""s_waitcnt vmcnt({vm.after('G')})
                v_sub_f32 v{tmp+1}, 1.0, v{VG}
                v_mul_f32 v{tmp}, v{tmp}, v{tmp+1}""")
        else:
            A.e(f"s_nop 0\nv_mul_f32 v{tmp}, v{tmp}, v{VG}")
        for i in range(8): A.e(f"v_pk_mul_f32 {v(o+2*i,2)}, {v(o+2*i,2)}, {v(tmp,2)} op_sel_hi:[1,0]")
        A.e(f"v_pk_add_f32 {v(tmp+2,2)}, {v(o,2)}, {v(o+2,2)}")
        for i in range(2, 8): A.e(f"v_pk_add_f32 {v(tmp+2,2)}, {v(tmp+2,2)}, {v(o+2*i,2)}")
        A.e(f"""v_sub_f32 v{tmp+2}, v{tmp+2}, v{tmp+2}
            v_fma_f32 v{tmp+2}, v{tmp+3}, v{tmp+2}, v{T0}
            v_cmp_le_f32 vcc, {f2u(2.0**-64)}, v{tmp+2}
            s_mov_b64 s[56:57], vcc
            v_cmp_ge_f32 vcc, {f2u(2.0**64)}, v{tmp+2}""")
        if early: A.e("s_waitcnt lgkmcnt(8)")
        for x in early[12:]: A.e(x)
        for i in range(8): A.e(f"v_cvt_pk_bf16_f32 v{tmp+i}, v{o+2*i}, v{o+2*i+1}")
        A.e(f"""s_and_b64 vcc, vcc, s[56:57]
            s_cmp_eq_u64 vcc, -1
            s_cselect_b32 s62, 1, s63
            s_cmp_eq_u32 s62, 0
            {"s_nop 0" if XP else f"s_cbranch_scc1 {P}slow{tag}"}
            buffer_store_dwordx4 {v(tmp,4)}, v{VOO}, {sr(WS)}, s{OSTB if which == 0 else OSTA} offen sc1
            buffer_store_dwordx4 {v(tmp+4,4)}, v{VOO}, {sr(WS)}, s{OSTB if which == 0 else OSTA} offen offset:512 sc1""")
        vm.add("S" + tag, 2)
    for n in range(73):
        step(n)
        if n == NB0 + 10 and not (XP & 8): finalize("B", 0, O2, L2, TB)
    A.e(mfma32(O, VF, PB[0], O))
    A.e("s_nop 0")
    A.e(mfma32(O, VF + 4, PB[0] + 4, O))
    A.e(smf(L, PB[0]))
    for h in range(8): A.e(f"s_sub_u32 s{OQ+h}, s{OQ+h}, 0x10000")
    A.e("s_setprio 0")
    st(A, "aend")
    if XP & 31: A.e(f"s_branch {P}end")
    AWO, OAC = 16, 64
    WFO = [32, 48]
    TA = SB[0]
    A.e(f"""v_lshrrev_b32 v20, 4, v0
        v_bfe_u32 v21, v0, 2, 2
        v_and_b32 v22, 1, v20
        v_lshl_add_u32 v22, v22, 2, v21
        v_lshrrev_b32 v23, 1, v20
        v_lshl_add_u32 v23, v23, 4, v22
        v_lshlrev_b32 v23, 7, v23
        v_and_b32 v20, 3, v0
        v_lshl_add_u32 v23, v20, 3, v23
        s_lshr_b32 s56, s3, 2
        s_lshl_b32 s56, s56, 12
        s_add_u32 s56, s56, {3*32768}
        v_add_u32 v23, s56, v23
        v_lshrrev_b32 v22, 1, v22""")
    for nb in range(4):
        A.e(f"v_xor_b32 v20, {nb}, v22\nv_lshl_add_u32 v{AWO+nb}, v20, 5, v23")
    assert CHO
    first = [f"ds_read_b64_tr_b16 {v(WFO[0]+8*nb+4*s_+2*jh,2)}, v{AWO+nb} offset:{s_*8192+jh*1024}" for nb in range(4) for s_ in range(2) for jh in range(2)]
    finalize("A", 1, O, L, TA)
    for x in first[:12] + ["s_waitcnt lgkmcnt(8)"] + first[12:]: A.e(x)
    st(A, "afin")

    def oreads(buf, i):
        return [f"ds_read_b64_tr_b16 {v(WFO[buf]+4*nb+2*jh,2)}, v{AWO+nb} offset:{i*8192+jh*1024}" for nb in range(4) for jh in range(2)]
    oidx = [i for i, t in enumerate(vm.q) if t == "O"] or [0] * 32
    def emit(x):
        for l_ in x[1]:
            if " lds" in l_ and A.l[-1].strip().startswith("s_add_u32 m0"): A.e("s_nop 0")
            A.e(l_)
        vm.add(x[0])
    def y1():
        st(A, "y1a")
        A.e("s_waitcnt vmcnt(0)\ns_barrier")
        st(A, "y1")
        A.e(f"""s_cmp_lg_u32 s3, 4
            s_cbranch_scc1 {P}y1""")
        signal(4, AN)
        A.lab(f"{P}y1")
    def ypre():
        A.e(f"""s_cmp_lg_u32 s3, 4
            s_cbranch_scc1 {P}yp
            v_and_b32 v20, 15, v0
            v_lshlrev_b32 v20, {FS}, v20
            s_lshl_b32 s56, s{RB2}, {FS+4}
            v_add_u32 v20, s56, v20""")
        poll_issue(20, 4)
        A.lab(f"{P}yp")
        pw[3] = len(vm.q)
    def ypoll():
        st(A, "y3a")
        A.e(f"""s_cmp_lg_u32 s3, 4
            s_cbranch_scc1 {P}pd3
            s_waitcnt vmcnt({len(vm.q) - pw[3]})""")
        poll("3", 20, 4, True, slp=SLP3)
    def ybar(*tags):
        if tags: A.e(f"s_waitcnt vmcnt({vm.after(*tags)})")
        A.e("s_barrier")
    pre = {j: [] for j in range(32)}
    obg = {j: [] for j in range(32)}
    pre[3].append(y1)
    pre[JP].append(ypoll)
    for j in sorted({7, 11, JP}):
        pre[j].append((lambda: ybar("U12", "U13")) if j == 11 else ybar)
    if DIAG: pre[JP].append(lambda: st(A, "y3"))
    pre[JV].append(lambda: ybar("U14", "U15"))
    if os.environ.get("DIAG") == "1": pre[16].append(lambda: st(A, "y4"))
    for k in range(8): obg[3 + k // 2].append(upiece(12 + k // 4, k & 3))
    nl = 0
    for j in range(JP, 32):
        c = 0
        while not (XP & 128) and nl < 32 and c < (LPS if j < 16 else 2) and (nl // 4 < j // 2 if CHO else nl // 2 < j):
            obg[j].append((f"OA{nl}", oload(nl, 0)[1])); nl += 1; c += 1
    for k in range(4): obg[7 + k].append(upiece(14, k))
    for k in range(4): obg[JU + k].append(upiece(15, k))
    def wrd(J, nb):
        return [f"ds_read_b64_tr_b16 {v(WFO[0]+8*nb+4*s_+2*jh,2)}, v{AWO+nb} offset:{(2*(J&1)+s_)*8192+jh*1024}" for s_ in range(2) for jh in range(2)]
    def wadv(J, nb):
        u = 8 + J // 2
        return f"v_add_u32 v{AWO+nb}, {((u % 5 - (u-1) % 5) * 32768) & 0xffffffff}, v{AWO+nb}"
    if CHO:
      for J in range(16):
        groups = [0, 1, 2, 3]
        for g, nb in enumerate(groups):
            j = 2 * J + (g >> 1)
            if g == 0:
                w = min(60, len(vm.q) - 1 - oidx[7]) if J == 0 else vm.after(f"OA{4*(J-8)+3}") if J >= 8 else None
                A.e("s_waitcnt lgkmcnt(4)" + ("" if w is None else f" vmcnt({w})"))
            if g == 2: A.e("s_waitcnt lgkmcnt(4)" if J < 15 else "s_waitcnt lgkmcnt(0)")
            if g in (0, 2):
                if j == JP - PRE: ypre()
                b = list(obg[j])
            Jn, nn = (J, 3) if g == 0 else (J + 1, g - 1)
            rd = wrd(Jn, nn) if Jn < 16 and not (J == 0 and g == 0) else []
            if rd and Jn % 2 == 0: A.e(wadv(Jn, nn))
            fo = (0, 1) if nb % 2 == 0 else (1, 0)
            k = 0
            for f in fo:
                for s_ in ((0, 1) if k == 0 else (1, 0)):
                    d = OAC + 4 * (f * 4 + nb)
                    A.e(mfma16(d, WFO[0] + 8*nb + 4*s_, OFR + 16*(J & 7) + 8*s_ + 4*f, "0" if (J == 0 and k % 2 == 0) else d))
                    if k == 0 and g in (1, 3):
                        for fn in pre[j]: fn()
                    if rd: A.e(rd[k])
                    if k % 2 == 1 and b and (g in (1, 3) or not pre[j]): emit(b.pop(0))
                    k += 1
            if g in (1, 3):
                while b: emit(b.pop(0))
      A.e("s_nop 1")
    else:
      for j in range(32):
          u, i = 8 + j // 4, j & 3
          q, buf = u & 3, i & 1
          order = [(nb, f if nb % 2 == 0 else 1 - f) for nb in range(4) for f in range(2)]
          if j == 31: order = [(nb, 1) for nb in range(4)] + [(3 - nb, 0) for nb in range(4)]
          ms = [mfma16(OAC + 4*(f*4+nb), WFO[buf]+4*nb, OFR+32*q+8*i+4*f, "0" if j == 0 else OAC + 4*(f*4+nb)) for nb, f in order]
          w = min(60, len(vm.q) - 1 - oidx[7]) if j == 0 else vm.after(f"OA{2*(j-16)+1}") if j >= 16 else None
          lg = 0 if ((pre[j] and not MID) or j == 31) else 4
          A.e(f"s_waitcnt lgkmcnt({lg})" if w is None else f"s_waitcnt lgkmcnt({lg}) vmcnt({w})")
          if i == 3 and u < 15:
              dl = ((u+1) % 5 - u % 5) * 32768
              for nb in range(4): A.e(f"v_add_u32 v{AWO+nb}, {dl & 0xffffffff}, v{AWO+nb}")
          if j == JP - PRE: ypre()
          if not MID:
              for f in pre[j]: f()
          rd = oreads(1 - buf, (i + 1) & 3) if j < 31 else []
          b = list(obg[j])
          for k in range(8):
              if k == 4 and lg: A.e("s_waitcnt lgkmcnt(4)")
              A.e(ms[k])
              if k == 4 and MID:
                  for f in pre[j]: f()
              if rd: A.e(rd[k])
              if k % 2 == 1 and b and (k > 4 or not pre[j] or not MID): emit(b.pop(0))
          while b: emit(b.pop(0))
    st(A, "oend")
    if XP & 256: A.e(f"s_branch {P}end")
    srd(A, SX_, "s22", "s23", 4 * MB)
    for nb in range(4): A.e(f"ds_write_b128 v{VXW}, {v(OAC+16+4*nb,4)} offset:{32768+1024*nb}")
    A.e("s_waitcnt lgkmcnt(0)\ns_barrier")
    for nb in range(4): A.e(f"ds_read_b128 {v(32+4*nb,4)}, v{VXW+1} offset:{32768+1024*nb}")
    for a in range(2):
        A.e(f"s_waitcnt lgkmcnt({2 - 2*a})")
        for i in range(4): A.e(f"v_pk_add_f32 {v(OAC+8*a+2*i,2)}, {v(OAC+8*a+2*i,2)}, {v(32+8*a+2*i,2)}")
        for i in range(4): A.e(f"v_cvt_pk_bf16_f32 v{48+4*a+i}, v{OAC+8*a+2*i}, v{OAC+8*a+2*i+1}")
        A.e(f"""s_nop 0
            v_permlane16_swap_b32 v{48+4*a}, v{48+4*a+2}
            v_permlane16_swap_b32 v{48+4*a+1}, v{48+4*a+3}
            buffer_store_dwordx4 {v(48+4*a,4)}, v{VXO}, {sr(SX_)}, s{OUTS} offen offset:{64*a} {OFL}""")
    A.lab(f"{P}end")
    if E('HT', 0):
        A.e(f"""s_waitcnt vmcnt(0)
            s_memrealtime s[72:73]
            s_memtime s[76:77]
            s_waitcnt lgkmcnt(0)
            s_cmp_lg_u32 s3, 4
            s_cbranch_scc1 {P}end2
            s_mov_b64 exec, 1
            v_mov_b32 v0, 0
            s_not_b32 s56, s70
            v_mov_b32 v1, s56
            v_mov_b32 v2, s70
            v_mov_b32 v3, s72
            s_sub_u32 s76, s76, s74
            v_mov_b32 v4, s76
            buffer_atomic_umax v1, v0, {sr(DBG)}, 0 offen offset:8 sc1
            buffer_atomic_umax v2, v0, {sr(DBG)}, 0 offen offset:12 sc1
            buffer_atomic_umax v3, v0, {sr(DBG)}, 0 offen offset:16 sc1
            buffer_atomic_umax v4, v0, {sr(DBG)}, 0 offen offset:20 sc1""")
    stamp_flush(A, 0)
    trace_flush(A)
    A.lab(f"{P}end2")
    A.e("s_endpgm")

    AX, AW, VKO = 16, 18, VG
    XF, WF = [32, 48], 64
    ACC = 128
    A.lab(f"{P}compute")
    A.e(f"""v_and_b32 v8, 15, v0
        v_lshrrev_b32 v9, 4, v0
        v_bfe_u32 v10, v0, 1, 3
        s_and_b32 s56, s3, 1
        s_lshl_b32 s56, s56, 13
        v_xor_b32 v11, v9, v10
        v_lshlrev_b32 v11, 4, v11
        v_lshl_add_u32 v11, v8, 7, v11
        v_add_u32 v{AX}, s56, v11
        v_xor_b32 v{AX+1}, 64, v{AX}
        v_bfe_u32 v12, v0, 2, 2
        v_and_b32 v13, 3, v0
        v_lshl_add_u32 v14, v9, 3, v12
        v_lshlrev_b32 v14, 7, v14
        v_lshl_add_u32 v14, v13, 3, v14
        v_bfe_u32 v15, v0, 3, 2
        s_and_b32 s56, s3, 2
        v_xor_b32 v15, s56, v15
        v_lshl_add_u32 v14, v15, 5, v14
        v_add_u32 v{AW}, {XSZ}, v14
        v_xor_b32 v{AW+1}, 32, v{AW}
        v_and_b32 v8, 0x33, v0
        v_bfe_u32 v9, v0, 2, 1
        v_bfe_u32 v10, v0, 3, 1
        v_lshl_or_b32 v8, v9, 3, v8
        v_lshl_or_b32 v8, v10, 2, v8
        v_lshlrev_b32 v20, 4, v8
        s_waitcnt lgkmcnt(0)""")
    srds()
    A.e(f"""v_mov_b32 v21, 0
        s_or_b32 s56, s2, s3
        s_cmp_lg_u32 s56, 0
        s_cbranch_scc1 {P}ntag
        s_memrealtime s[56:57]
        s_waitcnt lgkmcnt(0)
        s_mul_i32 s57, s57, 0x9e3779b1
        s_xor_b32 s56, s56, s57
        s_or_b32 s56, s56, 1
        v_mov_b32 v22, s56
        buffer_store_dword v22, v21, {sr(DBG)}, 0 offen sc1""")
    A.lab(f"{P}ntag")
    if PFC:
        A.e("s_getpc_b64 s[58:59]")
        A.lab(f"{P}pcref")
        A.e(f"""s_sub_u32 s58, s58, {P}pcref-{name}
            s_subb_u32 s59, s59, 0
            s_lshl_b32 s56, s3, 5
            s_add_u32 s56, s56, s{IDXS}
            s_lshl_b32 s56, s56, 10
            v_add_u32 v28, s56, v{VL16}
            v_min_u32 v28, {P}last-{name}-16, v28
            s_cmp_ge_u32 s56, {P}last-{name}
            s_cbranch_scc1 {P}npc
            global_load_dwordx4 v[96:99], v28, s[58:59]""")
        A.lab(f"{P}npc")
    zero(24, 4)
    for nm, fn in (("s", setup_s), ("v", setup_v)):
        A.lab(f"{P}set{nm}")
        fn()
        A.e(f"""s_cmp_ge_u32 s3, 4
            s_cbranch_scc1 {P}set{nm}_r""")
        if nm == "s":
            for i in range(8): A.e(mfma32(ACC + 16*i, 24, 24, "0"))
    A.e(f"""v_mov_b32 v{VKO}, v20
        s_mov_b32 s58, 0
        s_mov_b32 s59, 0
        s_mov_b32 s60, {(-ST) & 0xffffffff}
        s_mov_b32 s61, {2*ST}
        s_mov_b32 s63, {f2u(CSCALE)}
        s_and_b32 s57, s{HEAD}, 24
        s_add_u32 s92, s{HEAD}, {4*GROT}
        s_and_b32 s92, s92, 7
        s_or_b32 s92, s92, s57
        s_lshl_b32 s92, s92, 6
        s_add_u32 s92, s92, s{RT}
        s_lshl_b32 s92, s92, 12
        s_add_u32 s92, s92, {KVB_OFF}
        s_add_u32 s93, s92, 4096
        s_add_u32 s96, s{HEAD}, {6*GROT}
        s_and_b32 s96, s96, 7
        s_or_b32 s96, s96, s57
        s_lshl_b32 s96, s96, 6
        s_add_u32 s96, s96, s{RT}
        s_lshl_b32 s96, s96, 12
        s_add_u32 s96, s96, {KVB_OFF}
        s_add_u32 s97, s96, 4096
        s_nop 0""")
    def rx(buf, ks, mb): return f"ds_read_b128 {v(XF[buf]+4*mb,4)}, v{AX+ks} offset:{mb*2048}"
    def rw(nb, ks, jh): return f"ds_read_b64_tr_b16 {v(WF+4*nb+2*jh,2)}, v{AW+(nb&1)} offset:{(nb>>1)*8192+ks*4096+jh*512}"
    st(A, "setup")
    A.e("s_barrier")
    st(A, "g0")
    XR, WR_ = 32, 64
    def gx(mb): return [f"ds_read_b128 {v(XR+8*mb+4*ks,4)}, v{AX+ks} offset:{mb*2048}" for ks in range(2)]
    def gw(D): return [f"ds_read_b64_tr_b16 {v(WR_+16*(D&1)+8*n2+4*ks+2*jh,2)}, v{AW+n2} offset:{D*8192+ks*4096+jh*512}" for n2 in range(2) for ks in range(2) for jh in range(2)]
    acc = lambda mb, nb: ACC + 4 * (nb * 4 + mb)
    def gm(D, chain=True):
        o = []
        for mb in range(4):
            for c in range(2):
                for e_ in range(2):
                    n2, ks = (c ^ (mb & 1), e_ ^ c) if chain else (e_, c)
                    d = acc(mb, 2*D + n2)
                    x, w = XR + 8*mb + 4*ks, WR_ + 16*(D&1) + 8*n2 + 4*ks
                    o.append(mfma16(d, x, w, d) if D == 3 else mfma16(d, w, x, d))
        return o
    def gtile(last, fill=None):
        for D in range(4):
            post = {k: [] for k in range(16)}
            rd = (gx(3) + gw(1)) if D == 0 else gw(D + 1) if D < 3 else [] if last else gw(0) + gx(0) + gx(1) + gx(2)
            for k, r in enumerate(rd): post[k].append(r)
            if D == 0:
                post[3].append("s_waitcnt lgkmcnt(4)"); post[11].append("s_waitcnt lgkmcnt(4)")
                if not last: post[12] += ["s_cmp_eq_u32 s58, 0", "s_cselect_b32 s62, s61, s60"]
            if D == 1 and not last:
                post[8] += [f"v_add_u32 v{AX}, s62, v{AX}", f"v_add_u32 v{AX+1}, s62, v{AX+1}"]
                post[9] += ["s_add_u32 s58, s58, s62", "s_add_u32 s59, s59, 1"]
                post[10].append("s_cmp_lg_u32 s59, 15")
            if D == 2 and not last:
                post[8] += [f"v_add_u32 v{AW}, s62, v{AW}", f"v_add_u32 v{AW+1}, s62, v{AW+1}"]
                post[GB2] += ["s_waitcnt lgkmcnt(0)", "s_barrier"]
            elif D < 3: post[14].append("s_waitcnt lgkmcnt(0)")
            elif not last: post[14].append("s_waitcnt lgkmcnt(4)")
            for k, m in enumerate(gm(D, not (last and D > 0 and LCH == 0))):
                A.e(m)
                for x_ in post[k]: A.e(x_)
                if last and 16 * D + k == 31: st(A, "x2")
                if last and 16 * D + k == HB:
                    st(A, "x3")
                    A.e("s_waitcnt lgkmcnt(0)\ns_barrier")
                if fill:
                    n_ = 2 - len(post[k])
                    while n_ > 0 and fill and fill[0][0] <= 16 * D + k:
                        x_ = fill.pop(0)[1]
                        A.e(x_); n_ -= 2 if ("permlane" in x_ or "ds_write" in x_) else 1
    for r in gw(0) + gx(0) + gx(1) + gx(2): A.e(r)
    A.e("s_waitcnt lgkmcnt(4)")
    A.raw(".p2align 6")
    A.lab(f"{P}g1")
    gtile(False)
    A.e(f"s_cbranch_scc1 {P}g1")
    st(A, "x1")
    T = 21
    def blk(rtl, g, tr=False):
        return [[acc(2*rtl+a, 2*g+b) for b in range(2)] for a in range(2)] if tr else [[acc(2*rtl+b, 2*g+a) for b in range(2)] for a in range(2)]
    fill = [(10, "s_waitcnt vmcnt(0)"), (10, f"s_add_u32 s56, s{W4K}, {MISC}"), (11, "s_mov_b32 s62, s63"), (12, f"v_add_u32 v{T0}, s56, v{VL16}")]
    fill += [(13, x) for x in pack_list(QA, blk(0, 0), False)]
    fill += [(20, x) for x in pack_list(96, blk(1, 0), False) + [f"ds_write_b128 v{T0}, {v(96,4)}", f"ds_write_b128 v{T0}, {v(100,4)} offset:1024"]]
    fill += [(36, x) for x in pack_list(104, blk(1, 1), False) + [f"ds_write_b128 v{T0}, {v(104,4)} offset:2048", f"ds_write_b128 v{T0}, {v(108,4)} offset:3072"]]
    qb0 = pack_list(QB, blk(0, 1), False)
    fill += [(40, x) for x in qb0]
    for rtl in range(2):
        tk = 64 + 8 * rtl
        so = "s92" if rtl == 0 else "s93"
        fill += [(52, x) for x in pack_list(tk, blk(rtl, 2), 2 if (rtl == 0 and not PKM) else 1) +
                 [f"buffer_store_dwordx4 {v(tk,4)}, v{VKO}, {sr(WS)}, {so} offen sc1", f"buffer_store_dwordx4 {v(tk+4,4)}, v{VKO}, {sr(WS)}, {so} offen offset:1024 sc1"]]
    gtile(True, fill)
    st(A, "gend")
    assert len(fill) >= 8
    while fill: A.e(fill.pop(0)[1])
    for rtl in range(2):
        tv = ACC + 8 * rtl
        pack(tv, blk(rtl, 3, True), False)
        so = "s96" if rtl == 0 else "s97"
        A.e(f"""buffer_store_dwordx4 {v(tv,4)}, v{VL16}, {sr(WS)}, {so} offen offset:2048 sc1
            buffer_store_dwordx4 {v(tv+4,4)}, v{VL16}, {sr(WS)}, {so} offen offset:3072 sc1""")
    A.e(f"s_branch {P}attn")

    if XP & 4:
        for l in ("sig1", "sig2", "poll1", "poll2"): A.lab(f"{P}{l}_r")
    if XP & 8: A.lab(f"{P}normB")
    for ph in (1, 2):
        A.lab(f"{P}sig{ph}")
        signal(ph + 1, TZ + 1)
        A.e(f"s_branch {P}sig{ph}_r")
    A.lab(f"{P}pre1")
    A.e(f"""v_lshrrev_b32 v{TZ+1}, 4, v0
        v_min_u32 v{TZ+1}, 2, v{TZ+1}
        v_sub_u32 v{TZ+1}, s{RB}, v{TZ+1}
        v_max_i32 v{TZ+1}, 0, v{TZ+1}
        v_lshlrev_b32 v{TZ+1}, 4, v{TZ+1}
        v_and_or_b32 v{TZ+1}, v0, 15, v{TZ+1}
        v_lshlrev_b32 v{TZ+1}, {FS}, v{TZ+1}""")
    poll_issue(TZ + 1, 2)
    A.e(f"s_branch {P}pre1_r")
    A.lab(f"{P}poll1")
    A.e(f"s_waitcnt vmcnt({pw[1]})")
    poll("1", TZ + 1, 2, True)
    A.e(f"s_branch {P}poll1_r")
    A.lab(f"{P}pre2")
    A.e(f"""v_and_b32 v{TZ+1}, 15, v0
        v_lshlrev_b32 v{TZ+1}, {FS}, v{TZ+1}
        s_lshl_b32 s56, s{RB2}, {FS+4}
        v_add_u32 v{TZ+1}, s56, v{TZ+1}""")
    poll_issue(TZ + 1, 3)
    A.e(f"s_branch {P}pre2_r")
    A.lab(f"{P}poll2")
    A.e(f"s_waitcnt vmcnt({pw[2]})")
    poll("2", TZ + 1, 3, True)
    A.e(f"s_branch {P}poll2_r")
    for j in range(2, 8):
        A.lab(f"{P}cm{j}")
        zero(CM, 16)
        A.e(f"s_nop 0\ns_branch {P}cm{j}_r")

    def slow(tag, q, o, l, kf, vf, S, C, Pp, M, setup):
        A.lab(f"{P}slow{tag}")
        A.e("s_waitcnt vmcnt(0) lgkmcnt(0)")
        A.e(setup)
        zero(o, 16); zero(l, 4)
        A.e(f"""v_mov_b32 v{M}, {NEG}
            s_mov_b32 s99, 0""")
        A.lab(f"{P}spass{tag}")
        A.e("s_mov_b32 s100, s98")
        A.lab(f"{P}stile{tag}")
        A.e(f"""s_lshl_b32 s56, s100, 12
            s_add_u32 s56, s56, s101
            buffer_load_dwordx4 {v(kf,4)}, v{VL16}, {sr(WS)}, s56 offen sc1
            buffer_load_dwordx4 {v(kf+4,4)}, v{VL16}, {sr(WS)}, s56 offen offset:1024 sc1
            buffer_load_dwordx4 {v(vf,4)}, v{VL16}, {sr(WS)}, s56 offen offset:2048 sc1
            buffer_load_dwordx4 {v(vf+4,4)}, v{VL16}, {sr(WS)}, s56 offen offset:3072 sc1
            s_cmp_eq_u32 s100, s96
            s_cselect_b32 s56, {NEG}, 0
            s_cmp_eq_u32 s100, s97
            s_cselect_b32 s57, {NEG}, 0
            v_mov_b32 v{M+2}, s56
            v_mov_b32 v{M+3}, s57""")
        for r in range(16):
            A.e(f"""v_cmp_le_i32 vcc, {keyl(r)}, v{VD}
                s_nop 1
                v_cndmask_b32 v{C+r}, v{M+2}, v{M+3}, vcc""")
        A.e("s_waitcnt vmcnt(0)\ns_nop 0")
        A.e(mfma32(S, kf, q, C))
        A.e(mfma32(S, kf + 4, q + 4, S))
        A.e(f"""s_nop 7
            s_nop 7
            s_cmp_eq_u32 s99, 0
            s_cbranch_scc0 {P}sp2{tag}""")
        for r in range(16): A.e(f"v_max_f32 v{M}, v{M}, v{S+r}")
        A.e(f"s_branch {P}snext{tag}")
        A.lab(f"{P}sp2{tag}")
        for r in range(16): A.e(f"v_sub_f32 v{S+r}, v{S+r}, v{M}")
        for r in range(16): A.e(ex(S, r))
        A.e("s_nop 0")
        for i in range(8): A.e(cv(Pp, S, i))
        A.e("s_nop 1")
        A.e(mfma32(o, vf, Pp, o))
        A.e(mfma32(o, vf + 4, Pp + 4, o))
        A.e(smf(l, Pp))
        A.e("s_nop 7\ns_nop 7")
        A.lab(f"{P}snext{tag}")
        A.e(f"""s_add_u32 s100, s100, 1
            s_cmp_le_u32 s100, s95
            s_cbranch_scc1 {P}stile{tag}
            s_cmp_eq_u32 s99, 0
            s_cbranch_scc0 {P}sdone{tag}
            v_mov_b32 v{M+1}, v{M}
            s_nop 1
            v_permlane32_swap_b32 v{M}, v{M+1}
            s_nop 1
            v_max_f32 v{M}, v{M}, v{M+1}
            s_mov_b32 s99, 1
            s_branch {P}spass{tag}""")
        A.lab(f"{P}sdone{tag}")
        A.e(f"""s_mov_b32 s63, 1
            s_branch {P}norm{tag}""")
    slow("B", QB, O2, L2, 196, 204, 212, 228, 244, 148,
         f"""s_lshl_b32 s101, s{HEADB}, 18
            s_add_u32 s101, s101, {KVB_OFF}
            s_sub_i32 s97, s{RT}, 8
            s_max_i32 s98, s97, 0
            s_mov_b32 s95, s{RT}
            s_mov_b32 s96, s{RT}""")
    slow("A", QA, O, L, KF, VF, SB[0], SB[1], PB[0], ML + 8,
         f"""s_mov_b32 s101, {KVA_OFF}
            s_mov_b32 s98, 0
            s_mov_b32 s95, 63
            s_mov_b32 s96, -1
            s_mov_b32 s97, -1""")
    A.raw(".p2align 4")
    A.lab(f"{P}last")
    A.e("s_endpgm")
    return kernel_desc(name, 256, 102)

DOC = """;
"""
if __name__ == "__main__":
    ref = open(f"cdna_kernels/{NAME}.s.ref").read().split("\n")
    hdr = [l for l in ref if l.startswith(";") and "@launch" not in l]
    A = Asm()
    d = gen(A, NAME + "_kernel")
    out = "\n".join(hdr) + "\n" + f"; @launch grid=(256,1,1) block=(512,1,1) lds={LDS}\n"
    out += DOC
    out += '.amdgcn_target "amdgcn-amd-amdhsa--gfx950"\n.text\n' + A.text() + '.section .rodata,"a"\n' + d
    path = sys.argv[1] if len(sys.argv) > 1 else f"cdna_kernels/{NAME}.s"
    open(path, "w").write(out)
    print("wrote", path, len(out))
```
